```python
import torch

def _softmax(x, axis=-1):
    return torch.softmax(x, dim=axis)
def _gelu(x):
    return torch.nn.functional.gelu(x, approximate="tanh")
def _silu(x):
    return torch.nn.functional.silu(x)
def _sigmoid(x):
    return torch.sigmoid(x)
def _layernorm(x, axis=-1, eps=1e-5):
    m = x.mean(dim=axis, keepdim=True)
    v = x.var(dim=axis, keepdim=True, unbiased=False)
    return (x - m) / torch.sqrt(v + eps)
def _scatter_add(tgt, idx, src, axis=0):
    return tgt.clone().index_add_(axis, idx, src)
def _segment_sum(src, seg, n):
    out = torch.zeros((n,) + src.shape[1:], dtype=src.dtype)
    return out.index_add_(0, seg, src)
def _pad(x, pw):
    flat = tuple(v for pair in reversed(pw) for v in pair)
    return torch.nn.functional.pad(x, flat)

kernel_name = 'recurrent_scan__spectral_gfnet__dense_activation_gelu__prompt'

def setup_inputs():

    _w = (lambda a: (lambda t: t.to(torch.bfloat16) if t.is_floating_point() else t)(torch.as_tensor(a)))
    def _A_setup():
        B, S, D = 1, 2048, 640
        Df = D // 2 + 1
        return {
            "x": _w((lambda *s: torch.randn(*s, dtype=torch.bfloat16) * 0.05)(B, S, D)),
            "w_r": _w((lambda *s: torch.randn(*s, dtype=torch.bfloat16) * 3.2)(S, Df) * 0.02),
            "w_i": _w((lambda *s: torch.randn(*s, dtype=torch.bfloat16) * 3.2)(S, Df) * 0.02),
        }
    _A_in = _A_setup()

    def _B_setup():
        B, S, D, F = 1, 2048, 640, 1728
        return {
            "x": _w((lambda *s: torch.randn(*s, dtype=torch.bfloat16) * 0.05)(B, S, D)),
            "w1": _w((lambda *s: torch.randn(*s, dtype=torch.bfloat16) * 3.2)(D, F) * (D ** -0.5)),
            "b1": _w((lambda *s: torch.randn(*s, dtype=torch.bfloat16) * 3.2)(F) * 0.01),
            "w2": _w((lambda *s: torch.randn(*s, dtype=torch.bfloat16) * 0.4)(F, D) * (F ** -0.5)),
            "b2": _w((lambda *s: torch.randn(*s, dtype=torch.bfloat16) * 0.4)(D) * 0.01),
        }
    _B_in = _B_setup()

    return {
        "A_x": _A_in["x"],
        "A_w_r": _A_in["w_r"],
        "A_w_i": _A_in["w_i"],
        "B_x": _B_in["x"],
        "B_w1": _B_in["w1"],
        "B_b1": _B_in["b1"],
        "B_w2": _B_in["w2"],
        "B_b2": _B_in["b2"],
    }

def reference(A_x, A_w_r, A_w_i, B_x, B_w1, B_b1, B_w2, B_b2):
    def _A_ref(x, w_r, w_i):
        B, S, D = x.shape
        X = (lambda x, axes=(-2,-1): torch.fft.rfft2(x.float(), dim=axes))(x, axes=(-2, -1))
        W = w_r + 1j * w_i
        X = X * W
        y = (lambda x, s, axes=(-2,-1): torch.fft.irfft2(x, s=s, dim=axes).to(torch.bfloat16))(X, (S, D), axes=(-2, -1))
        return y

    def _B_ref(x, w1, b1, w2, b2):
        h = torch.einsum("bsd,df->bsf", x, w1) + b1
        h = _gelu(h)
        return torch.einsum("bsf,fd->bsd", h, w2) + b2

    x = A_x
    xn = _layernorm(x, axis=-1)
    s = _A_ref(xn, A_w_r, A_w_i)
    g = _silu(_B_ref(xn, B_w1, B_b1, B_w2, B_b2))
    return x + s * g
```

```python
import re, struct

def f2u(x):
    return struct.unpack('<I', struct.pack('<f', x))[0]
def fl(x):
    return f"0x{f2u(x):08x}"

TRANS = ('v_exp_f32','v_log_f32','v_rcp_f32','v_rsq_f32','v_sqrt_f32','v_sin_f32','v_cos_f32')
_rng = re.compile(r'^-?(?:abs\()?([vsa])\[(\d+):(\d+)\]\)?$')
_one = re.compile(r'^-?(?:abs\()?\|?([vsa])(\d+)\|?\)?$')
def regs(op):
    op = op.strip()
    m = _rng.match(op)
    if m: return {(m.group(1), i) for i in range(int(m.group(2)), int(m.group(3))+1)}
    m = _one.match(op)
    if m: return {(m.group(1), int(m.group(2)))}
    if op == 'vcc': return {('s',106),('s',107)}
    if op == 'm0': return {('s',124)}
    if op == 'exec': return {('s',126),('s',127)}
    return set()

class Ins:
    def __init__(self, text):
        self.text = text
        t = text.split(';')[0].strip()
        self.label = t.endswith(':')
        self.op = ''
        self.w = set(); self.r = set()
        self.kind = 'other'
        if not t or self.label or t.startswith('.'):
            self.kind = 'meta'; return
        parts = t.split(None, 1)
        self.op = op = parts[0]
        rest = parts[1] if len(parts) > 1 else ''
        ops = []; cur = ''; depth = 0
        for ch in rest:
            if ch in '[(': depth += 1
            if ch in '])': depth -= 1
            if ch == ',' and depth == 0: ops.append(cur); cur = ''
            else: cur += ch
        if cur: ops.append(cur)
        mods = ''
        if ops:
            last = ops[-1].strip().split(None, 1)
            ops[-1] = last[0]
            mods = last[1] if len(last) > 1 else ''
        self.mods = mods
        R = [regs(o) for o in ops]
        U = lambda l: set().union(*l) if l else set()
        if op.startswith('v_mfma'):
            self.kind = 'mfma'; self.w = R[0]; self.A = R[1]; self.B = R[2]; self.C = R[3]; self.r = U(R[1:])
            self.passes = 8 if '32x32x16' in op else (4 if '16x16x32' in op else 2)
        elif op.startswith('v_'):
            self.kind = 'valu'
            self.w = R[0]; self.r = U(R[1:])
            if op.startswith(('v_add_co','v_sub_co','v_addc_co','v_subb_co')):
                self.w = R[0] | R[1]; self.r = U(R[2:])
            if op.startswith(('v_fmac','v_dot2c','v_pk_fmac')): self.r |= R[0]
            if op.startswith('v_permlane'): self.w = R[0]|R[1]; self.r = R[0]|R[1]
            if 'dpp' in op: self.r |= R[0]
            self.trans = op.replace('_e32','').replace('_e64','') in TRANS
            self.dot = op.startswith('v_dot')
            self.dpp = 'dpp' in op
            self.perm = op.startswith('v_permlane')
            self.rdlane = op.startswith(('v_readfirstlane','v_readlane'))
        elif op.startswith(('ds_read','ds_bpermute','ds_permute','ds_swizzle')):
            self.kind = 'mem'; self.w = R[0]; self.r = U(R[1:])
        elif op.startswith('ds_'):
            self.kind = 'mem'; self.r = U(R)
        elif op.startswith(('buffer_load','global_load')):
            self.kind = 'mem'; self.vmem = True
            if ' lds' in (' ' + mods):
                self.r = U(R) | {('s',124)}; self.ldsdma = True
            else:
                self.w = R[0]; self.r = U(R[1:])
                if 'd16' in op: self.r |= R[0]
        elif op.startswith(('buffer_store','global_store','buffer_atomic','global_atomic')):
            self.kind = 'mem'; self.vmem = True; self.r = U(R)
            if op.endswith(('x3','x4')): self.widedata = R[0] if op.startswith('buffer') else R[1]
            if 'atomic' in op and 'sc0' in mods: self.w = R[0]
        elif op.startswith('s_'):
            self.kind = 'salu'
            if op.startswith(('s_cmp','s_cbranch','s_branch','s_waitcnt','s_barrier','s_nop','s_endpgm','s_sleep','s_setprio')):
                self.r = U(R)
            else:
                self.w = R[0] if R else set(); self.r = U(R[1:])
                if 'saveexec' in op: self.w |= {('s',126),('s',127)}
        self.states = 1
        if op == 's_nop': self.states = int(ops[0], 0) + 1

def need(p, c):
    n = 0
    isv = lambda s: {x for x in s if x[0] in 'va'}
    iss = lambda s: {x for x in s if x[0] == 's'}
    if p.kind == 'valu':
        pw = isv(p.w); ps = iss(p.w)
        if c.kind == 'mfma' and pw & c.r: n = max(n, 3 if p.dot else 2)
        if c.kind == 'valu':
            if p.trans and pw & c.r: n = max(n, 1)
            if c.rdlane and pw & c.r: n = max(n, 1)
            if (c.dpp or c.perm) and pw & c.r: n = max(n, 2)
            if ps & c.r: n = max(n, 4 if c.rdlane else 2)
            if p.dot and (pw & (c.r | c.w)):
                if c.op == p.op and not (pw & (c.r - c.w)): pass
                else: n = max(n, 3)
        if c.kind == 'mem':
            if getattr(c, 'vmem', False) and ps & c.r: n = max(n, 5)
            if p.dot and pw & c.r: n = max(n, 3)
            if p.trans and pw & c.r: n = max(n, 1)
        if c.kind == 'salu' and ps & c.r: n = max(n, 1)
    if p.kind == 'mfma':
        big = {2:5, 4:8, 8:12}[p.passes]
        if c.kind == 'mfma':
            if p.w & (c.A | c.B): n = max(n, big)
            if p.w & c.C:
                if c.C == p.w and c.op == p.op: n = max(n, 2 if p.passes == 2 else 0)
                else: n = max(n, big)
            elif p.w & c.w: n = max(n, big)
        elif c.kind in ('valu','mem'):
            if p.w & (c.r | c.w): n = max(n, big)
            if c.kind == 'valu' and p.C & c.w: n = max(n, {2:1,4:3,8:7}[p.passes])
    if p.kind == 'salu':
        if ('s',124) in p.w and getattr(c, 'ldsdma', False): n = max(n, 1)
    if p.kind == 'mem' and hasattr(p, 'widedata'):
        if p.widedata & c.w: n = max(n, 2 if c.kind in ('valu','mfma') else 1)
    return n

class Asm:
    def __init__(self):
        self.lines = []
    def __call__(self, *ss):
        for s in ss:
            for l in s.split('\n'):
                if l.strip(): self.lines.append(l.strip())
    def text(self):
        out = []; hist = []
        npad = 0
        for l in self.lines:
            c = Ins(l)
            if c.kind == 'meta':
                out.append(l); continue
            dist = 0; pad = 0
            for p in reversed(hist):
                n = need(p, c)
                if n - dist > pad: pad = n - dist
                dist += p.states
                if dist > 14: break
            if pad > 0:
                nop = Ins(f"s_nop {pad-1}")
                out.append("    " + nop.text); hist.append(nop); npad += 1
            out.append("    " + l); hist.append(c)
            if c.op in ('s_endpgm', 's_branch'): hist = []
            hist = hist[-20:]
        self.npad = npad
        return "\n".join(out) + "\n"

def interleave(main, fill, every=1, start=0):
    out = []; fi = 0
    for i, m in enumerate(main):
        out.append(m)
        if i >= start and (i - start) % every == every - 1 and fi < len(fill):
            out.append(fill[fi]); fi += 1
    out.extend(fill[fi:])
    return out

def spread(main, fill):
    out = []; n = len(main); k = len(fill); fi = 0
    for i, m in enumerate(main):
        out.append(m)
        tgt = (i + 1) * k // n
        while fi < tgt:
            out.append(fill[fi]); fi += 1
    out.extend(fill[fi:])
    return out
```

```python
import sys, math
from asmlib import *

NAME = "recurrent_scan__spectral_gfnet__dense_activation_gelu__prompt"
H_OFF, H_SZ = 0, 2048*1728*2
T_OFF, T_SZ = 0x800000, 32*11*64*128
U_OFF, U_SZ = 0xC00000, 32*11*64*128
G_OFF, G_SZ = 0x1000000, 2048*640*2
X_SZ = 2048*640*2
W1_SZ = 640*1728*2
WF_SZ = 2048*321*2

def vr(b, n): return f"v[{b}:{b+n-1}]"

def srd(A, d, base, size, off=0):
    if off:
        A(f"s_add_u32 s{d}, s{base}, 0x{off:x}", f"s_addc_u32 s{d+1}, s{base+1}, 0")
    else:
        A(f"s_mov_b32 s{d}, s{base}", f"s_mov_b32 s{d+1}, s{base+1}")
    A(f"s_mov_b32 s{d+2}, {size}", f"s_mov_b32 s{d+3}, 0x00020000")

GA = -2*0.7978845608028654*1.4426950408889634
GB = GA*0.044715
ONES = "0x3f803f80"

def row_stats(A, sx, sxx, t0, t1, mean, sq):
    A(f"v_mul_f32 v{mean}, {fl(1/640)}, v{sx}",
      f"v_mul_f32 v{t0}, {fl(1/640)}, v{sxx}",
      f"v_fma_f32 v{t0}, -v{mean}, v{mean}, v{t0}",
      f"v_max_f32 v{t0}, 0, v{t0}",
      f"v_cvt_pk_bf16_f32 v{t0}, v{t0}, v{t0}",
      f"v_lshlrev_b32 v{t0}, 16, v{t0}",
      f"v_add_f32 v{t0}, {fl(1e-5)}, v{t0}",
      f"v_cvt_pk_bf16_f32 v{t0}, v{t0}, v{t0}",
      f"v_lshlrev_b32 v{t0}, 16, v{t0}",
      f"v_sqrt_f32 v{sq}, v{t0}")

def k1(A):
    A("k1_kernel:")
    A("s_cmp_ge_u32 s2, 256", "s_cbranch_scc1 Lk1_end")
    A("s_load_dwordx2 s[4:5], s[0:1], 0", "s_load_dwordx4 s[6:9], s[0:1], 32"[:0] or "s_load_dwordx2 s[6:7], s[0:1], 32",
      "s_load_dwordx2 s[8:9], s[0:1], 40", "s_load_dwordx2 s[10:11], s[0:1], 80")
    A("v_lshrrev_b32 v1, 6, v0", "v_and_b32 v0, 63, v0", "v_readfirstlane_b32 s28, v1")
    A("s_and_b32 s31, s2, 7", "s_lshr_b32 s32, s2, 3")
    A("s_waitcnt lgkmcnt(0)")
    srd(A, 12, 4, X_SZ); srd(A, 16, 6, W1_SZ); srd(A, 20, 8, 1728*2); srd(A, 24, 10, H_SZ, H_OFF); srd(A, 36, 10, T_SZ, T_OFF)
    A("s_cmp_ge_u32 s32, 28", "s_cbranch_scc1 Lp1")
    A("s_lshr_b32 s29, s31, 1", "s_lshl_b32 s29, s29, 2", "s_and_b32 s33, s32, 3", "s_add_u32 s29, s29, s33")
    A("s_and_b32 s30, s31, 1", "s_mul_i32 s30, s30, 7", "s_lshr_b32 s33, s32, 2", "s_add_u32 s30, s30, s33")
    A("s_cmp_lt_u32 s28, 4", "s_cbranch_scc1 Lg1c")
    g1_loader(A)
    A("Lg1c:")
    g1_compute(A)
    A("Lp1:")
    p1(A)
    A("Lk1_end:", "s_endpgm")

NST, RING = 10, 5
def g1_loader(A):
    A("s_sub_u32 s33, s28, 4")
    A("v_lshrrev_b32 v1, 3, v0",
      "v_and_b32 v2, 7, v0",
      "v_lshrrev_b32 v3, 4, v0",
      "s_lshl_b32 s34, s29, 7", "s_lshl_b32 s35, s33, 5", "s_add_u32 s34, s34, s35",
      "v_add_u32 v1, s34, v1",
      "s_movk_i32 s35, 1280",
      "v_mul_lo_u32 v1, v1, s35",
      "v_xor_b32 v8, v2, v3",
      "v_xor_b32 v9, 4, v8",
      "v_lshl_add_u32 v4, v8, 4, v1",
      "v_lshl_add_u32 v5, v9, 4, v1",
      "v_add_u32 v5, 10240, v5",
      "v_add_u32 v6, 20480, v4",
      "v_add_u32 v7, 20480, v5")
    A("v_and_b32 v2, 15, v0", "v_lshlrev_b32 v8, 2, v3", "v_xor_b32 v2, v2, v8",
      "s_lshl_b32 s34, s33, 4", "v_add_u32 v8, s34, v3", "s_movk_i32 s35, 3456", "v_mul_lo_u32 v8, v8, s35",
      "s_lshl_b32 s34, s30, 8", "v_lshl_add_u32 v10, v2, 4, v8", "v_add_u32 v10, s34, v10")
    A("s_cmp_eq_u32 s30, 13", "s_cselect_b32 s34, 8, 16",
      "v_cmp_le_u32 vcc, s34, v2", "v_mov_b32 v8, 0x80000000", "s_nop 0", "v_cndmask_b32 v10, v10, v8, vcc")
    A("s_lshl_b32 s40, s33, 12")
    def issue(st):
        slot = (st % RING) * 32768
        A(f"s_movk_i32 s41, {st*128}")
        for q in range(4):
            A(f"s_add_u32 m0, s40, {slot + q*1024}", f"s_mov_b32 s42, {st*64*3456 + q*4*3456}",
              f"buffer_load_dwordx4 v{4+q}, s[12:15], s41 offen lds")
            A(f"s_add_u32 m0, s40, {slot + 16384 + q*1024}", "s_nop 0",
              f"buffer_load_dwordx4 v10, s[16:19], s42 offen lds")
    for st in range(RING): issue(st)
    for st in range(NST):
        issued = min(NST-1, max(RING-1, st+RING-2))
        A(f"s_waitcnt vmcnt({8*(issued-st)})", "s_barrier")
        if st >= 1 and st+RING-1 < NST: issue(st+RING-1)
    A("s_endpgm")

def g1_compute(A):
    ACC = lambda mt, nt: 16 + (mt*2+nt)*16
    FB = lambda p, kk, w: 80 + p*64 + kk*16 + w*4
    XA = lambda kk, nt: 208 + kk*2 + nt
    WA = lambda mt: 216 + mt
    SX, SXX, CS, B1 = 218, 219, 220, 221
    A("s_and_b32 s33, s28, 1", "s_lshr_b32 s34, s28, 1")
    A("v_and_b32 v1, 31, v0", "v_lshrrev_b32 v2, 5, v0")
    A("s_lshl_b32 s35, s30, 7", "s_lshl_b32 s40, s33, 6", "s_add_u32 s35, s35, s40", "s_lshl_b32 s40, s34, 5", "s_add_u32 s35, s35, s40",
      "v_add_lshl_u32 v3, v1, s35, 1", f"v_mov_b32 v{B1}, 0",
      f"buffer_load_short_d16_hi v{B1}, v3, s[20:23], 0 offen")
    A("s_lshl_b32 s35, s34, 13", "s_lshl_b32 s40, s33, 12", "s_add_u32 s35, s35, s40",
      "v_lshl_add_u32 v3, v1, 7, s35", "v_bfe_u32 v4, v0, 1, 3", "v_xor_b32 v4, v4, v2")
    for kk in range(4):
        A(f"v_xor_b32 v5, {2*kk}, v4", f"v_lshl_add_u32 v{XA(kk,0)}, v5, 4, v3", f"v_xor_b32 v{XA(kk,1)}, 0x1000, v{XA(kk,0)}")
    A("v_bfe_u32 v4, v0, 2, 2",
      "v_lshl_add_u32 v5, v2, 3, v4", "v_lshlrev_b32 v5, 8, v5",
      "v_bfe_u32 v6, v0, 4, 1", "v_lshl_add_u32 v5, v6, 5, v5",
      "v_and_b32 v6, 3, v0", "v_lshl_add_u32 v5, v6, 3, v5",
      "s_lshl_b32 s35, s33, 1", "s_add_u32 s35, s35, s34",
      "v_xor_b32 v6, s35, v4", f"v_lshl_add_u32 v{WA(0)}, v6, 6, v5", f"v_xor_b32 v{WA(1)}, 64, v{WA(0)}")
    A(f"v_mov_b32 v{SX}, 0", f"v_mov_b32 v{SXX}, 0", f"v_mov_b32 v{CS}, 0", f"s_mov_b32 s41, {ONES}")
    base = [0]
    def reads(st):
        p = st & 1; slot = (st % RING) * 32768
        L = []
        nb = slot & ~0xffff
        if nb != base[0]:
            d = nb - base[0]
            for r in range(208, 218):
                L.append(f"v_add_u32 v{r}, 0x{d & 0xffffffff:x}, v{r}")
            base[0] = nb
        so = slot - nb
        for kk in range(4):
            for mt in range(2):
                for jh in range(2):
                    L.append(f"ds_read_b64_tr_b16 {vr(FB(p,kk,2+mt)+2*jh,2)}, v{WA(mt)} offset:{so+16384+(16*kk+4*jh)*256}")
            for nt in range(2):
                L.append(f"ds_read_b128 {vr(FB(p,kk,nt),4)}, v{XA(kk,nt)} offset:{so}")
        return L
    def mfmas(st):
        p = st & 1; L = []
        for kk in range(4):
            for mt in range(2):
                for nt in range(2):
                    c = "0" if (st == 0 and kk == 0) else vr(ACC(mt,nt),16)
                    L.append(f"v_mfma_f32_32x32x16_bf16 {vr(ACC(mt,nt),16)}, {vr(FB(p,kk,2+mt),4)}, {vr(FB(p,kk,nt),4)}, {c}")
        return L
    def dots(st):
        p = st & 1; L = []
        for kk in range(4):
            for j in range(4):
                L.append(f"v_dot2c_f32_bf16 v{SX}, s41, v{FB(p,kk,0)+j}")
                L.append(f"v_dot2c_f32_bf16 v{SXX}, v{FB(p,kk,0)+j}, v{FB(p,kk,0)+j}")
                L.append(f"v_dot2c_f32_bf16 v{CS}, s41, v{FB(p,kk,2)+j}")
        return L
    for st in range(NST):
        A("s_barrier")
        if st == 0:
            A(*reads(0))
        else:
            A(*spread(mfmas(st-1)[:12], reads(st)))
            A(*mfmas(st-1)[12:])
            A(*dots(st-1))
        A("s_waitcnt lgkmcnt(0)")
    A(*dots(NST-1))
    M = mfmas(NST-1)
    F = Asm()
    for r in (SX, SXX, CS):
        F(f"v_mov_b32 v3, v{r}", "s_nop 1", f"v_permlane32_swap_b32 v{r}, v3", f"v_add_f32 v{r}, v{r}, v3")
    row_stats(F, SX, SXX, 3, 4, 5, 6)
    XF0, WF0, XF1, WF1 = 224, 228, 232, 236
    F(f"v_cvt_pk_bf16_f32 v{XF0}, -v5, -v5", f"v_cvt_pk_bf16_f32 v{XF0+1}, -v5, v6")
    F(f"v_cvt_pk_bf16_f32 v3, v{CS}, v{CS}", "v_lshlrev_b32 v3, 16, v3", f"v_sub_f32 v3, v{CS}, v3",
      f"v_cvt_pk_bf16_f32 v{WF0}, v{CS}, v3", f"v_and_b32 v4, 0xffff0000, v{WF0}", "v_sub_f32 v3, v3, v4",
      "s_waitcnt vmcnt(0)", f"v_cvt_pk_bf16_f32 v{WF0+1}, v3, v{B1}")
    F("s_lshl_b32 s35, s34, 9", "s_lshl_b32 s40, s33, 8", "s_add_u32 s35, s35, s40", "v_lshl_add_u32 v7, v1, 3, s35",
      "s_lshl_b32 s35, s33, 9", "s_lshl_b32 s40, s34, 8", "s_add_u32 s35, s35, s40", "v_lshl_add_u32 v8, v1, 3, s35",
      f"ds_write_b64 v7, {vr(XF0,2)}", f"ds_write_b64 v8, {vr(WF0,2)} offset:1024",
      "v_xor_b32 v7, 0x100, v7", "v_xor_b32 v8, 0x100, v8")
    for r in (XF0, WF0, XF1, WF1):
        F(f"v_mov_b32 v{r+2}, 0", f"v_mov_b32 v{r+3}, 0")
    A(*spread(M[:12], F.lines))
    A("s_waitcnt lgkmcnt(0)", "s_barrier")
    A(f"ds_read_b64 {vr(XF1,2)}, v7", f"ds_read_b64 {vr(WF1,2)}, v8 offset:1024")
    A(*M[12:])
    A("v_cmp_eq_u32 vcc, 0, v2", "s_waitcnt lgkmcnt(0)")
    for r in (WF0, WF0+1, WF1, WF1+1):
        A(f"v_cndmask_b32 v{r}, 0, v{r}, vcc")
    for mt in range(2):
        for nt in range(2):
            A(f"v_mfma_f32_32x32x16_bf16 {vr(ACC(mt,nt),16)}, {vr((WF0,WF1)[mt],4)}, {vr((XF0,XF1)[nt],4)}, {vr(ACC(mt,nt),16)}")
    for nt in range(2):
        c = 240 + 4*nt
        A(f"v_and_b32 v{c+2}, 0xffff0000, v{(XF0,XF1)[nt]+1}", f"v_rcp_f32 v3, v{c+2}",
          f"v_mul_f32 v{c}, {fl(GA)}, v3", "v_mul_f32 v4, v3, v3", "v_mul_f32 v4, v4, v3", f"v_mul_f32 v{c+1}, {fl(GB)}, v4")
    A("s_lshl_b32 s35, s30, 1", "s_add_u32 s35, s35, s33", "s_cmp_ge_u32 s35, 27", "s_cbranch_scc1 Lk1_end")
    for mt in range(2):
        for nt in range(2):
            s = 44 + mt*2 + nt
            A("s_lshl_b32 s40, s29, 2", "s_lshl_b32 s42, s34, 1", "s_add_u32 s40, s40, s42", f"s_xor_b32 s42, s33, {nt}", "s_add_u32 s40, s40, s42",
              "s_mulk_i32 s40, 108", "s_lshl_b32 s42, s35, 2", "s_add_u32 s40, s40, s42", f"s_xor_b32 s42, s34, {mt}", "s_lshl_b32 s42, s42, 1",
              "s_add_u32 s40, s40, s42", f"s_lshl_b32 s{s}, s40, 10")
    A("v_lshlrev_b32 v9, 4, v0")
    T0, T1 = 80, 96
    n = 0
    for mt in range(2):
        for nt in range(2):
            c = 240 + 4*nt
            for half in range(2):
                a0 = ACC(mt,nt) + 8*half
                t = 80 + (n % 2)*16; o = 112 + (n % 4)*4; n += 1
                P = range(4)
                for i in P: A(f"v_pk_mul_f32 {vr(t+2*i,2)}, {vr(a0+2*i,2)}, {vr(a0+2*i,2)}")
                for i in P: A(f"v_pk_fma_f32 {vr(t+2*i,2)}, {vr(t+2*i,2)}, {vr(c,2)}, {vr(c,2)} op_sel:[0,1,0] op_sel_hi:[1,1,0]")
                for i in P: A(f"v_pk_mul_f32 {vr(t+2*i,2)}, {vr(t+2*i,2)}, {vr(a0+2*i,2)}")
                for i in range(8): A(f"v_exp_f32 v{t+i}, v{t+i}")
                for i in P: A(f"v_pk_fma_f32 {vr(t+2*i,2)}, {vr(t+2*i,2)}, {vr(c+2,2)}, {vr(c+2,2)} op_sel:[0,0,0] op_sel_hi:[1,0,0]")
                for i in range(8): A(f"v_rcp_f32 v{t+i}, v{t+i}")
                for i in P: A(f"v_pk_mul_f32 {vr(t+2*i,2)}, {vr(t+2*i,2)}, {vr(a0+2*i,2)}")
                for i in P: A(f"v_cvt_pk_bf16_f32 v{o+i}, v{t+2*i}, v{t+2*i+1}")
                A(f"buffer_store_dwordx4 {vr(o,4)}, v9, s[24:27], s{44+mt*2+nt} offen offset:{half*1024}")
    A("s_endpgm")

def p1(A):
    BC = lambda u: 16 + 8*u
    BS = lambda u: 20 + 8*u
    TW = 56
    AF = lambda p, u: 64 + p*20 + 4*u
    AP = lambda p: 104 + 8*p
    AQ = lambda p: 108 + 8*p
    OUT = lambda par, i: 120 + par*8 + i
    TMP = 136
    YF = lambda o, pl: 152 + (o*2+pl)*4
    FP = lambda nt, pl: 184 + (nt*3+pl)*4
    TA = 208; PK = 240
    FPIMG = 81920
    A("s_sub_u32 s29, s32, 28", "s_lshl_b32 s29, s29, 3", "s_add_u32 s29, s29, s31", "s_lshl_b32 s29, s29, 1")
    A("s_lshr_b32 s33, s28, 2", "s_add_u32 s33, s33, s29",
      "s_and_b32 s34, s28, 3", "s_lshl_b32 s34, s34, 9", "s_add_u32 s33, s33, s34",
      "s_mulk_i32 s33, 1280",
      "s_mul_i32 s34, s28, 10240",
      "s_mov_b32 s35, 81920", "s_movk_i32 s40, 820")
    for i in range(10):
        A(f"v_add_u32 v1, {64*i}, v0", "v_mul_u32_u24 v2, s40, v1", "v_lshrrev_b32 v2, 16, v2",
          "v_mul_u32_u24 v3, 80, v2", "v_sub_u32 v3, v1, v3",
          "v_and_b32 v4, 3, v2", "v_lshlrev_b32 v4, 2, v4", "v_xor_b32 v3, v3, v4",
          "v_mul_u32_u24 v2, s35, v2", "v_lshl_add_u32 v2, v3, 4, v2",
          f"s_add_u32 m0, s34, {1024*i}", "s_nop 0",
          "buffer_load_dwordx4 v2, s[12:15], s33 offen lds")
    A("s_and_b32 s41, s28, 1", "s_add_u32 s41, s41, 4", "s_lshr_b32 s42, s28, 1", "s_and_b32 s42, s42, 1",
      "s_cmp_lt_u32 s28, 4", "s_cselect_b32 s43, s28, s41", "s_cselect_b32 s44, 0, s42",
      "s_cselect_b32 s45, 1, 0")
    A("v_and_b32 v1, 15, v0", "v_lshrrev_b32 v2, 4, v0")
    A("s_lshl_b32 s41, s43, 4", "v_add_u32 v3, s41, v1", "v_cvt_f32_u32 v4, v3",
      f"v_mul_f32 v5, {fl(1/160)}, v4",
      "v_cvt_f32_u32 v6, v2", "v_mul_f32 v6, 4.0, v6", "v_mul_f32 v6, v6, v5")
    for u in range(5):
        for jp in range(4):
            for e in range(2):
                j = 2*jp+e; c = 32*u + 16*(j>>2) + (j&3)
                A(f"v_fmamk_f32 v{8+e}, v5, {fl(float(c))}, v6")
            A("v_cos_f32 v10, v8", "v_cos_f32 v11, v9", "v_sin_f32 v12, v8", "v_sin_f32 v13, v9",
              f"v_cvt_pk_bf16_f32 v{BC(u)+jp}, v10, v11", f"v_cvt_pk_bf16_f32 v{BS(u)+jp}, -v12, -v13")
    for r in (1,2,3):
        A(f"v_mul_f32 v8, {fl(r/640)}, v4", f"v_cos_f32 v{TW+2*r-2}, v8", f"v_sin_f32 v{TW+2*r-1}, v8")
    A("v_cmp_eq_u32 vcc, 0, v3", f"v_mov_b32 v8, {fl(-640.0)}", "s_nop 0", "v_cndmask_b32 v62, 0, v8, vcc")
    A("v_and_b32 v8, 3, v0", "v_bfe_u32 v9, v0, 3, 1", "v_lshl_add_u32 v9, v2, 1, v9", "v_lshlrev_b32 v10, 2, v8", "v_xor_b32 v9, v9, v10",
      "v_mul_u32_u24 v10, 1280, v8", "v_lshl_add_u32 v10, v9, 4, v10", "v_bfe_u32 v9, v0, 2, 1", "v_lshl_add_u32 v14, v9, 3, v10",
      "s_mul_i32 s41, s44, 40960", "v_add_u32 v14, s41, v14", "v_xor_b32 v15, 128, v14")
    A("s_mov_b32 s41, 90112", "v_mul_lo_u32 v63, v1, s41", "v_lshl_add_u32 v63, v2, 4, v63",
      "s_mul_i32 s41, s44, 6144", f"s_add_u32 s41, s41, {FPIMG}", "v_lshl_add_u32 v7, v0, 4, s41")
    A("s_cmp_lt_u32 s28, 4", "s_cbranch_scc1 Lp1_w03")
    A("s_and_b32 s46, s28, 1")
    A("s_lshl_b32 s41, s46, 10", "s_add_u32 s41, s41, s29", "s_add_u32 s41, s41, s44",
      "v_lshl_add_u32 v8, v2, 6, s41", "v_cvt_f32_u32 v8, v8", f"v_mul_f32 v8, {fl(1/2048)}, v8",
      "v_cvt_f32_u32 v9, v1", "v_add_f32 v10, 0x41800000, v9")
    for tt in range(4):
        A(f"v_add_f32 v11, {fl(tt*256/2048)}, v8")
        for nt in range(2):
            A(f"v_mul_f32 v12, v11, v{9+nt}", f"v_cos_f32 v{208+nt*4+tt}, v12", f"v_sin_f32 v{216+nt*4+tt}, v12")
    A("s_lshl_b32 s41, s44, 5", "s_lshl_b32 s42, s46, 4", "s_add_u32 s41, s41, s42",
      "v_lshrrev_b32 v8, 2, v0", "v_add_u32 v9, s41, v8", "v_mul_u32_u24 v9, 1280, v9",
      "v_and_b32 v10, 3, v0", "v_lshl_add_u32 v9, v10, 4, v9", "v_and_b32 v8, 3, v8")
    for ii in range(4):
        A(f"v_xor_b32 v10, {ii}, v8", f"v_lshl_add_u32 v{224+ii}, v10, 6, v9")
    A("v_mov_b32 v228, 0", "v_mov_b32 v229, 0", "v_mov_b32 v230, 0", "v_mov_b32 v231, 0", f"s_mov_b32 s47, {ONES}")
    A("s_waitcnt vmcnt(0)", "s_barrier")
    for I in range(5):
        for ii in range(4):
            A(f"ds_read_b128 {vr(64+(I*4+ii)*4,4)}, v{224+ii} offset:{256*I}")
    for I in range(5):
        A(f"s_waitcnt lgkmcnt({min(15,4*(4-I))})")
        for j in range(16):
            r = 64 + I*16 + j
            A(f"v_dot2c_f32_bf16 v{228+(j&1)}, s47, v{r}", f"v_dot2c_f32_bf16 v{230+(j&1)}, v{r}, v{r}")
    A("v_add_f32 v228, v228, v229", "v_add_f32 v230, v230, v231")
    for qp in ("[1,0,3,2]", "[2,3,0,1]"):
        A(f"v_add_f32_dpp v228, v228, v228 quad_perm:{qp} row_mask:0xf bank_mask:0xf",
          f"v_add_f32_dpp v230, v230, v230 quad_perm:{qp} row_mask:0xf bank_mask:0xf")
    row_stats(A, 228, 230, 8, 9, 10, 11)
    A("v_cvt_pk_bf16_f32 v11, v11, v11", "v_lshlrev_b32 v11, 16, v11", "v_rcp_f32 v11, v11",
      "v_lshlrev_b32 v8, 4, v2")
    for tt in range(4):
        A(f"ds_bpermute_b32 v{232+tt}, v8, v11 offset:{64*tt}")
    A("s_lshl_b32 s41, s46, 3", "v_add_u32 v9, s41, v7", "s_waitcnt lgkmcnt(0)")
    for nt in range(2):
        for tt in range(4):
            A(f"v_mul_f32 v{208+nt*4+tt}, v{208+nt*4+tt}, v{232+tt}", f"v_mul_f32 v{216+nt*4+tt}, v{216+nt*4+tt}, v{232+tt}")
        c = 208+nt*4; s = 216+nt*4; o = 236 + nt*6
        A(f"v_cvt_pk_bf16_f32 v{o}, v{c}, v{c+1}", f"v_cvt_pk_bf16_f32 v{o+1}, v{c+2}, v{c+3}",
          f"v_cvt_pk_bf16_f32 v{o+2}, v{s}, v{s+1}", f"v_cvt_pk_bf16_f32 v{o+3}, v{s+2}, v{s+3}",
          f"v_cvt_pk_bf16_f32 v{o+4}, -v{s}, -v{s+1}", f"v_cvt_pk_bf16_f32 v{o+5}, -v{s+2}, -v{s+3}")
        for pl in range(3):
            A(f"ds_write_b64 v9, {vr(o+2*pl,2)} offset:{(nt*3+pl)*1024}")
    A("s_waitcnt lgkmcnt(0)", "s_barrier", "s_branch Lp1_unit")
    A("Lp1_w03:")
    A("s_waitcnt vmcnt(0)", "s_barrier")
    A("Lp1_unit:")
    def reads(t):
        return [f"ds_read_b64_tr_b16 {vr(AF(t&1,u)+2*jh,2)}, v{14+jh} offset:{t*5120+u*256}" for u in range(5) for jh in range(2)]
    def mf(t):
        L = []
        for u in range(5):
            for (acc, B) in ((AP(t&1), BC(u)), (AQ(t&1), BS(u))):
                L.append(f"v_mfma_f32_16x16x32_bf16 {vr(acc,4)}, {vr(AF(t&1,u),4)}, {vr(B,4)}, {'0' if u==0 else vr(acc,4)}")
        return L
    def bfly(t):
        P = AP(t&1); Q = AQ(t&1); O = lambda i: OUT(t&1, i)
        c1,s1,c2,s2,c3,s3 = range(TW, TW+6)
        pr,pi,qr,qi,ar,ai,ur,ui,wr_,wi_,tt = range(TMP, TMP+11)
        L = [f"v_fma_f32 v{pr}, v{P+2}, v{c2}, v{P}", f"v_fma_f32 v{pi}, v{Q+2}, v{c2}, v{Q}",
             f"v_mul_f32 v{ar}, v{P+1}, v{c1}", f"v_mul_f32 v{ai}, v{Q+1}, v{c1}",
             f"v_fmac_f32 v{pr}, v{Q+2}, v{s2}", f"v_fma_f32 v{pi}, -v{P+2}, v{s2}, v{pi}",
             f"v_fmac_f32 v{ar}, v{Q+1}, v{s1}", f"v_fma_f32 v{ai}, -v{P+1}, v{s1}, v{ai}",
             f"v_fma_f32 v{qr}, 2.0, v{P}, -v{pr}", f"v_fma_f32 v{qi}, 2.0, v{Q}, -v{pi}",
             f"v_fma_f32 v{ur}, v{P+3}, v{c3}, v{ar}", f"v_fma_f32 v{ui}, v{Q+3}, v{c3}, v{ai}",
             f"v_fmac_f32 v{ur}, v{Q+3}, v{s3}", f"v_fma_f32 v{ui}, -v{P+3}, v{s3}, v{ui}",
             f"v_fma_f32 v{wr_}, 2.0, v{ar}, -v{ur}", f"v_fma_f32 v{wi_}, 2.0, v{ai}, -v{ui}",
             f"v_add_f32 v{O(0)}, v{pr}, v{ur}", f"v_add_f32 v{O(1)}, v{pi}, v{ui}",
             f"v_mul_f32 v{tt}, {fl(1/640)}, v{O(0)}",
             f"v_sub_f32 v{O(6)}, v{pr}, v{ur}", f"v_sub_f32 v{O(7)}, v{ui}, v{pi}",
             f"v_cvt_pk_bf16_f32 v{tt}, v{tt}, v{tt}",
             f"v_sub_f32 v{O(2)}, v{qr}, v{wi_}", f"v_fma_f32 v{O(3)}, -1.0, v{qi}, -v{wr_}",
             f"v_lshlrev_b32 v{tt}, 16, v{tt}",
             f"v_add_f32 v{O(4)}, v{qr}, v{wi_}", f"v_sub_f32 v{O(5)}, v{qi}, v{wr_}",
             f"v_fmac_f32 v{O(0)}, v{tt}, v62"]
        if t & 1:
            for i in (1,2,3,4,5,6,7,0):
                L.append(f"v_cvt_pk_bf16_f32 v{YF(i>>1,i&1)+(t>>1)}, v{OUT(0,i)}, v{OUT(1,i)}")
        return L
    A(*reads(0))
    for t in range(9):
        if t == 4:
            A("s_cmp_eq_u32 s45, 0", "s_cbranch_scc1 Lp1_nob", "s_barrier", "Lp1_nob:")
        if t < 8:
            A("s_waitcnt lgkmcnt(0)")
            fill = (reads(t+1) if t < 7 else [f"ds_read_b128 {vr(FP(nt,pl),4)}, v7 offset:{(nt*3+pl)*1024}" for nt in range(2) for pl in range(3)])
            fill = fill + (bfly(t-1) if t >= 1 else [])
            A(*spread(mf(t), fill))
        else:
            A(*bfly(7))
    A("s_waitcnt lgkmcnt(0)")
    A("s_add_u32 s41, s29, s44", "s_lshl_b32 s41, s41, 7", "s_lshl_b32 s42, s43, 13", "s_add_u32 s41, s41, s42",
      f"s_add_u32 s42, s41, {16*90112}", f"s_add_u32 s46, s41, {6*8192}", f"s_add_u32 s47, s42, {6*8192}")
    for typ, kinds in ((0,(0,2)), (1,(1,3))):
        if typ == 1:
            A("s_cmp_eq_u32 s43, 5", "s_cbranch_scc1 Lk1_end")
        n = 0
        for tile, o in enumerate(kinds):
            for nt in range(2):
                re = TA + n*8; im = re + 4; n += 1
                A(f"v_mfma_f32_16x16x32_bf16 {vr(re,4)}, {vr(YF(o,0),4)}, {vr(FP(nt,0),4)}, 0",
                  f"v_mfma_f32_16x16x32_bf16 {vr(im,4)}, {vr(YF(o,1),4)}, {vr(FP(nt,0),4)}, 0",
                  f"v_mfma_f32_16x16x32_bf16 {vr(re,4)}, {vr(YF(o,1),4)}, {vr(FP(nt,1),4)}, {vr(re,4)}",
                  f"v_mfma_f32_16x16x32_bf16 {vr(im,4)}, {vr(YF(o,0),4)}, {vr(FP(nt,2),4)}, {vr(im,4)}")
        n = 0
        for tile, o in enumerate(kinds):
            for nt in range(2):
                re = TA + n*8; pk = PK + n*4; n += 1
                for j in range(4):
                    A(f"v_cvt_pk_bf16_f32 v{pk+j}, v{re+2*j}, v{re+2*j+1}")
                so = ((41,42),(46,47))[typ][nt]
                A(f"buffer_store_dwordx4 {vr(pk,4)}, v63, s[36:39], s{so} offen offset:{tile*64}")
    A("s_cmp_eq_u32 s45, 0", "s_cbranch_scc1 Lk1_end")
    A("s_mov_b32 s45, 0", "s_mov_b32 s44, 1", "v_add_u32 v14, 40960, v14", "v_add_u32 v15, 40960, v15", "v_add_u32 v7, 6144, v7", "s_branch Lp1_unit")

def k2(A):
    A("k2_kernel:")
    A("s_cmp_ge_u32 s2, 248", "s_cbranch_scc1 Lk2_end")
    A("s_load_dwordx4 s[4:7], s[0:1], 8", "s_load_dwordx4 s[8:11], s[0:1], 48", "s_load_dwordx2 s[40:41], s[0:1], 80")
    A("v_lshrrev_b32 v1, 6, v0", "v_and_b32 v0, 63, v0", "v_readfirstlane_b32 s28, v1")
    A("s_and_b32 s31, s2, 7", "s_lshr_b32 s32, s2, 3")
    A("s_waitcnt lgkmcnt(0)")
    A("s_cmp_ge_u32 s32, 20", "s_cbranch_scc1 Lp2")
    srd(A, 12, 40, H_SZ, H_OFF); srd(A, 16, 8, W1_SZ); srd(A, 20, 10, 640*2); srd(A, 24, 40, G_SZ, G_OFF)
    g2(A)
    A("Lp2:")
    srd(A, 12, 40, T_SZ, T_OFF); srd(A, 16, 4, WF_SZ); srd(A, 20, 6, WF_SZ); srd(A, 24, 40, U_SZ, U_OFF)
    p2(A)
    A("Lk2_end:", "s_endpgm")

def g2(A):
    NS, R = 27, 8
    ACC = lambda mt: 16 + 16*mt
    WB = lambda p, kt, mt: 48 + p*32 + kt*8 + mt*4
    HA = lambda st, kt: 112 + (st % R)*16 + kt*4
    A("s_lshr_b32 s29, s31, 1", "s_lshl_b32 s29, s29, 2", "s_and_b32 s33, s32, 3", "s_add_u32 s29, s29, s33")
    A("s_and_b32 s30, s31, 1", "s_mul_i32 s30, s30, 5", "s_lshr_b32 s33, s32, 2", "s_add_u32 s30, s30, s33")
    A("s_lshl_b32 s33, s29, 2", "s_add_u32 s33, s33, s28", f"s_mul_i32 s34, s33, {108*1024}", "v_lshl_add_u32 v2, v0, 4, s34")
    A("v_lshrrev_b32 v4, 3, v0", "s_lshl_b32 s34, s28, 4", "v_add_u32 v4, s34, v4", "v_mul_u32_u24 v4, 1280, v4",
      "v_and_b32 v5, 7, v0", "v_bfe_u32 v6, v0, 4, 1", "v_lshlrev_b32 v6, 1, v6", "v_xor_b32 v5, v5, v6",
      "v_lshl_add_u32 v3, v5, 4, v4", "s_lshl_b32 s34, s30, 7", "v_add_u32 v3, s34, v3", "v_add_u32 v4, 10240, v3",
      "s_lshl_b32 s35, s28, 11")
    def loadB(st):
        slot = (st % R)*8192
        return [f"s_mov_b32 s36, {st*64*1280}", f"s_add_u32 m0, s35, {slot}", "s_nop 0", "buffer_load_dwordx4 v3, s[16:19], s36 offen lds",
                f"s_add_u32 m0, s35, {slot+1024}", "s_nop 0", "buffer_load_dwordx4 v4, s[16:19], s36 offen lds"]
    def loadA(st):
        return [f"s_mov_b32 s37, {st*4096}"] + [f"buffer_load_dwordx4 {vr(HA(st,kt),4)}, v2, s[12:15], s37 offen offset:{kt*1024}" for kt in range(4)]
    A("v_bfe_u32 v5, v0, 2, 1", "v_lshlrev_b32 v5, 5, v5", "v_bfe_u32 v6, v0, 3, 2", "v_lshl_add_u32 v5, v6, 2, v5",
      "v_and_b32 v6, 3, v0", "v_add_u32 v5, v5, v6", "v_lshl_add_u32 v5, v5, 1, s34",
      "buffer_load_ushort v240, v5, s[20:23], 0 offen", "buffer_load_ushort v244, v5, s[20:23], 0 offen offset:32")
    for st in range(R):
        A(*loadB(st)); A(*loadA(st))
    for r in (241,242,243,245,246,247,249,250,251): A(f"v_mov_b32 v{r}, 0")
    A("v_cmp_gt_u32 vcc, 32, v0", "v_mov_b32 v5, 0x3f80", "s_nop 0", "v_cndmask_b32 v248, 0, v5, vcc")
    A("v_lshrrev_b32 v5, 5, v0", "v_bfe_u32 v8, v0, 2, 2", "v_lshl_add_u32 v5, v5, 2, v8", "v_lshlrev_b32 v5, 7, v5",
      "v_and_b32 v8, 1, v0", "v_lshl_add_u32 v5, v8, 6, v5", "v_bfe_u32 v8, v0, 4, 1", "v_lshl_add_u32 v5, v8, 4, v5",
      "v_bfe_u32 v8, v0, 1, 1", "v_lshl_add_u32 v5, v8, 3, v5", "v_bfe_u32 v8, v0, 3, 1", "v_lshl_add_u32 v6, v8, 5, v5", "v_xor_b32 v7, 32, v6")
    A("v_and_b32 v8, 31, v0", "s_lshl_b32 s36, s33, 5", "v_add_u32 v8, s36, v8", "v_mul_u32_u24 v8, 1280, v8",
      "v_lshrrev_b32 v9, 5, v0", "v_lshl_add_u32 v9, v9, 6, v8", "v_add_u32 v9, s34, v9")
    def reads(st):
        slot = (st % R)*8192
        return [f"ds_read_b64_tr_b16 {vr(WB(st&1,kt,mt)+2*jh,2)}, v{6+mt} offset:{slot+(16*kt+8*jh)*128}" for kt in range(4) for mt in range(2) for jh in range(2)]
    def mf(st):
        return [f"v_mfma_f32_32x32x16_bf16 {vr(ACC(mt),16)}, {vr(WB(st&1,kt,mt),4)}, {vr(HA(st,kt),4)}, {vr(ACC(mt),16)}" for kt in range(4) for mt in range(2)]
    for st in range(NS):
        last = min(NS-1, max(R-1, st+R-2))
        A(f"s_waitcnt vmcnt({4+6*(last-st)})", "s_barrier")
        if st == 0:
            A(*reads(0))
            for mt in range(2):
                A(f"v_mfma_f32_32x32x16_bf16 {vr(ACC(mt),16)}, {vr(240+4*mt,4)}, v[248:251], 0")
        else:
            nx = st-1+R
            fill = reads(st)
            if nx < NS: fill = loadB(nx) + fill
            A(*spread(mf(st-1)[:7], fill)); A(mf(st-1)[7])
            if nx < NS: A(*loadA(nx))
        A("s_waitcnt lgkmcnt(0)")
    A("s_waitcnt vmcnt(0)")
    A(*mf(NS-1))
    A(f"s_mov_b32 s36, {fl(-1.4426950408889634)}", "s_mov_b32 s38, 1.0")
    for q in range(4):
        a0 = 16 + 8*q; t = 48 + (q&1)*8; o = 64 + q*4
        P = range(4)
        for i in P: A(f"v_pk_mul_f32 {vr(t+2*i,2)}, {vr(a0+2*i,2)}, s[36:37] op_sel_hi:[1,0]")
        for i in range(8): A(f"v_exp_f32 v{t+i}, v{t+i}")
        for i in P: A(f"v_pk_add_f32 {vr(t+2*i,2)}, {vr(t+2*i,2)}, s[38:39] op_sel_hi:[1,0]")
        for i in range(8): A(f"v_rcp_f32 v{t+i}, v{t+i}")
        for i in P: A(f"v_pk_mul_f32 {vr(t+2*i,2)}, {vr(t+2*i,2)}, {vr(a0+2*i,2)}")
        for i in P: A(f"v_cvt_pk_bf16_f32 v{o+i}, v{t+2*i}, v{t+2*i+1}")
        A(f"buffer_store_dwordx4 {vr(o,4)}, v9, s[24:27], 0 offen offset:{16*q}")
    A("s_endpgm")

def p2(A):
    C = lambda t, ks: vr(16 + (t*2+ks)*4, 4)
    S = lambda t, ks: vr(48 + (t*2+ks)*4, 4)
    N = lambda t, ks: f"a[{(t*2+ks)*4}:{(t*2+ks)*4+3}]"
    WV = lambda tau, pl, t, e: 80 + tau*32 + pl*16 + t*4 + e
    TB = lambda tau, ks, pl: 144 + tau*16 + (ks*2+pl)*4
    XA = lambda tau, pl, t: 176 + tau*32 + pl*16 + t*4
    PK = 240
    A("s_sub_u32 s33, s32, 20", "s_lshl_b32 s33, s33, 2", "s_add_u32 s33, s33, s28",
      "s_mul_i32 s34, s33, 47", "s_lshr_b32 s34, s34, 9",
      "s_mul_i32 s35, s34, 11", "s_sub_u32 s30, s33, s35",
      "s_lshl_b32 s29, s31, 2", "s_add_u32 s29, s29, s34")
    A("s_mul_i32 s33, s29, 90112", "s_lshl_b32 s34, s30, 13", "s_add_u32 s33, s33, s34", "s_lshl_b32 s35, s28, 13",
      "v_lshlrev_b32 v3, 4, v0", "s_mov_b32 m0, s35", "s_add_u32 s34, s33, 4096")
    for i in range(4): A(f"buffer_load_dwordx4 v3, s[12:15], s33 offen offset:{1024*i} lds")
    A("s_add_u32 m0, s35, 4096", "s_nop 0")
    for i in range(4): A(f"buffer_load_dwordx4 v3, s[12:15], s34 offen offset:{1024*i} lds")
    A("v_and_b32 v1, 15, v0", "v_lshrrev_b32 v2, 4, v0")
    A("s_lshl_b32 s33, s30, 4", "v_add_u32 v5, s33, v1", "v_sub_u32 v6, 256, v5",
      "s_cmp_lt_u32 s30, 6", "s_cselect_b64 vcc, -1, 0", "v_cndmask_b32 v5, v6, v5, vcc",
      "v_lshl_add_u32 v4, v2, 7, s29", "v_mul_u32_u24 v4, 642, v4", "v_lshl_add_u32 v4, v5, 1, v4")
    for tau in range(2):
        for t in range(4):
            for e in range(4):
                A(f"s_mov_b32 s33, {(16*t+e)*20544}")
                for pl in range(2):
                    r = WV(tau,pl,t,e)
                    A(f"v_mov_b32 v{r}, 0", f"buffer_load_short_d16_hi v{r}, v4, s[{16+4*pl}:{19+4*pl}], s33 offen offset:{320*tau}")
    A("v_cvt_f32_u32 v5, v1", f"v_mul_f32 v5, {fl(1/64)}, v5", "v_add_f32 v6, 0x3e800000, v5",
      "v_cvt_f32_u32 v7, v2", "v_mul_f32 v7, 4.0, v7",
      "v_and_b32 v14, 1, v0", "v_mov_b32 v15, 0x80008000", "v_mul_lo_u32 v14, v14, v15",
      "v_xor_b32 v15, 0x80000000, v14")
    for t in range(2):
        for jp in range(4):
            for e in range(2):
                j = 2*jp+e
                A(f"v_add_f32 v{8+e}, {fl(float(16*(j>>2)+(j&3)))}, v7", f"v_mul_f32 v{8+e}, v{8+e}, v{5+t}")
            c0 = 16+t*8+jp; s0 = 48+t*8+jp
            A("v_cos_f32 v10, v8", "v_cos_f32 v11, v9", "v_sin_f32 v12, v8", "v_sin_f32 v13, v9",
              f"v_cvt_pk_bf16_f32 v{c0}, v10, v11", f"v_cvt_pk_bf16_f32 v{s0}, v12, v13")
            for b in (c0, s0):
                A(f"v_xor_b32 v{b+4}, v14, v{b}", f"v_xor_b32 v{b+16}, 0x80000000, v{b}", f"v_xor_b32 v{b+20}, v15, v{b}")
    for r in range(32):
        A(f"v_xor_b32 v{8+(r&3)}, 0x80008000, v{48+r}", f"v_accvgpr_write_b32 a{r}, v{8+(r&3)}")
    A("v_lshrrev_b32 v5, 2, v0", "v_lshlrev_b32 v5, 7, v5", "v_and_b32 v7, 3, v0", "v_lshl_add_u32 v5, v7, 4, v5", "v_add_u32 v5, s35, v5",
      "s_mov_b32 s33, 45056", "v_mul_lo_u32 v6, v1, s33", "v_lshl_add_u32 v6, v2, 4, v6",
      "s_lshl_b32 s36, s30, 12", "s_lshl_b32 s33, s29, 7", "s_add_u32 s36, s36, s33",
      f"s_add_u32 s37, s36, {16*45056}", f"s_add_u32 s38, s36, {32*45056}", f"s_add_u32 s39, s36, {48*45056}")
    A("s_waitcnt vmcnt(63)"[:0] or "s_waitcnt vmcnt(32)")
    for tau in range(2):
        for ks in range(2):
            for pl in range(2):
                for jh in range(2):
                    A(f"ds_read_b64_tr_b16 {vr(TB(tau,ks,pl)+2*jh,2)}, v5 offset:{(32*ks+16*jh)*128+tau*64+pl*8}")
    M = "v_mfma_f32_16x16x32_bf16"
    def st2(tau):
        L = []
        for t in range(4):
            re = vr(XA(tau,0,t),4); im = vr(XA(tau,1,t),4)
            for ks in range(2):
                tr = vr(TB(tau,ks,0),4); ti = vr(TB(tau,ks,1),4)
                L += [f"{M} {re}, {C(t,ks)}, {tr}, {'0' if ks==0 else re}", f"{M} {im}, {C(t,ks)}, {ti}, {'0' if ks==0 else im}",
                      f"{M} {re}, {S(t,ks)}, {ti}, {re}", f"{M} {im}, {N(t,ks)}, {tr}, {im}"]
        return L
    def wmul(tau):
        L = []
        for t in range(4):
            for e in range(4):
                xr = XA(tau,0,t)+e; xi = XA(tau,1,t)+e; wr = WV(tau,0,t,e); wi = WV(tau,1,t,e)
                L += [f"v_mul_f32 v{8+e}, v{xr}, v{wr}", f"v_mul_f32 v{12+e}, v{xr}, v{wi}",
                      f"v_fma_f32 v{8+e}, -v{xi}, v{wi}, v{8+e}", f"v_fmac_f32 v{12+e}, v{xi}, v{wr}"]
            for pl in range(2):
                d = TB(tau, t>>1, pl) + (t&1)*2
                L += [f"v_cvt_pk_bf16_f32 v{d}, v{8+4*pl}, v{9+4*pl}", f"v_cvt_pk_bf16_f32 v{d+1}, v{10+4*pl}, v{11+4*pl}"]
        return L
    def st3(tau):
        L = []
        for nt in range(4):
            re = vr(XA(tau,0,nt),4); im = vr(XA(tau,1,nt),4)
            for ks in range(2):
                xr = vr(TB(tau,ks,0),4); xi = vr(TB(tau,ks,1),4)
                L += [f"{M} {re}, {xr}, {C(nt,ks)}, {'0' if ks==0 else re}", f"{M} {im}, {xi}, {C(nt,ks)}, {'0' if ks==0 else im}",
                      f"{M} {re}, {xi}, {N(nt,ks)}, {re}", f"{M} {im}, {xr}, {S(nt,ks)}, {im}"]
        return L
    def outp(tau):
        L = []
        for nt in range(4):
            pk = PK + 4*nt; re = XA(tau,0,nt); im = XA(tau,1,nt)
            L += [f"v_cvt_pk_bf16_f32 v{pk}, v{re}, v{re+1}", f"v_cvt_pk_bf16_f32 v{pk+1}, v{re+2}, v{re+3}",
                  f"v_cvt_pk_bf16_f32 v{pk+2}, v{im}, v{im+1}", f"v_cvt_pk_bf16_f32 v{pk+3}, v{im+2}, v{im+3}",
                  f"buffer_store_dwordx4 {vr(pk,4)}, v6, s[24:27], s{36+nt} offen offset:{64*tau}"]
        return L
    A("s_waitcnt lgkmcnt(8)")
    A(*st2(0))
    A("s_waitcnt lgkmcnt(0)")
    A(*spread(st2(1), wmul(0)))
    A("s_waitcnt vmcnt(0)")
    A(*spread(st3(0), wmul(1)))
    A(*spread(st3(1), outp(0)))
    A(*outp(1))

def k3(A):
    A("k3_kernel:")
    A("s_cmp_ge_u32 s2, 256", "s_cbranch_scc1 Lk3_end")
    A("s_load_dwordx2 s[4:5], s[0:1], 0", "s_load_dwordx2 s[6:7], s[0:1], 64", "s_load_dwordx2 s[40:41], s[0:1], 80")
    A("v_lshrrev_b32 v1, 6, v0", "v_and_b32 v0, 63, v0", "v_readfirstlane_b32 s28, v1")
    A("s_and_b32 s31, s2, 7", "s_lshr_b32 s32, s2, 3")
    A("s_lshl_b32 s29, s31, 3", "s_lshr_b32 s33, s32, 2", "s_add_u32 s29, s29, s33",
      "s_and_b32 s30, s32, 1",
      "s_lshr_b32 s33, s32, 1", "s_and_b32 s33, s33, 1", "s_mul_i32 s33, s33, 5", "s_add_u32 s42, s33, s28")
    A("s_waitcnt lgkmcnt(0)")
    srd(A, 12, 40, U_SZ, U_OFF); srd(A, 16, 4, X_SZ); srd(A, 20, 40, G_SZ, G_OFF); srd(A, 24, 6, X_SZ)
    ZIMG = 49152
    GC, GS, GN = 16, 20, 24
    TWc = lambda r: 28 + (r-1)*8
    TWs = lambda r: 32 + (r-1)*8
    HF = lambda bb: 52 + 4*bb
    XR, GR = 76, 84
    XU, GU = 92, 108
    UA = lambda ty, tau, pl: 124 + ((ty*2+tau)*2+pl)*4
    VA = lambda ty, tau, pl: 156 + ((ty*2+tau)*2+pl)*4
    TT = 188
    ZF = lambda bb, r: 124 + (bb*4+r)*4
    ACC = lambda r: 220 + 4*r
    A("s_mul_i32 s33, s29, 45056", "s_lshl_b32 s34, s28, 12", "s_add_u32 s33, s33, s34", f"s_add_u32 s34, s33, {6*4096}",
      "s_lshl_b32 s35, s28, 13", "v_lshlrev_b32 v3, 4, v0", "s_mov_b32 m0, s35",
      "s_cmp_eq_u32 s28, 5", "s_cselect_b32 s36, 0x80000000, 0", "v_or_b32 v4, s36, v3")
    for i in range(4): A(f"buffer_load_dwordx4 v3, s[12:15], s33 offen offset:{1024*i} lds")
    A("s_add_u32 m0, s35, 4096", "s_nop 0")
    for i in range(4): A(f"buffer_load_dwordx4 v4, s[12:15], s34 offen offset:{1024*i} lds")
    A("v_and_b32 v1, 15, v0", "v_lshrrev_b32 v2, 4, v0")
    A("s_lshl_b32 s33, s30, 10", "s_add_u32 s33, s33, s29", "v_lshl_add_u32 v5, v1, 6, s33",
      "v_mul_u32_u24 v6, 1280, v5", "v_lshl_add_u32 v6, v2, 5, v6", "s_lshl_b32 s33, s42, 7", "s_or_b32 s33, s33, s36", "v_add_u32 v6, s33, v6")
    A(f"buffer_load_dwordx4 {vr(XR,4)}, v6, s[16:19], 0 offen", f"buffer_load_dwordx4 {vr(XR+4,4)}, v6, s[16:19], 0 offen offset:16",
      f"buffer_load_dwordx4 {vr(GR,4)}, v6, s[20:23], 0 offen", f"buffer_load_dwordx4 {vr(GR+4,4)}, v6, s[20:23], 0 offen offset:16")
    SC = 2/(640*2048)
    A("v_cvt_f32_u32 v5, v5", f"v_mul_f32 v5, {fl(1/2048)}, v5", "v_cvt_f32_u32 v7, v2", "v_mul_f32 v7, 4.0, v7", f"s_mov_b32 s37, {fl(SC)}")
    for jp in range(4):
        for e in range(2):
            j = 2*jp+e
            A(f"v_add_f32 v{8+e}, {fl(float(16*(j>>2)+(j&3)))}, v7", f"v_mul_f32 v{8+e}, v{8+e}, v5")
        A("v_cos_f32 v10, v8", "v_cos_f32 v11, v9", "v_sin_f32 v12, v8", "v_sin_f32 v13, v9")
        for r in range(10,14): A(f"v_mul_f32 v{r}, s37, v{r}")
        A(f"v_cvt_pk_bf16_f32 v{GC+jp}, v10, v11", f"v_cvt_pk_bf16_f32 v{GS+jp}, v12, v13", f"v_cvt_pk_bf16_f32 v{GN+jp}, -v12, -v13")
    A("v_lshrrev_b32 v5, 2, v0", "v_lshlrev_b32 v5, 7, v5", "v_and_b32 v8, 3, v0", "v_lshl_add_u32 v5, v8, 4, v5", "v_add_u32 v5, s35, v5")
    A("s_lshl_b32 s33, s28, 4", "v_cvt_f32_u32 v8, s33", "v_add_f32 v8, v8, v7")
    for e in range(4):
        A(f"v_add_f32 v9, {fl(float(e))}, v8")
        for r in (1,2,3):
            A(f"v_mul_f32 v10, {fl(r/640)}, v9", f"v_cos_f32 v{TWc(r)+e}, v10", f"v_sin_f32 v{TWs(r)+e}, v10")
    A("s_waitcnt vmcnt(4)")
    for ty in range(2):
        for tau in range(2):
            for pl in range(2):
                for jh in range(2):
                    A(f"ds_read_b64_tr_b16 {vr(UA(ty,tau,pl)+2*jh,2)}, v5 offset:{ty*4096+jh*2048+tau*64+pl*8}")
    Hl = Asm()
    Hl("s_lshl_b32 s33, s42, 4", "v_add_u32 v14, s33, v1", "v_cvt_f32_u32 v15, v14", f"v_mul_f32 v15, {fl(1/160)}, v15", "v_mul_f32 v4, v7, v15")
    for bb in range(5):
        for ep in range(2):
            for e in range(2):
                Hl(f"v_fmamk_f32 v{8+e}, v15, {fl(float(16*bb+2*ep+e))}, v4")
            Hl("v_cos_f32 v10, v8", "v_cos_f32 v11, v9", "v_sin_f32 v12, v8", "v_sin_f32 v13, v9")
            if bb == 0 and ep == 0:
                Hl("v_cmp_gt_u32 vcc, 16, v0", "s_nop 1", "v_cndmask_b32 v10, v10, 0.5, vcc"[:0] or "v_mov_b32 v8, 0.5", "v_cndmask_b32 v10, v10, v8, vcc")
            Hl(f"v_cvt_pk_bf16_f32 v{HF(bb)+ep}, v10, v11", f"v_cvt_pk_bf16_f32 v{HF(bb)+2+ep}, -v12, -v13")
    Hl("v_and_b32 v8, 1, v14", "v_lshlrev_b32 v8, 15, v8", "v_or_b32 v8, 0x3f80, v8", f"v_cndmask_b32 v{HF(5)}, 0, v8, vcc",
       f"v_mov_b32 v{HF(5)+1}, 0", f"v_mov_b32 v{HF(5)+2}, 0", f"v_mov_b32 v{HF(5)+3}, 0")
    M = "v_mfma_f32_16x16x32_bf16"
    ML = []
    for ty in range(2):
        for tau in range(2):
            re = vr(VA(ty,tau,0),4); im = vr(VA(ty,tau,1),4); ur = vr(UA(ty,tau,0),4); ui = vr(UA(ty,tau,1),4)
            ML += [f"{M} {re}, {ur}, {vr(GC,4)}, 0", f"{M} {im}, {ui}, {vr(GC,4)}, 0", f"{M} {re}, {ui}, {vr(GN,4)}, {re}", f"{M} {im}, {ur}, {vr(GS,4)}, {im}"]
    A(*Hl.lines[:20])
    A("s_waitcnt lgkmcnt(0)")
    A(*spread(ML, Hl.lines[20:50]))
    def pk(op, d, a, b, c=None, nb=False, na=False):
        s = f"v_pk_{op}_f32 {vr(d,2)}, {vr(a,2)}, {vr(b,2)}" + (f", {vr(c,2)}" if c is not None else "")
        n = [int(na), int(nb)] + ([0] if c is not None else [])
        if na or nb: s += f" neg_lo:[{','.join(map(str,n))}] neg_hi:[{','.join(map(str,n))}]"
        return s
    Ar,Ai,Br,Bi,Dr,Di,Cr,Ci = [VA(ty,tau,pl) for ty in range(2) for tau in range(2) for pl in range(2)]
    pr,pi,qr,qi,ur,ui,wr,wi = [TT+4*i for i in range(8)]
    Z = lambda r, pl: 124 + (r*2+pl)*4
    for e in (0,2):
        A(pk('add',pr+e,Ar+e,Cr+e), pk('add',pi+e,Ai+e,Ci+e,nb=True), pk('add',qr+e,Ar+e,Cr+e,nb=True), pk('add',qi+e,Ai+e,Ci+e),
          pk('add',ur+e,Br+e,Dr+e), pk('add',ui+e,Bi+e,Di+e,nb=True), pk('add',wr+e,Br+e,Dr+e,nb=True), pk('add',wi+e,Bi+e,Di+e))
    b = lambda r, pl: 156 + (r*2+pl)*4
    for e in (0,2):
        A(pk('add',Z(0,0)+e,pr+e,ur+e), pk('add',Z(0,1)+e,pi+e,ui+e), pk('add',b(2,0)+e,pr+e,ur+e,nb=True), pk('add',b(2,1)+e,pi+e,ui+e,nb=True),
          pk('add',b(1,0)+e,qr+e,wi+e,nb=True), pk('add',b(1,1)+e,qi+e,wr+e), pk('add',b(3,0)+e,qr+e,wi+e), pk('add',b(3,1)+e,qi+e,wr+e,nb=True))
    A("s_lshl_b32 s33, s28, 12", f"s_add_u32 s33, s33, {ZIMG}", "v_add_u32 v5, s33, v3")
    for r in range(4):
        if r:
            for e in (0,2):
                A(pk('mul',Z(r,0)+e,b(r,0)+e,TWc(r)+e), pk('mul',Z(r,1)+e,b(r,0)+e,TWs(r)+e))
            for e in (0,2):
                A(pk('fma',Z(r,0)+e,b(r,1)+e,TWs(r)+e,Z(r,0)+e,na=True), pk('fma',Z(r,1)+e,b(r,1)+e,TWc(r)+e,Z(r,1)+e))
        o = TT + 4*r
        for j in range(4): A(f"v_cvt_pk_bf16_f32 v{o+j}, v{Z(r,0)+2*j}, v{Z(r,0)+2*j+1}")
        A(f"ds_write_b128 v5, {vr(o,4)} offset:{r*1024}")
    A(*Hl.lines[50:])
    A("s_waitcnt lgkmcnt(0)", "s_barrier")
    A("s_cmp_eq_u32 s28, 5", "s_cbranch_scc1 Lk3_end")
    for bb in range(6):
        for r in range(4):
            A(f"ds_read_b128 {vr(ZF(bb,r),4)}, v3 offset:{ZIMG+(bb*4+r)*1024}" if ZIMG+(bb*4+r)*1024 < 65536 else
              f"ds_read_b128 {vr(ZF(bb,r),4)}, v4 offset:{ZIMG+(bb*4+r)*1024-32768}")
            if bb == 0 and r == 0: A("v_add_u32 v4, 0x8000, v3")
    A("s_waitcnt vmcnt(0)")
    for q in range(8):
        A(f"v_lshlrev_b32 v{XU+2*q}, 16, v{XR+q}", f"v_and_b32 v{XU+2*q+1}, 0xffff0000, v{XR+q}",
          f"v_lshlrev_b32 v{GU+2*q}, 16, v{GR+q}", f"v_and_b32 v{GU+2*q+1}, 0xffff0000, v{GR+q}")
    for bb in range(6):
        A(f"s_waitcnt lgkmcnt({min(15,4*(5-bb))})")
        for r in range(4):
            A(f"{M} {vr(ACC(r),4)}, {vr(HF(bb),4)}, {vr(ZF(bb,r),4)}, {'0' if bb==0 else vr(ACC(r),4)}")
    for r in range(4):
        for e in range(4):
            A(f"v_fmac_f32 v{XU+4*e+r}, v{ACC(r)+e}, v{GU+4*e+r}")
    for q in range(8):
        A(f"v_cvt_pk_bf16_f32 v{XR+q}, v{XU+2*q}, v{XU+2*q+1}")
    A(f"buffer_store_dwordx4 {vr(XR,4)}, v6, s[24:27], 0 offen", f"buffer_store_dwordx4 {vr(XR+4,4)}, v6, s[24:27], 0 offen offset:16")
    A("Lk3_end:", "s_endpgm")

def kd(name, vgpr, sgpr=96, accum=None):
    accum = accum or min(256, (vgpr+3)//4*4)
    return f""".amdhsa_kernel {name}
  .amdhsa_next_free_vgpr {vgpr}
  .amdhsa_next_free_sgpr {sgpr}
  .amdhsa_accum_offset {accum}
  .amdhsa_group_segment_fixed_size 0
  .amdhsa_kernarg_size 88
  .amdhsa_user_sgpr_count 2
  .amdhsa_user_sgpr_kernarg_segment_ptr 1
  .amdhsa_system_sgpr_workgroup_id_x 1
.end_amdhsa_kernel
"""

def build(kernels):
    hdr = open(f"cdna_kernels/{NAME}.s.ref").read().split("; Override")[0]
    out = hdr
    for (name, fn, grid, block, lds, vg) in kernels:
        out += f"; @launch kernel={name} grid=({grid},1,1) block=({block},1,1) lds={lds}\n"
    out += '.amdgcn_target "amdgcn-amd-amdhsa--gfx950"\n.text\n'
    seen = []
    for (name, fn, grid, block, lds, vg) in kernels:
        if name in seen: continue
        seen.append(name)
        A = Asm(); fn(A)
        out += f".globl {name}\n.p2align 8\n.type {name},@function\n" + A.text()
    out += '.section .rodata,"a"\n'
    seen = []
    for (name, fn, grid, block, lds, vg) in kernels:
        if name in seen: continue
        seen.append(name)
        out += ".p2align 6\n" + kd(name, vg)
    return out

if __name__ == '__main__':
    ks = [("k1_kernel", k1, 256, 512, 163840, 256), ("k2_kernel", k2, 248, 256, 65536, 288), ("k3_kernel", k3, 256, 384, 98304, 240)]
    open(sys.argv[1] if len(sys.argv) > 1 else 'cur.s', 'w').write(build(ks))
```

```python
import sys, math
from asmlib import *

NAME = "recurrent_scan__spectral_gfnet__dense_activation_gelu__prompt"
H_OFF, H_SZ = 0, 2048*1728*2
T_OFF, T_SZ = 0x800000, 32*11*64*128
U_OFF, U_SZ = 0xC00000, 32*11*64*128
G_OFF, G_SZ = 0x1000000, 2048*640*2
X_SZ = 2048*640*2
W1_SZ = 640*1728*2
WF_SZ = 2048*321*2

def vr(b, n): return f"v[{b}:{b+n-1}]"

def srd(A, d, base, size, off=0):
    if off:
        A(f"s_add_u32 s{d}, s{base}, 0x{off:x}", f"s_addc_u32 s{d+1}, s{base+1}, 0")
    else:
        A(f"s_mov_b32 s{d}, s{base}", f"s_mov_b32 s{d+1}, s{base+1}")
    A(f"s_mov_b32 s{d+2}, {size}", f"s_mov_b32 s{d+3}, 0x00020000")


DIAG = False
DIAG_OFF = 0x2000000
def stamp(A, k):
    if DIAG:
        A(f"s_memrealtime s[{60+2*k}:{61+2*k}]", "s_waitcnt lgkmcnt(0)")
def kstart(A):
    if DIAG:
        for k in range(60, 92): A(f"s_mov_b32 s{k}, 0")
        A("s_memrealtime s[60:61]", "s_memtime s[88:89]", "s_load_dwordx2 s[92:93], s[0:1], 80", "s_waitcnt lgkmcnt(0)")
def kend(A, kid, lab):
    A(f"{lab}:")
    if DIAG:
        A("s_waitcnt vmcnt(0) lgkmcnt(0)", "s_memrealtime s[86:87]", "s_memtime s[90:91]", "s_waitcnt lgkmcnt(0)")
        A(f"s_add_u32 s92, s92, 0x{DIAG_OFF:x}", "s_addc_u32 s93, s93, 0", "s_mov_b32 s94, 0x1000000", "s_mov_b32 s95, 0x00020000")
        A(f"s_add_u32 s96, s2, {kid*256}", "s_lshl_b32 s96, s96, 3", "s_add_u32 s96, s96, s28", "s_lshl_b32 s96, s96, 6", "v_mov_b32 v1, 0")
        for q in range(4):
            for j in range(4): A(f"v_mov_b32 v{4+j}, s{60+2*(4*q+j)}")
            A(f"buffer_store_dwordx4 v[4:7], v1, s[92:95], s96 offen offset:{16*q}", "s_nop 1")
    A("s_endpgm")
    A(f"{lab}_x:", "s_endpgm")

GA = -2*0.7978845608028654*1.4426950408889634
GB = GA*0.044715
ONES = "0x3f803f80"

def row_stats(A, sx, sxx, t0, t1, mean, sq):
    A(f"v_mul_f32 v{mean}, {fl(1/640)}, v{sx}",
      f"v_mul_f32 v{t0}, {fl(1/640)}, v{sxx}",
      f"v_fma_f32 v{t0}, -v{mean}, v{mean}, v{t0}",
      f"v_max_f32 v{t0}, 0, v{t0}",
      f"v_cvt_pk_bf16_f32 v{t0}, v{t0}, v{t0}",
      f"v_lshlrev_b32 v{t0}, 16, v{t0}",
      f"v_add_f32 v{t0}, {fl(1e-5)}, v{t0}",
      f"v_cvt_pk_bf16_f32 v{t0}, v{t0}, v{t0}",
      f"v_lshlrev_b32 v{t0}, 16, v{t0}",
      f"v_sqrt_f32 v{sq}, v{t0}")

def k1(A):
    A("k1_kernel:")
    A("s_cmp_ge_u32 s2, 256", "s_cbranch_scc1 Lk1_end_x")
    kstart(A)
    A("s_load_dwordx2 s[4:5], s[0:1], 0", "s_load_dwordx4 s[6:9], s[0:1], 32"[:0] or "s_load_dwordx2 s[6:7], s[0:1], 32",
      "s_load_dwordx2 s[8:9], s[0:1], 40", "s_load_dwordx2 s[10:11], s[0:1], 80")
    A("v_lshrrev_b32 v1, 6, v0", "v_and_b32 v0, 63, v0", "v_readfirstlane_b32 s28, v1")
    A("s_and_b32 s31, s2, 7", "s_lshr_b32 s32, s2, 3")
    A("s_waitcnt lgkmcnt(0)")
    srd(A, 12, 4, X_SZ); srd(A, 16, 6, W1_SZ); srd(A, 20, 8, 1728*2); srd(A, 24, 10, H_SZ, H_OFF); srd(A, 36, 10, T_SZ, T_OFF)
    A("s_cmp_ge_u32 s32, 28", "s_cbranch_scc1 Lp1")
    A("s_lshr_b32 s29, s31, 1", "s_lshl_b32 s29, s29, 2", "s_and_b32 s33, s32, 3", "s_add_u32 s29, s29, s33")
    A("s_and_b32 s30, s31, 1", "s_mul_i32 s30, s30, 7", "s_lshr_b32 s33, s32, 2", "s_add_u32 s30, s30, s33")
    A("s_cmp_lt_u32 s28, 4", "s_cbranch_scc1 Lg1c")
    g1_loader(A)
    A("Lg1c:")
    g1_compute(A)
    A("Lp1:")
    p1(A)
    kend(A, 0, "Lk1_end")

NST, RING = 10, 5
def g1_loader(A):
    A("s_sub_u32 s33, s28, 4")
    A("v_lshrrev_b32 v1, 3, v0",
      "v_and_b32 v2, 7, v0",
      "v_lshrrev_b32 v3, 4, v0",
      "s_lshl_b32 s34, s29, 7", "s_lshl_b32 s35, s33, 5", "s_add_u32 s34, s34, s35",
      "v_add_u32 v1, s34, v1",
      "s_movk_i32 s35, 1280",
      "v_mul_lo_u32 v1, v1, s35",
      "v_xor_b32 v8, v2, v3",
      "v_xor_b32 v9, 4, v8",
      "v_lshl_add_u32 v4, v8, 4, v1",
      "v_lshl_add_u32 v5, v9, 4, v1",
      "v_add_u32 v5, 10240, v5",
      "v_add_u32 v6, 20480, v4",
      "v_add_u32 v7, 20480, v5")
    A("v_and_b32 v2, 15, v0", "v_lshlrev_b32 v8, 2, v3", "v_xor_b32 v2, v2, v8",
      "s_lshl_b32 s34, s33, 4", "v_add_u32 v8, s34, v3", "s_movk_i32 s35, 3456", "v_mul_lo_u32 v8, v8, s35",
      "s_lshl_b32 s34, s30, 8", "v_lshl_add_u32 v10, v2, 4, v8", "v_add_u32 v10, s34, v10")
    A("s_cmp_eq_u32 s30, 13", "s_cselect_b32 s34, 8, 16",
      "v_cmp_le_u32 vcc, s34, v2", "v_mov_b32 v8, 0x80000000", "s_nop 0", "v_cndmask_b32 v10, v10, v8, vcc")
    A("s_lshl_b32 s40, s33, 12")
    def issue(st):
        slot = (st % RING) * 32768
        A(f"s_movk_i32 s41, {st*128}")
        for q in range(4):
            A(f"s_add_u32 m0, s40, {slot + q*1024}", f"s_mov_b32 s42, {st*64*3456 + q*4*3456}",
              f"buffer_load_dwordx4 v{4+q}, s[12:15], s41 offen lds")
            A(f"s_add_u32 m0, s40, {slot + 16384 + q*1024}", "s_nop 0",
              f"buffer_load_dwordx4 v10, s[16:19], s42 offen lds")
    for st in range(RING): issue(st)
    for st in range(NST):
        issued = min(NST-1, max(RING-1, st+RING-2))
        A(f"s_waitcnt vmcnt({8*(issued-st)})", "s_barrier")
        if st >= 1 and st+RING-1 < NST: issue(st+RING-1)
    A("s_branch Lk1_end")

def g1_compute(A):
    ACC = lambda mt, nt: 16 + (mt*2+nt)*16
    FB = lambda p, kk, w: 80 + p*64 + kk*16 + w*4
    XA = lambda kk, nt: 208 + kk*2 + nt
    WA = lambda mt: 216 + mt
    SX, SXX, CS, B1 = 218, 219, 220, 221
    A("s_and_b32 s33, s28, 1", "s_lshr_b32 s34, s28, 1")
    A("v_and_b32 v1, 31, v0", "v_lshrrev_b32 v2, 5, v0")
    A("s_lshl_b32 s35, s30, 7", "s_lshl_b32 s40, s33, 6", "s_add_u32 s35, s35, s40", "s_lshl_b32 s40, s34, 5", "s_add_u32 s35, s35, s40",
      "v_add_lshl_u32 v3, v1, s35, 1", f"v_mov_b32 v{B1}, 0",
      f"buffer_load_short_d16_hi v{B1}, v3, s[20:23], 0 offen")
    A("s_lshl_b32 s35, s34, 13", "s_lshl_b32 s40, s33, 12", "s_add_u32 s35, s35, s40",
      "v_lshl_add_u32 v3, v1, 7, s35", "v_bfe_u32 v4, v0, 1, 3", "v_xor_b32 v4, v4, v2")
    for kk in range(4):
        A(f"v_xor_b32 v5, {2*kk}, v4", f"v_lshl_add_u32 v{XA(kk,0)}, v5, 4, v3", f"v_xor_b32 v{XA(kk,1)}, 0x1000, v{XA(kk,0)}")
    A("v_bfe_u32 v4, v0, 2, 2",
      "v_lshl_add_u32 v5, v2, 3, v4", "v_lshlrev_b32 v5, 8, v5",
      "v_bfe_u32 v6, v0, 4, 1", "v_lshl_add_u32 v5, v6, 5, v5",
      "v_and_b32 v6, 3, v0", "v_lshl_add_u32 v5, v6, 3, v5",
      "s_lshl_b32 s35, s33, 1", "s_add_u32 s35, s35, s34",
      "v_xor_b32 v6, s35, v4", f"v_lshl_add_u32 v{WA(0)}, v6, 6, v5", f"v_xor_b32 v{WA(1)}, 64, v{WA(0)}")
    A(f"v_mov_b32 v{SX}, 0", f"v_mov_b32 v{SXX}, 0", f"v_mov_b32 v{CS}, 0", f"s_mov_b32 s41, {ONES}")
    base = [0]
    def reads(st):
        p = st & 1; slot = (st % RING) * 32768
        L = []
        nb = slot & ~0xffff
        if nb != base[0]:
            d = nb - base[0]
            for r in range(208, 218):
                L.append(f"v_add_u32 v{r}, 0x{d & 0xffffffff:x}, v{r}")
            base[0] = nb
        so = slot - nb
        for kk in range(4):
            for mt in range(2):
                for jh in range(2):
                    L.append(f"ds_read_b64_tr_b16 {vr(FB(p,kk,2+mt)+2*jh,2)}, v{WA(mt)} offset:{so+16384+(16*kk+4*jh)*256}")
            for nt in range(2):
                L.append(f"ds_read_b128 {vr(FB(p,kk,nt),4)}, v{XA(kk,nt)} offset:{so}")
        return L
    def mfmas(st):
        p = st & 1; L = []
        for kk in range(4):
            for mt in range(2):
                for nt in range(2):
                    c = "0" if (st == 0 and kk == 0) else vr(ACC(mt,nt),16)
                    L.append(f"v_mfma_f32_32x32x16_bf16 {vr(ACC(mt,nt),16)}, {vr(FB(p,kk,2+mt),4)}, {vr(FB(p,kk,nt),4)}, {c}")
        return L
    def dots(st):
        p = st & 1; L = []
        for kk in range(4):
            for j in range(4):
                L.append(f"v_dot2c_f32_bf16 v{SX}, s41, v{FB(p,kk,0)+j}")
                L.append(f"v_dot2c_f32_bf16 v{SXX}, v{FB(p,kk,0)+j}, v{FB(p,kk,0)+j}")
                L.append(f"v_dot2c_f32_bf16 v{CS}, s41, v{FB(p,kk,2)+j}")
        return L
    for st in range(NST):
        A("s_barrier")
        if st == 0:
            A(*reads(0))
        else:
            A(*spread(mfmas(st-1)[:12], reads(st)))
            A(*mfmas(st-1)[12:])
            A(*dots(st-1))
        A("s_waitcnt lgkmcnt(0)")
        stamp(A, 1+st)
    A(*dots(NST-1))
    M = mfmas(NST-1)
    F = Asm()
    for r in (SX, SXX, CS):
        F(f"v_mov_b32 v3, v{r}", "s_nop 1", f"v_permlane32_swap_b32 v{r}, v3", f"v_add_f32 v{r}, v{r}, v3")
    row_stats(F, SX, SXX, 3, 4, 5, 6)
    XF0, WF0, XF1, WF1 = 224, 228, 232, 236
    F(f"v_cvt_pk_bf16_f32 v{XF0}, -v5, -v5", f"v_cvt_pk_bf16_f32 v{XF0+1}, -v5, v6")
    F(f"v_cvt_pk_bf16_f32 v3, v{CS}, v{CS}", "v_lshlrev_b32 v3, 16, v3", f"v_sub_f32 v3, v{CS}, v3",
      f"v_cvt_pk_bf16_f32 v{WF0}, v{CS}, v3", f"v_and_b32 v4, 0xffff0000, v{WF0}", "v_sub_f32 v3, v3, v4",
      "s_waitcnt vmcnt(0)", f"v_cvt_pk_bf16_f32 v{WF0+1}, v3, v{B1}")
    F("s_lshl_b32 s35, s34, 9", "s_lshl_b32 s40, s33, 8", "s_add_u32 s35, s35, s40", "v_lshl_add_u32 v7, v1, 3, s35",
      "s_lshl_b32 s35, s33, 9", "s_lshl_b32 s40, s34, 8", "s_add_u32 s35, s35, s40", "v_lshl_add_u32 v8, v1, 3, s35",
      f"ds_write_b64 v7, {vr(XF0,2)}", f"ds_write_b64 v8, {vr(WF0,2)} offset:1024",
      "v_xor_b32 v7, 0x100, v7", "v_xor_b32 v8, 0x100, v8")
    for r in (XF0, WF0, XF1, WF1):
        F(f"v_mov_b32 v{r+2}, 0", f"v_mov_b32 v{r+3}, 0")
    A(*spread(M[:12], F.lines))
    A("s_waitcnt lgkmcnt(0)", "s_barrier")
    A(f"ds_read_b64 {vr(XF1,2)}, v7", f"ds_read_b64 {vr(WF1,2)}, v8 offset:1024")
    A(*M[12:])
    A("v_cmp_eq_u32 vcc, 0, v2", "s_waitcnt lgkmcnt(0)")
    for r in (WF0, WF0+1, WF1, WF1+1):
        A(f"v_cndmask_b32 v{r}, 0, v{r}, vcc")
    for mt in range(2):
        for nt in range(2):
            A(f"v_mfma_f32_32x32x16_bf16 {vr(ACC(mt,nt),16)}, {vr((WF0,WF1)[mt],4)}, {vr((XF0,XF1)[nt],4)}, {vr(ACC(mt,nt),16)}")
    for nt in range(2):
        c = 240 + 4*nt
        A(f"v_and_b32 v{c+2}, 0xffff0000, v{(XF0,XF1)[nt]+1}", f"v_rcp_f32 v3, v{c+2}",
          f"v_mul_f32 v{c}, {fl(GA)}, v3", "v_mul_f32 v4, v3, v3", "v_mul_f32 v4, v4, v3", f"v_mul_f32 v{c+1}, {fl(GB)}, v4")
    stamp(A, 11)
    A("s_lshl_b32 s35, s30, 1", "s_add_u32 s35, s35, s33", "s_cmp_ge_u32 s35, 27", "s_cbranch_scc1 Lk1_end")
    for mt in range(2):
        for nt in range(2):
            s = 44 + mt*2 + nt
            A("s_lshl_b32 s40, s29, 2", "s_lshl_b32 s42, s34, 1", "s_add_u32 s40, s40, s42", f"s_xor_b32 s42, s33, {nt}", "s_add_u32 s40, s40, s42",
              "s_mulk_i32 s40, 108", "s_lshl_b32 s42, s35, 2", "s_add_u32 s40, s40, s42", f"s_xor_b32 s42, s34, {mt}", "s_lshl_b32 s42, s42, 1",
              "s_add_u32 s40, s40, s42", f"s_lshl_b32 s{s}, s40, 10")
    A("v_lshlrev_b32 v9, 4, v0")
    T0, T1 = 80, 96
    n = 0
    for mt in range(2):
        for nt in range(2):
            c = 240 + 4*nt
            for half in range(2):
                a0 = ACC(mt,nt) + 8*half
                t = 80 + (n % 2)*16; o = 112 + (n % 4)*4; n += 1
                P = range(4)
                for i in P: A(f"v_pk_mul_f32 {vr(t+2*i,2)}, {vr(a0+2*i,2)}, {vr(a0+2*i,2)}")
                for i in P: A(f"v_pk_fma_f32 {vr(t+2*i,2)}, {vr(t+2*i,2)}, {vr(c,2)}, {vr(c,2)} op_sel:[0,1,0] op_sel_hi:[1,1,0]")
                for i in P: A(f"v_pk_mul_f32 {vr(t+2*i,2)}, {vr(t+2*i,2)}, {vr(a0+2*i,2)}")
                for i in range(8): A(f"v_exp_f32 v{t+i}, v{t+i}")
                for i in P: A(f"v_pk_fma_f32 {vr(t+2*i,2)}, {vr(t+2*i,2)}, {vr(c+2,2)}, {vr(c+2,2)} op_sel:[0,0,0] op_sel_hi:[1,0,0]")
                for i in range(8): A(f"v_rcp_f32 v{t+i}, v{t+i}")
                for i in P: A(f"v_pk_mul_f32 {vr(t+2*i,2)}, {vr(t+2*i,2)}, {vr(a0+2*i,2)}")
                for i in P: A(f"v_cvt_pk_bf16_f32 v{o+i}, v{t+2*i}, v{t+2*i+1}")
                A(f"buffer_store_dwordx4 {vr(o,4)}, v9, s[24:27], s{44+mt*2+nt} offen offset:{half*1024}")
    A("s_branch Lk1_end")

def p1(A):
    BC = lambda u: 16 + 8*u
    BS = lambda u: 20 + 8*u
    TW = 56
    AF = lambda p, u: 64 + p*20 + 4*u
    AP = lambda p: 104 + 8*p
    AQ = lambda p: 108 + 8*p
    OUT = lambda par, i: 120 + par*8 + i
    TMP = 136
    YF = lambda o, pl: 152 + (o*2+pl)*4
    FP = lambda nt, pl: 184 + (nt*3+pl)*4
    TA = 208; PK = 240
    FPIMG = 81920
    A("s_sub_u32 s29, s32, 28", "s_lshl_b32 s29, s29, 3", "s_add_u32 s29, s29, s31", "s_lshl_b32 s29, s29, 1")
    A("s_lshr_b32 s33, s28, 2", "s_add_u32 s33, s33, s29",
      "s_and_b32 s34, s28, 3", "s_lshl_b32 s34, s34, 9", "s_add_u32 s33, s33, s34",
      "s_mulk_i32 s33, 1280",
      "s_mul_i32 s34, s28, 10240",
      "s_mov_b32 s35, 81920", "s_movk_i32 s40, 820")
    for i in range(10):
        A(f"v_add_u32 v1, {64*i}, v0", "v_mul_u32_u24 v2, s40, v1", "v_lshrrev_b32 v2, 16, v2",
          "v_mul_u32_u24 v3, 80, v2", "v_sub_u32 v3, v1, v3",
          "v_and_b32 v4, 3, v2", "v_lshlrev_b32 v4, 2, v4", "v_xor_b32 v3, v3, v4",
          "v_mul_u32_u24 v2, s35, v2", "v_lshl_add_u32 v2, v3, 4, v2",
          f"s_add_u32 m0, s34, {1024*i}", "s_nop 0",
          "buffer_load_dwordx4 v2, s[12:15], s33 offen lds")
    A("s_and_b32 s41, s28, 1", "s_add_u32 s41, s41, 4", "s_lshr_b32 s42, s28, 1", "s_and_b32 s42, s42, 1",
      "s_cmp_lt_u32 s28, 4", "s_cselect_b32 s43, s28, s41", "s_cselect_b32 s44, 0, s42",
      "s_cselect_b32 s45, 1, 0")
    A("v_and_b32 v1, 15, v0", "v_lshrrev_b32 v2, 4, v0")
    A("s_lshl_b32 s41, s43, 4", "v_add_u32 v3, s41, v1", "v_cvt_f32_u32 v4, v3",
      f"v_mul_f32 v5, {fl(1/160)}, v4",
      "v_cvt_f32_u32 v6, v2", "v_mul_f32 v6, 4.0, v6", "v_mul_f32 v6, v6, v5")
    for u in range(5):
        for jp in range(4):
            for e in range(2):
                j = 2*jp+e; c = 32*u + 16*(j>>2) + (j&3)
                A(f"v_fmamk_f32 v{8+e}, v5, {fl(float(c))}, v6")
            A("v_cos_f32 v10, v8", "v_cos_f32 v11, v9", "v_sin_f32 v12, v8", "v_sin_f32 v13, v9",
              f"v_cvt_pk_bf16_f32 v{BC(u)+jp}, v10, v11", f"v_cvt_pk_bf16_f32 v{BS(u)+jp}, -v12, -v13")
    for r in (1,2,3):
        A(f"v_mul_f32 v8, {fl(r/640)}, v4", f"v_cos_f32 v{TW+2*r-2}, v8", f"v_sin_f32 v{TW+2*r-1}, v8")
    A("v_cmp_eq_u32 vcc, 0, v3", f"v_mov_b32 v8, {fl(-640.0)}", "s_nop 0", "v_cndmask_b32 v62, 0, v8, vcc")
    A("v_and_b32 v8, 3, v0", "v_bfe_u32 v9, v0, 3, 1", "v_lshl_add_u32 v9, v2, 1, v9", "v_lshlrev_b32 v10, 2, v8", "v_xor_b32 v9, v9, v10",
      "v_mul_u32_u24 v10, 1280, v8", "v_lshl_add_u32 v10, v9, 4, v10", "v_bfe_u32 v9, v0, 2, 1", "v_lshl_add_u32 v14, v9, 3, v10",
      "s_mul_i32 s41, s44, 40960", "v_add_u32 v14, s41, v14", "v_xor_b32 v15, 128, v14")
    A("s_mov_b32 s41, 90112", "v_mul_lo_u32 v63, v1, s41", "v_lshl_add_u32 v63, v2, 4, v63",
      "s_mul_i32 s41, s44, 6144", f"s_add_u32 s41, s41, {FPIMG}", "v_lshl_add_u32 v7, v0, 4, s41")
    A("s_cmp_lt_u32 s28, 4", "s_cbranch_scc1 Lp1_w03")
    A("s_and_b32 s46, s28, 1")
    A("s_lshl_b32 s41, s46, 10", "s_add_u32 s41, s41, s29", "s_add_u32 s41, s41, s44",
      "v_lshl_add_u32 v8, v2, 6, s41", "v_cvt_f32_u32 v8, v8", f"v_mul_f32 v8, {fl(1/2048)}, v8",
      "v_cvt_f32_u32 v9, v1", "v_add_f32 v10, 0x41800000, v9")
    for tt in range(4):
        A(f"v_add_f32 v11, {fl(tt*256/2048)}, v8")
        for nt in range(2):
            A(f"v_mul_f32 v12, v11, v{9+nt}", f"v_cos_f32 v{208+nt*4+tt}, v12", f"v_sin_f32 v{216+nt*4+tt}, v12")
    A("s_lshl_b32 s41, s44, 5", "s_lshl_b32 s42, s46, 4", "s_add_u32 s41, s41, s42",
      "v_lshrrev_b32 v8, 2, v0", "v_add_u32 v9, s41, v8", "v_mul_u32_u24 v9, 1280, v9",
      "v_and_b32 v10, 3, v0", "v_lshl_add_u32 v9, v10, 4, v9", "v_and_b32 v8, 3, v8")
    for ii in range(4):
        A(f"v_xor_b32 v10, {ii}, v8", f"v_lshl_add_u32 v{224+ii}, v10, 6, v9")
    A("v_mov_b32 v228, 0", "v_mov_b32 v229, 0", "v_mov_b32 v230, 0", "v_mov_b32 v231, 0", f"s_mov_b32 s47, {ONES}")
    A("s_waitcnt vmcnt(0)", "s_barrier")
    for I in range(5):
        for ii in range(4):
            A(f"ds_read_b128 {vr(64+(I*4+ii)*4,4)}, v{224+ii} offset:{256*I}")
    for I in range(5):
        A(f"s_waitcnt lgkmcnt({min(15,4*(4-I))})")
        for j in range(16):
            r = 64 + I*16 + j
            A(f"v_dot2c_f32_bf16 v{228+(j&1)}, s47, v{r}", f"v_dot2c_f32_bf16 v{230+(j&1)}, v{r}, v{r}")
    A("v_add_f32 v228, v228, v229", "v_add_f32 v230, v230, v231")
    for qp in ("[1,0,3,2]", "[2,3,0,1]"):
        A(f"v_add_f32_dpp v228, v228, v228 quad_perm:{qp} row_mask:0xf bank_mask:0xf",
          f"v_add_f32_dpp v230, v230, v230 quad_perm:{qp} row_mask:0xf bank_mask:0xf")
    row_stats(A, 228, 230, 8, 9, 10, 11)
    A("v_cvt_pk_bf16_f32 v11, v11, v11", "v_lshlrev_b32 v11, 16, v11", "v_rcp_f32 v11, v11",
      "v_lshlrev_b32 v8, 4, v2")
    for tt in range(4):
        A(f"ds_bpermute_b32 v{232+tt}, v8, v11 offset:{64*tt}")
    A("s_lshl_b32 s41, s46, 3", "v_add_u32 v9, s41, v7", "s_waitcnt lgkmcnt(0)")
    for nt in range(2):
        for tt in range(4):
            A(f"v_mul_f32 v{208+nt*4+tt}, v{208+nt*4+tt}, v{232+tt}", f"v_mul_f32 v{216+nt*4+tt}, v{216+nt*4+tt}, v{232+tt}")
        c = 208+nt*4; s = 216+nt*4; o = 236 + nt*6
        A(f"v_cvt_pk_bf16_f32 v{o}, v{c}, v{c+1}", f"v_cvt_pk_bf16_f32 v{o+1}, v{c+2}, v{c+3}",
          f"v_cvt_pk_bf16_f32 v{o+2}, v{s}, v{s+1}", f"v_cvt_pk_bf16_f32 v{o+3}, v{s+2}, v{s+3}",
          f"v_cvt_pk_bf16_f32 v{o+4}, -v{s}, -v{s+1}", f"v_cvt_pk_bf16_f32 v{o+5}, -v{s+2}, -v{s+3}")
        for pl in range(3):
            A(f"ds_write_b64 v9, {vr(o+2*pl,2)} offset:{(nt*3+pl)*1024}")
    A("s_waitcnt lgkmcnt(0)", "s_barrier", "s_branch Lp1_unit")
    A("Lp1_w03:")
    A("s_waitcnt vmcnt(0)", "s_barrier")
    stamp(A, 1)
    A("Lp1_unit:")
    stamp(A, 2)
    def reads(t):
        return [f"ds_read_b64_tr_b16 {vr(AF(t&1,u)+2*jh,2)}, v{14+jh} offset:{t*5120+u*256}" for u in range(5) for jh in range(2)]
    def mf(t):
        L = []
        for u in range(5):
            for (acc, B) in ((AP(t&1), BC(u)), (AQ(t&1), BS(u))):
                L.append(f"v_mfma_f32_16x16x32_bf16 {vr(acc,4)}, {vr(AF(t&1,u),4)}, {vr(B,4)}, {'0' if u==0 else vr(acc,4)}")
        return L
    def bfly(t):
        P = AP(t&1); Q = AQ(t&1); O = lambda i: OUT(t&1, i)
        c1,s1,c2,s2,c3,s3 = range(TW, TW+6)
        pr,pi,qr,qi,ar,ai,ur,ui,wr_,wi_,tt = range(TMP, TMP+11)
        L = [f"v_fma_f32 v{pr}, v{P+2}, v{c2}, v{P}", f"v_fma_f32 v{pi}, v{Q+2}, v{c2}, v{Q}",
             f"v_mul_f32 v{ar}, v{P+1}, v{c1}", f"v_mul_f32 v{ai}, v{Q+1}, v{c1}",
             f"v_fmac_f32 v{pr}, v{Q+2}, v{s2}", f"v_fma_f32 v{pi}, -v{P+2}, v{s2}, v{pi}",
             f"v_fmac_f32 v{ar}, v{Q+1}, v{s1}", f"v_fma_f32 v{ai}, -v{P+1}, v{s1}, v{ai}",
             f"v_fma_f32 v{qr}, 2.0, v{P}, -v{pr}", f"v_fma_f32 v{qi}, 2.0, v{Q}, -v{pi}",
             f"v_fma_f32 v{ur}, v{P+3}, v{c3}, v{ar}", f"v_fma_f32 v{ui}, v{Q+3}, v{c3}, v{ai}",
             f"v_fmac_f32 v{ur}, v{Q+3}, v{s3}", f"v_fma_f32 v{ui}, -v{P+3}, v{s3}, v{ui}",
             f"v_fma_f32 v{wr_}, 2.0, v{ar}, -v{ur}", f"v_fma_f32 v{wi_}, 2.0, v{ai}, -v{ui}",
             f"v_add_f32 v{O(0)}, v{pr}, v{ur}", f"v_add_f32 v{O(1)}, v{pi}, v{ui}",
             f"v_mul_f32 v{tt}, {fl(1/640)}, v{O(0)}",
             f"v_sub_f32 v{O(6)}, v{pr}, v{ur}", f"v_sub_f32 v{O(7)}, v{ui}, v{pi}",
             f"v_cvt_pk_bf16_f32 v{tt}, v{tt}, v{tt}",
             f"v_sub_f32 v{O(2)}, v{qr}, v{wi_}", f"v_fma_f32 v{O(3)}, -1.0, v{qi}, -v{wr_}",
             f"v_lshlrev_b32 v{tt}, 16, v{tt}",
             f"v_add_f32 v{O(4)}, v{qr}, v{wi_}", f"v_sub_f32 v{O(5)}, v{qi}, v{wr_}",
             f"v_fmac_f32 v{O(0)}, v{tt}, v62"]
        if t & 1:
            for i in (1,2,3,4,5,6,7,0):
                L.append(f"v_cvt_pk_bf16_f32 v{YF(i>>1,i&1)+(t>>1)}, v{OUT(0,i)}, v{OUT(1,i)}")
        return L
    A(*reads(0))
    for t in range(9):
        if t == 4:
            A("s_cmp_eq_u32 s45, 0", "s_cbranch_scc1 Lp1_nob", "s_barrier", "Lp1_nob:")
        if t < 8:
            A("s_waitcnt lgkmcnt(0)")
            fill = (reads(t+1) if t < 7 else [f"ds_read_b128 {vr(FP(nt,pl),4)}, v7 offset:{(nt*3+pl)*1024}" for nt in range(2) for pl in range(3)])
            fill = fill + (bfly(t-1) if t >= 1 else [])
            A(*spread(mf(t), fill))
        else:
            A(*bfly(7))
    A("s_waitcnt lgkmcnt(0)")
    stamp(A, 3)
    A("s_add_u32 s41, s29, s44", "s_lshl_b32 s41, s41, 7", "s_lshl_b32 s42, s43, 13", "s_add_u32 s41, s41, s42",
      f"s_add_u32 s42, s41, {16*90112}", f"s_add_u32 s46, s41, {6*8192}", f"s_add_u32 s47, s42, {6*8192}")
    for typ, kinds in ((0,(0,2)), (1,(1,3))):
        if typ == 1:
            A("s_cmp_eq_u32 s43, 5", "s_cbranch_scc1 Lk1_end")
        n = 0
        for tile, o in enumerate(kinds):
            for nt in range(2):
                re = TA + n*8; im = re + 4; n += 1
                A(f"v_mfma_f32_16x16x32_bf16 {vr(re,4)}, {vr(YF(o,0),4)}, {vr(FP(nt,0),4)}, 0",
                  f"v_mfma_f32_16x16x32_bf16 {vr(im,4)}, {vr(YF(o,1),4)}, {vr(FP(nt,0),4)}, 0",
                  f"v_mfma_f32_16x16x32_bf16 {vr(re,4)}, {vr(YF(o,1),4)}, {vr(FP(nt,1),4)}, {vr(re,4)}",
                  f"v_mfma_f32_16x16x32_bf16 {vr(im,4)}, {vr(YF(o,0),4)}, {vr(FP(nt,2),4)}, {vr(im,4)}")
        n = 0
        for tile, o in enumerate(kinds):
            for nt in range(2):
                re = TA + n*8; pk = PK + n*4; n += 1
                for j in range(4):
                    A(f"v_cvt_pk_bf16_f32 v{pk+j}, v{re+2*j}, v{re+2*j+1}")
                so = ((41,42),(46,47))[typ][nt]
                A(f"buffer_store_dwordx4 {vr(pk,4)}, v63, s[36:39], s{so} offen offset:{tile*64}")
    A("s_cmp_eq_u32 s45, 0", "s_cbranch_scc1 Lk1_end")
    A("s_mov_b32 s45, 0", "s_mov_b32 s44, 1", "v_add_u32 v14, 40960, v14", "v_add_u32 v15, 40960, v15", "v_add_u32 v7, 6144, v7", "s_branch Lp1_unit")

def k2(A):
    A("k2_kernel:")
    A("s_cmp_ge_u32 s2, 248", "s_cbranch_scc1 Lk2_end_x")
    kstart(A)
    A("s_load_dwordx4 s[4:7], s[0:1], 8", "s_load_dwordx4 s[8:11], s[0:1], 48", "s_load_dwordx2 s[40:41], s[0:1], 80")
    A("v_lshrrev_b32 v1, 6, v0", "v_and_b32 v0, 63, v0", "v_readfirstlane_b32 s28, v1")
    A("s_and_b32 s31, s2, 7", "s_lshr_b32 s32, s2, 3")
    A("s_waitcnt lgkmcnt(0)")
    A("s_cmp_ge_u32 s32, 20", "s_cbranch_scc1 Lp2")
    srd(A, 12, 40, H_SZ, H_OFF); srd(A, 16, 8, W1_SZ); srd(A, 20, 10, 640*2); srd(A, 24, 40, G_SZ, G_OFF)
    g2(A)
    A("Lp2:")
    srd(A, 12, 40, T_SZ, T_OFF); srd(A, 16, 4, WF_SZ); srd(A, 20, 6, WF_SZ); srd(A, 24, 40, U_SZ, U_OFF)
    p2(A)
    kend(A, 1, "Lk2_end")

def g2(A):
    NS, R = 27, 8
    ACC = lambda mt: 16 + 16*mt
    WB = lambda p, kt, mt: 48 + p*32 + kt*8 + mt*4
    HA = lambda st, kt: 112 + (st % R)*16 + kt*4
    A("s_lshr_b32 s29, s31, 1", "s_lshl_b32 s29, s29, 2", "s_and_b32 s33, s32, 3", "s_add_u32 s29, s29, s33")
    A("s_and_b32 s30, s31, 1", "s_mul_i32 s30, s30, 5", "s_lshr_b32 s33, s32, 2", "s_add_u32 s30, s30, s33")
    A("s_lshl_b32 s33, s29, 2", "s_add_u32 s33, s33, s28", f"s_mul_i32 s34, s33, {108*1024}", "v_lshl_add_u32 v2, v0, 4, s34")
    A("v_lshrrev_b32 v4, 3, v0", "s_lshl_b32 s34, s28, 4", "v_add_u32 v4, s34, v4", "v_mul_u32_u24 v4, 1280, v4",
      "v_and_b32 v5, 7, v0", "v_bfe_u32 v6, v0, 4, 1", "v_lshlrev_b32 v6, 1, v6", "v_xor_b32 v5, v5, v6",
      "v_lshl_add_u32 v3, v5, 4, v4", "s_lshl_b32 s34, s30, 7", "v_add_u32 v3, s34, v3", "v_add_u32 v4, 10240, v3",
      "s_lshl_b32 s35, s28, 11")
    def loadB(st):
        slot = (st % R)*8192
        return [f"s_mov_b32 s36, {st*64*1280}", f"s_add_u32 m0, s35, {slot}", "s_nop 0", "buffer_load_dwordx4 v3, s[16:19], s36 offen lds",
                f"s_add_u32 m0, s35, {slot+1024}", "s_nop 0", "buffer_load_dwordx4 v4, s[16:19], s36 offen lds"]
    def loadA(st):
        return [f"s_mov_b32 s37, {st*4096}"] + [f"buffer_load_dwordx4 {vr(HA(st,kt),4)}, v2, s[12:15], s37 offen offset:{kt*1024}" for kt in range(4)]
    A("v_bfe_u32 v5, v0, 2, 1", "v_lshlrev_b32 v5, 5, v5", "v_bfe_u32 v6, v0, 3, 2", "v_lshl_add_u32 v5, v6, 2, v5",
      "v_and_b32 v6, 3, v0", "v_add_u32 v5, v5, v6", "v_lshl_add_u32 v5, v5, 1, s34",
      "buffer_load_ushort v240, v5, s[20:23], 0 offen", "buffer_load_ushort v244, v5, s[20:23], 0 offen offset:32")
    for st in range(R):
        A(*loadB(st)); A(*loadA(st))
    for r in (241,242,243,245,246,247,249,250,251): A(f"v_mov_b32 v{r}, 0")
    A("v_cmp_gt_u32 vcc, 32, v0", "v_mov_b32 v5, 0x3f80", "s_nop 0", "v_cndmask_b32 v248, 0, v5, vcc")
    A("v_lshrrev_b32 v5, 5, v0", "v_bfe_u32 v8, v0, 2, 2", "v_lshl_add_u32 v5, v5, 2, v8", "v_lshlrev_b32 v5, 7, v5",
      "v_and_b32 v8, 1, v0", "v_lshl_add_u32 v5, v8, 6, v5", "v_bfe_u32 v8, v0, 4, 1", "v_lshl_add_u32 v5, v8, 4, v5",
      "v_bfe_u32 v8, v0, 1, 1", "v_lshl_add_u32 v5, v8, 3, v5", "v_bfe_u32 v8, v0, 3, 1", "v_lshl_add_u32 v6, v8, 5, v5", "v_xor_b32 v7, 32, v6")
    A("v_and_b32 v8, 31, v0", "s_lshl_b32 s36, s33, 5", "v_add_u32 v8, s36, v8", "v_mul_u32_u24 v8, 1280, v8",
      "v_lshrrev_b32 v9, 5, v0", "v_lshl_add_u32 v9, v9, 6, v8", "v_add_u32 v9, s34, v9")
    def reads(st):
        slot = (st % R)*8192
        return [f"ds_read_b64_tr_b16 {vr(WB(st&1,kt,mt)+2*jh,2)}, v{6+mt} offset:{slot+(16*kt+8*jh)*128}" for kt in range(4) for mt in range(2) for jh in range(2)]
    def mf(st):
        return [f"v_mfma_f32_32x32x16_bf16 {vr(ACC(mt),16)}, {vr(WB(st&1,kt,mt),4)}, {vr(HA(st,kt),4)}, {vr(ACC(mt),16)}" for kt in range(4) for mt in range(2)]
    for st in range(NS):
        last = min(NS-1, max(R-1, st+R-2))
        A(f"s_waitcnt vmcnt({4+6*(last-st)})", "s_barrier")
        if st == 0:
            A(*reads(0))
            for mt in range(2):
                A(f"v_mfma_f32_32x32x16_bf16 {vr(ACC(mt),16)}, {vr(240+4*mt,4)}, v[248:251], 0")
        else:
            nx = st-1+R
            fill = reads(st)
            if nx < NS: fill = loadB(nx) + fill
            A(*spread(mf(st-1)[:7], fill)); A(mf(st-1)[7])
            if nx < NS: A(*loadA(nx))
        A("s_waitcnt lgkmcnt(0)")
        if st % 3 == 0 or st == NS-1: stamp(A, 1+(st+2)//3)
    A("s_waitcnt vmcnt(0)")
    A(*mf(NS-1))
    A(f"s_mov_b32 s36, {fl(-1.4426950408889634)}", "s_mov_b32 s38, 1.0")
    for q in range(4):
        a0 = 16 + 8*q; t = 48 + (q&1)*8; o = 64 + q*4
        P = range(4)
        for i in P: A(f"v_pk_mul_f32 {vr(t+2*i,2)}, {vr(a0+2*i,2)}, s[36:37] op_sel_hi:[1,0]")
        for i in range(8): A(f"v_exp_f32 v{t+i}, v{t+i}")
        for i in P: A(f"v_pk_add_f32 {vr(t+2*i,2)}, {vr(t+2*i,2)}, s[38:39] op_sel_hi:[1,0]")
        for i in range(8): A(f"v_rcp_f32 v{t+i}, v{t+i}")
        for i in P: A(f"v_pk_mul_f32 {vr(t+2*i,2)}, {vr(t+2*i,2)}, {vr(a0+2*i,2)}")
        for i in P: A(f"v_cvt_pk_bf16_f32 v{o+i}, v{t+2*i}, v{t+2*i+1}")
        A(f"buffer_store_dwordx4 {vr(o,4)}, v9, s[24:27], 0 offen offset:{16*q}")
    A("s_branch Lk2_end")

def p2(A):
    C = lambda t, ks: vr(16 + (t*2+ks)*4, 4)
    S = lambda t, ks: vr(48 + (t*2+ks)*4, 4)
    N = lambda t, ks: f"a[{(t*2+ks)*4}:{(t*2+ks)*4+3}]"
    WV = lambda tau, pl, t, e: 80 + tau*32 + pl*16 + t*4 + e
    TB = lambda tau, ks, pl: 144 + tau*16 + (ks*2+pl)*4
    XA = lambda tau, pl, t: 176 + tau*32 + pl*16 + t*4
    PK = 240
    A("s_sub_u32 s33, s32, 20", "s_lshl_b32 s33, s33, 2", "s_add_u32 s33, s33, s28",
      "s_mul_i32 s34, s33, 47", "s_lshr_b32 s34, s34, 9",
      "s_mul_i32 s35, s34, 11", "s_sub_u32 s30, s33, s35",
      "s_lshl_b32 s29, s31, 2", "s_add_u32 s29, s29, s34")
    A("s_mul_i32 s33, s29, 90112", "s_lshl_b32 s34, s30, 13", "s_add_u32 s33, s33, s34", "s_lshl_b32 s35, s28, 13",
      "v_lshlrev_b32 v3, 4, v0", "s_mov_b32 m0, s35", "s_add_u32 s34, s33, 4096")
    for i in range(4): A(f"buffer_load_dwordx4 v3, s[12:15], s33 offen offset:{1024*i} lds")
    A("s_add_u32 m0, s35, 4096", "s_nop 0")
    for i in range(4): A(f"buffer_load_dwordx4 v3, s[12:15], s34 offen offset:{1024*i} lds")
    A("v_and_b32 v1, 15, v0", "v_lshrrev_b32 v2, 4, v0")
    A("s_lshl_b32 s33, s30, 4", "v_add_u32 v5, s33, v1", "v_sub_u32 v6, 256, v5",
      "s_cmp_lt_u32 s30, 6", "s_cselect_b64 vcc, -1, 0", "v_cndmask_b32 v5, v6, v5, vcc",
      "v_lshl_add_u32 v4, v2, 7, s29", "v_mul_u32_u24 v4, 642, v4", "v_lshl_add_u32 v4, v5, 1, v4")
    for tau in range(2):
        for t in range(4):
            for e in range(4):
                A(f"s_mov_b32 s33, {(16*t+e)*20544}")
                for pl in range(2):
                    r = WV(tau,pl,t,e)
                    A(f"v_mov_b32 v{r}, 0", f"buffer_load_short_d16_hi v{r}, v4, s[{16+4*pl}:{19+4*pl}], s33 offen offset:{320*tau}")
    A("v_cvt_f32_u32 v5, v1", f"v_mul_f32 v5, {fl(1/64)}, v5", "v_add_f32 v6, 0x3e800000, v5",
      "v_cvt_f32_u32 v7, v2", "v_mul_f32 v7, 4.0, v7",
      "v_and_b32 v14, 1, v0", "v_mov_b32 v15, 0x80008000", "v_mul_lo_u32 v14, v14, v15",
      "v_xor_b32 v15, 0x80000000, v14")
    for t in range(2):
        for jp in range(4):
            for e in range(2):
                j = 2*jp+e
                A(f"v_add_f32 v{8+e}, {fl(float(16*(j>>2)+(j&3)))}, v7", f"v_mul_f32 v{8+e}, v{8+e}, v{5+t}")
            c0 = 16+t*8+jp; s0 = 48+t*8+jp
            A("v_cos_f32 v10, v8", "v_cos_f32 v11, v9", "v_sin_f32 v12, v8", "v_sin_f32 v13, v9",
              f"v_cvt_pk_bf16_f32 v{c0}, v10, v11", f"v_cvt_pk_bf16_f32 v{s0}, v12, v13")
            for b in (c0, s0):
                A(f"v_xor_b32 v{b+4}, v14, v{b}", f"v_xor_b32 v{b+16}, 0x80000000, v{b}", f"v_xor_b32 v{b+20}, v15, v{b}")
    for r in range(32):
        A(f"v_xor_b32 v{8+(r&3)}, 0x80008000, v{48+r}", f"v_accvgpr_write_b32 a{r}, v{8+(r&3)}")
    A("v_lshrrev_b32 v5, 2, v0", "v_lshlrev_b32 v5, 7, v5", "v_and_b32 v7, 3, v0", "v_lshl_add_u32 v5, v7, 4, v5", "v_add_u32 v5, s35, v5",
      "s_mov_b32 s33, 45056", "v_mul_lo_u32 v6, v1, s33", "v_lshl_add_u32 v6, v2, 4, v6",
      "s_lshl_b32 s36, s30, 12", "s_lshl_b32 s33, s29, 7", "s_add_u32 s36, s36, s33",
      f"s_add_u32 s37, s36, {16*45056}", f"s_add_u32 s38, s36, {32*45056}", f"s_add_u32 s39, s36, {48*45056}")
    A("s_waitcnt vmcnt(63)"[:0] or "s_nop 0")
    stamp(A, 1)
    A("s_waitcnt vmcnt(32)")
    stamp(A, 2)
    for tau in range(2):
        for ks in range(2):
            for pl in range(2):
                for jh in range(2):
                    A(f"ds_read_b64_tr_b16 {vr(TB(tau,ks,pl)+2*jh,2)}, v5 offset:{(32*ks+16*jh)*128+tau*64+pl*8}")
    M = "v_mfma_f32_16x16x32_bf16"
    def st2(tau):
        L = []
        for t in range(4):
            re = vr(XA(tau,0,t),4); im = vr(XA(tau,1,t),4)
            for ks in range(2):
                tr = vr(TB(tau,ks,0),4); ti = vr(TB(tau,ks,1),4)
                L += [f"{M} {re}, {C(t,ks)}, {tr}, {'0' if ks==0 else re}", f"{M} {im}, {C(t,ks)}, {ti}, {'0' if ks==0 else im}",
                      f"{M} {re}, {S(t,ks)}, {ti}, {re}", f"{M} {im}, {N(t,ks)}, {tr}, {im}"]
        return L
    def wmul(tau):
        L = []
        for t in range(4):
            for e in range(4):
                xr = XA(tau,0,t)+e; xi = XA(tau,1,t)+e; wr = WV(tau,0,t,e); wi = WV(tau,1,t,e)
                L += [f"v_mul_f32 v{8+e}, v{xr}, v{wr}", f"v_mul_f32 v{12+e}, v{xr}, v{wi}",
                      f"v_fma_f32 v{8+e}, -v{xi}, v{wi}, v{8+e}", f"v_fmac_f32 v{12+e}, v{xi}, v{wr}"]
            for pl in range(2):
                d = TB(tau, t>>1, pl) + (t&1)*2
                L += [f"v_cvt_pk_bf16_f32 v{d}, v{8+4*pl}, v{9+4*pl}", f"v_cvt_pk_bf16_f32 v{d+1}, v{10+4*pl}, v{11+4*pl}"]
        return L
    def st3(tau):
        L = []
        for nt in range(4):
            re = vr(XA(tau,0,nt),4); im = vr(XA(tau,1,nt),4)
            for ks in range(2):
                xr = vr(TB(tau,ks,0),4); xi = vr(TB(tau,ks,1),4)
                L += [f"{M} {re}, {xr}, {C(nt,ks)}, {'0' if ks==0 else re}", f"{M} {im}, {xi}, {C(nt,ks)}, {'0' if ks==0 else im}",
                      f"{M} {re}, {xi}, {N(nt,ks)}, {re}", f"{M} {im}, {xr}, {S(nt,ks)}, {im}"]
        return L
    def outp(tau):
        L = []
        for nt in range(4):
            pk = PK + 4*nt; re = XA(tau,0,nt); im = XA(tau,1,nt)
            L += [f"v_cvt_pk_bf16_f32 v{pk}, v{re}, v{re+1}", f"v_cvt_pk_bf16_f32 v{pk+1}, v{re+2}, v{re+3}",
                  f"v_cvt_pk_bf16_f32 v{pk+2}, v{im}, v{im+1}", f"v_cvt_pk_bf16_f32 v{pk+3}, v{im+2}, v{im+3}",
                  f"buffer_store_dwordx4 {vr(pk,4)}, v6, s[24:27], s{36+nt} offen offset:{64*tau}"]
        return L
    A("s_waitcnt lgkmcnt(8)")
    A(*st2(0))
    A("s_waitcnt lgkmcnt(0)")
    A(*spread(st2(1), wmul(0)))
    stamp(A, 3)
    A("s_waitcnt vmcnt(0)")
    stamp(A, 4)
    A(*spread(st3(0), wmul(1)))
    A(*spread(st3(1), outp(0)))
    A(*outp(1))

def k3(A):
    A("k3_kernel:")
    A("s_cmp_ge_u32 s2, 256", "s_cbranch_scc1 Lk3_end_x")
    kstart(A)
    A("s_load_dwordx2 s[4:5], s[0:1], 0", "s_load_dwordx2 s[6:7], s[0:1], 64", "s_load_dwordx2 s[40:41], s[0:1], 80")
    A("v_lshrrev_b32 v1, 6, v0", "v_and_b32 v0, 63, v0", "v_readfirstlane_b32 s28, v1")
    A("s_and_b32 s31, s2, 7", "s_lshr_b32 s32, s2, 3")
    A("s_lshl_b32 s29, s31, 3", "s_lshr_b32 s33, s32, 2", "s_add_u32 s29, s29, s33",
      "s_and_b32 s30, s32, 1",
      "s_lshr_b32 s33, s32, 1", "s_and_b32 s33, s33, 1", "s_mul_i32 s33, s33, 5", "s_add_u32 s42, s33, s28")
    A("s_waitcnt lgkmcnt(0)")
    srd(A, 12, 40, U_SZ, U_OFF); srd(A, 16, 4, X_SZ); srd(A, 20, 40, G_SZ, G_OFF); srd(A, 24, 6, X_SZ)
    ZIMG = 49152
    GC, GS, GN = 16, 20, 24
    TWc = lambda r: 28 + (r-1)*8
    TWs = lambda r: 32 + (r-1)*8
    HF = lambda bb: 52 + 4*bb
    XR, GR = 76, 84
    XU, GU = 92, 108
    UA = lambda ty, tau, pl: 124 + ((ty*2+tau)*2+pl)*4
    VA = lambda ty, tau, pl: 156 + ((ty*2+tau)*2+pl)*4
    TT = 188
    ZF = lambda bb, r: 124 + (bb*4+r)*4
    ACC = lambda r: 220 + 4*r
    A("s_mul_i32 s33, s29, 45056", "s_lshl_b32 s34, s28, 12", "s_add_u32 s33, s33, s34", f"s_add_u32 s34, s33, {6*4096}",
      "s_lshl_b32 s35, s28, 13", "v_lshlrev_b32 v3, 4, v0", "s_mov_b32 m0, s35",
      "s_cmp_eq_u32 s28, 5", "s_cselect_b32 s36, 0x80000000, 0", "v_or_b32 v4, s36, v3")
    for i in range(4): A(f"buffer_load_dwordx4 v3, s[12:15], s33 offen offset:{1024*i} lds")
    A("s_add_u32 m0, s35, 4096", "s_nop 0")
    for i in range(4): A(f"buffer_load_dwordx4 v4, s[12:15], s34 offen offset:{1024*i} lds")
    A("v_and_b32 v1, 15, v0", "v_lshrrev_b32 v2, 4, v0")
    A("s_lshl_b32 s33, s30, 10", "s_add_u32 s33, s33, s29", "v_lshl_add_u32 v5, v1, 6, s33",
      "v_mul_u32_u24 v6, 1280, v5", "v_lshl_add_u32 v6, v2, 5, v6", "s_lshl_b32 s33, s42, 7", "s_or_b32 s33, s33, s36", "v_add_u32 v6, s33, v6")
    A(f"buffer_load_dwordx4 {vr(XR,4)}, v6, s[16:19], 0 offen", f"buffer_load_dwordx4 {vr(XR+4,4)}, v6, s[16:19], 0 offen offset:16",
      f"buffer_load_dwordx4 {vr(GR,4)}, v6, s[20:23], 0 offen", f"buffer_load_dwordx4 {vr(GR+4,4)}, v6, s[20:23], 0 offen offset:16")
    SC = 2/(640*2048)
    A("v_cvt_f32_u32 v5, v5", f"v_mul_f32 v5, {fl(1/2048)}, v5", "v_cvt_f32_u32 v7, v2", "v_mul_f32 v7, 4.0, v7", f"s_mov_b32 s37, {fl(SC)}")
    for jp in range(4):
        for e in range(2):
            j = 2*jp+e
            A(f"v_add_f32 v{8+e}, {fl(float(16*(j>>2)+(j&3)))}, v7", f"v_mul_f32 v{8+e}, v{8+e}, v5")
        A("v_cos_f32 v10, v8", "v_cos_f32 v11, v9", "v_sin_f32 v12, v8", "v_sin_f32 v13, v9")
        for r in range(10,14): A(f"v_mul_f32 v{r}, s37, v{r}")
        A(f"v_cvt_pk_bf16_f32 v{GC+jp}, v10, v11", f"v_cvt_pk_bf16_f32 v{GS+jp}, v12, v13", f"v_cvt_pk_bf16_f32 v{GN+jp}, -v12, -v13")
    A("v_lshrrev_b32 v5, 2, v0", "v_lshlrev_b32 v5, 7, v5", "v_and_b32 v8, 3, v0", "v_lshl_add_u32 v5, v8, 4, v5", "v_add_u32 v5, s35, v5")
    A("s_lshl_b32 s33, s28, 4", "v_cvt_f32_u32 v8, s33", "v_add_f32 v8, v8, v7")
    for e in range(4):
        A(f"v_add_f32 v9, {fl(float(e))}, v8")
        for r in (1,2,3):
            A(f"v_mul_f32 v10, {fl(r/640)}, v9", f"v_cos_f32 v{TWc(r)+e}, v10", f"v_sin_f32 v{TWs(r)+e}, v10")
    stamp(A, 1)
    A("s_waitcnt vmcnt(4)")
    stamp(A, 2)
    for ty in range(2):
        for tau in range(2):
            for pl in range(2):
                for jh in range(2):
                    A(f"ds_read_b64_tr_b16 {vr(UA(ty,tau,pl)+2*jh,2)}, v5 offset:{ty*4096+jh*2048+tau*64+pl*8}")
    Hl = Asm()
    Hl("s_lshl_b32 s33, s42, 4", "v_add_u32 v14, s33, v1", "v_cvt_f32_u32 v15, v14", f"v_mul_f32 v15, {fl(1/160)}, v15", "v_mul_f32 v4, v7, v15")
    for bb in range(5):
        for ep in range(2):
            for e in range(2):
                Hl(f"v_fmamk_f32 v{8+e}, v15, {fl(float(16*bb+2*ep+e))}, v4")
            Hl("v_cos_f32 v10, v8", "v_cos_f32 v11, v9", "v_sin_f32 v12, v8", "v_sin_f32 v13, v9")
            if bb == 0 and ep == 0:
                Hl("v_cmp_gt_u32 vcc, 16, v0", "s_nop 1", "v_cndmask_b32 v10, v10, 0.5, vcc"[:0] or "v_mov_b32 v8, 0.5", "v_cndmask_b32 v10, v10, v8, vcc")
            Hl(f"v_cvt_pk_bf16_f32 v{HF(bb)+ep}, v10, v11", f"v_cvt_pk_bf16_f32 v{HF(bb)+2+ep}, -v12, -v13")
    Hl("v_and_b32 v8, 1, v14", "v_lshlrev_b32 v8, 15, v8", "v_or_b32 v8, 0x3f80, v8", f"v_cndmask_b32 v{HF(5)}, 0, v8, vcc",
       f"v_mov_b32 v{HF(5)+1}, 0", f"v_mov_b32 v{HF(5)+2}, 0", f"v_mov_b32 v{HF(5)+3}, 0")
    M = "v_mfma_f32_16x16x32_bf16"
    ML = []
    for ty in range(2):
        for tau in range(2):
            re = vr(VA(ty,tau,0),4); im = vr(VA(ty,tau,1),4); ur = vr(UA(ty,tau,0),4); ui = vr(UA(ty,tau,1),4)
            ML += [f"{M} {re}, {ur}, {vr(GC,4)}, 0", f"{M} {im}, {ui}, {vr(GC,4)}, 0", f"{M} {re}, {ui}, {vr(GN,4)}, {re}", f"{M} {im}, {ur}, {vr(GS,4)}, {im}"]
    A(*Hl.lines[:20])
    A("s_waitcnt lgkmcnt(0)")
    A(*spread(ML, Hl.lines[20:50]))
    def pk(op, d, a, b, c=None, nb=False, na=False):
        s = f"v_pk_{op}_f32 {vr(d,2)}, {vr(a,2)}, {vr(b,2)}" + (f", {vr(c,2)}" if c is not None else "")
        n = [int(na), int(nb)] + ([0] if c is not None else [])
        if na or nb: s += f" neg_lo:[{','.join(map(str,n))}] neg_hi:[{','.join(map(str,n))}]"
        return s
    Ar,Ai,Br,Bi,Dr,Di,Cr,Ci = [VA(ty,tau,pl) for ty in range(2) for tau in range(2) for pl in range(2)]
    pr,pi,qr,qi,ur,ui,wr,wi = [TT+4*i for i in range(8)]
    Z = lambda r, pl: 124 + (r*2+pl)*4
    for e in (0,2):
        A(pk('add',pr+e,Ar+e,Cr+e), pk('add',pi+e,Ai+e,Ci+e,nb=True), pk('add',qr+e,Ar+e,Cr+e,nb=True), pk('add',qi+e,Ai+e,Ci+e),
          pk('add',ur+e,Br+e,Dr+e), pk('add',ui+e,Bi+e,Di+e,nb=True), pk('add',wr+e,Br+e,Dr+e,nb=True), pk('add',wi+e,Bi+e,Di+e))
    b = lambda r, pl: 156 + (r*2+pl)*4
    for e in (0,2):
        A(pk('add',Z(0,0)+e,pr+e,ur+e), pk('add',Z(0,1)+e,pi+e,ui+e), pk('add',b(2,0)+e,pr+e,ur+e,nb=True), pk('add',b(2,1)+e,pi+e,ui+e,nb=True),
          pk('add',b(1,0)+e,qr+e,wi+e,nb=True), pk('add',b(1,1)+e,qi+e,wr+e), pk('add',b(3,0)+e,qr+e,wi+e), pk('add',b(3,1)+e,qi+e,wr+e,nb=True))
    A("s_lshl_b32 s33, s28, 12", f"s_add_u32 s33, s33, {ZIMG}", "v_add_u32 v5, s33, v3")
    for r in range(4):
        if r:
            for e in (0,2):
                A(pk('mul',Z(r,0)+e,b(r,0)+e,TWc(r)+e), pk('mul',Z(r,1)+e,b(r,0)+e,TWs(r)+e))
            for e in (0,2):
                A(pk('fma',Z(r,0)+e,b(r,1)+e,TWs(r)+e,Z(r,0)+e,na=True), pk('fma',Z(r,1)+e,b(r,1)+e,TWc(r)+e,Z(r,1)+e))
        o = TT + 4*r
        for j in range(4): A(f"v_cvt_pk_bf16_f32 v{o+j}, v{Z(r,0)+2*j}, v{Z(r,0)+2*j+1}")
        A(f"ds_write_b128 v5, {vr(o,4)} offset:{r*1024}")
    A(*Hl.lines[50:])
    A("s_waitcnt lgkmcnt(0)", "s_barrier")
    stamp(A, 3)
    A("s_cmp_eq_u32 s28, 5", "s_cbranch_scc1 Lk3_end")
    for bb in range(6):
        for r in range(4):
            A(f"ds_read_b128 {vr(ZF(bb,r),4)}, v3 offset:{ZIMG+(bb*4+r)*1024}" if ZIMG+(bb*4+r)*1024 < 65536 else
              f"ds_read_b128 {vr(ZF(bb,r),4)}, v4 offset:{ZIMG+(bb*4+r)*1024-32768}")
            if bb == 0 and r == 0: A("v_add_u32 v4, 0x8000, v3")
    A("s_waitcnt vmcnt(0)")
    for q in range(8):
        A(f"v_lshlrev_b32 v{XU+2*q}, 16, v{XR+q}", f"v_and_b32 v{XU+2*q+1}, 0xffff0000, v{XR+q}",
          f"v_lshlrev_b32 v{GU+2*q}, 16, v{GR+q}", f"v_and_b32 v{GU+2*q+1}, 0xffff0000, v{GR+q}")
    for bb in range(6):
        A(f"s_waitcnt lgkmcnt({min(15,4*(5-bb))})")
        for r in range(4):
            A(f"{M} {vr(ACC(r),4)}, {vr(HF(bb),4)}, {vr(ZF(bb,r),4)}, {'0' if bb==0 else vr(ACC(r),4)}")
    for r in range(4):
        for e in range(4):
            A(f"v_fmac_f32 v{XU+4*e+r}, v{ACC(r)+e}, v{GU+4*e+r}")
    for q in range(8):
        A(f"v_cvt_pk_bf16_f32 v{XR+q}, v{XU+2*q}, v{XU+2*q+1}")
    A(f"buffer_store_dwordx4 {vr(XR,4)}, v6, s[24:27], 0 offen", f"buffer_store_dwordx4 {vr(XR+4,4)}, v6, s[24:27], 0 offen offset:16")
    kend(A, 2, "Lk3_end")

def kd(name, vgpr, sgpr=100, accum=None):
    accum = accum or min(256, (vgpr+3)//4*4)
    return f""".amdhsa_kernel {name}
  .amdhsa_next_free_vgpr {vgpr}
  .amdhsa_next_free_sgpr {sgpr}
  .amdhsa_accum_offset {accum}
  .amdhsa_group_segment_fixed_size 0
  .amdhsa_kernarg_size 88
  .amdhsa_user_sgpr_count 2
  .amdhsa_user_sgpr_kernarg_segment_ptr 1
  .amdhsa_system_sgpr_workgroup_id_x 1
.end_amdhsa_kernel
"""

def build(kernels):
    hdr = open(f"cdna_kernels/{NAME}.s.ref").read().split("; Override")[0]
    out = hdr
    for (name, fn, grid, block, lds, vg) in kernels:
        out += f"; @launch kernel={name} grid=({grid},1,1) block=({block},1,1) lds={lds}\n"
    out += '.amdgcn_target "amdgcn-amd-amdhsa--gfx950"\n.text\n'
    seen = []
    for (name, fn, grid, block, lds, vg) in kernels:
        if name in seen: continue
        seen.append(name)
        A = Asm(); fn(A)
        out += f".globl {name}\n.p2align 8\n.type {name},@function\n" + A.text()
    out += '.section .rodata,"a"\n'
    seen = []
    for (name, fn, grid, block, lds, vg) in kernels:
        if name in seen: continue
        seen.append(name)
        out += ".p2align 6\n" + kd(name, vg)
    return out

KS = [("k1_kernel", k1, 256, 512, 163840, 256), ("k2_kernel", k2, 248, 256, 65536, 288), ("k3_kernel", k3, 256, 384, 98304, 240)]

if __name__ == '__main__':
    DIAG = len(sys.argv) > 2 and sys.argv[2] == 'diag'
    ks = KS
    open(sys.argv[1] if len(sys.argv) > 1 else 'cur.s', 'w').write(build(ks))
```

```python
import gen, sys
from gen import *
def kstart2(A):
    A("s_memrealtime s[60:61]", "s_load_dwordx2 s[92:93], s[0:1], 72", "s_waitcnt lgkmcnt(0)")
def kend2(A, kid, lab):
    A(f"{lab}:")
    A("s_cmp_lg_u32 s28, 0", f"s_cbranch_scc1 {lab}_x")
    A("s_mov_b32 s96, 0", "s_cmp_eq_u32 s2, 0", f"s_cbranch_scc1 {lab}_y", "s_mov_b32 s96, 8", "s_cmp_lg_u32 s2, 247", f"s_cbranch_scc1 {lab}_x", f"{lab}_y:")
    A("s_waitcnt vmcnt(0) lgkmcnt(0)", "s_memrealtime s[86:87]", "s_waitcnt lgkmcnt(0)")
    A(f"s_add_u32 s92, s92, {(NK-1-kid)*512}", "s_addc_u32 s93, s93, 0", "s_mov_b32 s94, 256", "s_mov_b32 s95, 0x00020000")
    A("v_mov_b32 v4, s60", "v_mov_b32 v5, s86", "v_mov_b32 v1, 0", "s_mov_b64 exec, 1")
    A(f"buffer_store_dwordx2 v[4:5], v1, s[92:95], s96 offen offset:{16*kid}")
    A("s_endpgm")
    A(f"{lab}_x:", "s_endpgm")
gen.kstart = kstart2; gen.kend = kend2
NK = len(gen.KS)
open('t/diag2.s','w').write(build(gen.KS))
```

```python
import sys, math
from asmlib import *

NAME = "recurrent_scan__spectral_gfnet__dense_activation_gelu__prompt"
H_OFF, H_SZ = 0, 2048*1728*2
T_OFF, T_SZ = 0x800000, 32*11*64*128
U_OFF, U_SZ = 0xC00000, 32*11*64*128
G_OFF, G_SZ = 0x1000000, 2048*640*2
X_SZ = 2048*640*2
W1_SZ = 640*1728*2
WF_SZ = 2048*321*2

OPT = dict(local=True, rot=True, pf=True)
def vr(b, n): return f"v[{b}:{b+n-1}]"

def srd(A, d, base, size, off=0):
    if off:
        A(f"s_add_u32 s{d}, s{base}, 0x{off:x}", f"s_addc_u32 s{d+1}, s{base+1}, 0")
    else:
        A(f"s_mov_b32 s{d}, s{base}", f"s_mov_b32 s{d+1}, s{base+1}")
    A(f"s_mov_b32 s{d+2}, {size}", f"s_mov_b32 s{d+3}, 0x00020000")


DIAG = False
DIAG_OFF = 0x2000000
def stamp(A, k):
    if DIAG:
        A(f"s_memrealtime s[{60+2*k}:{61+2*k}]", "s_waitcnt lgkmcnt(0)")
def kstart(A):
    if DIAG:
        for k in range(60, 92): A(f"s_mov_b32 s{k}, 0")
        A("s_memrealtime s[60:61]", "s_memtime s[88:89]", "s_load_dwordx2 s[92:93], s[0:1], 80", "s_waitcnt lgkmcnt(0)")
def kend(A, kid, lab):
    A(f"{lab}:")
    if DIAG:
        A("s_waitcnt vmcnt(0) lgkmcnt(0)", "s_memrealtime s[86:87]", "s_memtime s[90:91]", "s_waitcnt lgkmcnt(0)")
        A(f"s_add_u32 s92, s92, 0x{DIAG_OFF:x}", "s_addc_u32 s93, s93, 0", "s_mov_b32 s94, 0x1000000", "s_mov_b32 s95, 0x00020000")
        A(f"s_add_u32 s96, s2, {kid*256}", "s_lshl_b32 s96, s96, 3", "s_add_u32 s96, s96, s28", "s_lshl_b32 s96, s96, 6", "v_mov_b32 v1, 0")
        for q in range(4):
            for j in range(4): A(f"v_mov_b32 v{4+j}, s{60+2*(4*q+j)}")
            A(f"buffer_store_dwordx4 v[4:7], v1, s[92:95], s96 offen offset:{16*q}", "s_nop 1")
    A("s_endpgm")
    A(f"{lab}_x:", "s_endpgm")

GA = -2*0.7978845608028654*1.4426950408889634
GB = GA*0.044715
ONES = "0x3f803f80"

def row_stats(A, sx, sxx, t0, t1, mean, sq):
    A(f"v_mul_f32 v{mean}, {fl(1/640)}, v{sx}",
      f"v_mul_f32 v{t0}, {fl(1/640)}, v{sxx}",
      f"v_fma_f32 v{t0}, -v{mean}, v{mean}, v{t0}",
      f"v_max_f32 v{t0}, 0, v{t0}",
      f"v_cvt_pk_bf16_f32 v{t0}, v{t0}, v{t0}",
      f"v_lshlrev_b32 v{t0}, 16, v{t0}",
      f"v_add_f32 v{t0}, {fl(1e-5)}, v{t0}",
      f"v_cvt_pk_bf16_f32 v{t0}, v{t0}, v{t0}",
      f"v_lshlrev_b32 v{t0}, 16, v{t0}",
      f"v_sqrt_f32 v{sq}, v{t0}")

def k1(A):
    A("k1_kernel:")
    A("s_cmp_ge_u32 s2, 256", "s_cbranch_scc1 Lk1_end_x")
    kstart(A)
    A("s_load_dwordx2 s[4:5], s[0:1], 0", "s_load_dwordx4 s[6:9], s[0:1], 32"[:0] or "s_load_dwordx2 s[6:7], s[0:1], 32",
      "s_load_dwordx2 s[8:9], s[0:1], 40", "s_load_dwordx2 s[10:11], s[0:1], 80")
    A("v_lshrrev_b32 v1, 6, v0", "v_and_b32 v0, 63, v0", "v_readfirstlane_b32 s28, v1")
    A("s_and_b32 s31, s2, 7", "s_lshr_b32 s32, s2, 3")
    A("s_waitcnt lgkmcnt(0)")
    srd(A, 12, 4, X_SZ); srd(A, 16, 6, W1_SZ); srd(A, 20, 8, 1728*2); srd(A, 24, 10, H_SZ, H_OFF); srd(A, 36, 10, T_SZ, T_OFF)
    A("s_cmp_ge_u32 s32, 28", "s_cbranch_scc1 Lp1")
    if OPT['local']:
        A("s_lshl_b32 s29, s31, 1", "s_and_b32 s33, s32, 1", "s_add_u32 s29, s29, s33", "s_lshr_b32 s30, s32, 1")
    else:
        A("s_lshr_b32 s29, s31, 1", "s_lshl_b32 s29, s29, 2", "s_and_b32 s33, s32, 3", "s_add_u32 s29, s29, s33")
        A("s_and_b32 s30, s31, 1", "s_mul_i32 s30, s30, 7", "s_lshr_b32 s33, s32, 2", "s_add_u32 s30, s30, s33")
    A("s_cmp_lt_u32 s28, 4", "s_cbranch_scc1 Lg1c")
    g1_loader(A)
    A("Lg1c:")
    g1_compute(A)
    A("Lp1:")
    p1(A)
    kend(A, 0, "Lk1_end")

NST, RING = 10, 5
def g1_loader(A):
    A("s_sub_u32 s33, s28, 4")
    A("v_lshrrev_b32 v1, 3, v0",
      "v_and_b32 v2, 7, v0",
      "v_lshrrev_b32 v3, 4, v0",
      "s_lshl_b32 s34, s29, 7", "s_lshl_b32 s35, s33, 5", "s_add_u32 s34, s34, s35",
      "v_add_u32 v1, s34, v1",
      "s_movk_i32 s35, 1280",
      "v_mul_lo_u32 v1, v1, s35",
      "v_xor_b32 v8, v2, v3",
      "v_xor_b32 v9, 4, v8",
      "v_lshl_add_u32 v4, v8, 4, v1",
      "v_lshl_add_u32 v5, v9, 4, v1",
      "v_add_u32 v5, 10240, v5",
      "v_add_u32 v6, 20480, v4",
      "v_add_u32 v7, 20480, v5")
    A("v_and_b32 v2, 15, v0", "v_lshlrev_b32 v8, 2, v3", "v_xor_b32 v2, v2, v8",
      "s_lshl_b32 s34, s33, 4", "v_add_u32 v8, s34, v3", "s_movk_i32 s35, 3456", "v_mul_lo_u32 v8, v8, s35",
      "s_lshl_b32 s34, s30, 8", "v_lshl_add_u32 v10, v2, 4, v8", "v_add_u32 v10, s34, v10")
    A("s_cmp_eq_u32 s30, 13", "s_cselect_b32 s34, 8, 16",
      "v_cmp_le_u32 vcc, s34, v2", "v_mov_b32 v8, 0x80000000", "s_nop 0", "v_cndmask_b32 v10, v10, v8, vcc")
    A("s_lshl_b32 s40, s33, 12")
    if OPT['rot']:
        A("s_mul_i32 s43, s30, 47", "s_lshr_b32 s43, s43, 6", "s_and_b32 s34, s29, 1", "s_mul_i32 s34, s34, 5", "s_add_u32 s43, s43, s34",
          "s_cmp_ge_u32 s43, 10", "s_cselect_b32 s34, 10, 0", "s_sub_u32 s43, s43, s34")
    else:
        A("s_mov_b32 s43, 0")
    def issue(st):
        slot = (st % RING) * 32768
        A("s_lshl_b32 s41, s43, 7", f"s_mul_i32 s42, s43, {64*3456}")
        for q in range(4):
            A(f"s_add_u32 m0, s40, {slot + q*1024}", "s_nop 0",
              f"buffer_load_dwordx4 v{4+q}, s[12:15], s41 offen lds")
            A(f"s_add_u32 m0, s40, {slot + 16384 + q*1024}", "s_nop 0",
              f"buffer_load_dwordx4 v10, s[16:19], s42 offen lds")
            if q < 3: A(f"s_add_u32 s42, s42, {4*3456}")
        A("s_add_u32 s43, s43, 1", "s_cmp_eq_u32 s43, 10", "s_cselect_b32 s43, 0, s43")
    for st in range(RING): issue(st)
    npf = 0
    for st in range(NST):
        issued = min(NST-1, max(RING-1, st+RING-2))
        A(f"s_waitcnt vmcnt({8*(issued-st)+npf})", "s_barrier")
        if st >= 1 and st+RING-1 < NST: issue(st+RING-1)
        if st+RING-1 == NST-1 and OPT['pf']:
            A("s_load_dwordx4 s[44:47], s[0:1], 8", "s_load_dwordx2 s[48:49], s[0:1], 48",
              "s_lshl_b32 s34, s32, 2", "s_add_u32 s34, s34, s33", f"s_mul_i32 s35, s34, {192*128}", "v_lshl_add_u32 v11, v0, 7, s35",
              "s_lshl_b32 s35, s34, 1", "v_lshrrev_b32 v12, 5, v0", "v_add_u32 v12, s35, v12", "v_and_b32 v12, 63, v12",
              "v_mul_u32_u24 v12, 20544, v12", "v_and_b32 v13, 31, v0", "v_min_u32 v13, 21, v13", "v_lshl_add_u32 v12, v13, 7, v12",
              "s_mul_i32 s35, s31, 2568", "s_and_b32 s35, s35, 0xffffff80", "v_add_u32 v12, s35, v12", "v_and_b32 v12, -4, v12",
              "s_waitcnt lgkmcnt(0)")
            srd(A, 52, 48, W1_SZ)
            A("s_cmp_lt_u32 s34, 32", "s_cselect_b32 s56, s44, s46", "s_cselect_b32 s57, s45, s47", "s_cmp_lt_u32 s34, 64",
              f"s_cselect_b32 s58, {WF_SZ}, 0", "s_mov_b32 s59, 0x00020000")
            for i in range(3):
                A(f"s_movk_i32 s35, {i*8192}", f"buffer_load_dword v{16+i}, v11, s[52:55], s35 offen")
            A("buffer_load_dword v20, v12, s[56:59], 0 offen")
            npf = 4
    A("s_branch Lk1_end")

def g1_compute(A):
    ACC = lambda mt, nt: 16 + (mt*2+nt)*16
    FB = lambda p, kk, w: 80 + p*64 + kk*16 + w*4
    XA = lambda kk, nt: 208 + kk*2 + nt
    WA = lambda mt: 216 + mt
    SX, SXX, CS, B1 = 218, 219, 220, 221
    A("s_and_b32 s33, s28, 1", "s_lshr_b32 s34, s28, 1")
    A("v_and_b32 v1, 31, v0", "v_lshrrev_b32 v2, 5, v0")
    A("s_lshl_b32 s35, s30, 7", "s_lshl_b32 s40, s33, 6", "s_add_u32 s35, s35, s40", "s_lshl_b32 s40, s34, 5", "s_add_u32 s35, s35, s40",
      "v_add_lshl_u32 v3, v1, s35, 1", f"v_mov_b32 v{B1}, 0",
      f"buffer_load_short_d16_hi v{B1}, v3, s[20:23], 0 offen")
    A("s_lshl_b32 s35, s34, 13", "s_lshl_b32 s40, s33, 12", "s_add_u32 s35, s35, s40",
      "v_lshl_add_u32 v3, v1, 7, s35", "v_bfe_u32 v4, v0, 1, 3", "v_xor_b32 v4, v4, v2")
    for kk in range(4):
        A(f"v_xor_b32 v5, {2*kk}, v4", f"v_lshl_add_u32 v{XA(kk,0)}, v5, 4, v3", f"v_xor_b32 v{XA(kk,1)}, 0x1000, v{XA(kk,0)}")
    A("v_bfe_u32 v4, v0, 2, 2",
      "v_lshl_add_u32 v5, v2, 3, v4", "v_lshlrev_b32 v5, 8, v5",
      "v_bfe_u32 v6, v0, 4, 1", "v_lshl_add_u32 v5, v6, 5, v5",
      "v_and_b32 v6, 3, v0", "v_lshl_add_u32 v5, v6, 3, v5",
      "s_lshl_b32 s35, s33, 1", "s_add_u32 s35, s35, s34",
      "v_xor_b32 v6, s35, v4", f"v_lshl_add_u32 v{WA(0)}, v6, 6, v5", f"v_xor_b32 v{WA(1)}, 64, v{WA(0)}")
    A(f"v_mov_b32 v{SX}, 0", f"v_mov_b32 v{SXX}, 0", f"v_mov_b32 v{CS}, 0", f"s_mov_b32 s41, {ONES}")
    base = [0]
    def reads(st):
        p = st & 1; slot = (st % RING) * 32768
        L = []
        nb = slot & ~0xffff
        if nb != base[0]:
            d = nb - base[0]
            for r in range(208, 218):
                L.append(f"v_add_u32 v{r}, 0x{d & 0xffffffff:x}, v{r}")
            base[0] = nb
        so = slot - nb
        for kk in range(4):
            for mt in range(2):
                for jh in range(2):
                    L.append(f"ds_read_b64_tr_b16 {vr(FB(p,kk,2+mt)+2*jh,2)}, v{WA(mt)} offset:{so+16384+(16*kk+4*jh)*256}")
            for nt in range(2):
                L.append(f"ds_read_b128 {vr(FB(p,kk,nt),4)}, v{XA(kk,nt)} offset:{so}")
        return L
    def mfmas(st):
        p = st & 1; L = []
        for kk in range(4):
            for mt in range(2):
                for nt in range(2):
                    c = "0" if (st == 0 and kk == 0) else vr(ACC(mt,nt),16)
                    L.append(f"v_mfma_f32_32x32x16_bf16 {vr(ACC(mt,nt),16)}, {vr(FB(p,kk,2+mt),4)}, {vr(FB(p,kk,nt),4)}, {c}")
        return L
    def dots(st):
        p = st & 1; L = []
        for kk in range(4):
            for j in range(4):
                L.append(f"v_dot2c_f32_bf16 v{SX}, s41, v{FB(p,kk,0)+j}")
                L.append(f"v_dot2c_f32_bf16 v{SXX}, v{FB(p,kk,0)+j}, v{FB(p,kk,0)+j}")
                L.append(f"v_dot2c_f32_bf16 v{CS}, s41, v{FB(p,kk,2)+j}")
        return L
    for st in range(NST):
        A("s_barrier")
        if st == 0:
            A(*reads(0))
        else:
            A(*spread(mfmas(st-1)[:12], reads(st)))
            A(*mfmas(st-1)[12:])
            A(*dots(st-1))
        A("s_waitcnt lgkmcnt(0)")
        stamp(A, 1+st)
    A(*dots(NST-1))
    M = mfmas(NST-1)
    F = Asm()
    for r in (SX, SXX, CS):
        F(f"v_mov_b32 v3, v{r}", "s_nop 1", f"v_permlane32_swap_b32 v{r}, v3", f"v_add_f32 v{r}, v{r}, v3")
    row_stats(F, SX, SXX, 3, 4, 5, 6)
    XF0, WF0, XF1, WF1 = 224, 228, 232, 236
    F(f"v_cvt_pk_bf16_f32 v{XF0}, -v5, -v5", f"v_cvt_pk_bf16_f32 v{XF0+1}, -v5, v6")
    F(f"v_cvt_pk_bf16_f32 v3, v{CS}, v{CS}", "v_lshlrev_b32 v3, 16, v3", f"v_sub_f32 v3, v{CS}, v3",
      f"v_cvt_pk_bf16_f32 v{WF0}, v{CS}, v3", f"v_and_b32 v4, 0xffff0000, v{WF0}", "v_sub_f32 v3, v3, v4",
      "s_waitcnt vmcnt(0)", f"v_cvt_pk_bf16_f32 v{WF0+1}, v3, v{B1}")
    F("s_lshl_b32 s35, s34, 9", "s_lshl_b32 s40, s33, 8", "s_add_u32 s35, s35, s40", "v_lshl_add_u32 v7, v1, 3, s35",
      "s_lshl_b32 s35, s33, 9", "s_lshl_b32 s40, s34, 8", "s_add_u32 s35, s35, s40", "v_lshl_add_u32 v8, v1, 3, s35",
      f"ds_write_b64 v7, {vr(XF0,2)}", f"ds_write_b64 v8, {vr(WF0,2)} offset:1024",
      "v_xor_b32 v7, 0x100, v7", "v_xor_b32 v8, 0x100, v8")
    for r in (XF0, WF0, XF1, WF1):
        F(f"v_mov_b32 v{r+2}, 0", f"v_mov_b32 v{r+3}, 0")
    A(*spread(M[:12], F.lines))
    A("s_waitcnt lgkmcnt(0)", "s_barrier")
    A(f"ds_read_b64 {vr(XF1,2)}, v7", f"ds_read_b64 {vr(WF1,2)}, v8 offset:1024")
    A(*M[12:])
    A("v_cmp_eq_u32 vcc, 0, v2", "s_waitcnt lgkmcnt(0)")
    for r in (WF0, WF0+1, WF1, WF1+1):
        A(f"v_cndmask_b32 v{r}, 0, v{r}, vcc")
    for mt in range(2):
        for nt in range(2):
            A(f"v_mfma_f32_32x32x16_bf16 {vr(ACC(mt,nt),16)}, {vr((WF0,WF1)[mt],4)}, {vr((XF0,XF1)[nt],4)}, {vr(ACC(mt,nt),16)}")
    for nt in range(2):
        c = 240 + 4*nt
        A(f"v_and_b32 v{c+2}, 0xffff0000, v{(XF0,XF1)[nt]+1}", f"v_rcp_f32 v3, v{c+2}",
          f"v_mul_f32 v{c}, {fl(GA)}, v3", "v_mul_f32 v4, v3, v3", "v_mul_f32 v4, v4, v3", f"v_mul_f32 v{c+1}, {fl(GB)}, v4")
    stamp(A, 11)
    A("s_lshl_b32 s35, s30, 1", "s_add_u32 s35, s35, s33", "s_cmp_ge_u32 s35, 27", "s_cbranch_scc1 Lk1_end")
    for mt in range(2):
        for nt in range(2):
            s = 44 + mt*2 + nt
            A("s_lshl_b32 s40, s29, 2", "s_lshl_b32 s42, s34, 1", "s_add_u32 s40, s40, s42", f"s_xor_b32 s42, s33, {nt}", "s_add_u32 s40, s40, s42",
              "s_mulk_i32 s40, 108", "s_lshl_b32 s42, s35, 2", "s_add_u32 s40, s40, s42", f"s_xor_b32 s42, s34, {mt}", "s_lshl_b32 s42, s42, 1",
              "s_add_u32 s40, s40, s42", f"s_lshl_b32 s{s}, s40, 10")
    A("v_lshlrev_b32 v9, 4, v0")
    T0, T1 = 80, 96
    n = 0
    for mt in range(2):
        for nt in range(2):
            c = 240 + 4*nt
            for half in range(2):
                a0 = ACC(mt,nt) + 8*half
                t = 80 + (n % 2)*16; o = 112 + (n % 4)*4; n += 1
                P = range(4)
                for i in P: A(f"v_pk_mul_f32 {vr(t+2*i,2)}, {vr(a0+2*i,2)}, {vr(a0+2*i,2)}")
                for i in P: A(f"v_pk_fma_f32 {vr(t+2*i,2)}, {vr(t+2*i,2)}, {vr(c,2)}, {vr(c,2)} op_sel:[0,1,0] op_sel_hi:[1,1,0]")
                for i in P: A(f"v_pk_mul_f32 {vr(t+2*i,2)}, {vr(t+2*i,2)}, {vr(a0+2*i,2)}")
                for i in range(8): A(f"v_exp_f32 v{t+i}, v{t+i}")
                for i in P: A(f"v_pk_fma_f32 {vr(t+2*i,2)}, {vr(t+2*i,2)}, {vr(c+2,2)}, {vr(c+2,2)} op_sel:[0,0,0] op_sel_hi:[1,0,0]")
                for i in range(8): A(f"v_rcp_f32 v{t+i}, v{t+i}")
                for i in P: A(f"v_pk_mul_f32 {vr(t+2*i,2)}, {vr(t+2*i,2)}, {vr(a0+2*i,2)}")
                for i in P: A(f"v_cvt_pk_bf16_f32 v{o+i}, v{t+2*i}, v{t+2*i+1}")
                A(f"buffer_store_dwordx4 {vr(o,4)}, v9, s[24:27], s{44+mt*2+nt} offen offset:{half*1024}")
    A("s_branch Lk1_end")

def p1(A):
    BC = lambda u: 16 + 8*u
    BS = lambda u: 20 + 8*u
    TW = 56
    AF = lambda p, u: 64 + p*20 + 4*u
    AP = lambda p: 104 + 8*p
    AQ = lambda p: 108 + 8*p
    OUT = lambda par, i: 120 + par*8 + i
    TMP = 136
    YF = lambda o, pl: 152 + (o*2+pl)*4
    FP = lambda nt, pl: 184 + (nt*3+pl)*4
    TA = 208; PK = 240
    FPIMG = 81920
    A("s_sub_u32 s29, s32, 28", "s_lshl_b32 s29, s29, 3", "s_add_u32 s29, s29, s31", "s_lshl_b32 s29, s29, 1")
    A("s_lshr_b32 s33, s28, 2", "s_add_u32 s33, s33, s29",
      "s_and_b32 s34, s28, 3", "s_lshl_b32 s34, s34, 9", "s_add_u32 s33, s33, s34",
      "s_mulk_i32 s33, 1280",
      "s_mul_i32 s34, s28, 10240",
      "s_mov_b32 s35, 81920", "s_movk_i32 s40, 820")
    for i in range(10):
        A(f"v_add_u32 v1, {64*i}, v0", "v_mul_u32_u24 v2, s40, v1", "v_lshrrev_b32 v2, 16, v2",
          "v_mul_u32_u24 v3, 80, v2", "v_sub_u32 v3, v1, v3",
          "v_and_b32 v4, 3, v2", "v_lshlrev_b32 v4, 2, v4", "v_xor_b32 v3, v3, v4",
          "v_mul_u32_u24 v2, s35, v2", "v_lshl_add_u32 v2, v3, 4, v2",
          f"s_add_u32 m0, s34, {1024*i}", "s_nop 0",
          "buffer_load_dwordx4 v2, s[12:15], s33 offen lds")
    A("s_and_b32 s41, s28, 1", "s_add_u32 s41, s41, 4", "s_lshr_b32 s42, s28, 1", "s_and_b32 s42, s42, 1",
      "s_cmp_lt_u32 s28, 4", "s_cselect_b32 s43, s28, s41", "s_cselect_b32 s44, 0, s42",
      "s_cselect_b32 s45, 1, 0")
    A("v_and_b32 v1, 15, v0", "v_lshrrev_b32 v2, 4, v0")
    A("s_lshl_b32 s41, s43, 4", "v_add_u32 v3, s41, v1", "v_cvt_f32_u32 v4, v3",
      f"v_mul_f32 v5, {fl(1/160)}, v4",
      "v_cvt_f32_u32 v6, v2", "v_mul_f32 v6, 4.0, v6", "v_mul_f32 v6, v6, v5")
    for u in range(5):
        for jp in range(4):
            for e in range(2):
                j = 2*jp+e; c = 32*u + 16*(j>>2) + (j&3)
                A(f"v_fmamk_f32 v{8+e}, v5, {fl(float(c))}, v6")
            A("v_cos_f32 v10, v8", "v_cos_f32 v11, v9", "v_sin_f32 v12, v8", "v_sin_f32 v13, v9",
              f"v_cvt_pk_bf16_f32 v{BC(u)+jp}, v10, v11", f"v_cvt_pk_bf16_f32 v{BS(u)+jp}, -v12, -v13")
    for r in (1,2,3):
        A(f"v_mul_f32 v8, {fl(r/640)}, v4", f"v_cos_f32 v{TW+2*r-2}, v8", f"v_sin_f32 v{TW+2*r-1}, v8")
    A("v_cmp_eq_u32 vcc, 0, v3", f"v_mov_b32 v8, {fl(-640.0)}", "s_nop 0", "v_cndmask_b32 v62, 0, v8, vcc")
    A("v_and_b32 v8, 3, v0", "v_bfe_u32 v9, v0, 3, 1", "v_lshl_add_u32 v9, v2, 1, v9", "v_lshlrev_b32 v10, 2, v8", "v_xor_b32 v9, v9, v10",
      "v_mul_u32_u24 v10, 1280, v8", "v_lshl_add_u32 v10, v9, 4, v10", "v_bfe_u32 v9, v0, 2, 1", "v_lshl_add_u32 v14, v9, 3, v10",
      "s_mul_i32 s41, s44, 40960", "v_add_u32 v14, s41, v14", "v_xor_b32 v15, 128, v14")
    A("s_mov_b32 s41, 90112", "v_mul_lo_u32 v63, v1, s41", "v_lshl_add_u32 v63, v2, 4, v63",
      "s_mul_i32 s41, s44, 6144", f"s_add_u32 s41, s41, {FPIMG}", "v_lshl_add_u32 v7, v0, 4, s41")
    A("s_cmp_lt_u32 s28, 4", "s_cbranch_scc1 Lp1_w03")
    A("s_and_b32 s46, s28, 1")
    A("s_lshl_b32 s41, s46, 10", "s_add_u32 s41, s41, s29", "s_add_u32 s41, s41, s44",
      "v_lshl_add_u32 v8, v2, 6, s41", "v_cvt_f32_u32 v8, v8", f"v_mul_f32 v8, {fl(1/2048)}, v8",
      "v_cvt_f32_u32 v9, v1", "v_add_f32 v10, 0x41800000, v9")
    for tt in range(4):
        A(f"v_add_f32 v11, {fl(tt*256/2048)}, v8")
        for nt in range(2):
            A(f"v_mul_f32 v12, v11, v{9+nt}", f"v_cos_f32 v{208+nt*4+tt}, v12", f"v_sin_f32 v{216+nt*4+tt}, v12")
    A("s_lshl_b32 s41, s44, 5", "s_lshl_b32 s42, s46, 4", "s_add_u32 s41, s41, s42",
      "v_lshrrev_b32 v8, 2, v0", "v_add_u32 v9, s41, v8", "v_mul_u32_u24 v9, 1280, v9",
      "v_and_b32 v10, 3, v0", "v_lshl_add_u32 v9, v10, 4, v9", "v_and_b32 v8, 3, v8")
    for ii in range(4):
        A(f"v_xor_b32 v10, {ii}, v8", f"v_lshl_add_u32 v{224+ii}, v10, 6, v9")
    A("v_mov_b32 v228, 0", "v_mov_b32 v229, 0", "v_mov_b32 v230, 0", "v_mov_b32 v231, 0", f"s_mov_b32 s47, {ONES}")
    A("s_waitcnt vmcnt(0)", "s_barrier")
    for I in range(5):
        for ii in range(4):
            A(f"ds_read_b128 {vr(64+(I*4+ii)*4,4)}, v{224+ii} offset:{256*I}")
    for I in range(5):
        A(f"s_waitcnt lgkmcnt({min(15,4*(4-I))})")
        for j in range(16):
            r = 64 + I*16 + j
            A(f"v_dot2c_f32_bf16 v{228+(j&1)}, s47, v{r}", f"v_dot2c_f32_bf16 v{230+(j&1)}, v{r}, v{r}")
    A("v_add_f32 v228, v228, v229", "v_add_f32 v230, v230, v231")
    for qp in ("[1,0,3,2]", "[2,3,0,1]"):
        A(f"v_add_f32_dpp v228, v228, v228 quad_perm:{qp} row_mask:0xf bank_mask:0xf",
          f"v_add_f32_dpp v230, v230, v230 quad_perm:{qp} row_mask:0xf bank_mask:0xf")
    row_stats(A, 228, 230, 8, 9, 10, 11)
    A("v_cvt_pk_bf16_f32 v11, v11, v11", "v_lshlrev_b32 v11, 16, v11", "v_rcp_f32 v11, v11",
      "v_lshlrev_b32 v8, 4, v2")
    for tt in range(4):
        A(f"ds_bpermute_b32 v{232+tt}, v8, v11 offset:{64*tt}")
    A("s_lshl_b32 s41, s46, 3", "v_add_u32 v9, s41, v7", "s_waitcnt lgkmcnt(0)")
    for nt in range(2):
        for tt in range(4):
            A(f"v_mul_f32 v{208+nt*4+tt}, v{208+nt*4+tt}, v{232+tt}", f"v_mul_f32 v{216+nt*4+tt}, v{216+nt*4+tt}, v{232+tt}")
        c = 208+nt*4; s = 216+nt*4; o = 236 + nt*6
        A(f"v_cvt_pk_bf16_f32 v{o}, v{c}, v{c+1}", f"v_cvt_pk_bf16_f32 v{o+1}, v{c+2}, v{c+3}",
          f"v_cvt_pk_bf16_f32 v{o+2}, v{s}, v{s+1}", f"v_cvt_pk_bf16_f32 v{o+3}, v{s+2}, v{s+3}",
          f"v_cvt_pk_bf16_f32 v{o+4}, -v{s}, -v{s+1}", f"v_cvt_pk_bf16_f32 v{o+5}, -v{s+2}, -v{s+3}")
        for pl in range(3):
            A(f"ds_write_b64 v9, {vr(o+2*pl,2)} offset:{(nt*3+pl)*1024}")
    A("s_waitcnt lgkmcnt(0)", "s_barrier", "s_branch Lp1_unit")
    A("Lp1_w03:")
    A("s_waitcnt vmcnt(0)", "s_barrier")
    stamp(A, 1)
    A("Lp1_unit:")
    stamp(A, 2)
    def reads(t):
        return [f"ds_read_b64_tr_b16 {vr(AF(t&1,u)+2*jh,2)}, v{14+jh} offset:{t*5120+u*256}" for u in range(5) for jh in range(2)]
    def mf(t):
        L = []
        for u in range(5):
            for (acc, B) in ((AP(t&1), BC(u)), (AQ(t&1), BS(u))):
                L.append(f"v_mfma_f32_16x16x32_bf16 {vr(acc,4)}, {vr(AF(t&1,u),4)}, {vr(B,4)}, {'0' if u==0 else vr(acc,4)}")
        return L
    def bfly(t):
        P = AP(t&1); Q = AQ(t&1); O = lambda i: OUT(t&1, i)
        c1,s1,c2,s2,c3,s3 = range(TW, TW+6)
        pr,pi,qr,qi,ar,ai,ur,ui,wr_,wi_,tt = range(TMP, TMP+11)
        L = [f"v_fma_f32 v{pr}, v{P+2}, v{c2}, v{P}", f"v_fma_f32 v{pi}, v{Q+2}, v{c2}, v{Q}",
             f"v_mul_f32 v{ar}, v{P+1}, v{c1}", f"v_mul_f32 v{ai}, v{Q+1}, v{c1}",
             f"v_fmac_f32 v{pr}, v{Q+2}, v{s2}", f"v_fma_f32 v{pi}, -v{P+2}, v{s2}, v{pi}",
             f"v_fmac_f32 v{ar}, v{Q+1}, v{s1}", f"v_fma_f32 v{ai}, -v{P+1}, v{s1}, v{ai}",
             f"v_fma_f32 v{qr}, 2.0, v{P}, -v{pr}", f"v_fma_f32 v{qi}, 2.0, v{Q}, -v{pi}",
             f"v_fma_f32 v{ur}, v{P+3}, v{c3}, v{ar}", f"v_fma_f32 v{ui}, v{Q+3}, v{c3}, v{ai}",
             f"v_fmac_f32 v{ur}, v{Q+3}, v{s3}", f"v_fma_f32 v{ui}, -v{P+3}, v{s3}, v{ui}",
             f"v_fma_f32 v{wr_}, 2.0, v{ar}, -v{ur}", f"v_fma_f32 v{wi_}, 2.0, v{ai}, -v{ui}",
             f"v_add_f32 v{O(0)}, v{pr}, v{ur}", f"v_add_f32 v{O(1)}, v{pi}, v{ui}",
             f"v_mul_f32 v{tt}, {fl(1/640)}, v{O(0)}",
             f"v_sub_f32 v{O(6)}, v{pr}, v{ur}", f"v_sub_f32 v{O(7)}, v{ui}, v{pi}",
             f"v_cvt_pk_bf16_f32 v{tt}, v{tt}, v{tt}",
             f"v_sub_f32 v{O(2)}, v{qr}, v{wi_}", f"v_fma_f32 v{O(3)}, -1.0, v{qi}, -v{wr_}",
             f"v_lshlrev_b32 v{tt}, 16, v{tt}",
             f"v_add_f32 v{O(4)}, v{qr}, v{wi_}", f"v_sub_f32 v{O(5)}, v{qi}, v{wr_}",
             f"v_fmac_f32 v{O(0)}, v{tt}, v62"]
        if t & 1:
            for i in (1,2,3,4,5,6,7,0):
                L.append(f"v_cvt_pk_bf16_f32 v{YF(i>>1,i&1)+(t>>1)}, v{OUT(0,i)}, v{OUT(1,i)}")
        return L
    A(*reads(0))
    for t in range(9):
        if t == 4:
            A("s_cmp_eq_u32 s45, 0", "s_cbranch_scc1 Lp1_nob", "s_barrier", "Lp1_nob:")
        if t < 8:
            A("s_waitcnt lgkmcnt(0)")
            fill = (reads(t+1) if t < 7 else [f"ds_read_b128 {vr(FP(nt,pl),4)}, v7 offset:{(nt*3+pl)*1024}" for nt in range(2) for pl in range(3)])
            fill = fill + (bfly(t-1) if t >= 1 else [])
            A(*spread(mf(t), fill))
        else:
            A(*bfly(7))
    A("s_waitcnt lgkmcnt(0)")
    stamp(A, 3)
    A("s_add_u32 s41, s29, s44", "s_lshl_b32 s41, s41, 7", "s_lshl_b32 s42, s43, 13", "s_add_u32 s41, s41, s42",
      f"s_add_u32 s42, s41, {16*90112}", f"s_add_u32 s46, s41, {6*8192}", f"s_add_u32 s47, s42, {6*8192}")
    for typ, kinds in ((0,(0,2)), (1,(1,3))):
        if typ == 1:
            A("s_cmp_eq_u32 s43, 5", "s_cbranch_scc1 Lk1_end")
        n = 0
        for tile, o in enumerate(kinds):
            for nt in range(2):
                re = TA + n*8; im = re + 4; n += 1
                A(f"v_mfma_f32_16x16x32_bf16 {vr(re,4)}, {vr(YF(o,0),4)}, {vr(FP(nt,0),4)}, 0",
                  f"v_mfma_f32_16x16x32_bf16 {vr(im,4)}, {vr(YF(o,1),4)}, {vr(FP(nt,0),4)}, 0",
                  f"v_mfma_f32_16x16x32_bf16 {vr(re,4)}, {vr(YF(o,1),4)}, {vr(FP(nt,1),4)}, {vr(re,4)}",
                  f"v_mfma_f32_16x16x32_bf16 {vr(im,4)}, {vr(YF(o,0),4)}, {vr(FP(nt,2),4)}, {vr(im,4)}")
        n = 0
        for tile, o in enumerate(kinds):
            for nt in range(2):
                re = TA + n*8; pk = PK + n*4; n += 1
                for j in range(4):
                    A(f"v_cvt_pk_bf16_f32 v{pk+j}, v{re+2*j}, v{re+2*j+1}")
                so = ((41,42),(46,47))[typ][nt]
                A(f"buffer_store_dwordx4 {vr(pk,4)}, v63, s[36:39], s{so} offen offset:{tile*64}")
    A("s_cmp_eq_u32 s45, 0", "s_cbranch_scc1 Lk1_end")
    A("s_mov_b32 s45, 0", "s_mov_b32 s44, 1", "v_add_u32 v14, 40960, v14", "v_add_u32 v15, 40960, v15", "v_add_u32 v7, 6144, v7", "s_branch Lp1_unit")

def k2(A):
    A("k2_kernel:")
    A("s_cmp_ge_u32 s2, 248", "s_cbranch_scc1 Lk2_end_x")
    kstart(A)
    A("s_load_dwordx4 s[4:7], s[0:1], 8", "s_load_dwordx4 s[8:11], s[0:1], 48", "s_load_dwordx2 s[40:41], s[0:1], 80")
    A("v_lshrrev_b32 v1, 6, v0", "v_and_b32 v0, 63, v0", "v_readfirstlane_b32 s28, v1")
    A("s_and_b32 s31, s2, 7", "s_lshr_b32 s32, s2, 3")
    A("s_waitcnt lgkmcnt(0)")
    A("s_cmp_ge_u32 s32, 20", "s_cbranch_scc1 Lp2")
    srd(A, 12, 40, H_SZ, H_OFF); srd(A, 16, 8, W1_SZ); srd(A, 20, 10, 640*2); srd(A, 24, 40, G_SZ, G_OFF)
    g2(A)
    A("Lp2:")
    srd(A, 12, 40, T_SZ, T_OFF); srd(A, 16, 4, WF_SZ); srd(A, 20, 6, WF_SZ); srd(A, 24, 40, U_SZ, U_OFF)
    p2(A)
    kend(A, 1, "Lk2_end")

def g2(A):
    NS, R = 27, 8
    ACC = lambda mt: 16 + 16*mt
    WB = lambda p, kt, mt: 48 + p*32 + kt*8 + mt*4
    HA = lambda st, kt: 112 + (st % R)*16 + kt*4
    if OPT['local']:
        A("s_lshl_b32 s29, s31, 1", "s_and_b32 s33, s32, 1", "s_add_u32 s29, s29, s33", "s_lshr_b32 s30, s32, 1")
    else:
        A("s_lshr_b32 s29, s31, 1", "s_lshl_b32 s29, s29, 2", "s_and_b32 s33, s32, 3", "s_add_u32 s29, s29, s33")
        A("s_and_b32 s30, s31, 1", "s_mul_i32 s30, s30, 5", "s_lshr_b32 s33, s32, 2", "s_add_u32 s30, s30, s33")
    if OPT['rot']:
        A("s_mul_i32 s43, s30, 173", "s_lshr_b32 s43, s43, 6", "s_and_b32 s34, s29, 1", "s_mul_i32 s34, s34, 13", "s_add_u32 s43, s43, s34",
          "s_cmp_ge_u32 s43, 27", "s_cselect_b32 s34, 27, 0", "s_sub_u32 s43, s43, s34")
    else:
        A("s_mov_b32 s43, 0")
    A("s_lshl_b32 s33, s29, 2", "s_add_u32 s33, s33, s28", f"s_mul_i32 s34, s33, {108*1024}", "v_lshl_add_u32 v2, v0, 4, s34")
    A("v_lshrrev_b32 v4, 3, v0", "s_lshl_b32 s34, s28, 4", "v_add_u32 v4, s34, v4", "v_mul_u32_u24 v4, 1280, v4",
      "v_and_b32 v5, 7, v0", "v_bfe_u32 v6, v0, 4, 1", "v_lshlrev_b32 v6, 1, v6", "v_xor_b32 v5, v5, v6",
      "v_lshl_add_u32 v3, v5, 4, v4", "s_lshl_b32 s34, s30, 7", "v_add_u32 v3, s34, v3", "v_add_u32 v4, 10240, v3",
      "s_lshl_b32 s35, s28, 11")
    def loadB(st):
        slot = (st % R)*8192
        return [f"s_mul_i32 s36, s43, {64*1280}", f"s_add_u32 m0, s35, {slot}", "s_nop 0", "buffer_load_dwordx4 v3, s[16:19], s36 offen lds",
                f"s_add_u32 m0, s35, {slot+1024}", "s_nop 0", "buffer_load_dwordx4 v4, s[16:19], s36 offen lds"]
    def loadA(st):
        return ["s_lshl_b32 s37, s43, 12"] + [f"buffer_load_dwordx4 {vr(HA(st,kt),4)}, v2, s[12:15], s37 offen offset:{kt*1024}" for kt in range(4)] + ["s_add_u32 s43, s43, 1", "s_cmp_eq_u32 s43, 27", "s_cselect_b32 s43, 0, s43"]
    A("v_bfe_u32 v5, v0, 2, 1", "v_lshlrev_b32 v5, 5, v5", "v_bfe_u32 v6, v0, 3, 2", "v_lshl_add_u32 v5, v6, 2, v5",
      "v_and_b32 v6, 3, v0", "v_add_u32 v5, v5, v6", "v_lshl_add_u32 v5, v5, 1, s34",
      "buffer_load_ushort v240, v5, s[20:23], 0 offen", "buffer_load_ushort v244, v5, s[20:23], 0 offen offset:32")
    for st in range(R):
        A(*loadB(st)); A(*loadA(st))
    for r in (241,242,243,245,246,247,249,250,251): A(f"v_mov_b32 v{r}, 0")
    A("v_cmp_gt_u32 vcc, 32, v0", "v_mov_b32 v5, 0x3f80", "s_nop 0", "v_cndmask_b32 v248, 0, v5, vcc")
    A("v_lshrrev_b32 v5, 5, v0", "v_bfe_u32 v8, v0, 2, 2", "v_lshl_add_u32 v5, v5, 2, v8", "v_lshlrev_b32 v5, 7, v5",
      "v_and_b32 v8, 1, v0", "v_lshl_add_u32 v5, v8, 6, v5", "v_bfe_u32 v8, v0, 4, 1", "v_lshl_add_u32 v5, v8, 4, v5",
      "v_bfe_u32 v8, v0, 1, 1", "v_lshl_add_u32 v5, v8, 3, v5", "v_bfe_u32 v8, v0, 3, 1", "v_lshl_add_u32 v6, v8, 5, v5", "v_xor_b32 v7, 32, v6")
    A("v_and_b32 v8, 31, v0", "s_lshl_b32 s36, s33, 5", "v_add_u32 v8, s36, v8", "v_mul_u32_u24 v8, 1280, v8",
      "v_lshrrev_b32 v9, 5, v0", "v_lshl_add_u32 v9, v9, 6, v8", "v_add_u32 v9, s34, v9")
    def reads(st):
        slot = (st % R)*8192
        return [f"ds_read_b64_tr_b16 {vr(WB(st&1,kt,mt)+2*jh,2)}, v{6+mt} offset:{slot+(16*kt+8*jh)*128}" for kt in range(4) for mt in range(2) for jh in range(2)]
    def mf(st):
        return [f"v_mfma_f32_32x32x16_bf16 {vr(ACC(mt),16)}, {vr(WB(st&1,kt,mt),4)}, {vr(HA(st,kt),4)}, {vr(ACC(mt),16)}" for kt in range(4) for mt in range(2)]
    for st in range(NS):
        last = min(NS-1, max(R-1, st+R-2))
        A(f"s_waitcnt vmcnt({4+6*(last-st)})", "s_barrier")
        if st == 0:
            A(*reads(0))
            for mt in range(2):
                A(f"v_mfma_f32_32x32x16_bf16 {vr(ACC(mt),16)}, {vr(240+4*mt,4)}, v[248:251], 0")
        else:
            nx = st-1+R
            fill = reads(st)
            if nx < NS: fill = loadB(nx) + fill
            A(*spread(mf(st-1)[:7], fill)); A(mf(st-1)[7])
            if nx < NS: A(*loadA(nx))
        A("s_waitcnt lgkmcnt(0)")
        if st % 3 == 0 or st == NS-1: stamp(A, 1+(st+2)//3)
    A("s_waitcnt vmcnt(0)")
    A(*mf(NS-1))
    A(f"s_mov_b32 s36, {fl(-1.4426950408889634)}", "s_mov_b32 s38, 1.0")
    for q in range(4):
        a0 = 16 + 8*q; t = 48 + (q&1)*8; o = 64 + q*4
        P = range(4)
        for i in P: A(f"v_pk_mul_f32 {vr(t+2*i,2)}, {vr(a0+2*i,2)}, s[36:37] op_sel_hi:[1,0]")
        for i in range(8): A(f"v_exp_f32 v{t+i}, v{t+i}")
        for i in P: A(f"v_pk_add_f32 {vr(t+2*i,2)}, {vr(t+2*i,2)}, s[38:39] op_sel_hi:[1,0]")
        for i in range(8): A(f"v_rcp_f32 v{t+i}, v{t+i}")
        for i in P: A(f"v_pk_mul_f32 {vr(t+2*i,2)}, {vr(t+2*i,2)}, {vr(a0+2*i,2)}")
        for i in P: A(f"v_cvt_pk_bf16_f32 v{o+i}, v{t+2*i}, v{t+2*i+1}")
        A(f"buffer_store_dwordx4 {vr(o,4)}, v9, s[24:27], 0 offen offset:{16*q}")
    A("s_branch Lk2_end")

def p2(A):
    C = lambda t, ks: vr(16 + (t*2+ks)*4, 4)
    S = lambda t, ks: vr(48 + (t*2+ks)*4, 4)
    WV = lambda tau, pl, t, e: 80 + tau*32 + pl*16 + t*4 + e
    TB = lambda tau, ks, pl: 144 + tau*24 + (ks*3+pl)*4
    XA = lambda tau, pl, t: 192 + tau*32 + pl*16 + t*4
    PK = 80
    A("s_sub_u32 s33, s32, 20", "s_lshl_b32 s33, s33, 2", "s_add_u32 s33, s33, s28",
      "s_mul_i32 s34, s33, 47", "s_lshr_b32 s34, s34, 9",
      "s_mul_i32 s35, s34, 11", "s_sub_u32 s30, s33, s35",
      "s_lshl_b32 s29, s31, 2", "s_add_u32 s29, s29, s34")
    A("s_mul_i32 s33, s29, 90112", "s_lshl_b32 s34, s30, 13", "s_add_u32 s33, s33, s34", "s_lshl_b32 s35, s28, 13",
      "v_lshlrev_b32 v3, 4, v0", "s_mov_b32 m0, s35", "s_add_u32 s34, s33, 4096")
    for i in range(4): A(f"buffer_load_dwordx4 v3, s[12:15], s33 offen offset:{1024*i} lds")
    A("s_add_u32 m0, s35, 4096", "s_nop 0")
    for i in range(4): A(f"buffer_load_dwordx4 v3, s[12:15], s34 offen offset:{1024*i} lds")
    A("v_and_b32 v1, 15, v0", "v_lshrrev_b32 v2, 4, v0")
    A("s_lshl_b32 s33, s30, 4", "v_add_u32 v5, s33, v1", "v_sub_u32 v6, 256, v5",
      "s_cmp_lt_u32 s30, 6", "s_cselect_b64 vcc, -1, 0", "v_cndmask_b32 v5, v6, v5, vcc",
      "v_lshl_add_u32 v4, v2, 7, s29", "v_mul_u32_u24 v4, 642, v4", "v_lshl_add_u32 v4, v5, 1, v4")
    for tau in range(2):
        for t in range(4):
            for e in range(4):
                A(f"s_mov_b32 s33, {(16*t+e)*20544}")
                for pl in range(2):
                    r = WV(tau,pl,t,e)
                    A(f"v_mov_b32 v{r}, 0", f"buffer_load_short_d16_hi v{r}, v4, s[{16+4*pl}:{19+4*pl}], s33 offen offset:{320*tau}")
    A("v_cvt_f32_u32 v5, v1", f"v_mul_f32 v5, {fl(1/64)}, v5", "v_add_f32 v6, 0x3e800000, v5",
      "v_cvt_f32_u32 v7, v2", "v_mul_f32 v7, 4.0, v7",
      "v_and_b32 v14, 1, v0", "v_mov_b32 v15, 0x80008000", "v_mul_lo_u32 v14, v14, v15",
      "v_xor_b32 v15, 0x80000000, v14")
    for t in range(2):
        for jp in range(4):
            for e in range(2):
                j = 2*jp+e
                A(f"v_add_f32 v{8+e}, {fl(float(16*(j>>2)+(j&3)))}, v7", f"v_mul_f32 v{8+e}, v{8+e}, v{5+t}")
            c0 = 16+t*8+jp; s0 = 48+t*8+jp
            A("v_cos_f32 v10, v8", "v_cos_f32 v11, v9", "v_sin_f32 v12, v8", "v_sin_f32 v13, v9",
              f"v_cvt_pk_bf16_f32 v{c0}, v10, v11", f"v_cvt_pk_bf16_f32 v{s0}, v12, v13")
            for b in (c0, s0):
                A(f"v_xor_b32 v{b+4}, v14, v{b}", f"v_xor_b32 v{b+16}, 0x80000000, v{b}", f"v_xor_b32 v{b+20}, v15, v{b}")
    A("v_lshrrev_b32 v5, 2, v0", "v_lshlrev_b32 v5, 7, v5", "v_and_b32 v7, 3, v0", "v_lshl_add_u32 v5, v7, 4, v5", "v_add_u32 v5, s35, v5",
      "s_mov_b32 s33, 45056", "v_mul_lo_u32 v6, v1, s33", "v_lshl_add_u32 v6, v2, 4, v6",
      "s_lshl_b32 s36, s30, 12", "s_lshl_b32 s33, s29, 7", "s_add_u32 s36, s36, s33",
      f"s_add_u32 s37, s36, {16*45056}", f"s_add_u32 s38, s36, {32*45056}", f"s_add_u32 s39, s36, {48*45056}")
    A("s_waitcnt vmcnt(63)"[:0] or "s_nop 0")
    stamp(A, 1)
    A("s_waitcnt vmcnt(32)")
    stamp(A, 2)
    for tau in range(2):
        for ks in range(2):
            for pl in range(2):
                for jh in range(2):
                    A(f"ds_read_b64_tr_b16 {vr(TB(tau,ks,pl)+2*jh,2)}, v5 offset:{(32*ks+16*jh)*128+tau*64+pl*8}")
    M = "v_mfma_f32_16x16x32_bf16"
    def st2(tau):
        L = []
        for t in range(4):
            re = vr(XA(tau,0,t),4); im = vr(XA(tau,1,t),4)
            for ks in range(2):
                tr = vr(TB(tau,ks,0),4); ti = vr(TB(tau,ks,1),4)
                L += [f"{M} {re}, {C(t,ks)}, {tr}, {'0' if ks==0 else re}", f"{M} {im}, {C(t,ks)}, {ti}, {'0' if ks==0 else im}",
                      f"{M} {re}, {S(t,ks)}, {ti}, {re}", f"{M} {im}, {S(t,ks)}, {vr(TB(tau,ks,2),4)}, {im}"]
        return L
    def wmul(tau):
        L = []
        for t in range(4):
            for e in range(4):
                xr = XA(tau,0,t)+e; xi = XA(tau,1,t)+e; wr = WV(tau,0,t,e); wi = WV(tau,1,t,e)
                L += [f"v_mul_f32 v{8+e}, v{xr}, v{wr}", f"v_mul_f32 v{12+e}, v{xr}, v{wi}",
                      f"v_fma_f32 v{8+e}, -v{xi}, v{wi}, v{8+e}", f"v_fmac_f32 v{12+e}, v{xi}, v{wr}"]
            for pl in range(2):
                d = TB(tau, t>>1, pl) + (t&1)*2
                L += [f"v_cvt_pk_bf16_f32 v{d}, v{8+4*pl}, v{9+4*pl}", f"v_cvt_pk_bf16_f32 v{d+1}, v{10+4*pl}, v{11+4*pl}"]
            d = TB(tau, t>>1, 2) + (t&1)*2
            L += [f"v_cvt_pk_bf16_f32 v{d}, -v12, -v13", f"v_cvt_pk_bf16_f32 v{d+1}, -v14, -v15"]
        return L
    def negT(tau):
        return [f"v_xor_b32 v{TB(tau,ks,2)+j}, 0x80008000, v{TB(tau,ks,0)+j}" for ks in range(2) for j in range(4)]
    def st3(tau):
        L = []
        for nt in range(4):
            re = vr(XA(tau,0,nt),4); im = vr(XA(tau,1,nt),4)
            for ks in range(2):
                xr = vr(TB(tau,ks,0),4); xi = vr(TB(tau,ks,1),4)
                L += [f"{M} {re}, {xr}, {C(nt,ks)}, {'0' if ks==0 else re}", f"{M} {im}, {xi}, {C(nt,ks)}, {'0' if ks==0 else im}",
                      f"{M} {re}, {vr(TB(tau,ks,2),4)}, {S(nt,ks)}, {re}", f"{M} {im}, {xr}, {S(nt,ks)}, {im}"]
        return L
    def outp(tau):
        L = []
        for nt in range(4):
            pk = PK + 4*nt; re = XA(tau,0,nt); im = XA(tau,1,nt)
            L += [f"v_cvt_pk_bf16_f32 v{pk}, v{re}, v{re+1}", f"v_cvt_pk_bf16_f32 v{pk+1}, v{re+2}, v{re+3}",
                  f"v_cvt_pk_bf16_f32 v{pk+2}, v{im}, v{im+1}", f"v_cvt_pk_bf16_f32 v{pk+3}, v{im+2}, v{im+3}",
                  f"buffer_store_dwordx4 {vr(pk,4)}, v6, s[24:27], s{36+nt} offen offset:{64*tau}"]
        return L
    A("s_waitcnt lgkmcnt(8)")
    A(*negT(0))
    A(*st2(0)[:16])
    A("s_waitcnt lgkmcnt(0)")
    A(*spread(st2(0)[16:], negT(1)))
    A(*spread(st2(1), wmul(0)))
    stamp(A, 3)
    A("s_waitcnt vmcnt(0)")
    stamp(A, 4)
    A(*spread(st3(0), wmul(1)))
    A(*spread(st3(1), outp(0)))
    A(*outp(1))

def k3(A):
    A("k3_kernel:")
    A("s_cmp_ge_u32 s2, 256", "s_cbranch_scc1 Lk3_end_x")
    kstart(A)
    A("s_load_dwordx2 s[4:5], s[0:1], 0", "s_load_dwordx2 s[6:7], s[0:1], 64", "s_load_dwordx2 s[40:41], s[0:1], 80")
    A("v_lshrrev_b32 v1, 6, v0", "v_and_b32 v0, 63, v0", "v_readfirstlane_b32 s28, v1")
    A("s_and_b32 s31, s2, 7", "s_lshr_b32 s32, s2, 3")
    A("s_lshl_b32 s29, s31, 3", "s_lshr_b32 s33, s32, 2", "s_add_u32 s29, s29, s33",
      "s_and_b32 s30, s32, 1",
      "s_lshr_b32 s33, s32, 1", "s_and_b32 s33, s33, 1", "s_mul_i32 s33, s33, 5", "s_add_u32 s42, s33, s28")
    A("s_waitcnt lgkmcnt(0)")
    srd(A, 12, 40, U_SZ, U_OFF); srd(A, 16, 4, X_SZ); srd(A, 20, 40, G_SZ, G_OFF); srd(A, 24, 6, X_SZ)
    ZIMG = 49152
    GC, GS, GN = 16, 20, 24
    TWc = lambda r: 28 + (r-1)*8
    TWs = lambda r: 32 + (r-1)*8
    HF = lambda bb: 52 + 4*bb
    XR, GR = 76, 84
    XU, GU = 92, 108
    UA = lambda ty, tau, pl: 124 + ((ty*2+tau)*2+pl)*4
    VA = lambda ty, tau, pl: 156 + ((ty*2+tau)*2+pl)*4
    TT = 188
    ZF = lambda bb, r: 124 + (bb*4+r)*4
    ACC = lambda r: 220 + 4*r
    A("s_mul_i32 s33, s29, 45056", "s_lshl_b32 s34, s28, 12", "s_add_u32 s33, s33, s34", f"s_add_u32 s34, s33, {6*4096}",
      "s_lshl_b32 s35, s28, 13", "v_lshlrev_b32 v3, 4, v0", "s_mov_b32 m0, s35",
      "s_cmp_eq_u32 s28, 5", "s_cselect_b32 s36, 0x80000000, 0", "v_or_b32 v4, s36, v3")
    for i in range(4): A(f"buffer_load_dwordx4 v3, s[12:15], s33 offen offset:{1024*i} lds")
    A("s_add_u32 m0, s35, 4096", "s_nop 0")
    for i in range(4): A(f"buffer_load_dwordx4 v4, s[12:15], s34 offen offset:{1024*i} lds")
    A("v_and_b32 v1, 15, v0", "v_lshrrev_b32 v2, 4, v0")
    A("s_lshl_b32 s33, s30, 10", "s_add_u32 s33, s33, s29", "v_lshl_add_u32 v5, v1, 6, s33",
      "v_mul_u32_u24 v6, 1280, v5", "v_lshl_add_u32 v6, v2, 5, v6", "s_lshl_b32 s33, s42, 7", "s_or_b32 s33, s33, s36", "v_add_u32 v6, s33, v6")
    A(f"buffer_load_dwordx4 {vr(XR,4)}, v6, s[16:19], 0 offen", f"buffer_load_dwordx4 {vr(XR+4,4)}, v6, s[16:19], 0 offen offset:16",
      f"buffer_load_dwordx4 {vr(GR,4)}, v6, s[20:23], 0 offen", f"buffer_load_dwordx4 {vr(GR+4,4)}, v6, s[20:23], 0 offen offset:16")
    SC = 2/(640*2048)
    A("v_cvt_f32_u32 v5, v5", f"v_mul_f32 v5, {fl(1/2048)}, v5", "v_cvt_f32_u32 v7, v2", "v_mul_f32 v7, 4.0, v7", f"s_mov_b32 s37, {fl(SC)}")
    for jp in range(4):
        for e in range(2):
            j = 2*jp+e
            A(f"v_add_f32 v{8+e}, {fl(float(16*(j>>2)+(j&3)))}, v7", f"v_mul_f32 v{8+e}, v{8+e}, v5")
        A("v_cos_f32 v10, v8", "v_cos_f32 v11, v9", "v_sin_f32 v12, v8", "v_sin_f32 v13, v9")
        for r in range(10,14): A(f"v_mul_f32 v{r}, s37, v{r}")
        A(f"v_cvt_pk_bf16_f32 v{GC+jp}, v10, v11", f"v_cvt_pk_bf16_f32 v{GS+jp}, v12, v13", f"v_cvt_pk_bf16_f32 v{GN+jp}, -v12, -v13")
    A("v_lshrrev_b32 v5, 2, v0", "v_lshlrev_b32 v5, 7, v5", "v_and_b32 v8, 3, v0", "v_lshl_add_u32 v5, v8, 4, v5", "v_add_u32 v5, s35, v5")
    A("s_lshl_b32 s33, s28, 4", "v_cvt_f32_u32 v8, s33", "v_add_f32 v8, v8, v7")
    for e in range(4):
        A(f"v_add_f32 v9, {fl(float(e))}, v8")
        for r in (1,2,3):
            A(f"v_mul_f32 v10, {fl(r/640)}, v9", f"v_cos_f32 v{TWc(r)+e}, v10", f"v_sin_f32 v{TWs(r)+e}, v10")
    stamp(A, 1)
    A("s_waitcnt vmcnt(4)")
    stamp(A, 2)
    for ty in range(2):
        for tau in range(2):
            for pl in range(2):
                for jh in range(2):
                    A(f"ds_read_b64_tr_b16 {vr(UA(ty,tau,pl)+2*jh,2)}, v5 offset:{ty*4096+jh*2048+tau*64+pl*8}")
    Hl = Asm()
    Hl("s_lshl_b32 s33, s42, 4", "v_add_u32 v14, s33, v1", "v_cvt_f32_u32 v15, v14", f"v_mul_f32 v15, {fl(1/160)}, v15", "v_mul_f32 v4, v7, v15")
    for bb in range(5):
        for ep in range(2):
            for e in range(2):
                Hl(f"v_fmamk_f32 v{8+e}, v15, {fl(float(16*bb+2*ep+e))}, v4")
            Hl("v_cos_f32 v10, v8", "v_cos_f32 v11, v9", "v_sin_f32 v12, v8", "v_sin_f32 v13, v9")
            if bb == 0 and ep == 0:
                Hl("v_cmp_gt_u32 vcc, 16, v0", "s_nop 1", "v_cndmask_b32 v10, v10, 0.5, vcc"[:0] or "v_mov_b32 v8, 0.5", "v_cndmask_b32 v10, v10, v8, vcc")
            Hl(f"v_cvt_pk_bf16_f32 v{HF(bb)+ep}, v10, v11", f"v_cvt_pk_bf16_f32 v{HF(bb)+2+ep}, -v12, -v13")
    Hl("v_and_b32 v8, 1, v14", "v_lshlrev_b32 v8, 15, v8", "v_or_b32 v8, 0x3f80, v8", f"v_cndmask_b32 v{HF(5)}, 0, v8, vcc",
       f"v_mov_b32 v{HF(5)+1}, 0", f"v_mov_b32 v{HF(5)+2}, 0", f"v_mov_b32 v{HF(5)+3}, 0")
    M = "v_mfma_f32_16x16x32_bf16"
    ML = []
    for ty in range(2):
        for tau in range(2):
            re = vr(VA(ty,tau,0),4); im = vr(VA(ty,tau,1),4); ur = vr(UA(ty,tau,0),4); ui = vr(UA(ty,tau,1),4)
            ML += [f"{M} {re}, {ur}, {vr(GC,4)}, 0", f"{M} {im}, {ui}, {vr(GC,4)}, 0", f"{M} {re}, {ui}, {vr(GN,4)}, {re}", f"{M} {im}, {ur}, {vr(GS,4)}, {im}"]
    A(*Hl.lines[:20])
    A("s_waitcnt lgkmcnt(0)")
    A(*spread(ML, Hl.lines[20:50]))
    def pk(op, d, a, b, c=None, nb=False, na=False):
        s = f"v_pk_{op}_f32 {vr(d,2)}, {vr(a,2)}, {vr(b,2)}" + (f", {vr(c,2)}" if c is not None else "")
        n = [int(na), int(nb)] + ([0] if c is not None else [])
        if na or nb: s += f" neg_lo:[{','.join(map(str,n))}] neg_hi:[{','.join(map(str,n))}]"
        return s
    Ar,Ai,Br,Bi,Dr,Di,Cr,Ci = [VA(ty,tau,pl) for ty in range(2) for tau in range(2) for pl in range(2)]
    pr,pi,qr,qi,ur,ui,wr,wi = [TT+4*i for i in range(8)]
    Z = lambda r, pl: 124 + (r*2+pl)*4
    for e in (0,2):
        A(pk('add',pr+e,Ar+e,Cr+e), pk('add',pi+e,Ai+e,Ci+e,nb=True), pk('add',qr+e,Ar+e,Cr+e,nb=True), pk('add',qi+e,Ai+e,Ci+e),
          pk('add',ur+e,Br+e,Dr+e), pk('add',ui+e,Bi+e,Di+e,nb=True), pk('add',wr+e,Br+e,Dr+e,nb=True), pk('add',wi+e,Bi+e,Di+e))
    b = lambda r, pl: 156 + (r*2+pl)*4
    for e in (0,2):
        A(pk('add',Z(0,0)+e,pr+e,ur+e), pk('add',Z(0,1)+e,pi+e,ui+e), pk('add',b(2,0)+e,pr+e,ur+e,nb=True), pk('add',b(2,1)+e,pi+e,ui+e,nb=True),
          pk('add',b(1,0)+e,qr+e,wi+e,nb=True), pk('add',b(1,1)+e,qi+e,wr+e), pk('add',b(3,0)+e,qr+e,wi+e), pk('add',b(3,1)+e,qi+e,wr+e,nb=True))
    A("s_lshl_b32 s33, s28, 12", f"s_add_u32 s33, s33, {ZIMG}", "v_add_u32 v5, s33, v3")
    for r in range(4):
        if r:
            for e in (0,2):
                A(pk('mul',Z(r,0)+e,b(r,0)+e,TWc(r)+e), pk('mul',Z(r,1)+e,b(r,0)+e,TWs(r)+e))
            for e in (0,2):
                A(pk('fma',Z(r,0)+e,b(r,1)+e,TWs(r)+e,Z(r,0)+e,na=True), pk('fma',Z(r,1)+e,b(r,1)+e,TWc(r)+e,Z(r,1)+e))
        o = TT + 4*r
        for j in range(4): A(f"v_cvt_pk_bf16_f32 v{o+j}, v{Z(r,0)+2*j}, v{Z(r,0)+2*j+1}")
        A(f"ds_write_b128 v5, {vr(o,4)} offset:{r*1024}")
    A(*Hl.lines[50:])
    A("s_waitcnt lgkmcnt(0)", "s_barrier")
    stamp(A, 3)
    A("s_cmp_eq_u32 s28, 5", "s_cbranch_scc1 Lk3_end")
    for bb in range(6):
        for r in range(4):
            A(f"ds_read_b128 {vr(ZF(bb,r),4)}, v3 offset:{ZIMG+(bb*4+r)*1024}" if ZIMG+(bb*4+r)*1024 < 65536 else
              f"ds_read_b128 {vr(ZF(bb,r),4)}, v4 offset:{ZIMG+(bb*4+r)*1024-32768}")
            if bb == 0 and r == 0: A("v_add_u32 v4, 0x8000, v3")
    A("s_waitcnt vmcnt(0)")
    for q in range(8):
        A(f"v_lshlrev_b32 v{XU+2*q}, 16, v{XR+q}", f"v_and_b32 v{XU+2*q+1}, 0xffff0000, v{XR+q}",
          f"v_lshlrev_b32 v{GU+2*q}, 16, v{GR+q}", f"v_and_b32 v{GU+2*q+1}, 0xffff0000, v{GR+q}")
    for bb in range(6):
        A(f"s_waitcnt lgkmcnt({min(15,4*(5-bb))})")
        for r in range(4):
            A(f"{M} {vr(ACC(r),4)}, {vr(HF(bb),4)}, {vr(ZF(bb,r),4)}, {'0' if bb==0 else vr(ACC(r),4)}")
    for r in range(4):
        for e in range(4):
            A(f"v_fmac_f32 v{XU+4*e+r}, v{ACC(r)+e}, v{GU+4*e+r}")
    for q in range(8):
        A(f"v_cvt_pk_bf16_f32 v{XR+q}, v{XU+2*q}, v{XU+2*q+1}")
    A(f"buffer_store_dwordx4 {vr(XR,4)}, v6, s[24:27], 0 offen", f"buffer_store_dwordx4 {vr(XR+4,4)}, v6, s[24:27], 0 offen offset:16")
    kend(A, 2, "Lk3_end")

def kd(name, vgpr, sgpr=100, accum=None):
    accum = accum or min(256, (vgpr+3)//4*4)
    return f""".amdhsa_kernel {name}
  .amdhsa_next_free_vgpr {vgpr}
  .amdhsa_next_free_sgpr {sgpr}
  .amdhsa_accum_offset {accum}
  .amdhsa_group_segment_fixed_size 0
  .amdhsa_kernarg_size 88
  .amdhsa_user_sgpr_count 2
  .amdhsa_user_sgpr_kernarg_segment_ptr 1
  .amdhsa_system_sgpr_workgroup_id_x 1
.end_amdhsa_kernel
"""

def build(kernels):
    hdr = open(f"cdna_kernels/{NAME}.s.ref").read().split("; Override")[0]
    out = hdr
    for (name, fn, grid, block, lds, vg) in kernels:
        out += f"; @launch kernel={name} grid=({grid},1,1) block=({block},1,1) lds={lds}\n"
    out += '.amdgcn_target "amdgcn-amd-amdhsa--gfx950"\n.text\n'
    seen = []
    for (name, fn, grid, block, lds, vg) in kernels:
        if name in seen: continue
        seen.append(name)
        A = Asm(); fn(A)
        out += f".globl {name}\n.p2align 8\n.type {name},@function\n" + A.text()
    out += '.section .rodata,"a"\n'
    seen = []
    for (name, fn, grid, block, lds, vg) in kernels:
        if name in seen: continue
        seen.append(name)
        out += ".p2align 6\n" + kd(name, vg)
    return out

KS = [("k1_kernel", k1, 256, 512, 163840, 256), ("k2_kernel", k2, 248, 256, 98304, 256), ("k3_kernel", k3, 256, 384, 98304, 240)]

if __name__ == '__main__':
    DIAG = len(sys.argv) > 2 and sys.argv[2] == 'diag'
    ks = KS
    open(sys.argv[1] if len(sys.argv) > 1 else 'cur.s', 'w').write(build(ks))
```

```python
import gen, sys
from gen import *
SPIN = len(sys.argv) > 2 and sys.argv[2] == 'spin'
def gbar(A, n, lab):
    A(f"{lab}:")
    A("s_waitcnt vmcnt(0) lgkmcnt(0)", "s_barrier")
    A("s_cmp_lg_u32 s28, 0", f"s_cbranch_scc1 Lgb{n}_w")
    A("s_load_dwordx2 s[92:93], s[0:1], 72", "s_waitcnt lgkmcnt(0)", "s_mov_b32 s94, 256", "s_mov_b32 s95, 0x00020000")
    A("buffer_wbl2 sc1", "s_waitcnt vmcnt(0)", "s_mov_b64 exec, 1", "v_mov_b32 v1, 0", "v_mov_b32 v2, 1",
      f"buffer_atomic_add v2, v1, s[92:95], 0 offen offset:{128*n} sc1", "s_mov_b32 s96, 0")
    A(f"Lgb{n}_p:", f"buffer_load_dword v2, v1, s[92:95], 0 offen offset:{128*n} sc1", "s_waitcnt vmcnt(0)", "v_readfirstlane_b32 s97, v2",
      "s_add_u32 s96, s96, 1", "s_cmp_ge_u32 s96, 0x40000", f"s_cbranch_scc1 Lgb{n}_o",
      "s_cmp_lt_u32 s97, 256", "s_sleep 1", f"s_cbranch_scc1 Lgb{n}_p", f"Lgb{n}_o:")
    A("s_mov_b64 exec, -1", "buffer_inv sc1", "s_waitcnt vmcnt(0)")
    A(f"Lgb{n}_w:", "s_barrier")
def kend2(A, kid, lab):
    if kid < 2: gbar(A, kid, lab)
    else:
        A(f"{lab}:")
        if SPIN:
            A("s_cmp_lg_u32 s28, 0", "s_cbranch_scc1 Lfin", "s_cmp_lg_u32 s2, 0", "s_cbranch_scc1 Lfin")
            A("s_waitcnt vmcnt(0)", "s_memrealtime s[62:63]", "s_waitcnt lgkmcnt(0)", "s_sub_u32 s33, s62, s98", "s_min_u32 s33, s33, 10000")
            A("Lspin:", "s_memrealtime s[64:65]", "s_waitcnt lgkmcnt(0)", "s_sub_u32 s34, s64, s62", "s_cmp_lt_u32 s34, s33", "s_cbranch_scc1 Lspin")
        A("Lfin:", "s_endpgm")
gen.kend = kend2
def single(A):
    out = []
    for ph, fn in enumerate((k1, k2, k3)):
        B = Asm(); fn(B); L = B.lines
        assert L[0].endswith("_kernel:")
        if ph == 0:
            L[0] = NAME + "_kernel:"; L[2] = "s_cbranch_scc1 Lfin"
            L.insert(3, "s_memrealtime s[98:99]")
            i = L.index("Lg1c:"); assert L[i-1] == "s_branch Lk1_end"; L.insert(i-1, "s_barrier")
        else:
            L = L[1:]
            L[1] = f"s_cbranch_scc1 Lk{ph+1}_end"
            for s in ("v_lshrrev_b32 v1, 6, v0", "v_and_b32 v0, 63, v0", "v_readfirstlane_b32 s28, v1"):
                L.remove(s)
            if ph == 1:
                pre = ["s_cmp_lt_u32 s28, 4", "s_cbranch_scc1 Lph2", "s_cmp_ge_u32 s2, 160", "s_cbranch_scc1 Lk2_end"] + ["s_barrier"]*27 + ["s_branch Lk2_end", "Lph2:"]
            else:
                pre = ["s_cmp_lt_u32 s28, 6", "s_cbranch_scc1 Lph3", "s_barrier", "s_branch Lfin", "Lph3:"]
            L = pre + L
        out += L
    A(*out)
txt = build([(NAME+"_kernel", single, 256, 512, 163840, 256)])
txt = txt.replace(f"; @launch kernel={NAME}_kernel grid", "; @launch grid")
open(sys.argv[1],'w').write(txt)
```

```python
import sys, math
from asmlib import *

NAME = "recurrent_scan__spectral_gfnet__dense_activation_gelu__prompt"
H_OFF, H_SZ = 0, 2048*1728*2
T_OFF, T_SZ = 0x700000, 32*11*64*128
U_OFF, U_SZ = 0xA00000, 32*11*64*128
P_OFF, P_SZ = 0xD00000, 2*2048*640*2
HT_OFF, HT_SZ = 0x1200000, 10*6*1024
X_SZ = 2048*640*2
W1_SZ = 640*1728*2
WF_SZ = 2048*321*2
OPT = dict(rot1=True, rot2=True, pf=True, sc_h='sc1', sc_t='sc1', sc_u='sc1', sc_p='sc1', sc_o='', map1='4x7', D=3, cpf=True, hpf=False, pfst=None)

def vr(b, n): return f"v[{b}:{b+n-1}]"
def srd(A, d, base, size, off=0):
    if off:
        A(f"s_add_u32 s{d}, s{base}, 0x{off:x}", f"s_addc_u32 s{d+1}, s{base+1}, 0")
    else:
        A(f"s_mov_b32 s{d}, s{base}", f"s_mov_b32 s{d+1}, s{base+1}")
    A(f"s_mov_b32 s{d+2}, {size}", f"s_mov_b32 s{d+3}, 0x00020000")

DIAG = False
DIAG_OFF = 0x2000000
def stamp(A, k):
    if DIAG:
        A(f"s_memrealtime s[{60+2*k}:{61+2*k}]", "s_waitcnt lgkmcnt(0)")
def kstart(A):
    if DIAG:
        for k in range(60, 92): A(f"s_mov_b32 s{k}, 0")
        A("s_memrealtime s[60:61]", "s_memtime s[88:89]", "s_load_dwordx2 s[92:93], s[0:1], 80", "s_waitcnt lgkmcnt(0)")
def kend(A, kid, lab):
    A(f"{lab}:")
    if DIAG:
        A("s_memrealtime s[84:85]", "s_waitcnt vmcnt(0) lgkmcnt(0)", "s_memrealtime s[86:87]", "s_memtime s[90:91]", "s_waitcnt lgkmcnt(0)")
        A(f"s_add_u32 s92, s92, 0x{DIAG_OFF:x}", "s_addc_u32 s93, s93, 0", "s_mov_b32 s94, 0x1000000", "s_mov_b32 s95, 0x00020000")
        A(f"s_add_u32 s96, s2, {kid*256}", "s_lshl_b32 s96, s96, 4", "s_add_u32 s96, s96, s28", "s_lshl_b32 s96, s96, 6", "s_mov_b64 exec, -1", "v_mov_b32 v1, 0")
        for q in range(4):
            for j in range(4): A(f"v_mov_b32 v{4+j}, s{60+2*(4*q+j)}")
            A(f"buffer_store_dwordx4 v[4:7], v1, s[92:95], s96 offen offset:{16*q}", "s_nop 1")
    A("s_endpgm")
    A(f"{lab}_x:", "s_endpgm")

GA = -2*0.7978845608028654*1.4426950408889634
GB = GA*0.044715
ONES = "0x3f803f80"
M32 = "v_mfma_f32_32x32x16_bf16"
M16 = "v_mfma_f32_16x16x32_bf16"

def row_stats(A, sx, sxx, t0, t1, mean, sq):
    A(f"v_mul_f32 v{mean}, {fl(1/640)}, v{sx}",
      f"v_mul_f32 v{t0}, {fl(1/640)}, v{sxx}",
      f"v_fma_f32 v{t0}, -v{mean}, v{mean}, v{t0}",
      f"v_max_f32 v{t0}, 0, v{t0}",
      f"v_cvt_pk_bf16_f32 v{t0}, v{t0}, v{t0}",
      f"v_lshlrev_b32 v{t0}, 16, v{t0}",
      f"v_add_f32 v{t0}, {fl(1e-5)}, v{t0}",
      f"v_cvt_pk_bf16_f32 v{t0}, v{t0}, v{t0}",
      f"v_lshlrev_b32 v{t0}, 16, v{t0}",
      f"v_sqrt_f32 v{sq}, v{t0}")

RING = 4
_cpf_n = [0]
def cpf(A, target, sel, v=(14,15,13), s=(56,58)):
    _cpf_n[0] += 1; lab = f"Lcpf{_cpf_n[0]}"
    a, t = s
    A(f"s_getpc_b64 s[{a}:{a+1}]", f"{lab}:", f"s_add_u32 s{a}, s{a}, {target}-{lab}", f"s_addc_u32 s{a+1}, s{a+1}, ({target}-{lab})>>32")
    A(f"v_lshlrev_b32 v{v[0]}, 7, v0")
    if sel: A(f"s_lshl_b32 s{t}, {sel}, 13", f"v_add_u32 v{v[0]}, s{t}, v{v[0]}")
    A(f"v_mov_b32 v{v[1]}, s{a+1}", f"v_add_co_u32 v{v[0]}, vcc, s{a}, v{v[0]}", f"v_addc_co_u32 v{v[1]}, vcc, 0, v{v[1]}, vcc",
      f"global_load_dword v{v[2]}, v[{v[0]}:{v[1]}], off")
ACC = lambda mt, nt: 16 + (mt*2+nt)*16
FB = lambda p, kk, w: 80 + p*64 + kk*16 + w*4

def loader_loop(A, NST, issue, extra=None):
    D = OPT['D']
    for st in range(D): issue(st)
    npf = 0
    for st in range(NST):
        issued = min(NST-1, st+D-1)
        A(f"s_waitcnt vmcnt({8*(issued-st)+npf})", "s_barrier")
        if st+D < NST: issue(st+D)
        if extra and st+D == NST-1: npf += extra()

def compute_loop(A, NST, reads, mfmas, tail, stampf=None):
    A("s_barrier")
    A(*reads(0))
    A("s_waitcnt lgkmcnt(0)")
    if stampf: stampf(0)
    A("s_barrier")
    for st in range(1, NST):
        M = mfmas(st-1)
        A(*spread(M[:11], reads(st)))
        A(M[11], M[12])
        A("s_waitcnt lgkmcnt(0)")
        if stampf: stampf(st)
        if st < NST-1: A("s_barrier")
        A(*M[13:])
        A(*tail(st-1))

def k1(A):
    A("k1_kernel:")
    A("s_cmp_ge_u32 s2, 256", "s_cbranch_scc1 Lk1_end_x")
    kstart(A)
    A("s_load_dwordx2 s[4:5], s[0:1], 0", "s_load_dwordx4 s[8:11], s[0:1], 32", "s_load_dwordx2 s[6:7], s[0:1], 80")
    A("v_lshrrev_b32 v1, 6, v0", "v_and_b32 v0, 63, v0", "v_readfirstlane_b32 s28, v1")
    A("s_and_b32 s31, s2, 7", "s_lshr_b32 s32, s2, 3")
    if OPT['cpf']:
        A("s_lshl_b32 s33, s32, 3", "s_add_u32 s33, s33, s28", "s_cmp_ge_u32 s33, 3", "s_cbranch_scc1 Lk1_nc")
        cpf(A, "k1_kernel", "s28")
        A("Lk1_nc:")
    A("s_cmp_ge_u32 s32, 28", "s_cbranch_scc1 Lp1")
    if OPT['map1'] == '2x14':
        A("s_lshl_b32 s29, s31, 1", "s_and_b32 s33, s32, 1", "s_add_u32 s29, s29, s33", "s_lshr_b32 s30, s32, 1")
    else:
        A("s_lshr_b32 s29, s31, 1", "s_lshl_b32 s29, s29, 2", "s_and_b32 s33, s32, 3", "s_add_u32 s29, s29, s33")
        A("s_and_b32 s30, s31, 1", "s_mul_i32 s30, s30, 7", "s_lshr_b32 s33, s32, 2", "s_add_u32 s30, s30, s33")
    A("s_cmp_lt_u32 s28, 4", "s_cbranch_scc1 Lg1c")
    g1_loader(A)
    A("Lg1c:")
    g1_compute(A)
    A("Lp1:")
    p1(A)
    kend(A, 0, "Lk1_end")

def g1_loader(A):
    NST = 10
    A("s_sub_u32 s33, s28, 4")
    A("v_lshrrev_b32 v1, 3, v0", "v_and_b32 v2, 7, v0", "v_lshrrev_b32 v3, 4, v0",
      "s_lshl_b32 s34, s29, 2", "s_add_u32 s34, s34, s33",
      "v_lshl_add_u32 v1, v1, 6, s34", "v_mul_u32_u24 v1, 1280, v1",
      "v_xor_b32 v8, v2, v3", "v_xor_b32 v9, 4, v8",
      "v_lshl_add_u32 v4, v8, 4, v1", "v_lshl_add_u32 v5, v9, 4, v1",
      f"v_add_u32 v5, {8*64*1280}, v5", f"v_add_u32 v6, {16*64*1280}, v4", f"v_add_u32 v7, {16*64*1280}, v5")
    A("v_and_b32 v2, 15, v0", "v_lshlrev_b32 v8, 2, v3", "v_xor_b32 v2, v2, v8",
      "s_lshl_b32 s34, s33, 4", "v_add_u32 v8, s34, v3", "v_mul_u32_u24 v8, 3456, v8",
      "s_lshl_b32 s34, s30, 8", "v_lshl_add_u32 v10, v2, 4, v8", "v_add_u32 v10, s34, v10")
    A("s_cmp_eq_u32 s30, 13", "s_cselect_b32 s34, 8, 16",
      "v_cmp_le_u32 vcc, s34, v2", "v_mov_b32 v8, 0x80000000", "s_nop 0", "v_cndmask_b32 v10, v10, v8, vcc")
    A("s_lshl_b32 s40, s33, 12")
    if OPT['rot1']:
        if OPT['map1'] == '2x14':
            A("s_mul_i32 s43, s30, 47", "s_lshr_b32 s43, s43, 6", "s_and_b32 s34, s29, 1", "s_mul_i32 s34, s34, 5", "s_add_u32 s43, s43, s34")
        else:
            A("s_lshr_b32 s43, s32, 2", "s_mul_i32 s43, s43, 92", "s_and_b32 s34, s32, 3", "s_mul_i32 s34, s34, 160", "s_add_u32 s43, s43, s34", "s_lshr_b32 s43, s43, 6")
        A("s_cmp_ge_u32 s43, 10", "s_cselect_b32 s34, 10, 0", "s_sub_u32 s43, s43, s34")
    else:
        A("s_mov_b32 s43, 0")
    A("s_waitcnt lgkmcnt(0)")
    srd(A, 12, 4, X_SZ); srd(A, 16, 8, W1_SZ)
    def issue(st):
        slot = (st % RING) * 32768
        A("s_lshl_b32 s41, s43, 7", f"s_mul_i32 s42, s43, {64*3456}")
        for q in range(4):
            A(f"s_add_u32 m0, s40, {slot + q*1024}", "s_nop 0", f"buffer_load_dwordx4 v{4+q}, s[12:15], s41 offen lds")
            A(f"s_add_u32 m0, s40, {slot + 16384 + q*1024}", "s_nop 0", f"buffer_load_dwordx4 v10, s[16:19], s42 offen lds")
            if q < 3: A(f"s_add_u32 s42, s42, {4*3456}")
        A("s_add_u32 s43, s43, 1", "s_cmp_eq_u32 s43, 10", "s_cselect_b32 s43, 0, s43")
    def extra():
        if not OPT['pf']: return 0
        A("s_load_dwordx4 s[44:47], s[0:1], 8", "s_load_dwordx2 s[48:49], s[0:1], 48",
          "s_lshl_b32 s34, s32, 2", "s_add_u32 s34, s34, s33", f"s_mul_i32 s35, s34, {192*128}", "v_lshl_add_u32 v11, v0, 7, s35",
          "s_lshl_b32 s35, s34, 1", "v_lshrrev_b32 v12, 5, v0", "v_add_u32 v12, s35, v12", "v_and_b32 v12, 63, v12",
          "v_mul_u32_u24 v12, 20544, v12", "v_and_b32 v13, 31, v0", "v_min_u32 v13, 21, v13", "v_lshl_add_u32 v12, v13, 7, v12",
          "s_mul_i32 s35, s31, 2568", "s_and_b32 s35, s35, 0xffffff80", "v_add_u32 v12, s35, v12", "v_and_b32 v12, -4, v12",
          "s_waitcnt lgkmcnt(0)")
        srd(A, 52, 48, W1_SZ)
        A("s_cmp_lt_u32 s34, 32", "s_cselect_b32 s56, s44, s46", "s_cselect_b32 s57, s45, s47", "s_cmp_lt_u32 s34, 64",
          f"s_cselect_b32 s58, {WF_SZ}, 0", "s_mov_b32 s59, 0x00020000")
        for i in range(3):
            A(f"s_movk_i32 s35, {i*8192}", f"buffer_load_dword v{16+i}, v11, s[52:55], s35 offen")
        A("buffer_load_dword v20, v12, s[56:59], 0 offen")
        return 4
    loader_loop(A, NST, issue, extra)
    if OPT['cpf']:
        A("s_lshl_b32 s34, s32, 2", "s_add_u32 s34, s34, s33", "s_cmp_ge_u32 s34, 2", "s_cbranch_scc1 Lk1_nc2")
        cpf(A, "k2_kernel", "s33")
        A("Lk1_nc2:")
    A("s_barrier")
    A("s_branch Lk1_end")

def g1_compute(A):
    NST = 10
    XA = lambda kk, nt: 208 + kk*2 + nt
    WA = lambda mt: 216 + mt
    SX, SXX, CS, B1 = 218, 219, 220, 221
    A("s_and_b32 s33, s28, 1", "s_lshr_b32 s34, s28, 1")
    A("v_and_b32 v1, 31, v0", "v_lshrrev_b32 v2, 5, v0")
    A("s_lshl_b32 s35, s30, 7", "s_lshl_b32 s40, s33, 6", "s_add_u32 s35, s35, s40", "s_lshl_b32 s40, s34, 5", "s_add_u32 s35, s35, s40",
      "v_add_lshl_u32 v9, v1, s35, 1", f"v_mov_b32 v{B1}, 0")
    A("s_lshl_b32 s35, s34, 13", "s_lshl_b32 s40, s33, 12", "s_add_u32 s35, s35, s40",
      "v_lshl_add_u32 v3, v1, 7, s35", "v_bfe_u32 v4, v0, 1, 3", "v_xor_b32 v4, v4, v2")
    for kk in range(4):
        A(f"v_xor_b32 v5, {2*kk}, v4", f"v_lshl_add_u32 v{XA(kk,0)}, v5, 4, v3", f"v_xor_b32 v{XA(kk,1)}, 0x1000, v{XA(kk,0)}")
    A("v_bfe_u32 v4, v0, 2, 2", "v_lshl_add_u32 v5, v2, 3, v4", "v_lshlrev_b32 v5, 8, v5",
      "v_bfe_u32 v6, v0, 4, 1", "v_lshl_add_u32 v5, v6, 5, v5", "v_and_b32 v6, 3, v0", "v_lshl_add_u32 v5, v6, 3, v5",
      "s_lshl_b32 s35, s33, 1", "s_add_u32 s35, s35, s34",
      "v_xor_b32 v6, s35, v4", f"v_lshl_add_u32 v{WA(0)}, v6, 6, v5", f"v_xor_b32 v{WA(1)}, 64, v{WA(0)}")
    A(f"v_mov_b32 v{SX}, 0", f"v_mov_b32 v{SXX}, 0", f"v_mov_b32 v{CS}, 0", f"s_mov_b32 s41, {ONES}")
    A("s_waitcnt lgkmcnt(0)")
    srd(A, 20, 10, 1728*2); srd(A, 24, 6, H_SZ, H_OFF)
    A(f"buffer_load_short_d16_hi v{B1}, v9, s[20:23], 0 offen")
    A("s_lshl_b32 s35, s30, 1", "s_add_u32 s35, s35, s33")
    for mt in range(2):
        for nt in range(2):
            s = 44 + mt*2 + nt
            A("s_lshl_b32 s40, s29, 2", "s_lshl_b32 s42, s34, 1", "s_add_u32 s40, s40, s42", f"s_xor_b32 s42, s33, {nt}", "s_add_u32 s40, s40, s42",
              "s_mulk_i32 s40, 108", "s_lshl_b32 s42, s35, 2", "s_add_u32 s40, s40, s42", f"s_xor_b32 s42, s34, {mt}", "s_lshl_b32 s42, s42, 1",
              "s_add_u32 s40, s40, s42", f"s_lshl_b32 s{s}, s40, 10")
    XCH = 131072
    A("s_lshl_b32 s42, s34, 9", "s_lshl_b32 s40, s33, 8", "s_add_u32 s42, s42, s40", f"s_add_u32 s42, s42, {XCH}", "v_lshl_add_u32 v7, v1, 3, s42",
      "s_lshl_b32 s42, s33, 9", "s_lshl_b32 s40, s34, 8", "s_add_u32 s42, s42, s40", f"s_add_u32 s42, s42, {XCH}", "v_lshl_add_u32 v8, v1, 3, s42",
      "v_lshlrev_b32 v9, 4, v0")
    XF0, WF0, XF1, WF1 = 224, 228, 232, 236
    for r in (XF0, WF0, XF1, WF1):
        A(f"v_mov_b32 v{r+2}, 0", f"v_mov_b32 v{r+3}, 0")
    base = [0]
    def reads(st):
        p = st & 1; slot = (st % RING) * 32768
        L = []
        nb = slot & ~0xffff
        if nb != base[0]:
            for r in range(208, 218): L.append(f"v_xor_b32 v{r}, 0x10000, v{r}")
            base[0] = nb
        so = slot - nb
        for kk in range(4):
            for mt in range(2):
                for jh in range(2):
                    L.append(f"ds_read_b64_tr_b16 {vr(FB(p,kk,2+mt)+2*jh,2)}, v{WA(mt)} offset:{so+16384+(16*kk+4*jh)*256}")
            for nt in range(2):
                L.append(f"ds_read_b128 {vr(FB(p,kk,nt),4)}, v{XA(kk,nt)} offset:{so}")
        return L
    def mfmas(st):
        p = st & 1; L = []
        for kk in range(4):
            for mt in range(2):
                for nt in range(2):
                    c = "0" if (st == 0 and kk == 0) else vr(ACC(mt,nt),16)
                    L.append(f"{M32} {vr(ACC(mt,nt),16)}, {vr(FB(p,kk,2+mt),4)}, {vr(FB(p,kk,nt),4)}, {c}")
        return L
    def dots(st):
        p = st & 1; L = []
        for kk in range(4):
            for j in range(4):
                L.append(f"v_dot2c_f32_bf16 v{SX}, s41, v{FB(p,kk,0)+j}")
                L.append(f"v_dot2c_f32_bf16 v{SXX}, v{FB(p,kk,0)+j}, v{FB(p,kk,0)+j}")
                L.append(f"v_dot2c_f32_bf16 v{CS}, s41, v{FB(p,kk,2)+j}")
        return L
    compute_loop(A, NST, reads, mfmas, dots, lambda st: stamp(A, 1+st))
    A(*dots(NST-1))
    M = mfmas(NST-1)
    F = Asm()
    for r in (SX, SXX, CS):
        F(f"v_mov_b32 v3, v{r}", "s_nop 1", f"v_permlane32_swap_b32 v{r}, v3", f"v_add_f32 v{r}, v{r}, v3")
    row_stats(F, SX, SXX, 3, 4, 5, 6)
    F(f"v_cvt_pk_bf16_f32 v{XF0}, -v5, -v5", f"v_cvt_pk_bf16_f32 v{XF0+1}, -v5, v6")
    F(f"v_cvt_pk_bf16_f32 v3, v{CS}, v{CS}", "v_lshlrev_b32 v3, 16, v3", f"v_sub_f32 v3, v{CS}, v3",
      f"v_cvt_pk_bf16_f32 v{WF0}, v{CS}, v3", f"v_and_b32 v4, 0xffff0000, v{WF0}", "v_sub_f32 v3, v3, v4",
      "s_waitcnt vmcnt(0)", f"v_cvt_pk_bf16_f32 v{WF0+1}, v3, v{B1}")
    F(f"ds_write_b64 v7, {vr(XF0,2)}", f"ds_write_b64 v8, {vr(WF0,2)} offset:1024",
      "v_xor_b32 v7, 0x100, v7", "v_xor_b32 v8, 0x100, v8")
    A(*spread(M[:8], F.lines))
    A(M[8], M[9])
    A("s_waitcnt lgkmcnt(0)", "s_barrier")
    A(f"ds_read_b64 {vr(XF1,2)}, v7", f"ds_read_b64 {vr(WF1,2)}, v8 offset:1024")
    A(*M[10:14])
    A("v_cmp_eq_u32 vcc, 0, v2", "s_waitcnt lgkmcnt(0)")
    G = Asm()
    for r in (WF0, WF0+1, WF1, WF1+1):
        G(f"v_cndmask_b32 v{r}, 0, v{r}, vcc")
    for nt in range(2):
        c = 240 + 4*nt
        G(f"v_and_b32 v{c+2}, 0xffff0000, v{(XF0,XF1)[nt]+1}", f"v_rcp_f32 v3, v{c+2}",
          f"v_mul_f32 v{c}, {fl(GA)}, v3", "v_mul_f32 v4, v3, v3", "v_mul_f32 v4, v4, v3", f"v_mul_f32 v{c+1}, {fl(GB)}, v4")
    A(*spread(M[14:], G.lines[:8]))
    X = [f"{M32} {vr(ACC(mt,nt),16)}, {vr((WF0,WF1)[mt],4)}, {vr((XF0,XF1)[nt],4)}, {vr(ACC(mt,nt),16)}" for mt in range(2) for nt in range(2)]
    A(*spread(X, G.lines[8:]))
    stamp(A, 11)
    A("s_cmp_ge_u32 s35, 27", "s_cbranch_scc1 Lk1_end")
    n = 0
    for mt in range(2):
        for nt in range(2):
            c = 240 + 4*nt
            for half in range(2):
                a0 = ACC(mt,nt) + 8*half
                t = 80 + (n % 2)*16; o = 112 + (n % 4)*4; n += 1
                P = range(4)
                for i in P: A(f"v_pk_mul_f32 {vr(t+2*i,2)}, {vr(a0+2*i,2)}, {vr(a0+2*i,2)}")
                for i in P: A(f"v_pk_fma_f32 {vr(t+2*i,2)}, {vr(t+2*i,2)}, {vr(c,2)}, {vr(c,2)} op_sel:[0,1,0] op_sel_hi:[1,1,0]")
                for i in P: A(f"v_pk_mul_f32 {vr(t+2*i,2)}, {vr(t+2*i,2)}, {vr(a0+2*i,2)}")
                for i in range(8): A(f"v_exp_f32 v{t+i}, v{t+i}")
                for i in P: A(f"v_pk_fma_f32 {vr(t+2*i,2)}, {vr(t+2*i,2)}, {vr(c+2,2)}, {vr(c+2,2)} op_sel:[0,0,0] op_sel_hi:[1,0,0]")
                for i in range(8): A(f"v_rcp_f32 v{t+i}, v{t+i}")
                for i in P: A(f"v_pk_mul_f32 {vr(t+2*i,2)}, {vr(t+2*i,2)}, {vr(a0+2*i,2)}")
                for i in P: A(f"v_cvt_pk_bf16_f32 v{o+i}, v{t+2*i}, v{t+2*i+1}")
                A(f"buffer_store_dwordx4 {vr(o,4)}, v9, s[24:27], s{44+mt*2+nt} offen offset:{half*1024} {OPT['sc_h']}")
    A("s_branch Lk1_end")

def p1(A):
    BC = lambda u: 16 + 8*u
    BS = lambda u: 20 + 8*u
    TW = 56
    AF = lambda p, u: 64 + p*20 + 4*u
    AP = lambda p: 104 + 8*p
    AQ = lambda p: 108 + 8*p
    OUT = lambda par, i: 120 + par*8 + i
    TMP = 136
    YF = lambda o, pl: 152 + (o*2+pl)*4
    FP = lambda nt, pl: 184 + (nt*3+pl)*4
    TA = 208; PK = 240
    FPIMG = 81920
    A("s_waitcnt lgkmcnt(0)")
    srd(A, 12, 4, X_SZ); srd(A, 36, 6, T_SZ, T_OFF)
    A("s_sub_u32 s29, s32, 28", "s_lshl_b32 s29, s29, 3", "s_add_u32 s29, s29, s31", "s_lshl_b32 s29, s29, 1")
    A("s_lshr_b32 s33, s28, 2", "s_add_u32 s33, s33, s29",
      "s_and_b32 s34, s28, 3", "s_lshl_b32 s34, s34, 9", "s_add_u32 s33, s33, s34",
      "s_mulk_i32 s33, 1280",
      "s_mul_i32 s34, s28, 10240",
      "s_mov_b32 s35, 81920", "s_movk_i32 s40, 820")
    for i in range(10):
        A(f"v_add_u32 v1, {64*i}, v0", "v_mul_u32_u24 v2, s40, v1", "v_lshrrev_b32 v2, 16, v2",
          "v_mul_u32_u24 v3, 80, v2", "v_sub_u32 v3, v1, v3",
          "v_and_b32 v4, 3, v2", "v_lshlrev_b32 v4, 2, v4", "v_xor_b32 v3, v3, v4",
          "v_mul_u32_u24 v2, s35, v2", "v_lshl_add_u32 v2, v3, 4, v2",
          f"s_add_u32 m0, s34, {1024*i}", "s_nop 0",
          "buffer_load_dwordx4 v2, s[12:15], s33 offen lds")
    A("s_and_b32 s41, s28, 1", "s_add_u32 s41, s41, 4", "s_lshr_b32 s42, s28, 1", "s_and_b32 s42, s42, 1",
      "s_cmp_lt_u32 s28, 4", "s_cselect_b32 s43, s28, s41", "s_cselect_b32 s44, 0, s42",
      "s_cselect_b32 s45, 1, 0")
    A("v_and_b32 v1, 15, v0", "v_lshrrev_b32 v2, 4, v0")
    A("s_lshl_b32 s41, s43, 4", "v_add_u32 v3, s41, v1", "v_cvt_f32_u32 v4, v3",
      f"v_mul_f32 v5, {fl(1/160)}, v4",
      "v_cvt_f32_u32 v6, v2", "v_mul_f32 v6, 4.0, v6", "v_mul_f32 v6, v6, v5")
    for u in range(5):
        for jp in range(4):
            for e in range(2):
                j = 2*jp+e; c = 32*u + 16*(j>>2) + (j&3)
                A(f"v_fmamk_f32 v{8+e}, v5, {fl(float(c))}, v6")
            A("v_cos_f32 v10, v8", "v_cos_f32 v11, v9", "v_sin_f32 v12, v8", "v_sin_f32 v13, v9",
              f"v_cvt_pk_bf16_f32 v{BC(u)+jp}, v10, v11", f"v_cvt_pk_bf16_f32 v{BS(u)+jp}, -v12, -v13")
    for r in (1,2,3):
        A(f"v_mul_f32 v8, {fl(r/640)}, v4", f"v_cos_f32 v{TW+2*r-2}, v8", f"v_sin_f32 v{TW+2*r-1}, v8")
    A("v_cmp_eq_u32 vcc, 0, v3", f"v_mov_b32 v8, {fl(-640.0)}", "s_nop 0", "v_cndmask_b32 v62, 0, v8, vcc")
    A("v_and_b32 v8, 3, v0", "v_bfe_u32 v9, v0, 3, 1", "v_lshl_add_u32 v9, v2, 1, v9", "v_lshlrev_b32 v10, 2, v8", "v_xor_b32 v9, v9, v10",
      "v_mul_u32_u24 v10, 1280, v8", "v_lshl_add_u32 v10, v9, 4, v10", "v_bfe_u32 v9, v0, 2, 1", "v_lshl_add_u32 v14, v9, 3, v10",
      "s_mul_i32 s41, s44, 40960", "v_add_u32 v14, s41, v14", "v_xor_b32 v15, 128, v14")
    A("s_mov_b32 s41, 90112", "v_mul_lo_u32 v63, v1, s41", "v_lshl_add_u32 v63, v2, 4, v63",
      "s_mul_i32 s41, s44, 6144", f"s_add_u32 s41, s41, {FPIMG}", "v_lshl_add_u32 v7, v0, 4, s41")
    A("s_cmp_lt_u32 s28, 4", "s_cbranch_scc1 Lp1_w03")
    A("s_and_b32 s46, s28, 1")
    A("s_lshl_b32 s41, s46, 10", "s_add_u32 s41, s41, s29", "s_add_u32 s41, s41, s44",
      "v_lshl_add_u32 v8, v2, 6, s41", "v_cvt_f32_u32 v8, v8", f"v_mul_f32 v8, {fl(1/2048)}, v8",
      "v_cvt_f32_u32 v9, v1", "v_add_f32 v10, 0x41800000, v9")
    for tt in range(4):
        A(f"v_add_f32 v11, {fl(tt*256/2048)}, v8")
        for nt in range(2):
            A(f"v_mul_f32 v12, v11, v{9+nt}", f"v_cos_f32 v{208+nt*4+tt}, v12", f"v_sin_f32 v{216+nt*4+tt}, v12")
    A("s_lshl_b32 s41, s44, 5", "s_lshl_b32 s42, s46, 4", "s_add_u32 s41, s41, s42",
      "v_lshrrev_b32 v8, 2, v0", "v_add_u32 v9, s41, v8", "v_mul_u32_u24 v9, 1280, v9",
      "v_and_b32 v10, 3, v0", "v_lshl_add_u32 v9, v10, 4, v9", "v_and_b32 v8, 3, v8")
    for ii in range(4):
        A(f"v_xor_b32 v10, {ii}, v8", f"v_lshl_add_u32 v{224+ii}, v10, 6, v9")
    A("v_mov_b32 v228, 0", "v_mov_b32 v229, 0", "v_mov_b32 v230, 0", "v_mov_b32 v231, 0", f"s_mov_b32 s47, {ONES}")
    A("s_waitcnt vmcnt(0)", "s_barrier")
    for I in range(5):
        for ii in range(4):
            A(f"ds_read_b128 {vr(64+(I*4+ii)*4,4)}, v{224+ii} offset:{256*I}")
    for I in range(5):
        A(f"s_waitcnt lgkmcnt({min(15,4*(4-I))})")
        for j in range(16):
            r = 64 + I*16 + j
            A(f"v_dot2c_f32_bf16 v{228+(j&1)}, s47, v{r}", f"v_dot2c_f32_bf16 v{230+(j&1)}, v{r}, v{r}")
    A("v_add_f32 v228, v228, v229", "v_add_f32 v230, v230, v231")
    for qp in ("[1,0,3,2]", "[2,3,0,1]"):
        A(f"v_add_f32_dpp v228, v228, v228 quad_perm:{qp} row_mask:0xf bank_mask:0xf",
          f"v_add_f32_dpp v230, v230, v230 quad_perm:{qp} row_mask:0xf bank_mask:0xf")
    row_stats(A, 228, 230, 8, 9, 10, 11)
    A("v_cvt_pk_bf16_f32 v11, v11, v11", "v_lshlrev_b32 v11, 16, v11", "v_rcp_f32 v11, v11",
      "v_lshlrev_b32 v8, 4, v2")
    for tt in range(4):
        A(f"ds_bpermute_b32 v{232+tt}, v8, v11 offset:{64*tt}")
    A("s_lshl_b32 s41, s46, 3", "v_add_u32 v9, s41, v7", "s_waitcnt lgkmcnt(0)")
    for nt in range(2):
        for tt in range(4):
            A(f"v_mul_f32 v{208+nt*4+tt}, v{208+nt*4+tt}, v{232+tt}", f"v_mul_f32 v{216+nt*4+tt}, v{216+nt*4+tt}, v{232+tt}")
        c = 208+nt*4; s = 216+nt*4; o = 236 + nt*6
        A(f"v_cvt_pk_bf16_f32 v{o}, v{c}, v{c+1}", f"v_cvt_pk_bf16_f32 v{o+1}, v{c+2}, v{c+3}",
          f"v_cvt_pk_bf16_f32 v{o+2}, v{s}, v{s+1}", f"v_cvt_pk_bf16_f32 v{o+3}, v{s+2}, v{s+3}",
          f"v_cvt_pk_bf16_f32 v{o+4}, -v{s}, -v{s+1}", f"v_cvt_pk_bf16_f32 v{o+5}, -v{s+2}, -v{s+3}")
        for pl in range(3):
            A(f"ds_write_b64 v9, {vr(o+2*pl,2)} offset:{(nt*3+pl)*1024}")
    A("s_waitcnt lgkmcnt(0)", "s_barrier", "s_branch Lp1_unit")
    A("Lp1_w03:")
    A("s_waitcnt vmcnt(0)", "s_barrier")
    stamp(A, 1)
    A("Lp1_unit:")
    stamp(A, 2)
    def reads(t):
        return [f"ds_read_b64_tr_b16 {vr(AF(t&1,u)+2*jh,2)}, v{14+jh} offset:{t*5120+u*256}" for u in range(5) for jh in range(2)]
    def mf(t):
        L = []
        for u in range(5):
            for (acc, B) in ((AP(t&1), BC(u)), (AQ(t&1), BS(u))):
                L.append(f"v_mfma_f32_16x16x32_bf16 {vr(acc,4)}, {vr(AF(t&1,u),4)}, {vr(B,4)}, {'0' if u==0 else vr(acc,4)}")
        return L
    def bfly(t):
        P = AP(t&1); Q = AQ(t&1); O = lambda i: OUT(t&1, i)
        c1,s1,c2,s2,c3,s3 = range(TW, TW+6)
        pr,pi,qr,qi,ar,ai,ur,ui,wr_,wi_,tt = range(TMP, TMP+11)
        L = [f"v_fma_f32 v{pr}, v{P+2}, v{c2}, v{P}", f"v_fma_f32 v{pi}, v{Q+2}, v{c2}, v{Q}",
             f"v_mul_f32 v{ar}, v{P+1}, v{c1}", f"v_mul_f32 v{ai}, v{Q+1}, v{c1}",
             f"v_fmac_f32 v{pr}, v{Q+2}, v{s2}", f"v_fma_f32 v{pi}, -v{P+2}, v{s2}, v{pi}",
             f"v_fmac_f32 v{ar}, v{Q+1}, v{s1}", f"v_fma_f32 v{ai}, -v{P+1}, v{s1}, v{ai}",
             f"v_fma_f32 v{qr}, 2.0, v{P}, -v{pr}", f"v_fma_f32 v{qi}, 2.0, v{Q}, -v{pi}",
             f"v_fma_f32 v{ur}, v{P+3}, v{c3}, v{ar}", f"v_fma_f32 v{ui}, v{Q+3}, v{c3}, v{ai}",
             f"v_fmac_f32 v{ur}, v{Q+3}, v{s3}", f"v_fma_f32 v{ui}, -v{P+3}, v{s3}, v{ui}",
             f"v_fma_f32 v{wr_}, 2.0, v{ar}, -v{ur}", f"v_fma_f32 v{wi_}, 2.0, v{ai}, -v{ui}",
             f"v_add_f32 v{O(0)}, v{pr}, v{ur}", f"v_add_f32 v{O(1)}, v{pi}, v{ui}",
             f"v_mul_f32 v{tt}, {fl(1/640)}, v{O(0)}",
             f"v_sub_f32 v{O(6)}, v{pr}, v{ur}", f"v_sub_f32 v{O(7)}, v{ui}, v{pi}",
             f"v_cvt_pk_bf16_f32 v{tt}, v{tt}, v{tt}",
             f"v_sub_f32 v{O(2)}, v{qr}, v{wi_}", f"v_fma_f32 v{O(3)}, -1.0, v{qi}, -v{wr_}",
             f"v_lshlrev_b32 v{tt}, 16, v{tt}",
             f"v_add_f32 v{O(4)}, v{qr}, v{wi_}", f"v_sub_f32 v{O(5)}, v{qi}, v{wr_}",
             f"v_fmac_f32 v{O(0)}, v{tt}, v62"]
        if t & 1:
            for i in (1,2,3,4,5,6,7,0):
                L.append(f"v_cvt_pk_bf16_f32 v{YF(i>>1,i&1)+(t>>1)}, v{OUT(0,i)}, v{OUT(1,i)}")
        return L
    A(*reads(0))
    for t in range(9):
        if t == 4:
            A("s_cmp_eq_u32 s45, 0", "s_cbranch_scc1 Lp1_nob", "s_barrier", "Lp1_nob:")
        if t < 8:
            A("s_waitcnt lgkmcnt(0)")
            fill = (reads(t+1) if t < 7 else [f"ds_read_b128 {vr(FP(nt,pl),4)}, v7 offset:{(nt*3+pl)*1024}" for nt in range(2) for pl in range(3)])
            fill = fill + (bfly(t-1) if t >= 1 else [])
            A(*spread(mf(t), fill))
        else:
            A(*bfly(7))
    A("s_waitcnt lgkmcnt(0)")
    stamp(A, 3)
    A("s_add_u32 s41, s29, s44", "s_lshl_b32 s41, s41, 7", "s_lshl_b32 s42, s43, 13", "s_add_u32 s41, s41, s42",
      f"s_add_u32 s42, s41, {16*90112}", f"s_add_u32 s46, s41, {6*8192}", f"s_add_u32 s47, s42, {6*8192}")
    for typ, kinds in ((0,(0,2)), (1,(1,3))):
        if typ == 1:
            A("s_cmp_eq_u32 s43, 5", "s_cbranch_scc1 Lk1_end")
        n = 0
        for tile, o in enumerate(kinds):
            for nt in range(2):
                re = TA + n*8; im = re + 4; n += 1
                A(f"v_mfma_f32_16x16x32_bf16 {vr(re,4)}, {vr(YF(o,0),4)}, {vr(FP(nt,0),4)}, 0",
                  f"v_mfma_f32_16x16x32_bf16 {vr(im,4)}, {vr(YF(o,1),4)}, {vr(FP(nt,0),4)}, 0",
                  f"v_mfma_f32_16x16x32_bf16 {vr(re,4)}, {vr(YF(o,1),4)}, {vr(FP(nt,1),4)}, {vr(re,4)}",
                  f"v_mfma_f32_16x16x32_bf16 {vr(im,4)}, {vr(YF(o,0),4)}, {vr(FP(nt,2),4)}, {vr(im,4)}")
        n = 0
        for tile, o in enumerate(kinds):
            for nt in range(2):
                re = TA + n*8; pk = PK + n*4; n += 1
                for j in range(4):
                    A(f"v_cvt_pk_bf16_f32 v{pk+j}, v{re+2*j}, v{re+2*j+1}")
                so = ((41,42),(46,47))[typ][nt]
                A(f"buffer_store_dwordx4 {vr(pk,4)}, v63, s[36:39], s{so} offen offset:{tile*64} {OPT['sc_t']}")
    A("s_cmp_eq_u32 s45, 0", "s_cbranch_scc1 Lk1_end")
    A("s_mov_b32 s45, 0", "s_mov_b32 s44, 1", "v_add_u32 v14, 40960, v14", "v_add_u32 v15, 40960, v15", "v_add_u32 v7, 6144, v7", "s_branch Lp1_unit")

def k2(A):
    A("k2_kernel:")
    A("s_cmp_ge_u32 s2, 256", "s_cbranch_scc1 Lk2_end_x")
    kstart(A)
    A("s_load_dwordx4 s[4:7], s[0:1], 8", "s_load_dwordx4 s[8:11], s[0:1], 48", "s_load_dwordx2 s[48:49], s[0:1], 80")
    A("v_lshrrev_b32 v1, 6, v0", "v_and_b32 v0, 63, v0", "v_readfirstlane_b32 s28, v1")
    A("s_and_b32 s31, s2, 7", "s_lshr_b32 s32, s2, 3")
    A("s_cmp_ge_u32 s32, 20", "s_cbranch_scc1 Lp2")
    A("s_lshl_b32 s29, s31, 1", "s_and_b32 s33, s32, 1", "s_add_u32 s29, s29, s33", "s_lshr_b32 s30, s32, 2", "s_bfe_u32 s50, s32, 0x10001")
    A("s_cmp_lt_u32 s28, 4", "s_cbranch_scc1 Lg2c")
    g2_loader(A)
    A("Lg2c:")
    g2_compute(A)
    A("Lp2:")
    p2(A)
    kend(A, 1, "Lk2_end")

def g2_loader(A):
    NST = 14
    A("s_sub_u32 s33, s28, 4")
    A("s_lshl_b32 s34, s29, 2", "s_add_u32 s34, s34, s33", f"s_mul_i32 s34, s34, {108*1024}", "v_lshl_add_u32 v4, v0, 4, s34")
    A("v_lshrrev_b32 v3, 4, v0", "v_and_b32 v2, 15, v0", "v_and_b32 v5, 1, v3", "v_lshlrev_b32 v5, 1, v5", "v_xor_b32 v2, v2, v5",
      "v_lshrrev_b32 v5, 1, v3", "v_lshlrev_b32 v5, 3, v5", "v_xor_b32 v2, v2, v5",
      "s_lshl_b32 s34, s33, 4", "v_add_u32 v8, s34, v3", "v_mul_u32_u24 v8, 1280, v8",
      "s_lshl_b32 s34, s30, 8", "v_lshl_add_u32 v10, v2, 4, v8", "v_add_u32 v10, s34, v10")
    A("s_lshl_b32 s40, s33, 12", "s_mul_i32 s44, s50, 14", "s_add_u32 s45, s44, 14")
    if OPT['rot2']:
        A("s_mul_i32 s43, s30, 180", "s_lshr_b32 s43, s43, 6", "s_and_b32 s34, s29, 1", "s_mul_i32 s34, s34, 7", "s_add_u32 s43, s43, s34",
          "s_cmp_ge_u32 s43, 14", "s_cselect_b32 s34, 14, 0", "s_sub_u32 s43, s43, s34", "s_add_u32 s43, s43, s44")
    else:
        A("s_mov_b32 s43, s44")
    A("s_waitcnt lgkmcnt(0)")
    srd(A, 12, 48, H_SZ, H_OFF); srd(A, 16, 8, W1_SZ)
    def issue(st):
        slot = (st % RING) * 32768
        A("s_cmp_eq_u32 s43, 27", f"s_cselect_b32 s14, 0, {H_SZ}", f"s_cselect_b32 s18, 0, {W1_SZ}",
          "s_lshl_b32 s41, s43, 12", f"s_add_u32 m0, s40, {slot}", f"s_mul_i32 s42, s43, {64*1280}")
        for q in range(4):
            A(f"buffer_load_dwordx4 v4, s[12:15], s41 offen offset:{q*1024} lds")
        for q in range(4):
            A(f"s_add_u32 m0, s40, {slot + 16384 + q*1024}", "s_nop 0", f"buffer_load_dwordx4 v10, s[16:19], s42 offen lds")
            if q < 3: A(f"s_add_u32 s42, s42, {4*1280}")
        A("s_add_u32 s43, s43, 1", "s_cmp_eq_u32 s43, s45", "s_cselect_b32 s43, s44, s43")
    loader_loop(A, NST, issue)
    if OPT['cpf']:
        A("s_lshl_b32 s34, s32, 2", "s_add_u32 s34, s34, s33", "s_cmp_ge_u32 s34, 1", "s_cbranch_scc1 Lk2_end")
        A("s_mov_b64 exec, 0x7ffffff")
        cpf(A, "k3_kernel", None)
    A("s_branch Lk2_end")

def g2_compute(A):
    NST = 14
    XA, WA = 208, lambda mt: 209 + mt
    A("s_and_b32 s33, s28, 1", "s_lshr_b32 s34, s28, 1")
    A("v_bfe_u32 v5, v0, 2, 1", "v_lshlrev_b32 v5, 5, v5", "v_bfe_u32 v6, v0, 3, 2", "v_lshl_add_u32 v5, v6, 2, v5",
      "v_and_b32 v6, 3, v0", "v_add_u32 v5, v5, v6", "s_lshl_b32 s35, s30, 8", "s_lshl_b32 s40, s33, 7", "s_add_u32 s35, s35, s40",
      "s_lshl_b32 s40, s50, 31", "s_or_b32 s35, s35, s40", "v_lshl_add_u32 v9, v5, 1, s35")
    A("s_lshl_b32 s35, s34, 13", f"v_lshl_add_u32 v{XA}, v0, 4, s35")
    A("v_lshrrev_b32 v5, 5, v0", "v_bfe_u32 v8, v0, 2, 2", "v_lshl_add_u32 v5, v5, 2, v8", "v_lshlrev_b32 v5, 8, v5",
      "v_and_b32 v8, 1, v0", "v_lshl_add_u32 v5, v8, 6, v5", "v_bfe_u32 v8, v0, 4, 1", "v_lshl_add_u32 v5, v8, 4, v5",
      "v_bfe_u32 v8, v0, 1, 1", "v_lshl_add_u32 v5, v8, 3, v5", "v_bfe_u32 v8, v0, 2, 1", "v_lshl_add_u32 v5, v8, 5, v5",
      "v_bfe_u32 v8, v0, 3, 1", "v_xor_b32 v8, s33, v8", f"v_lshl_add_u32 v{WA(0)}, v8, 7, v5", f"v_xor_b32 v{WA(1)}, 32, v{WA(0)}")
    A("s_waitcnt lgkmcnt(0)")
    srd(A, 20, 10, 640*2); srd(A, 24, 48, P_SZ, P_OFF)
    A("buffer_load_ushort v240, v9, s[20:23], 0 offen", "buffer_load_ushort v244, v9, s[20:23], 0 offen offset:32")
    for r in (241,242,243,245,246,247,249,250,251): A(f"v_mov_b32 v{r}, 0")
    A("v_cmp_gt_u32 vcc, 32, v0", "v_mov_b32 v5, 0x3f80", "s_nop 0", "v_cndmask_b32 v248, 0, v5, vcc")
    A("v_bfe_u32 v5, v0, 4, 1", "v_lshlrev_b32 v5, 10, v5", "v_lshrrev_b32 v6, 5, v0", "v_lshl_add_u32 v5, v6, 9, v5",
      "v_and_b32 v6, 15, v0", "v_lshl_add_u32 v7, v6, 4, v5",
      "s_lshl_b32 s40, s29, 2", "s_lshl_b32 s42, s34, 1", "s_add_u32 s40, s40, s42", "s_mul_i32 s40, s40, 10",
      "s_lshl_b32 s42, s30, 1", "s_add_u32 s40, s40, s42", "s_add_u32 s40, s40, s33", "s_lshl_b32 s40, s40, 12",
      f"s_mul_i32 s42, s50, {P_SZ//2}", "s_add_u32 s44, s40, s42", "s_add_u32 s45, s44, 40960")
    A("s_waitcnt vmcnt(0)")
    for mt in range(2):
        for nt in range(2):
            A(f"{M32} {vr(ACC(mt,nt),16)}, {vr(240+4*mt,4)}, v[248:251], 0")
    base = [0]
    def reads(st):
        p = st & 1; slot = (st % RING) * 32768
        L = []
        nb = slot & ~0xffff
        if nb != base[0]:
            for r in range(208, 211): L.append(f"v_xor_b32 v{r}, 0x10000, v{r}")
            base[0] = nb
        so = slot - nb
        for kk in range(4):
            for mt in range(2):
                for jh in range(2):
                    L.append(f"ds_read_b64_tr_b16 {vr(FB(p,kk,2+mt)+2*jh,2)}, v{WA(mt)} offset:{so+16384+(16*kk+8*jh)*256}")
            for nt in range(2):
                L.append(f"ds_read_b128 {vr(FB(p,kk,nt),4)}, v{XA} offset:{so+nt*4096+kk*1024}")
        return L
    def mfmas(st):
        p = st & 1
        return [f"{M32} {vr(ACC(mt,nt),16)}, {vr(FB(p,kk,2+mt),4)}, {vr(FB(p,kk,nt),4)}, {vr(ACC(mt,nt),16)}" for kk in range(4) for mt in range(2) for nt in range(2)]
    compute_loop(A, NST, reads, mfmas, lambda st: [], lambda st: stamp(A, 1+st) if st < 11 else None)
    p = (NST-1) & 1
    def outp(mt, nt):
        L = []
        for half in range(2):
            a0 = ACC(mt,nt) + 8*half; o = FB(1-p,0,0) + ((mt*2+nt)*2+half)*4
            L += [f"v_cvt_pk_bf16_f32 v{o+i}, v{a0+2*i}, v{a0+2*i+1}" for i in range(4)]
            L.append(f"buffer_store_dwordx4 {vr(o,4)}, v7, s[24:27], s{44+nt} offen offset:{half*2048+mt*256} {OPT['sc_p']}")
        return L
    tiles = [(mt,nt) for mt in range(2) for nt in range(2)]
    for i, (mt,nt) in enumerate(tiles):
        Mq = [f"{M32} {vr(ACC(mt,nt),16)}, {vr(FB(p,kk,2+mt),4)}, {vr(FB(p,kk,nt),4)}, {vr(ACC(mt,nt),16)}" for kk in range(4)]
        if i == 0: A(*Mq)
        else:
            A(Mq[0], Mq[1]); A(*spread(Mq[2:], outp(*tiles[i-1])))
    A(*outp(*tiles[3]))
    A("s_branch Lk2_end")

def hgen(Hl, HF, tvar):
    Hl(f"s_lshl_b32 s33, s{tvar}, 4", "v_add_u32 v14, s33, v1", "v_cvt_f32_u32 v15, v14", f"v_mul_f32 v15, {fl(1/160)}, v15", "v_mul_f32 v4, v7, v15")
    for bb in range(5):
        for ep in range(2):
            for e in range(2):
                Hl(f"v_fmamk_f32 v{8+e}, v15, {fl(float(16*bb+2*ep+e))}, v4")
            Hl("v_cos_f32 v10, v8", "v_cos_f32 v11, v9", "v_sin_f32 v12, v8", "v_sin_f32 v13, v9")
            if bb == 0 and ep == 0:
                Hl("v_cmp_gt_u32 vcc, 16, v0", "v_mov_b32 v8, 0.5", "s_nop 0", "v_cndmask_b32 v10, v10, v8, vcc")
            Hl(f"v_cvt_pk_bf16_f32 v{HF(bb)+ep}, v10, v11", f"v_cvt_pk_bf16_f32 v{HF(bb)+2+ep}, -v12, -v13")
    Hl("v_and_b32 v8, 1, v14", "v_lshlrev_b32 v8, 15, v8", "v_or_b32 v8, 0x3f80, v8", f"v_cndmask_b32 v{HF(5)}, 0, v8, vcc",
       f"v_mov_b32 v{HF(5)+1}, 0", f"v_mov_b32 v{HF(5)+2}, 0", f"v_mov_b32 v{HF(5)+3}, 0")

def p2(A):
    C = lambda t, ks: vr(16 + (t*2+ks)*4, 4)
    S = lambda t, ks: vr(48 + (t*2+ks)*4, 4)
    WV = lambda tau, pl, t, e: 80 + tau*32 + pl*16 + t*4 + e
    TB = lambda tau, ks, pl: 144 + tau*24 + (ks*3+pl)*4
    XA = lambda tau, pl, t: 192 + tau*32 + pl*16 + t*4
    PK = 80
    WIMG = 32768
    A("s_sub_u32 s33, s32, 20", "s_mul_i32 s34, s33, 43", "s_lshr_b32 s34, s34, 7", "s_mul_i32 s35, s34, 3", "s_sub_u32 s51, s33, s35",
      "s_lshl_b32 s29, s31, 2", "s_add_u32 s29, s29, s34", "s_and_b32 s52, s28, 3")
    A("s_mov_b32 s34, 0x9a543210", "s_mov_b32 s35, 0x8876", "s_lshl_b32 s33, s51, 2", "s_add_u32 s33, s33, s52", "s_lshl_b32 s33, s33, 2",
      "s_lshr_b64 s[34:35], s[34:35], s33", "s_and_b32 s30, s34, 15")
    A("s_lshl_b32 s53, s51, 6", "s_cmp_eq_u32 s51, 2", "s_cselect_b32 s53, 113, s53")
    A("s_mul_i32 s33, s29, 90112", "s_lshl_b32 s34, s30, 13", "s_add_u32 s33, s33, s34", "s_lshr_b32 s34, s28, 2", "s_lshl_b32 s34, s34, 12",
      "s_add_u32 s33, s33, s34", "s_lshl_b32 s35, s52, 13", "s_add_u32 m0, s35, s34", "v_lshlrev_b32 v3, 4, v0")
    A("v_lshrrev_b32 v4, 3, v0", "v_lshl_add_u32 v4, v4, 5, s29", "v_mul_u32_u24 v4, 642, v4", "v_and_b32 v5, 7, v0", "v_lshl_add_u32 v4, v5, 4, v4",
      "s_lshl_b32 s34, s53, 1", "s_bfe_u32 s36, s28, 0x10001", "s_mulk_i32 s36, 320", "s_add_u32 s34, s34, s36",
      "s_and_b32 s36, s28, 1", f"s_mul_i32 s36, s36, {32*20544}", "s_add_u32 s34, s34, s36", "v_add_u32 v4, s34, v4")
    A("s_waitcnt lgkmcnt(0)")
    srd(A, 12, 48, T_SZ, T_OFF); srd(A, 24, 48, U_SZ, U_OFF)
    A("s_cmp_lt_u32 s28, 4", "s_cselect_b32 s16, s4, s6", "s_cselect_b32 s17, s5, s7", f"s_mov_b32 s18, {WF_SZ}", "s_mov_b32 s19, 0x00020000")
    for i in range(4): A(f"buffer_load_dwordx4 v3, s[12:15], s33 offen offset:{1024*i} lds")
    A("s_lshl_b32 s36, s28, 12")
    for q in range(4):
        A(f"s_add_u32 m0, s36, {WIMG+1024*q}", f"s_mov_b32 s34, {q*8*20544}", "buffer_load_dwordx4 v4, s[16:19], s34 offen lds")
    A("v_and_b32 v1, 15, v0", "v_lshrrev_b32 v2, 4, v0", "v_cvt_f32_u32 v7, v2", "v_mul_f32 v7, 4.0, v7")
    A("s_cmp_lt_u32 s28, 4", "s_cbranch_scc1 Lp2_main")
    if OPT['hpf']:
        srd(A, 20, 48, H_SZ, H_OFF)
        A("s_sub_u32 s33, s32, 20", "s_lshl_b32 s33, s33, 2", "s_add_u32 s33, s33, s52", "s_lshl_b32 s33, s33, 6", "v_add_u32 v8, s33, v0",
          "v_and_b32 v9, 7, v8", "s_lshl_b32 s33, s31, 3", "v_add_u32 v9, s33, v9", f"v_mul_u32_u24 v9, {108*1024}, v9",
          "v_bfe_u32 v10, v8, 3, 1", f"v_mul_u32_u24 v10, {14*4096}, v10", "v_add_u32 v9, v9, v10",
          "v_lshrrev_b32 v10, 4, v8", "v_lshl_add_u32 v9, v10, 7, v9")
        for i in range(3):
            A(f"s_movk_i32 s33, {i*192*128}" if i*192*128 < 32768 else f"s_mov_b32 s33, {i*192*128}", f"buffer_load_dword v{100+i}, v9, s[20:23], s33 offen")
    A("s_sub_u32 s42, s2, 160", "s_lshl_b32 s42, s42, 2", "s_add_u32 s42, s42, s52", "s_cmp_ge_u32 s42, 10", "s_cbranch_scc1 Lp2_hb")
    HF = lambda bb: 16 + 4*bb
    hgen(A, HF, 42)
    srd(A, 20, 48, HT_SZ, HT_OFF)
    A("s_mul_i32 s33, s42, 6144", "s_add_u32 s34, s33, 4096")
    for bb in range(6):
        A(f"buffer_store_dwordx4 {vr(HF(bb),4)}, v3, s[20:23], s{33 if bb<4 else 34} offen offset:{(bb&3)*1024} sc1")
    A(f"s_waitcnt vmcnt({6+3*OPT['hpf']})", "s_barrier", "s_branch Lk2_end")
    A("Lp2_hb:", f"s_waitcnt vmcnt({3*OPT['hpf']})", "s_barrier", "s_branch Lk2_end")
    A("Lp2_main:")
    A("v_cvt_f32_u32 v5, v1", f"v_mul_f32 v5, {fl(1/64)}, v5", "v_add_f32 v6, 0x3e800000, v5",
      "v_and_b32 v14, 1, v0", "v_mov_b32 v15, 0x80008000", "v_mul_lo_u32 v14, v14, v15", "v_xor_b32 v15, 0x80000000, v14")
    for t in range(2):
        for jp in range(4):
            for e in range(2):
                j = 2*jp+e
                A(f"v_add_f32 v{8+e}, {fl(float(16*(j>>2)+(j&3)))}, v7", f"v_mul_f32 v{8+e}, v{8+e}, v{5+t}")
            c0 = 16+t*8+jp; s0 = 48+t*8+jp
            A("v_cos_f32 v10, v8", "v_cos_f32 v11, v9", "v_sin_f32 v12, v8", "v_sin_f32 v13, v9",
              f"v_cvt_pk_bf16_f32 v{c0}, v10, v11", f"v_cvt_pk_bf16_f32 v{s0}, v12, v13")
            for b in (c0, s0):
                A(f"v_xor_b32 v{b+4}, v14, v{b}", f"v_xor_b32 v{b+16}, 0x80000000, v{b}", f"v_xor_b32 v{b+20}, v15, v{b}")
    A("v_lshrrev_b32 v5, 2, v0", "v_lshlrev_b32 v5, 7, v5", "v_and_b32 v7, 3, v0", "v_lshl_add_u32 v5, v7, 4, v5", "v_add_u32 v5, s35, v5",
      "s_mov_b32 s33, 45056", "v_mul_lo_u32 v6, v1, s33", "v_lshl_add_u32 v6, v2, 4, v6",
      "s_lshl_b32 s36, s30, 12", "s_lshl_b32 s33, s29, 7", "s_add_u32 s36, s36, s33",
      f"s_add_u32 s37, s36, {16*45056}", f"s_add_u32 s38, s36, {32*45056}", f"s_add_u32 s39, s36, {48*45056}")
    A("s_lshl_b32 s33, s30, 4", "v_add_u32 v8, s33, v1", "v_sub_u32 v9, 256, v8",
      "s_cmp_lt_u32 s30, 6", "s_cselect_b64 vcc, -1, 0", "v_cndmask_b32 v8, v9, v8, vcc", "v_subrev_u32 v8, s53, v8",
      "v_lshlrev_b32 v4, 9, v2", "v_lshl_add_u32 v4, v8, 1, v4")
    stamp(A, 1)
    A("s_waitcnt vmcnt(0)", "s_barrier")
    stamp(A, 2)
    A("s_lshl_b32 s33, s51, 2", "s_add_u32 s33, s33, s52", "s_cmp_eq_u32 s33, 11", "s_cbranch_scc1 Lk2_end")
    def treads(tau):
        return [f"ds_read_b64_tr_b16 {vr(TB(tau,ks,pl)+2*jh,2)}, v5 offset:{(32*ks+16*jh)*128+tau*64+pl*8}" for ks in range(2) for pl in range(2) for jh in range(2)]
    def wreads(tau):
        return [f"ds_read_u16_d16_hi v{WV(tau,pl,t,e)}, v4 offset:{WIMG+(pl*2+tau)*8192+(16*t+e)*128}" for t in range(4) for e in range(4) for pl in range(2)]
    M = M16
    def st2(tau):
        L = []
        for t in range(4):
            re = vr(XA(tau,0,t),4); im = vr(XA(tau,1,t),4)
            for ks in range(2):
                tr = vr(TB(tau,ks,0),4); ti = vr(TB(tau,ks,1),4)
                L += [f"{M} {re}, {C(t,ks)}, {tr}, {'0' if ks==0 else re}", f"{M} {im}, {C(t,ks)}, {ti}, {'0' if ks==0 else im}",
                      f"{M} {re}, {S(t,ks)}, {ti}, {re}", f"{M} {im}, {S(t,ks)}, {vr(TB(tau,ks,2),4)}, {im}"]
        return L
    def wmul(tau):
        L = []
        for t in range(4):
            for e in range(4):
                xr = XA(tau,0,t)+e; xi = XA(tau,1,t)+e; wr = WV(tau,0,t,e); wi = WV(tau,1,t,e)
                L += [f"v_mul_f32 v{8+e}, v{xr}, v{wr}", f"v_mul_f32 v{12+e}, v{xr}, v{wi}",
                      f"v_fma_f32 v{8+e}, -v{xi}, v{wi}, v{8+e}", f"v_fmac_f32 v{12+e}, v{xi}, v{wr}"]
            for pl in range(2):
                d = TB(tau, t>>1, pl) + (t&1)*2
                L += [f"v_cvt_pk_bf16_f32 v{d}, v{8+4*pl}, v{9+4*pl}", f"v_cvt_pk_bf16_f32 v{d+1}, v{10+4*pl}, v{11+4*pl}"]
            d = TB(tau, t>>1, 2) + (t&1)*2
            L += [f"v_cvt_pk_bf16_f32 v{d}, -v12, -v13", f"v_cvt_pk_bf16_f32 v{d+1}, -v14, -v15"]
        return L
    def negT(tau):
        return [f"v_xor_b32 v{TB(tau,ks,2)+j}, 0x80008000, v{TB(tau,ks,0)+j}" for ks in range(2) for j in range(4)]
    def st3(tau):
        L = []
        for nt in range(4):
            re = vr(XA(tau,0,nt),4); im = vr(XA(tau,1,nt),4)
            for ks in range(2):
                xr = vr(TB(tau,ks,0),4); xi = vr(TB(tau,ks,1),4)
                L += [f"{M} {re}, {xr}, {C(nt,ks)}, {'0' if ks==0 else re}", f"{M} {im}, {xi}, {C(nt,ks)}, {'0' if ks==0 else im}",
                      f"{M} {re}, {vr(TB(tau,ks,2),4)}, {S(nt,ks)}, {re}", f"{M} {im}, {xr}, {S(nt,ks)}, {im}"]
        return L
    def outp(tau):
        L = []
        for nt in range(4):
            pk = PK + 4*nt + 16*tau; re = XA(tau,0,nt); im = XA(tau,1,nt)
            L += [f"v_cvt_pk_bf16_f32 v{pk}, v{re}, v{re+1}", f"v_cvt_pk_bf16_f32 v{pk+1}, v{re+2}, v{re+3}",
                  f"v_cvt_pk_bf16_f32 v{pk+2}, v{im}, v{im+1}", f"v_cvt_pk_bf16_f32 v{pk+3}, v{im+2}, v{im+3}",
                  f"buffer_store_dwordx4 {vr(pk,4)}, v6, s[24:27], s{36+nt} offen offset:{64*tau} {OPT['sc_u']}"]
        return L
    A(*treads(0)); A(*treads(1))
    A("s_waitcnt lgkmcnt(8)")
    A(*negT(0))
    A(*st2(0)[:8])
    A("s_waitcnt lgkmcnt(0)")
    A(*spread(st2(0)[8:], negT(1) + wreads(0)))
    A("s_waitcnt lgkmcnt(0)")
    A(*spread(st2(1), interleave(wmul(0), wreads(1), 2)))
    A("s_waitcnt lgkmcnt(0)")
    stamp(A, 3)
    A(*spread(st3(0), wmul(1)))
    A(*spread(st3(1), outp(0)))
    A(*outp(1))

def k3(A):
    A("k3_kernel:")
    A("s_cmp_ge_u32 s2, 256", "s_cbranch_scc1 Lk3_end_x")
    kstart(A)
    A("s_load_dwordx2 s[4:5], s[0:1], 0", "s_load_dwordx2 s[6:7], s[0:1], 64", "s_load_dwordx2 s[40:41], s[0:1], 80")
    A("v_lshrrev_b32 v1, 6, v0", "v_and_b32 v0, 63, v0", "v_readfirstlane_b32 s28, v1")
    A("s_and_b32 s31, s2, 7", "s_lshr_b32 s32, s2, 3")
    A("s_lshl_b32 s29, s31, 3", "s_lshr_b32 s33, s32, 2", "s_add_u32 s29, s29, s33", "s_and_b32 s30, s32, 1")
    A("v_lshlrev_b32 v3, 4, v0", "v_and_b32 v1, 15, v0", "v_lshrrev_b32 v2, 4, v0")
    A("s_lshl_b32 s33, s30, 10", "s_add_u32 s33, s33, s29", "v_lshl_add_u32 v5, v1, 6, s33")
    ZIMG = 49152
    M = M16
    A("s_cmp_ge_u32 s28, 6", "s_cbranch_scc1 Lk3_back")
    A("s_setprio 1")
    GC, GS, GN = 16, 20, 24
    TWc = lambda r: 28 + (r-1)*8
    TWs = lambda r: 32 + (r-1)*8
    UA = lambda ty, tau, pl: 52 + ((ty*2+tau)*2+pl)*4
    VA = lambda ty, tau, pl: 84 + ((ty*2+tau)*2+pl)*4
    TT = 116
    A("s_mul_i32 s33, s29, 45056", "s_lshl_b32 s34, s28, 12", "s_add_u32 s33, s33, s34", f"s_add_u32 s34, s33, {6*4096}",
      "s_lshl_b32 s35, s28, 13", "s_mov_b32 m0, s35",
      "s_cmp_eq_u32 s28, 5", "s_cselect_b32 s36, 0x80000000, 0", "v_or_b32 v4, s36, v3")
    A("s_waitcnt lgkmcnt(0)")
    srd(A, 12, 40, U_SZ, U_OFF)
    for i in range(4): A(f"buffer_load_dwordx4 v3, s[12:15], s33 offen offset:{1024*i} lds")
    A("s_add_u32 m0, s35, 4096", "s_nop 0")
    for i in range(4): A(f"buffer_load_dwordx4 v4, s[12:15], s34 offen offset:{1024*i} lds")
    SC = 2/(640*2048)
    A("v_cvt_f32_u32 v5, v5", f"v_mul_f32 v5, {fl(1/2048)}, v5", "v_cvt_f32_u32 v7, v2", "v_mul_f32 v7, 4.0, v7", f"s_mov_b32 s37, {fl(SC)}", "v_mul_f32 v6, v7, v5")
    for jp in range(4):
        for e in range(2):
            j = 2*jp+e
            A(f"v_fmamk_f32 v{8+e}, v5, {fl(float(16*(j>>2)+(j&3)))}, v6")
        A("v_cos_f32 v10, v8", "v_cos_f32 v11, v9", "v_sin_f32 v12, v8", "v_sin_f32 v13, v9")
        A(f"v_cvt_pk_bf16_f32 v{GC+jp}, v10, v11", f"v_cvt_pk_bf16_f32 v{GS+jp}, v12, v13", f"v_cvt_pk_bf16_f32 v{GN+jp}, -v12, -v13")
    A("v_lshrrev_b32 v5, 2, v0", "v_lshlrev_b32 v5, 7, v5", "v_and_b32 v8, 3, v0", "v_lshl_add_u32 v5, v8, 4, v5", "v_add_u32 v5, s35, v5")
    A("s_lshl_b32 s33, s28, 4", "v_cvt_f32_u32 v8, s33", "v_add_f32 v8, v8, v7")
    for e in range(4):
        A(f"v_add_f32 v9, {fl(float(e))}, v8")
        for r in (1,2,3):
            A(f"v_mul_f32 v10, {fl(r/640)}, v9", f"v_cos_f32 v{TWc(r)+e}, v10", f"v_sin_f32 v{TWs(r)+e}, v10")
    A("s_lshl_b32 s33, s28, 12", f"s_add_u32 s33, s33, {ZIMG}", "v_add_u32 v6, s33, v3")
    stamp(A, 1)
    A("s_waitcnt vmcnt(0)")
    stamp(A, 2)
    order = [(0,0),(1,1),(0,1),(1,0)]
    for ty, tau in order:
        for pl in range(2):
            for jh in range(2):
                A(f"ds_read_b64_tr_b16 {vr(UA(ty,tau,pl)+2*jh,2)}, v5 offset:{ty*4096+jh*2048+tau*64+pl*8}")
    for n, (ty, tau) in enumerate(order):
        re = vr(VA(ty,tau,0),4); im = vr(VA(ty,tau,1),4); ur = vr(UA(ty,tau,0),4); ui = vr(UA(ty,tau,1),4)
        A(f"s_waitcnt lgkmcnt({12-4*n})")
        A(f"{M} {re}, {ur}, {vr(GC,4)}, 0", f"{M} {im}, {ui}, {vr(GC,4)}, 0", f"{M} {re}, {ui}, {vr(GN,4)}, {re}", f"{M} {im}, {ur}, {vr(GS,4)}, {im}")
    def pk(op, d, a, b, c=None, nb=False, na=False):
        s = f"v_pk_{op}_f32 {vr(d,2)}, {vr(a,2)}, {vr(b,2)}" + (f", {vr(c,2)}" if c is not None else "")
        n = [int(na), int(nb)] + ([0] if c is not None else [])
        if na or nb: s += f" neg_lo:[{','.join(map(str,n))}] neg_hi:[{','.join(map(str,n))}]"
        return s
    Ar,Ai,Br,Bi,Dr,Di,Cr,Ci = [VA(ty,tau,pl) for ty in range(2) for tau in range(2) for pl in range(2)]
    pr,pi,qr,qi,ur,ui,wr,wi = [TT+4*i for i in range(8)]
    Z = lambda r, pl: 52 + (r*2+pl)*4
    for e in (0,2):
        A(pk('add',pr+e,Ar+e,Cr+e), pk('add',pi+e,Ai+e,Ci+e,nb=True), pk('add',qr+e,Ar+e,Cr+e,nb=True), pk('add',qi+e,Ai+e,Ci+e))
    for e in (0,2):
        A(pk('add',ur+e,Br+e,Dr+e), pk('add',ui+e,Bi+e,Di+e,nb=True), pk('add',wr+e,Br+e,Dr+e,nb=True), pk('add',wi+e,Bi+e,Di+e))
    b = lambda r, pl: 84 + (r*2+pl)*4
    for e in (0,2):
        A(pk('add',Z(0,0)+e,pr+e,ur+e), pk('add',Z(0,1)+e,pi+e,ui+e), pk('add',b(2,0)+e,pr+e,ur+e,nb=True), pk('add',b(2,1)+e,pi+e,ui+e,nb=True),
          pk('add',b(1,0)+e,qr+e,wi+e,nb=True), pk('add',b(1,1)+e,qi+e,wr+e), pk('add',b(3,0)+e,qr+e,wi+e), pk('add',b(3,1)+e,qi+e,wr+e,nb=True))
    for r in range(4):
        if r:
            for e in (0,2):
                A(pk('mul',Z(r,0)+e,b(r,0)+e,TWc(r)+e), pk('mul',Z(r,1)+e,b(r,0)+e,TWs(r)+e))
            for e in (0,2):
                A(pk('fma',Z(r,0)+e,b(r,1)+e,TWs(r)+e,Z(r,0)+e,na=True), pk('fma',Z(r,1)+e,b(r,1)+e,TWc(r)+e,Z(r,1)+e))
        o = TT + 4*r
        for j in range(4): A(f"v_cvt_pk_bf16_f32 v{o+j}, v{Z(r,0)+2*j}, v{Z(r,0)+2*j+1}")
        A(f"ds_write_b128 v6, {vr(o,4)} offset:{r*1024}")
    A("s_waitcnt lgkmcnt(0)")
    stamp(A, 3)
    A("s_barrier", "s_branch Lk3_end")
    A("Lk3_back:")
    HF = lambda bb: 16 + 4*bb
    XR, P0, P1 = 40, 48, 56
    GU = 64
    ZF = lambda bb, r: 96 + ((bb % 3)*4+r)*4
    AC = lambda r: 144 + 4*r
    XU = 80
    A("s_bfe_u32 s33, s32, 0x10001", "s_mul_i32 s33, s33, 5", "s_add_u32 s42, s33, s28", "s_sub_u32 s42, s42, 6")
    A("v_mul_u32_u24 v6, 1280, v5", "v_lshl_add_u32 v6, v2, 5, v6", "s_lshl_b32 s33, s42, 7", "v_add_u32 v6, s33, v6")
    A("s_mul_i32 s33, s29, 10", "s_add_u32 s33, s33, s42", "s_lshl_b32 s33, s33, 12", "s_lshl_b32 s34, s30, 10", "s_add_u32 s33, s33, s34",
      f"s_add_u32 s34, s33, {P_SZ//2}", "s_mul_i32 s35, s42, 6144", "s_add_u32 s36, s35, 4096")
    A("s_waitcnt lgkmcnt(0)")
    srd(A, 20, 40, P_SZ, P_OFF); srd(A, 16, 4, X_SZ); srd(A, 12, 40, HT_SZ, HT_OFF); srd(A, 24, 6, X_SZ)
    for half in range(2):
        A(f"buffer_load_dwordx4 {vr(P0+4*half,4)}, v3, s[20:23], s33 offen offset:{2048*half}",
          f"buffer_load_dwordx4 {vr(P1+4*half,4)}, v3, s[20:23], s34 offen offset:{2048*half}")
    A(f"buffer_load_dwordx4 {vr(XR,4)}, v6, s[16:19], 0 offen", f"buffer_load_dwordx4 {vr(XR+4,4)}, v6, s[16:19], 0 offen offset:16")
    for bb in range(6):
        A(f"buffer_load_dwordx4 {vr(HF(bb),4)}, v3, s[12:15], s{35 if bb<4 else 36} offen offset:{(bb&3)*1024}")
    SC = 2/(640*2048)
    A(f"s_mov_b32 s36, {fl(-1.4426950408889634)}", f"s_mov_b32 s38, {fl(1/SC)}", f"v_add_u32 v4, {ZIMG}, v3")
    stamp(A, 1)
    for half in range(2):
        A(f"s_waitcnt vmcnt({10-2*half})")
        g = GU + 8*half; t = 96
        for q in range(4):
            A(f"v_lshlrev_b32 v{g+2*q}, 16, v{P0+4*half+q}", f"v_and_b32 v{g+2*q+1}, 0xffff0000, v{P0+4*half+q}",
              f"v_lshlrev_b32 v{t+2*q}, 16, v{P1+4*half+q}", f"v_and_b32 v{t+2*q+1}, 0xffff0000, v{P1+4*half+q}")
        for i in range(8): A(f"v_add_f32 v{g+i}, v{g+i}, v{t+i}")
        for i in range(8): A(f"v_mul_f32 v{t+i}, s36, v{g+i}")
        for i in range(8): A(f"v_exp_f32 v{t+i}, v{t+i}")
        for i in range(8): A(f"v_fma_f32 v{t+i}, v{t+i}, s38, s38")
        for i in range(8): A(f"v_rcp_f32 v{t+i}, v{t+i}")
        for i in range(8): A(f"v_mul_f32 v{g+i}, v{g+i}, v{t+i}")
    A("s_waitcnt vmcnt(6)")
    for q in range(8):
        A(f"v_lshlrev_b32 v{XU+2*q}, 16, v{XR+q}", f"v_and_b32 v{XU+2*q+1}, 0xffff0000, v{XR+q}")
    A("s_waitcnt vmcnt(0)")
    stamp(A, 2)
    A("s_barrier")
    stamp(A, 3)
    def zr(bb): return [f"ds_read_b128 {vr(ZF(bb,r),4)}, v4 offset:{(bb*4+r)*1024}" for r in range(4)]
    for bb in range(3): A(*zr(bb))
    for bb in range(6):
        A(f"s_waitcnt lgkmcnt({min(8,4*(5-bb))})")
        for r in range(4):
            A(f"{M} {vr(AC(r),4)}, {vr(HF(bb),4)}, {vr(ZF(bb,r),4)}, {'0' if bb==0 else vr(AC(r),4)}")
        if bb < 3: A(*zr(bb+3))
    for e in range(4):
        for r in range(4):
            A(f"v_fmac_f32 v{XU+4*e+r}, v{AC(r)+e}, v{GU+4*e+r}")
        for q in (2*e, 2*e+1):
            A(f"v_cvt_pk_bf16_f32 v{XR+q}, v{XU+2*q}, v{XU+2*q+1}")
        if e & 1:
            A(f"buffer_store_dwordx4 {vr(XR+4*(e>>1),4)}, v6, s[24:27], 0 offen offset:{16*(e>>1)} {OPT['sc_o']}")
    kend(A, 2, "Lk3_end")

def kd(name, vgpr, sgpr=100, accum=None):
    accum = accum or min(256, (vgpr+3)//4*4)
    return f""".amdhsa_kernel {name}
  .amdhsa_next_free_vgpr {vgpr}
  .amdhsa_next_free_sgpr {sgpr}
  .amdhsa_accum_offset {accum}
  .amdhsa_group_segment_fixed_size 0
  .amdhsa_kernarg_size 88
  .amdhsa_user_sgpr_count 2
  .amdhsa_user_sgpr_kernarg_segment_ptr 1
  .amdhsa_system_sgpr_workgroup_id_x 1
.end_amdhsa_kernel
"""

def build(kernels):
    hdr = open(f"cdna_kernels/{NAME}.s.ref").read().split("; Override")[0]
    out = hdr
    for (name, fn, grid, block, lds, vg) in kernels:
        out += f"; @launch kernel={name} grid=({grid},1,1) block=({block},1,1) lds={lds}\n"
    out += '.amdgcn_target "amdgcn-amd-amdhsa--gfx950"\n.text\n'
    seen = []
    for (name, fn, grid, block, lds, vg) in kernels:
        if name in seen: continue
        seen.append(name)
        A = Asm(); fn(A)
        out += f".globl {name}\n.p2align 8\n.type {name},@function\n" + A.text()
    out += '.section .rodata,"a"\n'
    seen = []
    for (name, fn, grid, block, lds, vg) in kernels:
        if name in seen: continue
        seen.append(name)
        out += ".p2align 6\n" + kd(name, vg)
    return out

KS = [("k1_kernel", k1, 256, 512, 133120, 256), ("k2_kernel", k2, 256, 512, 131072, 256), ("k3_kernel", k3, 256, 704, 98304, 160)]

if __name__ == '__main__':
    DIAG = len(sys.argv) > 2 and sys.argv[2] == 'diag'
    for kv in sys.argv[3:]:
        k, v = kv.split('='); OPT[k] = eval(v)
    open(sys.argv[1] if len(sys.argv) > 1 else 'cur.s', 'w').write(build(KS))
```

```python
import sys, math
from asmlib import *

NAME = "recurrent_scan__spectral_gfnet__dense_activation_gelu__prompt"
H_OFF, H_SZ = 0, 2048*1728*2
T_OFF, T_SZ = 0x700000, 32*11*64*128
U_OFF, U_SZ = 0xA00000, 32*11*64*128
P_OFF, P_SZ = 0xD00000, 2*2048*640*2
HT_OFF, HT_SZ = 0x1200000, 10*6*1024
X_SZ = 2048*640*2
W1_SZ = 640*1728*2
WF_SZ = 2048*321*2
OPT = dict(rot1='xcd', rot2=False, pf=False, mpf=False, lpf=True, mpf1=False, sc_h='sc1', sc_t='sc1', sc_u='sc1', sc_p='sc1', sc_o='', map1='4x7', D=2, cpf=True, hpf=True, pfst=None)

def vr(b, n): return f"v[{b}:{b+n-1}]"
def srd(A, d, base, size, off=0):
    if off:
        A(f"s_add_u32 s{d}, s{base}, 0x{off:x}", f"s_addc_u32 s{d+1}, s{base+1}, 0")
    else:
        A(f"s_mov_b32 s{d}, s{base}", f"s_mov_b32 s{d+1}, s{base+1}")
    A(f"s_mov_b32 s{d+2}, {size}", f"s_mov_b32 s{d+3}, 0x00020000")

DIAG = False
DIAG_OFF = 0x2000000
def stamp(A, k):
    if DIAG:
        A(f"s_memrealtime s[{60+2*k}:{61+2*k}]", "s_waitcnt lgkmcnt(0)")
def kstart(A):
    if DIAG:
        for k in range(60, 92): A(f"s_mov_b32 s{k}, 0")
        A("s_memrealtime s[60:61]", "s_memtime s[88:89]", "s_load_dwordx2 s[92:93], s[0:1], 80", "s_waitcnt lgkmcnt(0)")
def kend(A, kid, lab):
    A(f"{lab}:")
    if DIAG:
        A("s_memrealtime s[84:85]", "s_waitcnt vmcnt(0) lgkmcnt(0)", "s_memrealtime s[86:87]", "s_memtime s[90:91]", "s_waitcnt lgkmcnt(0)")
        A(f"s_add_u32 s92, s92, 0x{DIAG_OFF:x}", "s_addc_u32 s93, s93, 0", "s_mov_b32 s94, 0x1000000", "s_mov_b32 s95, 0x00020000")
        A(f"s_add_u32 s96, s2, {kid*256}", "s_lshl_b32 s96, s96, 4", "s_add_u32 s96, s96, s28", "s_lshl_b32 s96, s96, 6", "s_mov_b64 exec, -1", "v_mov_b32 v1, 0")
        for q in range(4):
            for j in range(4): A(f"v_mov_b32 v{4+j}, s{60+2*(4*q+j)}")
            A(f"buffer_store_dwordx4 v[4:7], v1, s[92:95], s96 offen offset:{16*q}", "s_nop 1")
    A("s_endpgm")
    A(f"{lab}_x:", "s_endpgm")

GA = -2*0.7978845608028654*1.4426950408889634
GB = GA*0.044715
ONES = "0x3f803f80"
M32 = "v_mfma_f32_32x32x16_bf16"
M16 = "v_mfma_f32_16x16x32_bf16"

def row_stats(A, sx, sxx, t0, t1, mean, sq):
    A(f"v_mul_f32 v{mean}, {fl(1/640)}, v{sx}",
      f"v_mul_f32 v{t0}, {fl(1/640)}, v{sxx}",
      f"v_fma_f32 v{t0}, -v{mean}, v{mean}, v{t0}",
      f"v_max_f32 v{t0}, 0, v{t0}",
      f"v_cvt_pk_bf16_f32 v{t0}, v{t0}, v{t0}",
      f"v_lshlrev_b32 v{t0}, 16, v{t0}",
      f"v_add_f32 v{t0}, {fl(1e-5)}, v{t0}",
      f"v_cvt_pk_bf16_f32 v{t0}, v{t0}, v{t0}",
      f"v_lshlrev_b32 v{t0}, 16, v{t0}",
      f"v_sqrt_f32 v{sq}, v{t0}")

RING = 4
_cpf_n = [0]
def cpf(A, target, sel, v=(14,15,13), s=(56,58)):
    _cpf_n[0] += 1; lab = f"Lcpf{_cpf_n[0]}"
    a, t = s
    A(f"s_getpc_b64 s[{a}:{a+1}]", f"{lab}:", f"s_add_u32 s{a}, s{a}, {target}-{lab}", f"s_addc_u32 s{a+1}, s{a+1}, ({target}-{lab})>>32")
    A(f"v_lshlrev_b32 v{v[0]}, 7, v0")
    if sel: A(f"s_lshl_b32 s{t}, {sel}, 13", f"v_add_u32 v{v[0]}, s{t}, v{v[0]}")
    A(f"v_mov_b32 v{v[1]}, s{a+1}", f"v_add_co_u32 v{v[0]}, vcc, s{a}, v{v[0]}", f"v_addc_co_u32 v{v[1]}, vcc, 0, v{v[1]}, vcc",
      f"global_load_dword v{v[2]}, v[{v[0]}:{v[1]}], off")
ACC = lambda mt, nt: 16 + (mt*2+nt)*16
FB = lambda p, kk, w: 80 + p*64 + kk*16 + w*4

def loader_loop(A, NST, issue, extra=None):
    D = OPT['D']
    for st in range(D): issue(st)
    npf = 0
    for st in range(NST):
        issued = min(NST-1, st+D-1)
        A(f"s_waitcnt vmcnt({8*(issued-st)+npf})", "s_barrier")
        if st+D < NST: issue(st+D)
        if extra and st+D == NST-1: npf += extra()

def compute_loop(A, NST, reads, mfmas, tail, stampf=None, gap=None):
    A("s_barrier")
    A(*reads(0))
    A("s_waitcnt lgkmcnt(0)")
    if stampf: stampf(0)
    A("s_barrier")
    for st in range(1, NST):
        M = mfmas(st-1)
        G = gap(st-1) if gap else []
        n1 = len(G) - 30 if G else 0
        A(*spread(M[:10], spread(reads(st), G[:n1])))
        A(*spread(M[10:13], G[n1:n1+15]))
        A("s_waitcnt lgkmcnt(0)")
        if stampf: stampf(st)
        if st < NST-1: A("s_barrier")
        A(*spread(M[13:], G[n1+15:]))
        A(*tail(st-1))

def k1(A):
    A("k1_kernel:")
    A("s_cmp_ge_u32 s2, 256", "s_cbranch_scc1 Lk1_end_x")
    kstart(A)
    A("s_load_dwordx2 s[4:5], s[0:1], 0", "s_load_dwordx4 s[8:11], s[0:1], 32", "s_load_dwordx2 s[6:7], s[0:1], 80")
    A("v_lshrrev_b32 v1, 6, v0", "v_and_b32 v0, 63, v0", "v_readfirstlane_b32 s28, v1")
    A("s_and_b32 s31, s2, 7", "s_lshr_b32 s32, s2, 3")
    if OPT['cpf']:
        A("s_lshl_b32 s33, s32, 3", "s_add_u32 s33, s33, s28", "s_cmp_ge_u32 s33, 3", "s_cbranch_scc1 Lk1_nc")
        cpf(A, "k1_kernel", "s28", v=(14,15,252))
        A("Lk1_nc:")
    A("s_cmp_ge_u32 s32, 28", "s_cbranch_scc1 Lp1")
    if OPT['map1'] == '2x14':
        A("s_lshl_b32 s29, s31, 1", "s_and_b32 s33, s32, 1", "s_add_u32 s29, s29, s33", "s_lshr_b32 s30, s32, 1")
    else:
        A("s_lshr_b32 s29, s31, 1", "s_lshl_b32 s29, s29, 2", "s_and_b32 s33, s32, 3", "s_add_u32 s29, s29, s33")
        A("s_and_b32 s30, s31, 1", "s_mul_i32 s30, s30, 7", "s_lshr_b32 s33, s32, 2", "s_add_u32 s30, s30, s33")
    A("s_cmp_lt_u32 s28, 4", "s_cbranch_scc1 Lg1c")
    g1_loader(A)
    A("Lg1c:")
    g1_compute(A)
    A("Lp1:")
    p1(A)
    kend(A, 0, "Lk1_end")

def g1_loader(A):
    NST = 10
    A("s_sub_u32 s33, s28, 4")
    A("v_lshrrev_b32 v1, 3, v0", "v_and_b32 v2, 7, v0", "v_lshrrev_b32 v3, 4, v0",
      "s_lshl_b32 s34, s29, 2", "s_add_u32 s34, s34, s33",
      "v_lshl_add_u32 v1, v1, 6, s34", "v_mul_u32_u24 v1, 1280, v1",
      "v_xor_b32 v8, v2, v3", "v_xor_b32 v9, 4, v8",
      "v_lshl_add_u32 v4, v8, 4, v1", "v_lshl_add_u32 v5, v9, 4, v1",
      f"v_add_u32 v5, {8*64*1280}, v5", f"v_add_u32 v6, {16*64*1280}, v4", f"v_add_u32 v7, {16*64*1280}, v5")
    A("v_and_b32 v2, 15, v0", "v_lshlrev_b32 v8, 2, v3", "v_xor_b32 v2, v2, v8",
      "s_lshl_b32 s34, s33, 4", "v_add_u32 v8, s34, v3", "v_mul_u32_u24 v8, 3456, v8",
      "s_lshl_b32 s34, s30, 8", "v_lshl_add_u32 v10, v2, 4, v8", "v_add_u32 v10, s34, v10")
    A("s_cmp_eq_u32 s30, 13", "s_cselect_b32 s34, 8, 16",
      "v_cmp_le_u32 vcc, s34, v2", "v_mov_b32 v8, 0x80000000", "s_nop 0", "v_cndmask_b32 v10, v10, v8, vcc")
    A("s_lshl_b32 s40, s33, 12")
    if OPT['rot1']:
        if OPT['rot1'] == 'xcd':
            A("s_lshr_b32 s43, s31, 1", "s_mul_i32 s43, s43, 5", "s_lshr_b32 s43, s43, 1", "s_and_b32 s34, s31, 1", "s_mul_i32 s34, s34, 5", "s_add_u32 s43, s43, s34")
        elif OPT['map1'] == '2x14':
            A("s_mul_i32 s43, s30, 47", "s_lshr_b32 s43, s43, 6", "s_and_b32 s34, s29, 1", "s_mul_i32 s34, s34, 5", "s_add_u32 s43, s43, s34")
        else:
            A("s_lshr_b32 s43, s32, 2", "s_mul_i32 s43, s43, 92", "s_and_b32 s34, s32, 3", "s_mul_i32 s34, s34, 160", "s_add_u32 s43, s43, s34", "s_lshr_b32 s43, s43, 6")
        A("s_cmp_ge_u32 s43, 10", "s_cselect_b32 s34, 10, 0", "s_sub_u32 s43, s43, s34")
    else:
        A("s_mov_b32 s43, 0")
    A("s_waitcnt lgkmcnt(0)")
    srd(A, 12, 4, X_SZ); srd(A, 16, 8, W1_SZ)
    def issue(st):
        slot = (st % RING) * 32768
        A("s_lshl_b32 s41, s43, 7", f"s_mul_i32 s42, s43, {64*3456}")
        for q in range(4):
            A(f"s_add_u32 m0, s40, {slot + q*1024}", "s_nop 0", f"buffer_load_dwordx4 v{4+q}, s[12:15], s41 offen lds")
            A(f"s_add_u32 m0, s40, {slot + 16384 + q*1024}", "s_nop 0", f"buffer_load_dwordx4 v10, s[16:19], s42 offen lds")
            if q < 3: A(f"s_add_u32 s42, s42, {4*3456}")
        A("s_add_u32 s43, s43, 1", "s_cmp_eq_u32 s43, 10", "s_cselect_b32 s43, 0, s43")
    def extra():
        if not OPT['lpf']: return 0
        A("s_load_dwordx4 s[44:47], s[0:1], 8", "s_load_dwordx2 s[48:49], s[0:1], 48",
          "s_lshl_b32 s34, s2, 1", "s_add_u32 s34, s34, s33", "s_cmp_lt_u32 s33, 2", "s_cselect_b32 s34, s34, s2", "s_lshl_b32 s34, s34, 13",
          "v_lshl_add_u32 v11, v0, 7, s34", "s_waitcnt lgkmcnt(0)",
          "s_cmp_eq_u32 s33, 2", "s_cselect_b32 s52, s44, s46", "s_cselect_b32 s53, s45, s47",
          "s_cmp_lt_u32 s33, 2", "s_cselect_b32 s52, s48, s52", "s_cselect_b32 s53, s49, s53", f"s_mov_b32 s54, {W1_SZ}", f"s_cselect_b32 s54, s54, {WF_SZ}",
          "s_mov_b32 s55, 0x00020000", "buffer_load_dword v16, v11, s[52:55], 0 offen")
        return 1
    loader_loop(A, NST, issue, extra)
    if OPT['cpf']:
        A("s_lshl_b32 s34, s32, 2", "s_add_u32 s34, s34, s33", "s_cmp_ge_u32 s34, 2", "s_cbranch_scc1 Lk1_nc2")
        cpf(A, "k2_kernel", "s33")
        A("Lk1_nc2:")
    A("s_barrier")
    A("s_branch Lk1_end")

def g1_compute(A):
    NST = 10
    XA = lambda kk, nt: 208 + kk*2 + nt
    WA = lambda mt: 216 + mt
    SX, SXX, CS, B1 = 218, 219, 220, 221
    A("s_and_b32 s33, s28, 1", "s_lshr_b32 s34, s28, 1")
    A("v_and_b32 v1, 31, v0", "v_lshrrev_b32 v2, 5, v0")
    A("s_lshl_b32 s35, s30, 7", "s_lshl_b32 s40, s33, 6", "s_add_u32 s35, s35, s40", "s_lshl_b32 s40, s34, 5", "s_add_u32 s35, s35, s40",
      "v_add_lshl_u32 v9, v1, s35, 1", f"v_mov_b32 v{B1}, 0")
    A("s_lshl_b32 s35, s34, 13", "s_lshl_b32 s40, s33, 12", "s_add_u32 s35, s35, s40",
      "v_lshl_add_u32 v3, v1, 7, s35", "v_bfe_u32 v4, v0, 1, 3", "v_xor_b32 v4, v4, v2")
    for kk in range(4):
        A(f"v_xor_b32 v5, {2*kk}, v4", f"v_lshl_add_u32 v{XA(kk,0)}, v5, 4, v3", f"v_xor_b32 v{XA(kk,1)}, 0x1000, v{XA(kk,0)}")
    A("v_bfe_u32 v4, v0, 2, 2", "v_lshl_add_u32 v5, v2, 3, v4", "v_lshlrev_b32 v5, 8, v5",
      "v_bfe_u32 v6, v0, 4, 1", "v_lshl_add_u32 v5, v6, 5, v5", "v_and_b32 v6, 3, v0", "v_lshl_add_u32 v5, v6, 3, v5",
      "s_lshl_b32 s35, s33, 1", "s_add_u32 s35, s35, s34",
      "v_xor_b32 v6, s35, v4", f"v_lshl_add_u32 v{WA(0)}, v6, 6, v5", f"v_xor_b32 v{WA(1)}, 64, v{WA(0)}")
    A(f"v_mov_b32 v{SX}, 0", f"v_mov_b32 v{SXX}, 0", f"v_mov_b32 v{CS}, 0", f"s_mov_b32 s41, {ONES}")
    A("s_waitcnt lgkmcnt(0)")
    srd(A, 20, 10, 1728*2); srd(A, 24, 6, H_SZ, H_OFF)
    A(f"buffer_load_short_d16_hi v{B1}, v9, s[20:23], 0 offen")
    A("s_lshl_b32 s35, s30, 1", "s_add_u32 s35, s35, s33")
    for mt in range(2):
        for nt in range(2):
            s = 44 + mt*2 + nt
            A("s_lshl_b32 s40, s29, 2", "s_lshl_b32 s42, s34, 1", "s_add_u32 s40, s40, s42", f"s_xor_b32 s42, s33, {nt}", "s_add_u32 s40, s40, s42",
              "s_mulk_i32 s40, 108", "s_lshl_b32 s42, s35, 2", "s_add_u32 s40, s40, s42", f"s_xor_b32 s42, s34, {mt}", "s_lshl_b32 s42, s42, 1",
              "s_add_u32 s40, s40, s42", f"s_lshl_b32 s{s}, s40, 10")
    XCH = 131072
    A("s_lshl_b32 s42, s34, 9", "s_lshl_b32 s40, s33, 8", "s_add_u32 s42, s42, s40", f"s_add_u32 s42, s42, {XCH}", "v_lshl_add_u32 v7, v1, 3, s42",
      "s_lshl_b32 s42, s33, 9", "s_lshl_b32 s40, s34, 8", "s_add_u32 s42, s42, s40", f"s_add_u32 s42, s42, {XCH}", "v_lshl_add_u32 v8, v1, 3, s42",
      "v_lshlrev_b32 v9, 4, v0")
    XF0, WF0, XF1, WF1 = 224, 228, 232, 236
    for r in (XF0, WF0, XF1, WF1):
        A(f"v_mov_b32 v{r+2}, 0", f"v_mov_b32 v{r+3}, 0")
    PFS = OPT['pfst'] or [1,3,5,7]
    if OPT['pf']:
        A("s_load_dwordx4 s[36:39], s[0:1], 8", "s_load_dwordx2 s[52:53], s[0:1], 48",
          "s_lshl_b32 s42, s32, 2", "s_add_u32 s42, s42, s28", f"s_mul_i32 s40, s42, {192*128}", "v_lshl_add_u32 v10, v0, 7, s40",
          "s_lshl_b32 s40, s42, 1", "v_add_u32 v12, s40, v2", "v_and_b32 v12, 63, v12",
          "v_mul_u32_u24 v12, 20544, v12", "v_min_u32 v13, 21, v1", "v_lshl_add_u32 v12, v13, 7, v12",
          "s_mul_i32 s40, s31, 2568", "s_and_b32 s40, s40, 0xffffff80", "v_add_u32 v12, s40, v12", "v_and_b32 v12, -4, v12",
          "s_mov_b32 s48, 0", "s_movk_i32 s49, 8192", "s_movk_i32 s50, 16384", "s_waitcnt lgkmcnt(0)")
        A(f"s_mov_b32 s54, {W1_SZ}", "s_mov_b32 s55, 0x00020000")
        A("s_cmp_lt_u32 s42, 32", "s_cselect_b32 s56, s36, s38", "s_cselect_b32 s57, s37, s39", "s_cmp_lt_u32 s42, 64",
          f"s_cselect_b32 s58, {WF_SZ}, 0", "s_mov_b32 s59, 0x00020000")
    A("s_waitcnt vmcnt(0)")
    base = [0]
    def reads(st):
        p = st & 1; slot = (st % RING) * 32768
        L = []
        nb = slot & ~0xffff
        if nb != base[0]:
            for r in range(208, 218): L.append(f"v_xor_b32 v{r}, 0x10000, v{r}")
            base[0] = nb
        so = slot - nb
        for kk in range(4):
            for mt in range(2):
                for jh in range(2):
                    L.append(f"ds_read_b64_tr_b16 {vr(FB(p,kk,2+mt)+2*jh,2)}, v{WA(mt)} offset:{so+16384+(16*kk+4*jh)*256}")
            for nt in range(2):
                L.append(f"ds_read_b128 {vr(FB(p,kk,nt),4)}, v{XA(kk,nt)} offset:{so}")
        return L
    def mfmas(st):
        p = st & 1; L = []
        for kk in range(4):
            for mt in range(2):
                for nt in range(2):
                    c = "0" if (st == 0 and kk == 0) else vr(ACC(mt,nt),16)
                    L.append(f"{M32} {vr(ACC(mt,nt),16)}, {vr(FB(p,kk,2+mt),4)}, {vr(FB(p,kk,nt),4)}, {c}")
        return L
    def dots(st):
        p = st & 1; L = []
        for kk in range(4):
            for j in range(4):
                L.append(f"v_dot2c_f32_bf16 v{SX}, s41, v{FB(p,kk,0)+j}")
                if not OPT.get('sqv') or st == NST-1: L.append(f"v_dot2c_f32_bf16 v{SXX}, v{FB(p,kk,0)+j}, v{FB(p,kk,0)+j}")
                L.append(f"v_dot2c_f32_bf16 v{CS}, s41, v{FB(p,kk,2)+j}")
        if OPT['pf'] and st in PFS:
            n = PFS.index(st)
            L.append(f"buffer_load_dword v{248+n}, v10, s[52:55], s{48+n} offen" if n < 3 else "buffer_load_dword v251, v12, s[56:59], 0 offen")
        return L
    def sqgap(st):
        p = st & 1; L = []
        for kk in range(4):
            for j in range(4):
                r = FB(p,kk,0)+j
                L += [f"v_lshlrev_b32 v3, 16, v{r}", f"v_and_b32 v4, s51, v{r}", "v_fmac_f32 v222, v3, v3", "v_fmac_f32 v223, v4, v4"]
        return L
    A("v_mov_b32 v222, 0", "v_mov_b32 v223, 0", "s_mov_b32 s51, 0xffff0000")
    compute_loop(A, NST, reads, mfmas, dots, lambda st: stamp(A, 1+st) if st in (0,1,5,9) else None, sqgap if OPT.get('sqv') else None)
    A(*dots(NST-1))
    M = mfmas(NST-1)
    F = Asm()
    if OPT.get('sqv'): F(f"v_add_f32 v{SXX}, v{SXX}, v222", f"v_add_f32 v{SXX}, v{SXX}, v223")
    for r in (SX, SXX, CS):
        F(f"v_mov_b32 v3, v{r}", "s_nop 1", f"v_permlane32_swap_b32 v{r}, v3", f"v_add_f32 v{r}, v{r}, v3")
    row_stats(F, SX, SXX, 3, 4, 5, 6)
    F(f"v_cvt_pk_bf16_f32 v{XF0}, -v5, -v5", f"v_cvt_pk_bf16_f32 v{XF0+1}, -v5, v6")
    F(f"v_cvt_pk_bf16_f32 v3, v{CS}, v{CS}", "v_lshlrev_b32 v3, 16, v3", f"v_sub_f32 v3, v{CS}, v3",
      f"v_cvt_pk_bf16_f32 v{WF0}, v{CS}, v3", f"v_and_b32 v4, 0xffff0000, v{WF0}", "v_sub_f32 v3, v3, v4",
      f"v_cvt_pk_bf16_f32 v{WF0+1}, v3, v{B1}")
    F(f"ds_write_b64 v7, {vr(XF0,2)}", f"ds_write_b64 v8, {vr(WF0,2)} offset:1024",
      "v_xor_b32 v7, 0x100, v7", "v_xor_b32 v8, 0x100, v8")
    A(*spread(M[:8], F.lines))
    A(M[8], M[9])
    A("s_waitcnt lgkmcnt(0)", "s_barrier")
    A(f"ds_read_b64 {vr(XF1,2)}, v7", f"ds_read_b64 {vr(WF1,2)}, v8 offset:1024")
    A(*M[10:14])
    A("v_cmp_eq_u32 vcc, 0, v2", "s_waitcnt lgkmcnt(0)")
    G = Asm()
    for r in (WF0, WF0+1, WF1, WF1+1):
        G(f"v_cndmask_b32 v{r}, 0, v{r}, vcc")
    for nt in range(2):
        c = 240 + 4*nt
        G(f"v_and_b32 v{c+2}, 0xffff0000, v{(XF0,XF1)[nt]+1}", f"v_rcp_f32 v3, v{c+2}",
          f"v_mul_f32 v{c}, {fl(GA)}, v3", "v_mul_f32 v4, v3, v3", "v_mul_f32 v4, v4, v3", f"v_mul_f32 v{c+1}, {fl(GB)}, v4")
    A(*spread(M[14:], G.lines[:8]))
    X = [f"{M32} {vr(ACC(mt,nt),16)}, {vr((WF0,WF1)[mt],4)}, {vr((XF0,XF1)[nt],4)}, {vr(ACC(mt,nt),16)}" for mt in range(2) for nt in range(2)]
    A(*spread(X, G.lines[8:]))
    stamp(A, 11)
    A("s_cmp_ge_u32 s35, 27", "s_cbranch_scc1 Lk1_end")
    n = 0
    for mt in range(2):
        for nt in range(2):
            c = 240 + 4*nt
            for half in range(2):
                a0 = ACC(mt,nt) + 8*half
                t = 80 + (n % 2)*16; o = 112 + (n % 4)*4; n += 1
                P = range(4)
                for i in P: A(f"v_pk_mul_f32 {vr(t+2*i,2)}, {vr(a0+2*i,2)}, {vr(a0+2*i,2)}")
                for i in P: A(f"v_pk_fma_f32 {vr(t+2*i,2)}, {vr(t+2*i,2)}, {vr(c,2)}, {vr(c,2)} op_sel:[0,1,0] op_sel_hi:[1,1,0]")
                for i in P: A(f"v_pk_mul_f32 {vr(t+2*i,2)}, {vr(t+2*i,2)}, {vr(a0+2*i,2)}")
                for i in range(8): A(f"v_exp_f32 v{t+i}, v{t+i}")
                for i in P: A(f"v_pk_fma_f32 {vr(t+2*i,2)}, {vr(t+2*i,2)}, {vr(c+2,2)}, {vr(c+2,2)} op_sel:[0,0,0] op_sel_hi:[1,0,0]")
                for i in range(8): A(f"v_rcp_f32 v{t+i}, v{t+i}")
                for i in P: A(f"v_pk_mul_f32 {vr(t+2*i,2)}, {vr(t+2*i,2)}, {vr(a0+2*i,2)}")
                for i in P: A(f"v_cvt_pk_bf16_f32 v{o+i}, v{t+2*i}, v{t+2*i+1}")
                A(f"buffer_store_dwordx4 {vr(o,4)}, v9, s[24:27], s{44+mt*2+nt} offen offset:{half*1024} {OPT['sc_h']}")
    A("s_branch Lk1_end")

def p1(A):
    BC = lambda u: 16 + 8*u
    BS = lambda u: 20 + 8*u
    TW = 56
    AF = lambda p, u: 64 + p*20 + 4*u
    AP = lambda p: 104 + 8*p
    AQ = lambda p: 108 + 8*p
    OUT = lambda par, i: 120 + par*8 + i
    TMP = 136
    YF = lambda o, pl: 152 + (o*2+pl)*4
    FP = lambda nt, pl: 184 + (nt*3+pl)*4
    TA = 208; PK = 240
    FPIMG, DCT, SCR = 81920, 94208, 98304
    A("s_sub_u32 s29, s32, 28", "s_lshl_b32 s29, s29, 3", "s_add_u32 s29, s29, s31", "s_lshl_b32 s29, s29, 1")
    A("s_lshr_b32 s46, s28, 2", "s_add_u32 s47, s46, s29", "s_and_b32 s48, s28, 3", "s_lshl_b32 s34, s48, 9", "s_add_u32 s47, s47, s34",
      "s_mul_i32 s33, s47, 1280", "s_mul_i32 s34, s28, 10240", "s_mov_b32 s35, 81920")
    A("v_and_b32 v1, 15, v0", "v_lshrrev_b32 v2, 4, v0", "v_lshlrev_b32 v4, 2, v2", "v_xor_b32 v3, v1, v4", "v_mul_u32_u24 v4, s35, v2", "v_lshl_add_u32 v4, v3, 4, v4")
    A("s_waitcnt lgkmcnt(0)")
    srd(A, 12, 4, X_SZ); srd(A, 36, 6, T_SZ, T_OFF)
    for i in range(10):
        A(f"s_add_u32 m0, s34, {1024*i}", f"s_add_u32 s40, s33, {(i//5)*4*81920+(i%5)*256}", "buffer_load_dwordx4 v4, s[12:15], s40 offen lds")
    if OPT['mpf1']:
        srd(A, 16, 8, W1_SZ)
        A("s_lshl_b32 s40, s29, 2", "s_add_u32 s40, s40, s28", f"s_mul_i32 s40, s40, {68*128}", "v_lshl_add_u32 v3, v0, 7, s40",
          "buffer_load_dword v150, v3, s[16:19], 0 offen", "buffer_load_dword v151, v3, s[16:19], 0 offen offset:512")
    A("s_and_b32 s41, s28, 1", "s_add_u32 s41, s41, 4", "s_bfe_u32 s42, s28, 0x10001",
      "s_cmp_lt_u32 s28, 4", "s_cselect_b32 s43, s28, s41", "s_cselect_b32 s44, 0, s42", "s_cselect_b32 s45, 1, 0")
    A("v_lshl_add_u32 v8, v2, 6, s47", "v_cvt_f32_u32 v8, v8", f"v_mul_f32 v8, {fl(1/2048)}, v8", "v_cvt_f32_u32 v9, v1", "v_add_f32 v10, 0x41800000, v9")
    for tt in range(2):
        if tt: A(f"v_add_f32 v8, {fl(256/2048)}, v8")
        for nt in range(2):
            A(f"v_mul_f32 v12, v8, v{9+nt}", f"v_cos_f32 v{208+nt*2+tt}, v12", f"v_sin_f32 v{212+nt*2+tt}, v12")
    A("v_lshrrev_b32 v8, 5, v0", "v_mul_u32_u24 v9, 5120, v8", "v_add_u32 v9, s34, v9", "v_bfe_u32 v8, v0, 3, 2", "v_lshl_add_u32 v9, v8, 8, v9",
      "v_lshl_add_u32 v224, v1, 4, v9", "v_xor_b32 v225, 128, v224")
    A("v_mov_b32 v228, 0", "v_mov_b32 v229, 0", "v_mov_b32 v230, 0", "v_mov_b32 v231, 0", f"s_mov_b32 s49, {ONES}")
    A("s_mul_i32 s41, s46, 6144", "s_lshl_b32 s42, s48, 2", "s_add_u32 s41, s41, s42", f"s_add_u32 s41, s41, {FPIMG}", "v_lshl_add_u32 v226, v0, 4, s41",
      "s_lshl_b32 s41, s46, 6", "s_add_u32 s41, s41, s42", f"s_add_u32 s41, s41, {DCT}", "v_lshl_add_u32 v227, v2, 4, s41")
    A("s_lshl_b32 s41, s43, 4", "v_add_u32 v3, s41, v1", "v_cvt_f32_u32 v4, v3", f"v_mul_f32 v5, {fl(1/160)}, v4",
      "v_cvt_f32_u32 v6, v2", "v_mul_f32 v6, 4.0, v6", "v_mul_f32 v6, v6, v5")
    A("v_and_b32 v14, 1, v0", "v_mov_b32 v15, 0x80008000", "v_mul_lo_u32 v14, v14, v15")
    for u in range(5):
        for jp in range(2):
            for e in range(2):
                A(f"v_fmamk_f32 v{8+e}, v5, {fl(float(16*u+2*jp+e))}, v6")
            A("v_cos_f32 v10, v8", "v_cos_f32 v11, v9", "v_sin_f32 v12, v8", "v_sin_f32 v13, v9",
              f"v_cvt_pk_bf16_f32 v{BC(u)+jp}, v10, v11", f"v_cvt_pk_bf16_f32 v{BS(u)+jp}, -v12, -v13",
              f"v_xor_b32 v{BC(u)+2+jp}, v14, v{BC(u)+jp}", f"v_xor_b32 v{BS(u)+2+jp}, v14, v{BS(u)+jp}")
    for r in (1,2,3):
        A(f"v_mul_f32 v8, {fl(r/640)}, v4", f"v_cos_f32 v{TW+2*r-2}, v8", f"v_sin_f32 v{TW+2*r-1}, v8")
    A("v_and_b32 v8, 3, v0", "v_bfe_u32 v9, v0, 3, 1", "v_lshl_add_u32 v9, v2, 1, v9", "v_lshlrev_b32 v10, 2, v8", "v_xor_b32 v9, v9, v10",
      "v_lshlrev_b32 v10, 8, v8", "v_lshl_add_u32 v10, v9, 4, v10", "v_bfe_u32 v9, v0, 2, 1", "v_lshl_add_u32 v14, v9, 3, v10",
      "s_mul_i32 s41, s44, 40960", "v_add_u32 v14, s41, v14", "v_xor_b32 v15, 128, v14")
    A("s_mul_i32 s41, s44, 6144", f"s_add_u32 s41, s41, {FPIMG}", "v_lshl_add_u32 v7, v0, 4, s41",
      "s_lshl_b32 s41, s44, 6", f"s_add_u32 s41, s41, {DCT}", "v_lshl_add_u32 v62, v2, 4, s41",
      "v_lshrrev_b32 v8, 3, v0", "s_mov_b32 s41, 90112", "v_mul_lo_u32 v63, v8, s41", "v_and_b32 v9, 7, v0", "v_lshl_add_u32 v63, v9, 4, v63",
      "s_lshl_b32 s41, s28, 12", f"s_add_u32 s41, s41, {SCR}",
      "v_xor_b32 v10, v8, v9", "v_lshl_add_u32 v3, v8, 7, s41", "v_lshl_add_u32 v3, v10, 4, v3",
      "v_xor_b32 v10, v2, v9", "v_lshl_add_u32 v5, v1, 7, s41", "v_lshl_add_u32 v5, v10, 4, v5", "v_xor_b32 v6, 64, v5")
    if OPT['mpf']:
        A("s_load_dwordx4 s[52:55], s[0:1], 8", "s_load_dwordx2 s[56:57], s[0:1], 48",
          "s_lshl_b32 s40, s29, 2", "s_add_u32 s40, s40, s28", f"s_mul_i32 s41, s40, {68*128}", "v_lshl_add_u32 v216, v0, 7, s41",
          f"s_mul_i32 s41, s40, {41*128}", "v_lshl_add_u32 v217, v0, 7, s41", "s_waitcnt lgkmcnt(0)")
        srd(A, 16, 56, W1_SZ); srd(A, 20, 52, WF_SZ); srd(A, 24, 54, WF_SZ)
    stamp(A, 1)
    A(f"s_waitcnt vmcnt({2 if OPT['mpf1'] else 0})")
    stamp(A, 2)
    if OPT['mpf']:
        A("buffer_load_dword v146, v216, s[16:19], 0 offen", "s_mov_b32 exec_hi, 0x1ff", "buffer_load_dword v147, v217, s[20:23], 0 offen",
          "buffer_load_dword v148, v217, s[24:27], 0 offen", "s_mov_b64 exec, 15", "s_movk_i32 s41, 8192", "buffer_load_dword v149, v216, s[16:19], s41 offen", "s_mov_b64 exec, -1")
    for I in range(5):
        for ii in range(2):
            A(f"ds_read_b128 {vr(64+(I*2+ii)*4,4)}, v{224+ii} offset:{1024*I}")
    for I in range(5):
        A(f"s_waitcnt lgkmcnt({2*(4-I)})")
        for j in range(8):
            r = 64 + I*8 + j
            A(f"v_dot2c_f32_bf16 v{228+(j&1)}, s49, v{r}", f"v_dot2c_f32_bf16 v{230+(j&1)}, v{r}, v{r}")
    A("v_add_f32 v228, v228, v229", "v_add_f32 v230, v230, v231")
    for qp in ("quad_perm:[1,0,3,2]", "quad_perm:[2,3,0,1]", "row_half_mirror"):
        A(f"v_add_f32_dpp v228, v228, v228 {qp} row_mask:0xf bank_mask:0xf", f"v_add_f32_dpp v230, v230, v230 {qp} row_mask:0xf bank_mask:0xf")
    row_stats(A, 228, 230, 8, 9, 10, 11)
    A("v_cvt_pk_bf16_f32 v11, v11, v10", "v_lshlrev_b32 v8, 5, v2", "v_and_b32 v10, 0xffff0000, v11", "v_lshlrev_b32 v11, 16, v11", "v_rcp_f32 v11, v11",
      f"v_fmac_f32 v228, {fl(-640.0)}, v10")
    for tt in range(2):
        A(f"ds_bpermute_b32 v{232+tt}, v8, v11 offset:{128*tt}", f"ds_bpermute_b32 v{234+tt}, v8, v228 offset:{128*tt}")
    A("s_waitcnt lgkmcnt(0)")
    for nt in range(2):
        c = 208+nt*2; sn = 212+nt*2; o = 236 + nt*3
        for tt in range(2):
            A(f"v_mul_f32 v{c+tt}, v{c+tt}, v{232+tt}", f"v_mul_f32 v{sn+tt}, v{sn+tt}, v{232+tt}")
        A(f"v_cvt_pk_bf16_f32 v{o}, v{c}, v{c+1}", f"v_cvt_pk_bf16_f32 v{o+1}, v{sn}, v{sn+1}", f"v_cvt_pk_bf16_f32 v{o+2}, -v{sn}, -v{sn+1}")
        for pl in range(3):
            A(f"ds_write_b32 v226, v{o+pl} offset:{(nt*3+pl)*1024}")
    A("v_cvt_pk_bf16_f32 v8, v234, v235", "ds_write_b32 v227, v8")
    A("s_waitcnt lgkmcnt(0)", "s_barrier")
    stamp(A, 3)
    A("Lp1_unit:")
    stamp(A, 4)
    def reads(t):
        return [f"ds_read_b64_tr_b16 {vr(AF(t&1,u)+2*jh,2)}, v{14+((u+5*jh)&1)} offset:{t*5120+((u+5*jh)>>1)*1024}" for u in range(5) for jh in range(2)]
    def mf(t):
        L = []
        for u in range(5):
            for (acc, B) in ((AP(t&1), BC(u)), (AQ(t&1), BS(u))):
                L.append(f"{M16} {vr(acc,4)}, {vr(AF(t&1,u),4)}, {vr(B,4)}, {'0' if u==0 else vr(acc,4)}")
        return L
    def bfly(t):
        P = AP(t&1); Q = AQ(t&1); O = lambda i: OUT(t&1, i)
        c1,s1,c2,s2,c3,s3 = range(TW, TW+6)
        pr,pi,qr,qi,ar,ai,ur,ui,wr_,wi_ = range(TMP, TMP+10)
        L = [f"v_fma_f32 v{pr}, v{P+2}, v{c2}, v{P}", f"v_fma_f32 v{pi}, v{Q+2}, v{c2}, v{Q}",
             f"v_mul_f32 v{ar}, v{P+1}, v{c1}", f"v_mul_f32 v{ai}, v{Q+1}, v{c1}",
             f"v_fmac_f32 v{pr}, v{Q+2}, v{s2}", f"v_fma_f32 v{pi}, -v{P+2}, v{s2}, v{pi}",
             f"v_fmac_f32 v{ar}, v{Q+1}, v{s1}", f"v_fma_f32 v{ai}, -v{P+1}, v{s1}, v{ai}",
             f"v_fma_f32 v{qr}, 2.0, v{P}, -v{pr}", f"v_fma_f32 v{qi}, 2.0, v{Q}, -v{pi}",
             f"v_fma_f32 v{ur}, v{P+3}, v{c3}, v{ar}", f"v_fma_f32 v{ui}, v{Q+3}, v{c3}, v{ai}",
             f"v_fmac_f32 v{ur}, v{Q+3}, v{s3}", f"v_fma_f32 v{ui}, -v{P+3}, v{s3}, v{ui}",
             f"v_fma_f32 v{wr_}, 2.0, v{ar}, -v{ur}", f"v_fma_f32 v{wi_}, 2.0, v{ai}, -v{ui}",
             f"v_add_f32 v{O(0)}, v{pr}, v{ur}", f"v_add_f32 v{O(1)}, v{pi}, v{ui}",
             f"v_sub_f32 v{O(6)}, v{pr}, v{ur}", f"v_sub_f32 v{O(7)}, v{ui}, v{pi}",
             f"v_sub_f32 v{O(2)}, v{qr}, v{wi_}", f"v_add_f32 v{O(3)}, v{qi}, v{wr_}",
             f"v_add_f32 v{O(4)}, v{qr}, v{wi_}", f"v_sub_f32 v{O(5)}, v{qi}, v{wr_}"]
        if t & 1:
            for i in (0,1,6,7,2,3,4,5):
                n = '-' if i == 3 else ''
                L.append(f"v_cvt_pk_bf16_f32 v{YF(i>>1,i&1)+(t>>1)}, {n}v{OUT(0,i)}, {n}v{OUT(1,i)}")
        return L
    A(*reads(0))
    for t in range(9):
        if t < 8:
            A("s_waitcnt lgkmcnt(0)")
            fill = (reads(t+1) if t < 7 else [f"ds_read_b128 {vr(FP(nt,pl),4)}, v7 offset:{(nt*3+pl)*1024}" for nt in range(2) for pl in range(3)])
            fill = fill + (bfly(t-1) if t >= 1 else [])
            A(*spread(mf(t), fill))
        else:
            B = bfly(7)
            A(*B[:25])
            A("s_cmp_lg_u32 s43, 0", "s_cbranch_scc1 Lp1_nodc", "s_mov_b32 exec_lo, 0x10001", "s_mov_b32 exec_hi, 0x10001",
              f"ds_read_b128 {vr(YF(0,0),4)}, v62", "s_mov_b64 exec, -1", "Lp1_nodc:")
            A(*B[25:])
    A("s_add_u32 s41, s29, s44", "s_lshl_b32 s41, s41, 7", "s_lshl_b32 s42, s43, 13", "s_add_u32 s41, s41, s42")
    A("s_waitcnt lgkmcnt(0)")
    stamp(A, 5)
    def s1m(kinds, base):
        L = []; n = 0
        for tile, o in enumerate(kinds):
            for nt in range(2):
                re = base + n*8; im = re + 4; n += 1
                L += [f"{M16} {vr(re,4)}, {vr(YF(o,0),4)}, {vr(FP(nt,0),4)}, 0", f"{M16} {vr(im,4)}, {vr(YF(o,1),4)}, {vr(FP(nt,0),4)}, 0",
                      f"{M16} {vr(re,4)}, {vr(YF(o,1),4)}, {vr(FP(nt,1),4)}, {vr(re,4)}", f"{M16} {vr(im,4)}, {vr(YF(o,0),4)}, {vr(FP(nt,2),4)}, {vr(im,4)}"]
        return L
    def s1w(base):
        L = []; n = 0
        for tile in range(2):
            for nt in range(2):
                re = base + n*8; pk = PK + n*4; n += 1
                L += [f"v_cvt_pk_bf16_f32 v{pk+j}, v{re+2*j}, v{re+2*j+1}" for j in range(4)]
                L.append(f"ds_write_b128 v{5+tile}, {vr(pk,4)} offset:{nt*2048}")
        L += [f"ds_read_b128 {vr(base+4*q,4)}, v3 offset:{q*1024}" for q in range(4)]
        return L
    def s1s(base, poff):
        L = []
        for q in range(4):
            L += [f"s_add_u32 s42, s41, {q*8*90112+poff}", f"s_waitcnt lgkmcnt({3-q})",
                  f"buffer_store_dwordx4 {vr(base+4*q,4)}, v63, s[36:39], s42 offen {OPT['sc_t']}"]
        return L
    TB_ = 64
    A(*s1m((0,2), TA))
    A("s_cmp_eq_u32 s43, 5", "s_cbranch_scc1 Lp1_b5")
    A(*spread(s1m((1,3), TB_), s1w(TA)))
    A(*s1s(TA, 0))
    A(*s1w(TB_))
    A(*s1s(TB_, 6*8192))
    A("s_cmp_eq_u32 s45, 0", "s_cbranch_scc1 Lk1_end")
    A("s_mov_b32 s45, 0", "s_mov_b32 s44, 1", "v_add_u32 v14, 40960, v14", "v_add_u32 v15, 40960, v15", "v_add_u32 v7, 6144, v7", "v_add_u32 v62, 64, v62", "s_branch Lp1_unit")
    A("Lp1_b5:", "s_nop 7")
    A(*s1w(TA))
    A(*s1s(TA, 0))

def k2(A):
    A("k2_kernel:")
    A("s_cmp_ge_u32 s2, 256", "s_cbranch_scc1 Lk2_end_x")
    kstart(A)
    A("s_load_dwordx4 s[4:7], s[0:1], 8", "s_load_dwordx4 s[8:11], s[0:1], 48", "s_load_dwordx2 s[48:49], s[0:1], 80")
    A("v_lshrrev_b32 v1, 6, v0", "v_and_b32 v0, 63, v0", "v_readfirstlane_b32 s28, v1")
    A("s_and_b32 s31, s2, 7", "s_lshr_b32 s32, s2, 3")
    A("s_cmp_ge_u32 s32, 20", "s_cbranch_scc1 Lp2")
    A("s_lshr_b32 s29, s31, 1", "s_lshl_b32 s29, s29, 2", "s_and_b32 s33, s32, 3", "s_add_u32 s29, s29, s33", "s_lshr_b32 s30, s32, 2", "s_and_b32 s50, s31, 1")
    A("s_cmp_lt_u32 s28, 4", "s_cbranch_scc1 Lg2c")
    g2_loader(A)
    A("Lg2c:")
    g2_compute(A)
    A("Lp2:")
    p2(A)
    kend(A, 1, "Lk2_end")

def g2_loader(A):
    NST = 14
    A("s_sub_u32 s33, s28, 4")
    A("s_lshl_b32 s34, s29, 2", "s_add_u32 s34, s34, s33", f"s_mul_i32 s34, s34, {108*1024}", "v_lshl_add_u32 v4, v0, 4, s34")
    A("v_lshrrev_b32 v3, 4, v0", "v_and_b32 v2, 15, v0", "v_lshlrev_b32 v5, 2, v3", "v_xor_b32 v2, v2, v5",
      "s_lshl_b32 s34, s33, 4", "v_add_u32 v8, s34, v3", "v_mul_u32_u24 v8, 1280, v8",
      "s_lshl_b32 s34, s30, 8", "v_lshl_add_u32 v10, v2, 4, v8", "v_add_u32 v10, s34, v10")
    A("s_lshl_b32 s40, s33, 12", "s_mul_i32 s44, s50, 14", "s_add_u32 s45, s44, 14")
    if OPT['rot2']:
        A("s_mul_i32 s43, s30, 180", "s_lshr_b32 s43, s43, 6", "s_and_b32 s34, s29, 1", "s_mul_i32 s34, s34, 7", "s_add_u32 s43, s43, s34",
          "s_cmp_ge_u32 s43, 14", "s_cselect_b32 s34, 14, 0", "s_sub_u32 s43, s43, s34", "s_add_u32 s43, s43, s44")
    else:
        A("s_mov_b32 s43, s44")
    A("s_waitcnt lgkmcnt(0)")
    srd(A, 12, 48, H_SZ, H_OFF); srd(A, 16, 8, W1_SZ)
    def issue(st):
        slot = (st % RING) * 32768
        A("s_cmp_eq_u32 s43, 27", f"s_cselect_b32 s14, 0, {H_SZ}", f"s_cselect_b32 s18, 0, {W1_SZ}",
          "s_lshl_b32 s41, s43, 12", f"s_add_u32 m0, s40, {slot}", f"s_mul_i32 s42, s43, {64*1280}")
        for q in range(4):
            A(f"buffer_load_dwordx4 v4, s[12:15], s41 offen offset:{q*1024} lds")
        for q in range(4):
            A(f"s_add_u32 m0, s40, {slot + 16384 + q*1024}", "s_nop 0", f"buffer_load_dwordx4 v10, s[16:19], s42 offen lds")
            if q < 3: A(f"s_add_u32 s42, s42, {4*1280}")
        A("s_add_u32 s43, s43, 1", "s_cmp_eq_u32 s43, s45", "s_cselect_b32 s43, s44, s43")
    loader_loop(A, NST, issue)
    if OPT['cpf']:
        A("s_lshl_b32 s34, s32, 2", "s_add_u32 s34, s34, s33", "s_cmp_ge_u32 s34, 1", "s_cbranch_scc1 Lk2_end")
        A("s_mov_b64 exec, 0x7ffffff")
        cpf(A, "k3_kernel", None)
    A("s_branch Lk2_end")

def g2_compute(A):
    NST = 14
    XA, WA = 208, lambda mt: 209 + mt
    A("s_and_b32 s33, s28, 1", "s_lshr_b32 s34, s28, 1")
    A("v_and_b32 v1, 31, v0", "v_lshrrev_b32 v2, 5, v0")
    A("s_lshl_b32 s35, s30, 8", "s_lshl_b32 s40, s33, 7", "s_add_u32 s35, s35, s40",
      "s_lshl_b32 s40, s50, 31", "s_or_b32 s35, s35, s40", "v_lshl_add_u32 v9, v1, 1, s35")
    A("s_lshl_b32 s35, s34, 13", f"v_lshl_add_u32 v{XA}, v0, 4, s35")
    A("v_bfe_u32 v4, v0, 2, 2", "v_lshl_add_u32 v5, v2, 2, v4", "v_lshlrev_b32 v5, 8, v5",
      "v_bfe_u32 v6, v0, 4, 1", "v_lshl_add_u32 v5, v6, 5, v5", "v_and_b32 v6, 3, v0", "v_lshl_add_u32 v5, v6, 3, v5",
      "s_lshl_b32 s35, s33, 1", "v_xor_b32 v6, s35, v4", f"v_lshl_add_u32 v{WA(0)}, v6, 6, v5", f"v_xor_b32 v{WA(1)}, 64, v{WA(0)}")
    A("s_waitcnt lgkmcnt(0)")
    srd(A, 20, 10, 640*2); srd(A, 24, 48, P_SZ, P_OFF)
    A("buffer_load_ushort v240, v9, s[20:23], 0 offen", "buffer_load_ushort v244, v9, s[20:23], 0 offen offset:64")
    for r in (241,242,243,245,246,247,249,250,251): A(f"v_mov_b32 v{r}, 0")
    A("v_cmp_gt_u32 vcc, 32, v0", "v_mov_b32 v5, 0x3f80", "s_nop 0", "v_cndmask_b32 v248, 0, v5, vcc")
    A("v_lshlrev_b32 v5, 9, v2", "v_lshl_add_u32 v7, v1, 3, v5",
      "s_lshl_b32 s40, s29, 2", "s_lshl_b32 s42, s34, 1", "s_add_u32 s40, s40, s42", "s_mul_i32 s40, s40, 10",
      "s_lshl_b32 s42, s30, 1", "s_add_u32 s40, s40, s42", "s_add_u32 s40, s40, s33", "s_lshl_b32 s40, s40, 12",
      f"s_mul_i32 s42, s50, {P_SZ//2}", "s_add_u32 s44, s40, s42", "s_add_u32 s45, s44, 40960")
    A("s_waitcnt vmcnt(0)")
    for mt in range(2):
        for nt in range(2):
            A(f"{M32} {vr(ACC(mt,nt),16)}, v[248:251], {vr(240+4*mt,4)}, 0")
    base = [0]
    def reads(st):
        p = st & 1; slot = (st % RING) * 32768
        L = []
        nb = slot & ~0xffff
        if nb != base[0]:
            for r in range(208, 211): L.append(f"v_xor_b32 v{r}, 0x10000, v{r}")
            base[0] = nb
        so = slot - nb
        for kk in range(4):
            for mt in range(2):
                for jh in range(2):
                    L.append(f"ds_read_b64_tr_b16 {vr(FB(p,kk,2+mt)+2*jh,2)}, v{WA(mt)} offset:{so+16384+(16*kk+8*jh)*256}")
            for nt in range(2):
                L.append(f"ds_read_b128 {vr(FB(p,kk,nt),4)}, v{XA} offset:{so+nt*4096+kk*1024}")
        return L
    mm = lambda p, kk, mt, nt: f"{M32} {vr(ACC(mt,nt),16)}, {vr(FB(p,kk,nt),4)}, {vr(FB(p,kk,2+mt),4)}, {vr(ACC(mt,nt),16)}"
    def mfmas(st):
        return [mm(st&1, kk, mt, nt) for kk in range(4) for mt in range(2) for nt in range(2)]
    compute_loop(A, NST, reads, mfmas, lambda st: [], lambda st: stamp(A, 1+st) if st in (0,1,5,10) else None)
    p = (NST-1) & 1
    def outp(mt, nt):
        L = []
        for a in range(4):
            a0 = ACC(mt,nt) + 4*a; o = FB(1-p,0,0) + ((mt*2+nt)*4+a)*2
            L += [f"v_cvt_pk_bf16_f32 v{o}, v{a0}, v{a0+1}", f"v_cvt_pk_bf16_f32 v{o+1}, v{a0+2}, v{a0+3}",
                  f"buffer_store_dwordx2 {vr(o,2)}, v7, s[24:27], s{44+nt} offen offset:{a*1024+mt*256} {OPT['sc_p']}"]
        return L
    tiles = [(mt,nt) for mt in range(2) for nt in range(2)]
    for i, (mt,nt) in enumerate(tiles):
        Mq = [mm(p, kk, mt, nt) for kk in range(4)]
        if i == 0: A(*Mq)
        else:
            A(Mq[0], Mq[1]); A(*spread(Mq[2:], outp(*tiles[i-1])))
    A(*outp(*tiles[3]))
    A("s_branch Lk2_end")

def hgen(Hl, HF, tvar):
    Hl(f"s_lshl_b32 s33, s{tvar}, 4", "v_add_u32 v14, s33, v1", "v_cvt_f32_u32 v15, v14", f"v_mul_f32 v15, {fl(1/160)}, v15", "v_mul_f32 v4, v7, v15")
    for bb in range(5):
        for ep in range(2):
            for e in range(2):
                Hl(f"v_fmamk_f32 v{8+e}, v15, {fl(float(16*bb+2*ep+e))}, v4")
            Hl("v_cos_f32 v10, v8", "v_cos_f32 v11, v9", "v_sin_f32 v12, v8", "v_sin_f32 v13, v9")
            if bb == 0 and ep == 0:
                Hl("v_cmp_gt_u32 vcc, 16, v0", "v_mov_b32 v8, 0.5", "s_nop 0", "v_cndmask_b32 v10, v10, v8, vcc")
            Hl(f"v_cvt_pk_bf16_f32 v{HF(bb)+ep}, v10, v11", f"v_cvt_pk_bf16_f32 v{HF(bb)+2+ep}, -v12, -v13")
    Hl("v_and_b32 v8, 1, v14", "v_lshlrev_b32 v8, 15, v8", "v_or_b32 v8, 0x3f80, v8", f"v_cndmask_b32 v{HF(5)}, 0, v8, vcc",
       f"v_mov_b32 v{HF(5)+1}, 0", f"v_mov_b32 v{HF(5)+2}, 0", f"v_mov_b32 v{HF(5)+3}, 0")

def p2(A):
    C = lambda t, ks: vr(16 + (t*2+ks)*4, 4)
    S = lambda t, ks: vr(48 + (t*2+ks)*4, 4)
    WV = lambda tau, pl, t, e: 80 + tau*32 + pl*16 + t*4 + e
    TB = lambda tau, ks, pl: 144 + tau*24 + (ks*3+pl)*4
    XA = lambda tau, pl, t: 192 + tau*32 + pl*16 + t*4
    PK = 80
    WIMG = 32768
    A("s_sub_u32 s33, s32, 20", "s_mul_i32 s34, s33, 43", "s_lshr_b32 s34, s34, 7", "s_mul_i32 s35, s34, 3", "s_sub_u32 s51, s33, s35",
      "s_lshl_b32 s29, s31, 2", "s_add_u32 s29, s29, s34", "s_and_b32 s52, s28, 3")
    A("s_mov_b32 s34, 0x9a543210", "s_mov_b32 s35, 0x8876", "s_lshl_b32 s33, s51, 2", "s_add_u32 s33, s33, s52", "s_lshl_b32 s33, s33, 2",
      "s_lshr_b64 s[34:35], s[34:35], s33", "s_and_b32 s30, s34, 15")
    A("s_lshl_b32 s53, s51, 6", "s_cmp_eq_u32 s51, 2", "s_cselect_b32 s53, 113, s53")
    A("s_mul_i32 s33, s29, 90112", "s_lshl_b32 s34, s30, 13", "s_add_u32 s33, s33, s34", "s_lshr_b32 s34, s28, 2", "s_lshl_b32 s34, s34, 12",
      "s_add_u32 s33, s33, s34", "s_lshl_b32 s35, s52, 13", "s_add_u32 m0, s35, s34", "v_lshlrev_b32 v3, 4, v0")
    A("v_lshrrev_b32 v4, 3, v0", "v_lshl_add_u32 v4, v4, 5, s29", "v_mul_u32_u24 v4, 642, v4", "v_and_b32 v5, 7, v0", "v_lshl_add_u32 v4, v5, 4, v4",
      "s_lshl_b32 s34, s53, 1", "s_bfe_u32 s36, s28, 0x10001", "s_mulk_i32 s36, 320", "s_add_u32 s34, s34, s36",
      "s_and_b32 s36, s28, 1", f"s_mul_i32 s36, s36, {32*20544}", "s_add_u32 s34, s34, s36", "v_add_u32 v4, s34, v4")
    A("s_waitcnt lgkmcnt(0)")
    srd(A, 12, 48, T_SZ, T_OFF); srd(A, 24, 48, U_SZ, U_OFF)
    A("s_cmp_lt_u32 s28, 4", "s_cselect_b32 s16, s4, s6", "s_cselect_b32 s17, s5, s7", f"s_mov_b32 s18, {WF_SZ}", "s_mov_b32 s19, 0x00020000")
    for i in range(4): A(f"buffer_load_dwordx4 v3, s[12:15], s33 offen offset:{1024*i} lds")
    A("s_lshl_b32 s36, s28, 12")
    for q in range(4):
        A(f"s_add_u32 m0, s36, {WIMG+1024*q}", f"s_mov_b32 s34, {q*8*20544}", "buffer_load_dwordx4 v4, s[16:19], s34 offen lds")
    A("v_and_b32 v1, 15, v0", "v_lshrrev_b32 v2, 4, v0", "v_cvt_f32_u32 v7, v2", "v_mul_f32 v7, 4.0, v7")
    A("s_cmp_lt_u32 s28, 4", "s_cbranch_scc1 Lp2_main")
    NPF = 0
    if OPT['hpf']:
        srd(A, 20, 48, H_SZ, H_OFF); srd(A, 40, 8, W1_SZ)
        A("s_sub_u32 s33, s32, 20", "s_lshl_b32 s33, s33, 2", "s_add_u32 s33, s33, s52", "s_lshl_b32 s33, s33, 6", "v_add_u32 v8, s33, v0",
          "v_bfe_u32 v9, v8, 5, 4", "s_lshr_b32 s33, s31, 1", "s_lshl_b32 s33, s33, 4", "v_add_u32 v9, s33, v9", f"v_mul_u32_u24 v9, {108*1024}, v9",
          "v_and_b32 v10, 31, v8", "v_lshl_add_u32 v9, v10, 7, v9", "v_lshrrev_b32 v10, 9, v8", "v_lshl_add_u32 v9, v10, 12, v9",
          "s_and_b32 s34, s31, 1", f"s_mul_i32 s33, s34, {14*4096}", f"s_mul_i32 s34, s34, {14*81920}", "v_lshlrev_b32 v10, 7, v8")
        st0 = OPT.get('hpf0', 2)
        seq = [('h',0),('w',0),('w',1),('h',1),('w',2)]
        for n, (kind, i) in enumerate(seq):
            if kind == 'h': A(f"s_add_u32 s36, s33, {(st0+6*i)*4096}", f"buffer_load_dword v{100+n}, v9, s[20:23], s36 offen")
            else: A(f"s_add_u32 s36, s34, {st0*81920+i*3072*128}", f"buffer_load_dword v{100+n}, v10, s[40:43], s36 offen")
        NPF = len(seq)
    A("Lp2_hb:", f"s_waitcnt vmcnt({NPF})", "s_barrier")
    if OPT.get('xpf', True):
        A("s_load_dwordx2 s[20:21], s[0:1], 0", "s_sub_u32 s33, s32, 20", "s_lshl_b32 s33, s33, 2", "s_add_u32 s33, s33, s52", "s_lshl_b32 s33, s33, 6", "v_add_u32 v8, s33, v0",
          "v_mul_u32_u24 v9, 0xccd, v8", "v_lshrrev_b32 v9, 18, v9", "v_mul_u32_u24 v10, 80, v9", "v_sub_u32 v10, v8, v10",
          "s_mov_b32 s33, 81920", "v_mul_u32_u24 v9, s33, v9", "v_lshl_add_u32 v9, v10, 7, v9", "s_mul_i32 s33, s31, 10240",
          "s_waitcnt lgkmcnt(0)", f"s_mov_b32 s22, {X_SZ}", "s_mov_b32 s23, 0x00020000", "v_add_u32 v9, s33, v9",
          "buffer_load_dword v110, v9, s[20:23], 0 offen")
    A("s_branch Lk2_end")
    A("Lp2_main:")
    A("v_cvt_f32_u32 v5, v1", f"v_mul_f32 v5, {fl(1/64)}, v5", "v_add_f32 v6, 0x3e800000, v5",
      "v_and_b32 v14, 1, v0", "v_mov_b32 v15, 0x80008000", "v_mul_lo_u32 v14, v14, v15", "v_xor_b32 v15, 0x80000000, v14")
    for t in range(2):
        for jp in range(4):
            for e in range(2):
                j = 2*jp+e
                A(f"v_add_f32 v{8+e}, {fl(float(16*(j>>2)+(j&3)))}, v7", f"v_mul_f32 v{8+e}, v{8+e}, v{5+t}")
            c0 = 16+t*8+jp; s0 = 48+t*8+jp
            A("v_cos_f32 v10, v8", "v_cos_f32 v11, v9", "v_sin_f32 v12, v8", "v_sin_f32 v13, v9",
              f"v_cvt_pk_bf16_f32 v{c0}, v10, v11", f"v_cvt_pk_bf16_f32 v{s0}, v12, v13")
            for b in (c0, s0):
                A(f"v_xor_b32 v{b+4}, v14, v{b}", f"v_xor_b32 v{b+16}, 0x80000000, v{b}", f"v_xor_b32 v{b+20}, v15, v{b}")
    A("v_lshrrev_b32 v5, 2, v0", "v_lshlrev_b32 v5, 7, v5", "v_and_b32 v7, 3, v0", "v_lshl_add_u32 v5, v7, 4, v5", "v_add_u32 v5, s35, v5",
      "v_lshrrev_b32 v8, 3, v0", "s_mov_b32 s33, 45056", "v_mul_lo_u32 v6, v8, s33", "v_and_b32 v9, 7, v0", "v_lshl_add_u32 v6, v9, 4, v6",
      "s_lshl_b32 s36, s30, 12", "s_lshl_b32 s33, s29, 7", "s_add_u32 s36, s36, s33",
      "v_xor_b32 v10, v8, v9", "v_lshl_add_u32 v3, v8, 7, s35", "v_lshl_add_u32 v3, v10, 4, v3",
      "v_xor_b32 v10, v2, v9", "v_lshl_add_u32 v7, v1, 7, s35", "v_lshl_add_u32 v7, v10, 4, v7")
    A("s_lshl_b32 s33, s30, 4", "v_add_u32 v8, s33, v1", "v_sub_u32 v9, 256, v8",
      "s_cmp_lt_u32 s30, 6", "s_cselect_b64 vcc, -1, 0", "v_cndmask_b32 v8, v9, v8, vcc", "v_subrev_u32 v8, s53, v8",
      "v_lshlrev_b32 v4, 9, v2", "v_lshl_add_u32 v4, v8, 1, v4")
    stamp(A, 1)
    A("s_waitcnt vmcnt(0)", "s_barrier")
    stamp(A, 2)
    A("s_lshl_b32 s33, s51, 2", "s_add_u32 s33, s33, s52", "s_cmp_eq_u32 s33, 11", "s_cbranch_scc1 Lk2_end")
    def treads(tau):
        return [f"ds_read_b64_tr_b16 {vr(TB(tau,ks,pl)+2*jh,2)}, v5 offset:{(32*ks+16*jh)*128+tau*64+pl*8}" for ks in range(2) for pl in range(2) for jh in range(2)]
    def wreads(tau):
        return [f"ds_read_u16_d16_hi v{WV(tau,pl,t,e)}, v4 offset:{WIMG+(pl*2+tau)*8192+(16*t+e)*128}" for t in range(4) for e in range(4) for pl in range(2)]
    M = M16
    def st2(tau):
        L = []
        for t in range(4):
            re = vr(XA(tau,0,t),4); im = vr(XA(tau,1,t),4)
            for ks in range(2):
                tr = vr(TB(tau,ks,0),4); ti = vr(TB(tau,ks,1),4)
                L += [f"{M} {re}, {C(t,ks)}, {tr}, {'0' if ks==0 else re}", f"{M} {im}, {C(t,ks)}, {ti}, {'0' if ks==0 else im}",
                      f"{M} {re}, {S(t,ks)}, {ti}, {re}", f"{M} {im}, {S(t,ks)}, {vr(TB(tau,ks,2),4)}, {im}"]
        return L
    def wmul(tau):
        L = []
        for t in range(4):
            for e in range(4):
                xr = XA(tau,0,t)+e; xi = XA(tau,1,t)+e; wr = WV(tau,0,t,e); wi = WV(tau,1,t,e)
                L += [f"v_mul_f32 v{8+e}, v{xr}, v{wr}", f"v_mul_f32 v{12+e}, v{xr}, v{wi}",
                      f"v_fma_f32 v{8+e}, -v{xi}, v{wi}, v{8+e}", f"v_fmac_f32 v{12+e}, v{xi}, v{wr}"]
            for pl in range(2):
                d = TB(tau, t>>1, pl) + (t&1)*2
                L += [f"v_cvt_pk_bf16_f32 v{d}, v{8+4*pl}, v{9+4*pl}", f"v_cvt_pk_bf16_f32 v{d+1}, v{10+4*pl}, v{11+4*pl}"]
            d = TB(tau, t>>1, 2) + (t&1)*2
            L += [f"v_cvt_pk_bf16_f32 v{d}, -v12, -v13", f"v_cvt_pk_bf16_f32 v{d+1}, -v14, -v15"]
        return L
    def negT(tau):
        return [f"v_xor_b32 v{TB(tau,ks,2)+j}, 0x80008000, v{TB(tau,ks,0)+j}" for ks in range(2) for j in range(4)]
    def st3(tau):
        L = []
        for nt in range(4):
            re = vr(XA(tau,0,nt),4); im = vr(XA(tau,1,nt),4)
            for ks in range(2):
                xr = vr(TB(tau,ks,0),4); xi = vr(TB(tau,ks,1),4)
                L += [f"{M} {re}, {xr}, {C(nt,ks)}, {'0' if ks==0 else re}", f"{M} {im}, {xi}, {C(nt,ks)}, {'0' if ks==0 else im}",
                      f"{M} {re}, {vr(TB(tau,ks,2),4)}, {S(nt,ks)}, {re}", f"{M} {im}, {xr}, {S(nt,ks)}, {im}"]
        return L
    def outp(tau):
        L = []
        for nt in range(4):
            pk = PK + 4*nt + 16*tau; re = XA(tau,0,nt); im = XA(tau,1,nt)
            L += [f"v_cvt_pk_bf16_f32 v{pk}, v{re}, v{re+1}", f"v_cvt_pk_bf16_f32 v{pk+1}, v{re+2}, v{re+3}",
                  f"v_cvt_pk_bf16_f32 v{pk+2}, v{im}, v{im+1}", f"v_cvt_pk_bf16_f32 v{pk+3}, v{im+2}, v{im+3}",
                  f"ds_write_b128 v7, {vr(pk,4)} offset:{nt*2048}"]
        return L
    A(*treads(0)); A(*treads(1))
    A("s_waitcnt lgkmcnt(8)")
    A(*negT(0))
    A(*st2(0)[:8])
    A("s_waitcnt lgkmcnt(0)")
    A(*spread(st2(0)[8:], negT(1) + wreads(0)))
    A("s_waitcnt lgkmcnt(0)")
    A(*spread(st2(1), interleave(wmul(0), wreads(1), 2)))
    A("s_waitcnt lgkmcnt(0)")
    stamp(A, 3)
    A(*spread(st3(0), wmul(1)))
    S3 = st3(1); O1 = outp(1)
    A(*spread(S3[:16], outp(0) + ["v_xor_b32 v7, 64, v7"]))
    rb = lambda nt: [f"ds_read_b128 {vr(112+8*nt+4*q,4)}, v3 offset:{nt*2048+q*1024}" for q in range(2)]
    stq = lambda nt: [x for q in range(2) for x in (f"s_add_u32 s37, s36, {(16*nt+8*q)*45056}", f"buffer_store_dwordx4 {vr(112+8*nt+4*q,4)}, v6, s[24:27], s37 offen {OPT['sc_u']}")]
    A(*spread(S3[16:24], O1[0:5] + rb(0)))
    A(*spread(S3[24:32], O1[5:10] + rb(1)))
    A(*O1[10:15]); A(*rb(2))
    A("s_waitcnt lgkmcnt(6)"); A(*stq(0))
    A(*O1[15:20]); A(*rb(3))
    A("s_waitcnt lgkmcnt(6)"); A(*stq(1))
    A("s_waitcnt lgkmcnt(3)"); A(*stq(2))
    A("s_waitcnt lgkmcnt(0)"); A(*stq(3))

def k3(A):
    A("k3_kernel:")
    A("s_cmp_ge_u32 s2, 256", "s_cbranch_scc1 Lk3_end_x")
    kstart(A)
    A("s_load_dwordx2 s[4:5], s[0:1], 0", "s_load_dwordx2 s[6:7], s[0:1], 64", "s_load_dwordx2 s[40:41], s[0:1], 80")
    A("v_lshrrev_b32 v1, 6, v0", "v_and_b32 v0, 63, v0", "v_readfirstlane_b32 s28, v1")
    A("s_and_b32 s31, s2, 7", "s_lshr_b32 s32, s2, 3")
    A("s_lshl_b32 s29, s31, 3", "s_lshr_b32 s33, s32, 2", "s_add_u32 s29, s29, s33", "s_and_b32 s30, s32, 1")
    A("v_lshlrev_b32 v3, 4, v0", "v_and_b32 v1, 15, v0", "v_lshrrev_b32 v2, 4, v0")
    A("s_lshl_b32 s33, s30, 10", "s_add_u32 s33, s33, s29", "v_lshl_add_u32 v5, v1, 6, s33")
    ZIMG = 49152
    M = M16
    A("s_cmp_ge_u32 s28, 6", "s_cbranch_scc1 Lk3_back")
    A("s_setprio 1")
    GC, GS, GN = 16, 20, 24
    TWc = lambda r: 28 + (r-1)*8
    TWs = lambda r: 32 + (r-1)*8
    UA = lambda ty, tau, pl: 52 + ((ty*2+tau)*2+pl)*4
    VA = lambda ty, tau, pl: 84 + ((ty*2+tau)*2+pl)*4
    TT = 116
    A("s_mul_i32 s33, s29, 45056", "s_lshl_b32 s34, s28, 12", "s_add_u32 s33, s33, s34", f"s_add_u32 s34, s33, {6*4096}",
      "s_lshl_b32 s35, s28, 13", "s_mov_b32 m0, s35",
      "s_cmp_eq_u32 s28, 5", "s_cselect_b32 s36, 0x80000000, 0", "v_or_b32 v4, s36, v3")
    A("s_waitcnt lgkmcnt(0)")
    srd(A, 12, 40, U_SZ, U_OFF)
    for i in range(4): A(f"buffer_load_dwordx4 v3, s[12:15], s33 offen offset:{1024*i} lds")
    A("s_add_u32 m0, s35, 4096", "s_nop 0")
    for i in range(4): A(f"buffer_load_dwordx4 v4, s[12:15], s34 offen offset:{1024*i} lds")
    SC = 2/(640*2048)
    A("v_cvt_f32_u32 v5, v5", f"v_mul_f32 v5, {fl(1/2048)}, v5", "v_cvt_f32_u32 v7, v2", "v_mul_f32 v7, 4.0, v7", f"s_mov_b32 s37, {fl(SC)}", "v_mul_f32 v6, v7, v5")
    for jp in range(4):
        for e in range(2):
            j = 2*jp+e
            A(f"v_fmamk_f32 v{8+e}, v5, {fl(float(16*(j>>2)+(j&3)))}, v6")
        A("v_cos_f32 v10, v8", "v_cos_f32 v11, v9", "v_sin_f32 v12, v8", "v_sin_f32 v13, v9")
        A(f"v_cvt_pk_bf16_f32 v{GC+jp}, v10, v11", f"v_cvt_pk_bf16_f32 v{GS+jp}, v12, v13", f"v_cvt_pk_bf16_f32 v{GN+jp}, -v12, -v13")
    A("v_lshrrev_b32 v5, 2, v0", "v_lshlrev_b32 v5, 7, v5", "v_and_b32 v8, 3, v0", "v_lshl_add_u32 v5, v8, 4, v5", "v_add_u32 v5, s35, v5")
    A("s_lshl_b32 s33, s28, 4", "v_cvt_f32_u32 v8, s33", "v_add_f32 v8, v8, v7")
    for e in range(4):
        A(f"v_add_f32 v9, {fl(float(e))}, v8")
        for r in (1,2,3):
            A(f"v_mul_f32 v10, {fl(r/640)}, v9", f"v_cos_f32 v{TWc(r)+e}, v10", f"v_sin_f32 v{TWs(r)+e}, v10")
    A("s_lshl_b32 s33, s28, 12", f"s_add_u32 s33, s33, {ZIMG}", "v_add_u32 v6, s33, v3")
    stamp(A, 1)
    A("s_waitcnt vmcnt(0)")
    stamp(A, 2)
    order = [(0,0),(1,1),(0,1),(1,0)]
    for ty, tau in order:
        for pl in range(2):
            for jh in range(2):
                A(f"ds_read_b64_tr_b16 {vr(UA(ty,tau,pl)+2*jh,2)}, v5 offset:{ty*4096+jh*2048+tau*64+pl*8}")
    for n, (ty, tau) in enumerate(order):
        re = vr(VA(ty,tau,0),4); im = vr(VA(ty,tau,1),4); ur = vr(UA(ty,tau,0),4); ui = vr(UA(ty,tau,1),4)
        A(f"s_waitcnt lgkmcnt({12-4*n})")
        A(f"{M} {re}, {ur}, {vr(GC,4)}, 0", f"{M} {im}, {ui}, {vr(GC,4)}, 0", f"{M} {re}, {ui}, {vr(GN,4)}, {re}", f"{M} {im}, {ur}, {vr(GS,4)}, {im}")
    def pk(op, d, a, b, c=None, nb=False, na=False):
        s = f"v_pk_{op}_f32 {vr(d,2)}, {vr(a,2)}, {vr(b,2)}" + (f", {vr(c,2)}" if c is not None else "")
        n = [int(na), int(nb)] + ([0] if c is not None else [])
        if na or nb: s += f" neg_lo:[{','.join(map(str,n))}] neg_hi:[{','.join(map(str,n))}]"
        return s
    Ar,Ai,Br,Bi,Dr,Di,Cr,Ci = [VA(ty,tau,pl) for ty in range(2) for tau in range(2) for pl in range(2)]
    pr,pi,qr,qi,ur,ui,wr,wi = [TT+4*i for i in range(8)]
    Z = lambda r, pl: 52 + (r*2+pl)*4
    for e in (0,2):
        A(pk('add',pr+e,Ar+e,Cr+e), pk('add',pi+e,Ai+e,Ci+e,nb=True), pk('add',qr+e,Ar+e,Cr+e,nb=True), pk('add',qi+e,Ai+e,Ci+e))
    for e in (0,2):
        A(pk('add',ur+e,Br+e,Dr+e), pk('add',ui+e,Bi+e,Di+e,nb=True), pk('add',wr+e,Br+e,Dr+e,nb=True), pk('add',wi+e,Bi+e,Di+e))
    b = lambda r, pl: 84 + (r*2+pl)*4
    for e in (0,2):
        A(pk('add',Z(0,0)+e,pr+e,ur+e), pk('add',Z(0,1)+e,pi+e,ui+e), pk('add',b(2,0)+e,pr+e,ur+e,nb=True), pk('add',b(2,1)+e,pi+e,ui+e,nb=True),
          pk('add',b(1,0)+e,qr+e,wi+e,nb=True), pk('add',b(1,1)+e,qi+e,wr+e), pk('add',b(3,0)+e,qr+e,wi+e), pk('add',b(3,1)+e,qi+e,wr+e,nb=True))
    for r in range(4):
        if r:
            for e in (0,2):
                A(pk('mul',Z(r,0)+e,b(r,0)+e,TWc(r)+e), pk('mul',Z(r,1)+e,b(r,0)+e,TWs(r)+e))
            for e in (0,2):
                A(pk('fma',Z(r,0)+e,b(r,1)+e,TWs(r)+e,Z(r,0)+e,na=True), pk('fma',Z(r,1)+e,b(r,1)+e,TWc(r)+e,Z(r,1)+e))
        o = TT + 4*r
        for j in range(4): A(f"v_cvt_pk_bf16_f32 v{o+j}, v{Z(r,0)+2*j}, v{Z(r,0)+2*j+1}")
        A(f"ds_write_b128 v6, {vr(o,4)} offset:{r*1024}")
    A("s_waitcnt lgkmcnt(0)")
    stamp(A, 3)
    A("s_barrier", "s_branch Lk3_end")
    A("Lk3_back:")
    HF = lambda bb: 16 + 4*bb
    XR, P0, P1 = 40, 48, 56
    GU = 64
    XU = 80
    ZF = lambda bb, r: 96 + ((bb % 3)*4+r)*4
    AC = lambda r: 144 + 4*r
    A("s_bfe_u32 s33, s32, 0x10001", "s_mul_i32 s33, s33, 5", "s_add_u32 s42, s33, s28", "s_sub_u32 s42, s42, 6")
    A("s_lshl_b32 s33, s30, 10", "s_add_u32 s33, s33, s29", "v_lshl_add_u32 v6, v2, 8, s33", "v_mul_u32_u24 v6, 1280, v6", "v_lshl_add_u32 v6, v1, 3, v6",
      "s_lshl_b32 s44, s42, 7", "s_add_u32 s45, s44, 81920", "s_add_u32 s46, s45, 81920", "s_add_u32 s47, s46, 81920", "v_lshlrev_b32 v5, 5, v0")
    A("s_mul_i32 s48, s29, 10", "s_add_u32 s48, s48, s42", "s_lshl_b32 s48, s48, 12", "s_lshl_b32 s34, s30, 11", "s_add_u32 s48, s48, s34",
      f"s_add_u32 s49, s48, {P_SZ//2}", "v_cvt_f32_u32 v7, v2", "v_mul_f32 v7, 4.0, v7")
    Hl = Asm(); hgen(Hl, HF, 42)
    n0 = OPT.get('k3d', 30)
    A(*Hl.lines[:n0])
    A("s_waitcnt lgkmcnt(0)")
    srd(A, 20, 40, P_SZ, P_OFF); srd(A, 16, 4, X_SZ); srd(A, 24, 6, X_SZ)
    for half in range(2):
        A(f"buffer_load_dwordx4 {vr(P0+4*half,4)}, v5, s[20:23], s48 offen offset:{16*half}",
          f"buffer_load_dwordx4 {vr(P1+4*half,4)}, v5, s[20:23], s49 offen offset:{16*half}")
    for e in range(4):
        A(f"buffer_load_dwordx2 {vr(XR+2*e,2)}, v6, s[16:19], s{44+e} offen")
    A(*Hl.lines[n0:])
    SC = 2/(640*2048)
    A(f"s_mov_b32 s36, {fl(-1.4426950408889634)}", f"s_mov_b32 s38, {fl(1/SC)}", f"v_add_u32 v4, {ZIMG}, v3")
    stamp(A, 1)
    for half in range(2):
        A(f"s_waitcnt vmcnt({6-2*half})")
        g = GU + 8*half; t = 96
        for q in range(4):
            A(f"v_lshlrev_b32 v{g+2*q}, 16, v{P0+4*half+q}", f"v_and_b32 v{g+2*q+1}, 0xffff0000, v{P0+4*half+q}",
              f"v_lshlrev_b32 v{t+2*q}, 16, v{P1+4*half+q}", f"v_and_b32 v{t+2*q+1}, 0xffff0000, v{P1+4*half+q}")
        for i in range(8): A(f"v_add_f32 v{g+i}, v{g+i}, v{t+i}")
        for i in range(8): A(f"v_mul_f32 v{t+i}, s36, v{g+i}")
        for i in range(8): A(f"v_exp_f32 v{t+i}, v{t+i}")
        for i in range(8): A(f"v_fma_f32 v{t+i}, v{t+i}, s38, s38")
        for i in range(8): A(f"v_rcp_f32 v{t+i}, v{t+i}")
        for i in range(8): A(f"v_mul_f32 v{g+i}, v{g+i}, v{t+i}")
    stamp(A, 2)
    A("s_barrier")
    stamp(A, 3)
    def zr(bb): return [f"ds_read_b128 {vr(ZF(bb,r),4)}, v4 offset:{(bb*4+r)*1024}" for r in range(4)]
    for bb in range(3): A(*zr(bb))
    A("s_waitcnt vmcnt(0)")
    for q in range(8):
        A(f"v_lshlrev_b32 v{XU+2*q}, 16, v{XR+q}", f"v_and_b32 v{XU+2*q+1}, 0xffff0000, v{XR+q}")
    for bb in range(6):
        A(f"s_waitcnt lgkmcnt({min(8,4*(5-bb))})")
        for r in range(4):
            A(f"{M} {vr(AC(r),4)}, {vr(ZF(bb,r),4)}, {vr(HF(bb),4)}, {'0' if bb==0 else vr(AC(r),4)}")
        if bb < 3: A(*zr(bb+3))
    for e in range(4):
        for r in range(4):
            A(f"v_fmac_f32 v{XU+4*e+r}, v{AC(r)+e}, v{GU+4*r+e}")
        for q in (2*e, 2*e+1):
            A(f"v_cvt_pk_bf16_f32 v{XR+q}, v{XU+2*q}, v{XU+2*q+1}")
        A(f"buffer_store_dwordx2 {vr(XR+2*e,2)}, v6, s[24:27], s{44+e} offen {OPT['sc_o']}")
    kend(A, 2, "Lk3_end")

def kd(name, vgpr, sgpr=100, accum=None):
    accum = accum or min(256, (vgpr+3)//4*4)
    return f""".amdhsa_kernel {name}
  .amdhsa_next_free_vgpr {vgpr}
  .amdhsa_next_free_sgpr {sgpr}
  .amdhsa_accum_offset {accum}
  .amdhsa_group_segment_fixed_size 0
  .amdhsa_kernarg_size 88
  .amdhsa_user_sgpr_count 2
  .amdhsa_user_sgpr_kernarg_segment_ptr 1
  .amdhsa_system_sgpr_workgroup_id_x 1
.end_amdhsa_kernel
"""

def build(kernels):
    hdr = open(f"cdna_kernels/{NAME}.s.ref").read().split("; Override")[0]
    out = hdr
    for (name, fn, grid, block, lds, vg) in kernels:
        out += f"; @launch kernel={name} grid=({grid},1,1) block=({block},1,1) lds={lds}\n"
    out += '.amdgcn_target "amdgcn-amd-amdhsa--gfx950"\n.text\n'
    seen = []
    for (name, fn, grid, block, lds, vg) in kernels:
        if name in seen: continue
        seen.append(name)
        A = Asm(); fn(A)
        out += f".globl {name}\n.p2align 8\n.type {name},@function\n" + A.text()
    out += '.section .rodata,"a"\n'
    seen = []
    for (name, fn, grid, block, lds, vg) in kernels:
        if name in seen: continue
        seen.append(name)
        out += ".p2align 6\n" + kd(name, vg)
    return out

KS = [("k1_kernel", k1, 256, 512, 133120, 256), ("k2_kernel", k2, 256, 512, 131072, 256), ("k3_kernel", k3, 256, 704, 98304, 160)]

if __name__ == '__main__':
    DIAG = len(sys.argv) > 2 and sys.argv[2] == 'diag'
    for kv in sys.argv[3:]:
        k, v = kv.split('='); OPT[k] = eval(v)
    open(sys.argv[1] if len(sys.argv) > 1 else 'cur.s', 'w').write(build(KS))
```

```python
import sys, math
from asmlib import *

NAME = "recurrent_scan__spectral_gfnet__dense_activation_gelu__prompt"
H_OFF, H_SZ = 0, 2048*1728*2
T_OFF, T_SZ = 0x700000, 32*11*64*128
U_OFF, U_SZ = 0xA00000, 32*11*64*128
P_OFF, P_SZ = 0xD00000, 2*2048*640*2
FL_OFF, FL_SZ = 0x1200000, 33*8192
X_SZ = 2048*640*2
W1_SZ = 640*1728*2
WF_SZ = 2048*321*2
OPT = dict(rot1='xcd', rot2=False, pf=False, mpf=False, lpf=True, ppf=False, nw=2, mpf1=False, sc_h='sc1', sc_t='sc1', sc_u='sc1', sc_p='sc1', sc_o='', map1='4x7', D=2, cpf=True, hpf=False, pfst=None)

def vr(b, n): return f"v[{b}:{b+n-1}]"
def srd(A, d, base, size, off=0):
    if off:
        A(f"s_add_u32 s{d}, s{base}, 0x{off:x}", f"s_addc_u32 s{d+1}, s{base+1}, 0")
    else:
        A(f"s_mov_b32 s{d}, s{base}", f"s_mov_b32 s{d+1}, s{base+1}")
    A(f"s_mov_b32 s{d+2}, {size}", f"s_mov_b32 s{d+3}, 0x00020000")

DIAG = False
DIAG_OFF = 0x2000000
def stamp(A, k):
    if DIAG:
        A(f"s_memrealtime s[{60+2*k}:{61+2*k}]", "s_waitcnt lgkmcnt(0)")
def kstart(A):
    if DIAG:
        for k in range(60, 92): A(f"s_mov_b32 s{k}, 0")
        A("s_memrealtime s[60:61]", "s_memtime s[88:89]", "s_load_dwordx2 s[92:93], s[0:1], 80", "s_waitcnt lgkmcnt(0)")
def kend(A, kid, lab):
    A(f"{lab}:")
    if DIAG:
        A("s_memrealtime s[84:85]", "s_waitcnt vmcnt(0) lgkmcnt(0)", "s_memrealtime s[86:87]", "s_memtime s[90:91]", "s_waitcnt lgkmcnt(0)")
        A(f"s_add_u32 s92, s92, 0x{DIAG_OFF:x}", "s_addc_u32 s93, s93, 0", "s_mov_b32 s94, 0x1000000", "s_mov_b32 s95, 0x00020000")
        A(f"s_add_u32 s96, s2, {kid*256}", "s_lshl_b32 s96, s96, 4", "s_add_u32 s96, s96, s28", "s_lshl_b32 s96, s96, 6", "s_mov_b64 exec, -1", "v_mov_b32 v1, 0")
        for q in range(4):
            for j in range(4): A(f"v_mov_b32 v{4+j}, s{60+2*(4*q+j)}")
            A(f"buffer_store_dwordx4 v[4:7], v1, s[92:95], s96 offen offset:{16*q}", "s_nop 1")
    A("s_endpgm")
    A(f"{lab}_x:", "s_endpgm")

GA = -2*0.7978845608028654*1.4426950408889634
GB = GA*0.044715
ONES = "0x3f803f80"
M32 = "v_mfma_f32_32x32x16_bf16"
M16 = "v_mfma_f32_16x16x32_bf16"

def row_stats(A, sx, sxx, t0, t1, mean, sq):
    A(f"v_mul_f32 v{mean}, {fl(1/640)}, v{sx}",
      f"v_mul_f32 v{t0}, {fl(1/640)}, v{sxx}",
      f"v_fma_f32 v{t0}, -v{mean}, v{mean}, v{t0}",
      f"v_max_f32 v{t0}, 0, v{t0}",
      f"v_cvt_pk_bf16_f32 v{t0}, v{t0}, v{t0}",
      f"v_lshlrev_b32 v{t0}, 16, v{t0}",
      f"v_add_f32 v{t0}, {fl(1e-5)}, v{t0}",
      f"v_cvt_pk_bf16_f32 v{t0}, v{t0}, v{t0}",
      f"v_lshlrev_b32 v{t0}, 16, v{t0}",
      f"v_sqrt_f32 v{sq}, v{t0}")

RING = 4
def set_flag(nv, va, soff, off=0):
    return ["s_mov_b64 exec, 0xffff", f"buffer_store_dwordx2 {vr(nv,2)}, v{va}, s[52:55], {soff} offen offset:{off} sc1", "s_mov_b64 exec, -1"]
SPIN_MAX = 0x20000
_pl = [0]
def sync_srds(A):
    srd(A, 52, 6, FL_SZ, FL_OFF); srd(A, 56, 50, 256)
def chk_cleared(A, v, vz):
    _pl[0] += 1; n = _pl[0]
    A(f"s_mov_b32 s3, 0", f"Lcc{n}:", f"v_readfirstlane_b32 s49, v{v}", "s_add_u32 s3, s3, 1", "s_cmp_lg_u32 s49, 0", f"s_cbranch_scc1 Lcd{n}",
      f"s_cmp_ge_u32 s3, {SPIN_MAX}", f"s_cbranch_scc1 Lcd{n}",
      f"buffer_load_dwordx2 {vr(v,2)}, v{vz}, s[56:59], 0 offen sc1", "s_waitcnt vmcnt(0)", f"s_branch Lcc{n}", f"Lcd{n}:")
_cpf_n = [0]
def cpf(A, target, sel, v=(14,15,13), s=(56,58)):
    _cpf_n[0] += 1; lab = f"Lcpf{_cpf_n[0]}"
    a, t = s
    A(f"s_getpc_b64 s[{a}:{a+1}]", f"{lab}:", f"s_add_u32 s{a}, s{a}, {target}-{lab}", f"s_addc_u32 s{a+1}, s{a+1}, ({target}-{lab})>>32")
    A(f"v_lshlrev_b32 v{v[0]}, 7, v0")
    if sel: A(f"s_lshl_b32 s{t}, {sel}, 13", f"v_add_u32 v{v[0]}, s{t}, v{v[0]}")
    A(f"v_mov_b32 v{v[1]}, s{a+1}", f"v_add_co_u32 v{v[0]}, vcc, s{a}, v{v[0]}", f"v_addc_co_u32 v{v[1]}, vcc, 0, v{v[1]}, vcc",
      f"global_load_dword v{v[2]}, v[{v[0]}:{v[1]}], off")
ACC = lambda mt, nt: 16 + (mt*2+nt)*16
FB = lambda p, kk, w: 80 + p*64 + kk*16 + w*4

def loader_loop(A, NST, issue, extra=None, D=None):
    D = D or OPT['D']
    ops = []
    for st in range(2): ops += [st]*(issue(st) or 8)
    nxt = 2
    for st in range(NST):
        last = max(i for i, x in enumerate(ops) if x == st)
        A(f"s_waitcnt vmcnt({len(ops)-1-last})", "s_barrier")
        while nxt < NST and nxt <= (st+D if st >= 1 else 2):
            ops += [nxt]*(issue(nxt) or 8); nxt += 1
            if extra and nxt == OPT.get('lpfs', NST): ops += ['x']*extra()

def compute_loop(A, NST, reads, mfmas, tail, stampf=None, gap=None):
    A("s_barrier")
    A(*reads(0))
    A("s_waitcnt lgkmcnt(0)")
    if stampf: stampf(0)
    A("s_barrier")
    for st in range(1, NST):
        M = mfmas(st-1)
        G = gap(st-1) if gap else []
        n1 = len(G) - 30 if G else 0
        A(*spread(M[:10], spread(reads(st), G[:n1])))
        A(*spread(M[10:13], G[n1:n1+15]))
        A("s_waitcnt lgkmcnt(0)")
        if stampf: stampf(st)
        if st < NST-1: A("s_barrier")
        A(*spread(M[13:], G[n1+15:]))
        A(*tail(st-1))

def k1(A):
    A("k1_kernel:")
    A("s_cmp_ge_u32 s2, 256", "s_cbranch_scc1 Lk1_end_x")
    kstart(A)
    A("s_load_dwordx2 s[4:5], s[0:1], 0", "s_load_dwordx4 s[8:11], s[0:1], 32", "s_load_dwordx2 s[6:7], s[0:1], 80", "s_load_dwordx2 s[50:51], s[0:1], 72")
    A("v_lshrrev_b32 v1, 6, v0", "v_and_b32 v0, 63, v0", "v_readfirstlane_b32 s28, v1")
    A("s_and_b32 s31, s2, 7", "s_lshr_b32 s32, s2, 3")
    if OPT['cpf']:
        A("s_lshl_b32 s33, s32, 3", "s_add_u32 s33, s33, s28", "s_cmp_ge_u32 s33, 4", "s_cbranch_scc1 Lk1_nc")
        cpf(A, "k1_kernel", "s28", v=(14,15,253))
        A("Lk1_nc:")
    A("s_cmp_ge_u32 s32, 28", "s_cbranch_scc1 Lp1")
    A("s_lshr_b32 s29, s31, 1", "s_lshl_b32 s29, s29, 2", "s_and_b32 s33, s32, 3", "s_add_u32 s29, s29, s33")
    A("s_and_b32 s30, s31, 1", "s_mul_i32 s30, s30, 7", "s_lshr_b32 s33, s32, 2", "s_add_u32 s30, s30, s33")
    A("s_cmp_lt_u32 s28, 4", "s_cbranch_scc1 Lg1c")
    g1_loader(A)
    g2_loader(A)
    A("Lg1c:")
    g1_compute(A)
    g2_compute(A)
    A("Lp1:")
    p1(A)
    A("Lp2:")
    p2(A)
    kend(A, 0, "Lk1_end")

def g1_loader(A):
    NST = 10
    A("s_sub_u32 s33, s28, 4")
    A("v_lshrrev_b32 v1, 3, v0", "v_and_b32 v2, 7, v0", "v_lshrrev_b32 v3, 4, v0",
      "s_lshl_b32 s34, s29, 2", "s_add_u32 s34, s34, s33",
      "v_lshl_add_u32 v1, v1, 6, s34", "v_mul_u32_u24 v1, 1280, v1",
      "v_xor_b32 v8, v2, v3", "v_xor_b32 v9, 4, v8",
      "v_lshl_add_u32 v4, v8, 4, v1", "v_lshl_add_u32 v5, v9, 4, v1",
      f"v_add_u32 v5, {8*64*1280}, v5", f"v_add_u32 v6, {16*64*1280}, v4", f"v_add_u32 v7, {16*64*1280}, v5")
    A("v_and_b32 v2, 15, v0", "v_lshlrev_b32 v8, 2, v3", "v_xor_b32 v2, v2, v8",
      "s_lshl_b32 s34, s33, 4", "v_add_u32 v8, s34, v3", "v_mul_u32_u24 v8, 3456, v8",
      "s_lshl_b32 s34, s30, 8", "v_lshl_add_u32 v10, v2, 4, v8", "v_add_u32 v10, s34, v10")
    A("s_cmp_eq_u32 s30, 13", "s_cselect_b32 s34, 8, 16",
      "v_cmp_le_u32 vcc, s34, v2", "v_mov_b32 v8, 0x80000000", "s_nop 0", "v_cndmask_b32 v10, v10, v8, vcc")
    A("s_lshl_b32 s40, s33, 12")
    if OPT['rot1']:
        if OPT['rot1'] == 'xcd':
            A("s_lshr_b32 s43, s31, 1", "s_mul_i32 s43, s43, 5", "s_lshr_b32 s43, s43, 1", "s_and_b32 s34, s31, 1", "s_mul_i32 s34, s34, 5", "s_add_u32 s43, s43, s34")
        elif OPT['map1'] == '2x14':
            A("s_mul_i32 s43, s30, 47", "s_lshr_b32 s43, s43, 6", "s_and_b32 s34, s29, 1", "s_mul_i32 s34, s34, 5", "s_add_u32 s43, s43, s34")
        else:
            A("s_lshr_b32 s43, s32, 2", "s_mul_i32 s43, s43, 92", "s_and_b32 s34, s32, 3", "s_mul_i32 s34, s34, 160", "s_add_u32 s43, s43, s34", "s_lshr_b32 s43, s43, 6")
        A("s_cmp_ge_u32 s43, 10", "s_cselect_b32 s34, 10, 0", "s_sub_u32 s43, s43, s34")
    else:
        A("s_mov_b32 s43, 0")
    A("s_waitcnt lgkmcnt(0)")
    srd(A, 12, 4, X_SZ); srd(A, 16, 8, W1_SZ)
    def issue(st):
        slot = (st % RING) * 32768
        A("s_lshl_b32 s41, s43, 7", f"s_mul_i32 s42, s43, {64*3456}")
        for q in range(4):
            A(f"s_add_u32 m0, s40, {slot + q*1024}", "s_nop 0", f"buffer_load_dwordx4 v{4+q}, s[12:15], s41 offen lds")
            A(f"s_add_u32 m0, s40, {slot + 16384 + q*1024}", "s_nop 0", f"buffer_load_dwordx4 v10, s[16:19], s42 offen lds")
            if q < 3: A(f"s_add_u32 s42, s42, {4*3456}")
        A("s_add_u32 s43, s43, 1", "s_cmp_eq_u32 s43, 10", "s_cselect_b32 s43, 0, s43")
    def extra():
        A("s_load_dwordx4 s[44:47], s[0:1], 8", "s_load_dwordx2 s[48:49], s[0:1], 48",
          "s_lshl_b32 s34, s2, 1", "s_add_u32 s34, s34, s33", "s_cmp_lt_u32 s33, 2", "s_cselect_b32 s34, s34, s2", "s_lshl_b32 s34, s34, 13",
          "v_lshl_add_u32 v11, v0, 7, s34", "s_waitcnt lgkmcnt(0)",
          "s_cmp_eq_u32 s33, 2", "s_cselect_b32 s20, s44, s46", "s_cselect_b32 s21, s45, s47",
          "s_cmp_lt_u32 s33, 2", "s_cselect_b32 s20, s48, s20", "s_cselect_b32 s21, s49, s21", f"s_mov_b32 s22, {W1_SZ}", f"s_cselect_b32 s22, s22, {WF_SZ}",
          "s_mov_b32 s23, 0x00020000", "v_mov_b32 v12, 0")
        sync_srds(A)
        A("buffer_load_dwordx2 v[18:19], v12, s[56:59], 0 offen sc1")
        if OPT['lpf']: A("buffer_load_dword v16, v11, s[20:23], 0 offen")
        return 2 if OPT['lpf'] else 1
    loader_loop(A, NST, issue, extra, OPT.get('D1'))
    A("s_barrier")
    A("s_cmp_ge_u32 s32, 20", "s_cbranch_scc1 Lp2")

def g1_compute(A):
    NST = 10
    XA = lambda kk, nt: 208 + kk*2 + nt
    WA = lambda mt: 216 + mt
    SX, SXX, CS, B1 = 218, 219, 220, 221
    A("s_and_b32 s33, s28, 1", "s_lshr_b32 s34, s28, 1")
    A("v_and_b32 v1, 31, v0", "v_lshrrev_b32 v2, 5, v0")
    A("s_lshl_b32 s35, s30, 7", "s_lshl_b32 s40, s33, 6", "s_add_u32 s35, s35, s40", "s_lshl_b32 s40, s34, 5", "s_add_u32 s35, s35, s40",
      "v_add_lshl_u32 v9, v1, s35, 1", f"v_mov_b32 v{B1}, 0")
    A("s_lshl_b32 s35, s34, 13", "s_lshl_b32 s40, s33, 12", "s_add_u32 s35, s35, s40",
      "v_lshl_add_u32 v3, v1, 7, s35", "v_bfe_u32 v4, v0, 1, 3", "v_xor_b32 v4, v4, v2")
    for kk in range(4):
        A(f"v_xor_b32 v5, {2*kk}, v4", f"v_lshl_add_u32 v{XA(kk,0)}, v5, 4, v3", f"v_xor_b32 v{XA(kk,1)}, 0x1000, v{XA(kk,0)}")
    A("v_bfe_u32 v4, v0, 2, 2", "v_lshl_add_u32 v5, v2, 3, v4", "v_lshlrev_b32 v5, 8, v5",
      "v_bfe_u32 v6, v0, 4, 1", "v_lshl_add_u32 v5, v6, 5, v5", "v_and_b32 v6, 3, v0", "v_lshl_add_u32 v5, v6, 3, v5",
      "s_lshl_b32 s35, s33, 1", "s_add_u32 s35, s35, s34",
      "v_xor_b32 v6, s35, v4", f"v_lshl_add_u32 v{WA(0)}, v6, 6, v5", f"v_xor_b32 v{WA(1)}, 64, v{WA(0)}")
    A(f"v_mov_b32 v{SX}, 0", f"v_mov_b32 v{SXX}, 0", f"v_mov_b32 v{CS}, 0", f"s_mov_b32 s41, {ONES}")
    A("s_waitcnt lgkmcnt(0)")
    srd(A, 20, 10, 1728*2); srd(A, 24, 6, H_SZ, H_OFF)
    A(f"buffer_load_short_d16_hi v{B1}, v9, s[20:23], 0 offen")
    A("s_lshl_b32 s35, s30, 1", "s_add_u32 s35, s35, s33")
    for mt in range(2):
        for nt in range(2):
            s = 44 + mt*2 + nt
            A("s_lshl_b32 s40, s29, 2", "s_lshl_b32 s42, s34, 1", "s_add_u32 s40, s40, s42", f"s_xor_b32 s42, s33, {nt}", "s_add_u32 s40, s40, s42",
              "s_mulk_i32 s40, 108", "s_lshl_b32 s42, s35, 2", "s_add_u32 s40, s40, s42", f"s_xor_b32 s42, s34, {mt}",
              "s_add_u32 s40, s40, s42", f"s_lshl_b32 s{s}, s40, 10")
    XCH = 131072
    A("s_lshl_b32 s42, s34, 9", "s_lshl_b32 s40, s33, 8", "s_add_u32 s42, s42, s40", f"s_add_u32 s42, s42, {XCH}", "v_lshl_add_u32 v7, v1, 3, s42",
      "s_lshl_b32 s42, s33, 9", "s_lshl_b32 s40, s34, 8", "s_add_u32 s42, s42, s40", f"s_add_u32 s42, s42, {XCH}", "v_lshl_add_u32 v8, v1, 3, s42",
      "v_lshlrev_b32 v9, 4, v0")
    XF0, WF0, XF1, WF1 = 224, 228, 232, 236
    for r in (XF0, WF0, XF1, WF1):
        A(f"v_mov_b32 v{r+2}, 0", f"v_mov_b32 v{r+3}, 0")
    sync_srds(A)
    A("s_lshl_b32 s48, s29, 1", "s_add_u32 s48, s48, s34", "s_lshl_b32 s48, s48, 13", "s_lshl_b32 s40, s35, 8", "s_add_u32 s48, s48, s40", "v_mov_b32 v10, 0", "v_lshlrev_b32 v11, 3, v0")
    if OPT.get('tlb'):
        srd(A, 36, 6, 0x1400000)
        A("v_lshlrev_b32 v12, 21, v0", "v_add_u32 v12, 0x1fff80, v12", "s_cmp_lg_u32 s28, 1", "s_cbranch_scc1 Lg1_ntl", "buffer_load_dword v253, v12, s[36:39], 0 offen", "Lg1_ntl:")
    A("s_lshl_b32 s40, s2, 3", "s_add_u32 s40, s40, s28", "s_cmp_lg_u32 s40, 1737", "s_cbranch_scc1 Lg1_ncl")
    A("s_memrealtime s[36:37]", "s_waitcnt lgkmcnt(0)", "s_or_b32 s38, s36, 1", "v_mov_b32 v12, s38", "v_mov_b32 v13, s37",
      "s_mov_b64 exec, 1", "buffer_store_dwordx2 v[12:13], v10, s[56:59], 0 offen sc1", "s_mov_b64 exec, -1", "Lg1_ncl:")
    A("s_waitcnt vmcnt(0)")
    base = [0]
    def reads(st):
        p = st & 1; slot = (st % RING) * 32768
        L = []
        nb = slot & ~0xffff
        if nb != base[0]:
            for r in range(208, 218): L.append(f"v_xor_b32 v{r}, 0x10000, v{r}")
            base[0] = nb
        so = slot - nb
        for kk in range(4):
            for mt in range(2):
                for jh in range(2):
                    L.append(f"ds_read_b64_tr_b16 {vr(FB(p,kk,2+mt)+2*jh,2)}, v{WA(mt)} offset:{so+16384+(16*kk+4*jh)*256}")
            for nt in range(2):
                L.append(f"ds_read_b128 {vr(FB(p,kk,nt),4)}, v{XA(kk,nt)} offset:{so}")
        return L
    def mfmas(st):
        p = st & 1; L = []
        for kk in range(4):
            for mt in range(2):
                for nt in range(2):
                    c = "0" if (st == 0 and kk == 0) else vr(ACC(mt,nt),16)
                    L.append(f"{M32} {vr(ACC(mt,nt),16)}, {vr(FB(p,kk,2+mt),4)}, {vr(FB(p,kk,nt),4)}, {c}")
        return L
    def dots(st):
        p = st & 1; L = []
        for kk in range(4):
            for j in range(4):
                if not OPT.get('nostat'): L.append(f"v_dot2c_f32_bf16 v{SX}, s41, v{FB(p,kk,0)+j}")
                if (not OPT.get('sqv') or st == NST-1) and not OPT.get('nostat'): L.append(f"v_dot2c_f32_bf16 v{SXX}, v{FB(p,kk,0)+j}, v{FB(p,kk,0)+j}")
                L.append(f"v_dot2c_f32_bf16 v{CS}, s41, v{FB(p,kk,2)+j}")
        if st == 6: L.append("buffer_load_dwordx2 v[254:255], v10, s[56:59], 0 offen sc1")
        return L
    def sqgap(st):
        p = st & 1; L = []
        for kk in range(4):
            for j in range(4):
                r = FB(p,kk,0)+j
                L += [f"v_lshlrev_b32 v3, 16, v{r}", f"v_and_b32 v4, s51, v{r}", "v_fmac_f32 v222, v3, v3", "v_fmac_f32 v223, v4, v4"]
        return L
    pass
    compute_loop(A, NST, reads, mfmas, dots, lambda st: stamp(A, 1) if st == 0 else None)
    A(*dots(NST-1))
    M = mfmas(NST-1)
    F = Asm()
    if OPT.get('sqv'): F(f"v_add_f32 v{SXX}, v{SXX}, v222", f"v_add_f32 v{SXX}, v{SXX}, v223")
    for r in (SX, SXX, CS):
        F(f"v_mov_b32 v3, v{r}", "s_nop 1", f"v_permlane32_swap_b32 v{r}, v3", f"v_add_f32 v{r}, v{r}, v3")
    row_stats(F, SX, SXX, 3, 4, 5, 6)
    F(f"v_cvt_pk_bf16_f32 v{XF0}, -v5, -v5", f"v_cvt_pk_bf16_f32 v{XF0+1}, -v5, v6")
    F(f"v_cvt_pk_bf16_f32 v3, v{CS}, v{CS}", "v_lshlrev_b32 v3, 16, v3", f"v_sub_f32 v3, v{CS}, v3",
      f"v_cvt_pk_bf16_f32 v{WF0}, v{CS}, v3", f"v_and_b32 v4, 0xffff0000, v{WF0}", "v_sub_f32 v3, v3, v4",
      f"v_cvt_pk_bf16_f32 v{WF0+1}, v3, v{B1}")
    F(f"ds_write_b64 v7, {vr(XF0,2)}", f"ds_write_b64 v8, {vr(WF0,2)} offset:1024",
      "v_xor_b32 v7, 0x100, v7", "v_xor_b32 v8, 0x100, v8")
    A(*spread(M[:8], F.lines))
    A(M[8], M[9])
    A("s_waitcnt lgkmcnt(0)", "s_barrier")
    A(f"ds_read_b64 {vr(XF1,2)}, v7", f"ds_read_b64 {vr(WF1,2)}, v8 offset:1024")
    A(*M[10:14])
    A("v_cmp_eq_u32 vcc, 0, v2", "s_waitcnt lgkmcnt(0)")
    G = Asm()
    for r in (WF0, WF0+1, WF1, WF1+1):
        G(f"v_cndmask_b32 v{r}, 0, v{r}, vcc")
    for nt in range(2):
        c = 240 + 4*nt
        G(f"v_and_b32 v{c+2}, 0xffff0000, v{(XF0,XF1)[nt]+1}", f"v_rcp_f32 v3, v{c+2}",
          f"v_mul_f32 v{c}, {fl(GA)}, v3", "v_mul_f32 v4, v3, v3", "v_mul_f32 v4, v4, v3", f"v_mul_f32 v{c+1}, {fl(GB)}, v4")
    A(*spread(M[14:], G.lines[:8]))
    X = [f"{M32} {vr(ACC(mt,nt),16)}, {vr((WF0,WF1)[mt],4)}, {vr((XF0,XF1)[nt],4)}, {vr(ACC(mt,nt),16)}" for mt in range(2) for nt in range(2)]
    A(*spread(X, G.lines[8:]))
    stamp(A, 2)
    A("s_cmp_ge_u32 s35, 27", "s_cbranch_scc1 Lp2")
    A("s_waitcnt vmcnt(0)")
    chk_cleared(A, 254, 10)
    n = 0
    for half in range(2):
        for mt in range(2):
            for nt in range(2):
                c = 240 + 4*nt
                a0 = ACC(mt,nt) + 8*half
                t = 80 + (n % 2)*16; o = 112 + (n % 4)*4; n += 1
                P = range(4)
                for i in P: A(f"v_pk_mul_f32 {vr(t+2*i,2)}, {vr(a0+2*i,2)}, {vr(a0+2*i,2)}")
                for i in P: A(f"v_pk_fma_f32 {vr(t+2*i,2)}, {vr(t+2*i,2)}, {vr(c,2)}, {vr(c,2)} op_sel:[0,1,0] op_sel_hi:[1,1,0]")
                for i in P: A(f"v_pk_mul_f32 {vr(t+2*i,2)}, {vr(t+2*i,2)}, {vr(a0+2*i,2)}")
                for i in range(8): A(f"v_exp_f32 v{t+i}, v{t+i}")
                for i in P: A(f"v_pk_fma_f32 {vr(t+2*i,2)}, {vr(t+2*i,2)}, {vr(c+2,2)}, {vr(c+2,2)} op_sel:[0,0,0] op_sel_hi:[1,0,0]")
                for i in range(8): A(f"v_rcp_f32 v{t+i}, v{t+i}")
                for i in P: A(f"v_pk_mul_f32 {vr(t+2*i,2)}, {vr(t+2*i,2)}, {vr(a0+2*i,2)}")
                for i in P: A(f"v_cvt_pk_bf16_f32 v{o+i}, v{t+2*i}, v{t+2*i+1}")
                A(f"buffer_store_dwordx4 {vr(o,4)}, v9, s[24:27], s{44+mt*2+nt} offen offset:{half*2048} sc1")
                if n == OPT.get('efl', 7):
                    A(f"s_waitcnt vmcnt({n-4})", *set_flag(254, 11, "s48"),
                      "s_cmp_ge_u32 s32, 20", "s_cbranch_scc1 Lg1_ng", "s_barrier", "Lg1_ng:")
    stamp(A, 3)
    A("s_cmp_lt_u32 s32, 20", "s_cbranch_scc1 Lg2c")
    A("s_waitcnt vmcnt(0)", *set_flag(254, 11, "s48", 128), "s_branch Lp2")
    A("Lg2c:")

def p1(A):
    BC = lambda u: 16 + 8*u
    BS = lambda u: 20 + 8*u
    TW = 56
    AF = lambda p, u: 64 + p*20 + 4*u
    AP = lambda p: 104 + 8*p
    AQ = lambda p: 108 + 8*p
    OUT = lambda par, i: 120 + par*8 + i
    TMP = 136
    YF = lambda o, pl: 152 + (o*2+pl)*4
    FP = lambda nt, pl: 184 + (nt*3+pl)*4
    TA = 208; PK = 240
    FPIMG, DCT, SCR = 81920, 94208, 98304
    A("s_sub_u32 s29, s32, 28", "s_lshl_b32 s29, s29, 3", "s_add_u32 s29, s29, s31", "s_lshl_b32 s29, s29, 1")
    A("s_lshr_b32 s46, s28, 2", "s_add_u32 s47, s46, s29", "s_and_b32 s48, s28, 3", "s_lshl_b32 s34, s48, 9", "s_add_u32 s47, s47, s34",
      "s_mul_i32 s33, s47, 1280", "s_mul_i32 s34, s28, 10240", "s_mov_b32 s35, 81920")
    A("v_and_b32 v1, 15, v0", "v_lshrrev_b32 v2, 4, v0", "v_lshlrev_b32 v4, 2, v2", "v_xor_b32 v3, v1, v4", "v_mul_u32_u24 v4, s35, v2", "v_lshl_add_u32 v4, v3, 4, v4")
    A("s_waitcnt lgkmcnt(0)")
    srd(A, 12, 4, X_SZ); srd(A, 36, 6, T_SZ, T_OFF)
    for i in range(10):
        A(f"s_add_u32 m0, s34, {1024*i}", f"s_add_u32 s40, s33, {(i//5)*4*81920+(i%5)*256}", "buffer_load_dwordx4 v4, s[12:15], s40 offen lds")
    sync_srds(A)
    if OPT['mpf1']:
        srd(A, 16, 8, W1_SZ)
        A("s_lshl_b32 s40, s29, 2", "s_add_u32 s40, s40, s28", f"s_mul_i32 s40, s40, {68*128}", "v_lshl_add_u32 v3, v0, 7, s40",
          "buffer_load_dword v150, v3, s[16:19], 0 offen", "buffer_load_dword v151, v3, s[16:19], 0 offen offset:512")
    A("s_and_b32 s41, s28, 1", "s_add_u32 s41, s41, 4", "s_bfe_u32 s42, s28, 0x10001",
      "s_cmp_lt_u32 s28, 4", "s_cselect_b32 s43, s28, s41", "s_cselect_b32 s44, 0, s42", "s_cselect_b32 s45, 1, 0")
    A("v_lshl_add_u32 v8, v2, 6, s47", "v_cvt_f32_u32 v8, v8", f"v_mul_f32 v8, {fl(1/2048)}, v8", "v_cvt_f32_u32 v9, v1", "v_add_f32 v10, 0x41800000, v9")
    for tt in range(2):
        if tt: A(f"v_add_f32 v8, {fl(256/2048)}, v8")
        for nt in range(2):
            A(f"v_mul_f32 v12, v8, v{9+nt}", f"v_cos_f32 v{208+nt*2+tt}, v12", f"v_sin_f32 v{212+nt*2+tt}, v12")
    A("v_lshrrev_b32 v8, 5, v0", "v_mul_u32_u24 v9, 5120, v8", "v_add_u32 v9, s34, v9", "v_bfe_u32 v8, v0, 3, 2", "v_lshl_add_u32 v9, v8, 8, v9",
      "v_lshl_add_u32 v224, v1, 4, v9", "v_xor_b32 v225, 128, v224")
    A("v_mov_b32 v228, 0", "v_mov_b32 v229, 0", "v_mov_b32 v230, 0", "v_mov_b32 v231, 0", f"s_mov_b32 s49, {ONES}")
    A("s_mul_i32 s41, s46, 6144", "s_lshl_b32 s42, s48, 2", "s_add_u32 s41, s41, s42", f"s_add_u32 s41, s41, {FPIMG}", "v_lshl_add_u32 v226, v0, 4, s41",
      "s_lshl_b32 s41, s46, 6", "s_add_u32 s41, s41, s42", f"s_add_u32 s41, s41, {DCT}", "v_lshl_add_u32 v227, v2, 4, s41")
    A("s_lshl_b32 s41, s43, 4", "v_add_u32 v3, s41, v1", "v_cvt_f32_u32 v4, v3", f"v_mul_f32 v5, {fl(1/160)}, v4",
      "v_cvt_f32_u32 v6, v2", "v_mul_f32 v6, 4.0, v6", "v_mul_f32 v6, v6, v5")
    A("v_and_b32 v14, 1, v0", "v_mov_b32 v15, 0x80008000", "v_mul_lo_u32 v14, v14, v15")
    for u in range(5):
        for jp in range(2):
            for e in range(2):
                A(f"v_fmamk_f32 v{8+e}, v5, {fl(float(16*u+2*jp+e))}, v6")
            A("v_cos_f32 v10, v8", "v_cos_f32 v11, v9", "v_sin_f32 v12, v8", "v_sin_f32 v13, v9",
              f"v_cvt_pk_bf16_f32 v{BC(u)+jp}, v10, v11", f"v_cvt_pk_bf16_f32 v{BS(u)+jp}, -v12, -v13",
              f"v_xor_b32 v{BC(u)+2+jp}, v14, v{BC(u)+jp}", f"v_xor_b32 v{BS(u)+2+jp}, v14, v{BS(u)+jp}")
    for r in (1,2,3):
        A(f"v_mul_f32 v8, {fl(r/640)}, v4", f"v_cos_f32 v{TW+2*r-2}, v8", f"v_sin_f32 v{TW+2*r-1}, v8")
    A("v_and_b32 v8, 3, v0", "v_bfe_u32 v9, v0, 3, 1", "v_lshl_add_u32 v9, v2, 1, v9", "v_lshlrev_b32 v10, 2, v8", "v_xor_b32 v9, v9, v10",
      "v_lshlrev_b32 v10, 8, v8", "v_lshl_add_u32 v10, v9, 4, v10", "v_bfe_u32 v9, v0, 2, 1", "v_lshl_add_u32 v14, v9, 3, v10",
      "s_mul_i32 s41, s44, 40960", "v_add_u32 v14, s41, v14", "v_xor_b32 v15, 128, v14")
    A("s_mul_i32 s41, s44, 6144", f"s_add_u32 s41, s41, {FPIMG}", "v_lshl_add_u32 v7, v0, 4, s41",
      "s_lshl_b32 s41, s44, 6", f"s_add_u32 s41, s41, {DCT}", "v_lshl_add_u32 v62, v2, 4, s41",
      "v_lshrrev_b32 v8, 3, v0", "s_mov_b32 s41, 90112", "v_mul_lo_u32 v63, v8, s41", "v_and_b32 v9, 7, v0", "v_lshl_add_u32 v63, v9, 4, v63",
      "s_lshl_b32 s41, s28, 12", f"s_add_u32 s41, s41, {SCR}",
      "v_xor_b32 v10, v8, v9", "v_lshl_add_u32 v3, v8, 7, s41", "v_lshl_add_u32 v3, v10, 4, v3",
      "v_xor_b32 v10, v2, v9", "v_lshl_add_u32 v5, v1, 7, s41", "v_lshl_add_u32 v5, v10, 4, v5", "v_xor_b32 v6, 64, v5")
    if OPT['ppf']:
        A("s_load_dwordx4 s[24:27], s[0:1], 8", "s_load_dwordx2 s[16:17], s[0:1], 48",
          "s_mul_i32 s40, s29, 6", "s_add_u32 s40, s40, s28", "s_cmp_lt_u32 s28, 4", "s_cselect_b32 s41, 0, 4", "s_add_u32 s40, s40, s41",
          "s_lshl_b32 s41, s40, 13", "v_lshl_add_u32 v146, v0, 7, s41",
          "s_cmp_lt_u32 s29, 32", f"s_cselect_b32 s41, 0, {192*8192}", "v_subrev_u32 v147, s41, v146", "s_waitcnt lgkmcnt(0)",
          "s_cselect_b32 s20, s24, s26", "s_cselect_b32 s21, s25, s27", f"s_mov_b32 s22, {WF_SZ}", "s_mov_b32 s23, 0x00020000",
          f"s_mov_b32 s18, {W1_SZ}", "s_mov_b32 s19, 0x00020000")
    stamp(A, 1)
    A(f"s_waitcnt vmcnt({2 if OPT['mpf1'] else 0})")
    stamp(A, 2)
    for I in range(5):
        for ii in range(2):
            A(f"ds_read_b128 {vr(64+(I*2+ii)*4,4)}, v{224+ii} offset:{1024*I}")
    for I in range(5):
        A(f"s_waitcnt lgkmcnt({2*(4-I)})")
        for j in range(8):
            r = 64 + I*8 + j
            A(f"v_dot2c_f32_bf16 v{228+(j&1)}, s49, v{r}", f"v_dot2c_f32_bf16 v{230+(j&1)}, v{r}, v{r}")
    A("v_add_f32 v228, v228, v229", "v_add_f32 v230, v230, v231")
    for qp in ("quad_perm:[1,0,3,2]", "quad_perm:[2,3,0,1]", "row_half_mirror"):
        A(f"v_add_f32_dpp v228, v228, v228 {qp} row_mask:0xf bank_mask:0xf", f"v_add_f32_dpp v230, v230, v230 {qp} row_mask:0xf bank_mask:0xf")
    row_stats(A, 228, 230, 8, 9, 10, 11)
    A("v_cvt_pk_bf16_f32 v11, v11, v10", "v_lshlrev_b32 v8, 5, v2", "v_and_b32 v10, 0xffff0000, v11", "v_lshlrev_b32 v11, 16, v11", "v_rcp_f32 v11, v11",
      f"v_fmac_f32 v228, {fl(-640.0)}, v10")
    for tt in range(2):
        A(f"ds_bpermute_b32 v{232+tt}, v8, v11 offset:{128*tt}", f"ds_bpermute_b32 v{234+tt}, v8, v228 offset:{128*tt}")
    A("s_waitcnt lgkmcnt(0)")
    for nt in range(2):
        c = 208+nt*2; sn = 212+nt*2; o = 236 + nt*3
        for tt in range(2):
            A(f"v_mul_f32 v{c+tt}, v{c+tt}, v{232+tt}", f"v_mul_f32 v{sn+tt}, v{sn+tt}, v{232+tt}")
        A(f"v_cvt_pk_bf16_f32 v{o}, v{c}, v{c+1}", f"v_cvt_pk_bf16_f32 v{o+1}, v{sn}, v{sn+1}", f"v_cvt_pk_bf16_f32 v{o+2}, -v{sn}, -v{sn+1}")
        for pl in range(3):
            A(f"ds_write_b32 v226, v{o+pl} offset:{(nt*3+pl)*1024}")
    A("v_cvt_pk_bf16_f32 v8, v234, v235", "ds_write_b32 v227, v8")
    A("s_waitcnt lgkmcnt(0)", "s_barrier")
    stamp(A, 3)
    A("Lp1_unit:")
    stamp(A, 4)
    def reads(t):
        return [f"ds_read_b64_tr_b16 {vr(AF(t&1,u)+2*jh,2)}, v{14+((u+5*jh)&1)} offset:{t*5120+((u+5*jh)>>1)*1024}" for u in range(5) for jh in range(2)]
    def mf(t):
        L = []
        for u in range(5):
            for (acc, B) in ((AP(t&1), BC(u)), (AQ(t&1), BS(u))):
                L.append(f"{M16} {vr(acc,4)}, {vr(AF(t&1,u),4)}, {vr(B,4)}, {'0' if u==0 else vr(acc,4)}")
        return L
    def bfly(t):
        P = AP(t&1); Q = AQ(t&1); O = lambda i: OUT(t&1, i)
        c1,s1,c2,s2,c3,s3 = range(TW, TW+6)
        pr,pi,qr,qi,ar,ai,ur,ui,wr_,wi_ = range(TMP, TMP+10)
        L = [f"v_fma_f32 v{pr}, v{P+2}, v{c2}, v{P}", f"v_fma_f32 v{pi}, v{Q+2}, v{c2}, v{Q}",
             f"v_mul_f32 v{ar}, v{P+1}, v{c1}", f"v_mul_f32 v{ai}, v{Q+1}, v{c1}",
             f"v_fmac_f32 v{pr}, v{Q+2}, v{s2}", f"v_fma_f32 v{pi}, -v{P+2}, v{s2}, v{pi}",
             f"v_fmac_f32 v{ar}, v{Q+1}, v{s1}", f"v_fma_f32 v{ai}, -v{P+1}, v{s1}, v{ai}",
             f"v_fma_f32 v{qr}, 2.0, v{P}, -v{pr}", f"v_fma_f32 v{qi}, 2.0, v{Q}, -v{pi}",
             f"v_fma_f32 v{ur}, v{P+3}, v{c3}, v{ar}", f"v_fma_f32 v{ui}, v{Q+3}, v{c3}, v{ai}",
             f"v_fmac_f32 v{ur}, v{Q+3}, v{s3}", f"v_fma_f32 v{ui}, -v{P+3}, v{s3}, v{ui}",
             f"v_fma_f32 v{wr_}, 2.0, v{ar}, -v{ur}", f"v_fma_f32 v{wi_}, 2.0, v{ai}, -v{ui}",
             f"v_add_f32 v{O(0)}, v{pr}, v{ur}", f"v_add_f32 v{O(1)}, v{pi}, v{ui}",
             f"v_sub_f32 v{O(6)}, v{pr}, v{ur}", f"v_sub_f32 v{O(7)}, v{ui}, v{pi}",
             f"v_sub_f32 v{O(2)}, v{qr}, v{wi_}", f"v_add_f32 v{O(3)}, v{qi}, v{wr_}",
             f"v_add_f32 v{O(4)}, v{qr}, v{wi_}", f"v_sub_f32 v{O(5)}, v{qi}, v{wr_}"]
        if t & 1:
            for i in (0,1,6,7,2,3,4,5):
                n = '-' if i == 3 else ''
                L.append(f"v_cvt_pk_bf16_f32 v{YF(i>>1,i&1)+(t>>1)}, {n}v{OUT(0,i)}, {n}v{OUT(1,i)}")
        return L
    A(*reads(0))
    for t in range(9):
        if t < 8:
            A("s_waitcnt lgkmcnt(0)")
            fill = (reads(t+1) if t < 7 else [f"ds_read_b128 {vr(FP(nt,pl),4)}, v7 offset:{(nt*3+pl)*1024}" for nt in range(2) for pl in range(3)])
            fill = fill + (bfly(t-1) if t >= 1 else [])
            if OPT['ppf'] and t == 0: fill.append("buffer_load_dword v12, v146, s[16:19], 0 offen")
            if OPT['ppf'] and t == 4: fill.append("buffer_load_dword v13, v147, s[20:23], 0 offen")
            A(*spread(mf(t), fill))
        else:
            B = bfly(7)
            A(*B[:25])
            A("s_cmp_lg_u32 s43, 0", "s_cbranch_scc1 Lp1_nodc", "s_mov_b32 exec_lo, 0x10001", "s_mov_b32 exec_hi, 0x10001",
              f"ds_read_b128 {vr(YF(0,0),4)}, v62", "s_mov_b64 exec, -1", "Lp1_nodc:")
            A(*B[25:])
    A("s_add_u32 s41, s29, s44", "s_lshl_b32 s41, s41, 7", "s_lshl_b32 s42, s43, 13", "s_add_u32 s41, s41, s42")
    A("v_mov_b32 v150, 0", "buffer_load_dwordx2 v[148:149], v150, s[56:59], 0 offen sc1")
    A("s_waitcnt lgkmcnt(0)")
    stamp(A, 5)
    def s1m(kinds, base):
        L = []; n = 0
        for tile, o in enumerate(kinds):
            for nt in range(2):
                re = base + n*8; im = re + 4; n += 1
                L += [f"{M16} {vr(re,4)}, {vr(YF(o,0),4)}, {vr(FP(nt,0),4)}, 0", f"{M16} {vr(im,4)}, {vr(YF(o,1),4)}, {vr(FP(nt,0),4)}, 0",
                      f"{M16} {vr(re,4)}, {vr(YF(o,1),4)}, {vr(FP(nt,1),4)}, {vr(re,4)}", f"{M16} {vr(im,4)}, {vr(YF(o,0),4)}, {vr(FP(nt,2),4)}, {vr(im,4)}"]
        return L
    def s1w(base):
        L = []; n = 0
        for tile in range(2):
            for nt in range(2):
                re = base + n*8; pk = PK + n*4; n += 1
                L += [f"v_cvt_pk_bf16_f32 v{pk+j}, v{re+2*j}, v{re+2*j+1}" for j in range(4)]
                L.append(f"ds_write_b128 v{5+tile}, {vr(pk,4)} offset:{nt*2048}")
        L += [f"ds_read_b128 {vr(base+4*q,4)}, v3 offset:{q*1024}" for q in range(4)]
        return L
    def s1s(base, poff):
        L = []
        for q in range(4):
            L += [f"s_add_u32 s42, s41, {q*8*90112+poff}", f"s_waitcnt lgkmcnt({3-q})",
                  f"buffer_store_dwordx4 {vr(base+4*q,4)}, v63, s[36:39], s42 offen {OPT['sc_t']}"]
        return L
    TB_ = 64
    A(*s1m((0,2), TA))
    A("s_cmp_eq_u32 s43, 5", "s_cbranch_scc1 Lp1_b5")
    A(*spread(s1m((1,3), TB_), s1w(TA)))
    A(*s1s(TA, 0))
    A(*s1w(TB_))
    A(*s1s(TB_, 6*8192))
    A("s_cmp_eq_u32 s45, 0", "s_cbranch_scc1 Lp1_done")
    A("s_mov_b32 s45, 0", "s_mov_b32 s44, 1", "v_add_u32 v14, 40960, v14", "v_add_u32 v15, 40960, v15", "v_add_u32 v7, 6144, v7", "v_add_u32 v62, 64, v62", "v_add_u32 v146, 0x8000, v146", "v_add_u32 v147, 0x8000, v147", "s_branch Lp1_unit")
    A("Lp1_b5:", "s_nop 7")
    A(*s1w(TA))
    A(*s1s(TA, 0))
    A("Lp1_done:")
    stamp(A, 6)
    A("s_lshl_b32 s41, s29, 6", f"s_add_u32 s41, s41, {32*8192}", "v_lshlrev_b32 v151, 3, v0", "s_waitcnt vmcnt(0)")
    chk_cleared(A, 148, 150)
    A("s_barrier", "s_cmp_lg_u32 s28, 0", "s_cbranch_scc1 Lp2")
    A(*set_flag(148, 151, "s41"))

HK = [(4*c, 4*c+2) for c in range(7)] + [(4*c+1, 4*c+3) for c in range(6)] + [(25, None)]
def hk_mask(sp, upto):
    m = 0
    for j, (a, b) in enumerate(HK[:upto]):
        if upto == 14 and j < 6: continue
        for hs, x in enumerate((a, b)):
            if x is None: continue
            x = x + 28*sp
            if sp and j == 6 and hs == 1: x = 53
            if sp and j == 13: x = 27
            m |= 1 << x
    return m
def set_mask(A, upto):
    m0, m1 = hk_mask(0, upto), hk_mask(1, upto)
    A("s_cmp_eq_u32 s50, 0", f"s_mov_b32 s36, 0x{m0 & 0xffffffff:x}", f"s_mov_b32 s37, 0x{m0 >> 32:x}",
      f"s_cselect_b32 s36, s36, 0x{m1 & 0xffffffff:x}", f"s_cselect_b32 s37, s37, 0x{m1 >> 32:x}")
def poll_h(A, upto, first):
    _pl[0] += 1; n = _pl[0]
    if first: set_mask(A, upto)
    A("s_mov_b32 s3, 0")
    if not first: A(f"s_branch Lpc{n}")
    A(f"Lpl{n}:", "s_mov_b64 exec, s[36:37]", "buffer_load_dwordx2 v[20:21], v13, s[52:55], 0 offen sc1", "s_mov_b64 exec, -1", "s_waitcnt vmcnt(0)", f"Lpc{n}:",
      "v_cmp_eq_u64 vcc, v[20:21], v[18:19]", "s_add_u32 s3, s3, 1", "s_nop 0", "s_and_b64 s[38:39], vcc, s[36:37]", "s_cmp_eq_u64 s[38:39], s[36:37]", f"s_cbranch_scc1 Lpd{n}",
      f"s_sleep {OPT.get('slp',4)}", f"s_cmp_lt_u32 s3, {SPIN_MAX}", f"s_cbranch_scc1 Lpl{n}", f"Lpd{n}:")

def g2_loader(A):
    NST = 14
    A("s_lshr_b32 s30, s32, 2", "s_and_b32 s50, s31, 1")
    A("s_lshl_b32 s34, s29, 2", "s_add_u32 s34, s34, s33", f"s_mul_i32 s34, s34, {108*1024}", "v_lshl_add_u32 v4, v0, 4, s34")
    A("v_lshrrev_b32 v3, 4, v0", "v_and_b32 v2, 15, v0", "v_lshlrev_b32 v5, 2, v3", "v_xor_b32 v2, v2, v5",
      "s_and_b32 s34, s33, 1", "s_lshl_b32 s34, s34, 5", "v_add_u32 v8, s34, v3", "v_mul_u32_u24 v8, 1280, v8",
      "s_lshl_b32 s34, s30, 8", "v_lshl_add_u32 v10, v2, 4, v8", "v_add_u32 v10, s34, v10")
    A("s_lshl_b32 s34, s29, 1", "s_lshr_b32 s35, s33, 1", "s_add_u32 s34, s34, s35", "s_lshl_b32 s34, s34, 13", "v_lshl_add_u32 v13, v0, 7, s34")
    A(f"s_mul_i32 s44, s50, {28*2048}", f"s_mul_i32 s45, s50, {14*81920}", f"s_mul_i32 s34, s35, 81920", "s_add_u32 s45, s45, s34")
    srd(A, 12, 6, H_SZ, H_OFF); srd(A, 16, 48, W1_SZ)
    def issue_w(st):
        slot = (st % RING) * 32768; a, b = HK[st]
        A(f"s_add_u32 s42, s45, {(a>>1)*81920+(a&1)*20480}")
        if st == 6:
            A("s_and_b32 s34, s50, s35", "s_cmp_eq_u32 s34, 1", f"s_cselect_b32 s42, {26*81920+20480}, s42")
        if st == 13:
            A("s_cmp_eq_u32 s50, 0", f"s_mov_b32 s42, {12*81920+20480}", f"s_cselect_b32 s42, s42, {13*81920+20480}", "s_cmp_eq_u32 s35, 0", "s_cselect_b32 s18, s18, 0")
        for q in range(4):
            A(f"s_add_u32 m0, s40, {slot + 16384 + q*1024}", "s_nop 0", f"buffer_load_dwordx4 v10, s[16:19], s42 offen lds")
            if q < 3: A(f"s_add_u32 s42, s42, {4*1280}")
        return 4
    def issue_h(st):
        slot = (st % RING) * 32768; a, b = HK[st]
        A(f"s_add_u32 s41, s44, {a*2048}", f"s_add_u32 m0, s40, {slot}")
        if st == 13: A("s_cmp_eq_u32 s50, 0", f"s_cselect_b32 s41, s41, {27*2048}")
        else: A(f"s_add_u32 s43, s44, {b*2048-2048}")
        if st == 6: A("s_cmp_eq_u32 s50, 0", f"s_cselect_b32 s43, s43, {53*2048-2048}")
        for q in range(2): A(f"buffer_load_dwordx4 v4, s[12:15], s41 offen offset:{q*1024} sc1 lds")
        if st == 13: return 2
        for q in range(2,4): A(f"buffer_load_dwordx4 v4, s[12:15], s43 offen offset:{q*1024} sc1 lds")
        return 4
    NW = OPT.get('nw', 3)
    for st in range(NW): issue_w(st)
    A(f"s_waitcnt vmcnt({4*NW})")
    chk_cleared(A, 18, 12)
    A("s_barrier")
    stamp(A, 4)
    poll_h(A, 6, True)
    stamp(A, 5)
    ops = []
    D = OPT.get('D2') or 2
    for st in range(NW): ops += [st]*issue_h(st)
    nxt = NW
    for st in range(NST):
        last = max(i for i, x in enumerate(ops) if x == st)
        A(f"s_waitcnt vmcnt({len(ops)-1-last})", "s_barrier")
        if st == 1:
            set_mask(A, 14)
            A("s_mov_b64 exec, s[36:37]", "buffer_load_dwordx2 v[20:21], v13, s[52:55], 0 offen sc1", "s_mov_b64 exec, -1"); ops.append('p')
        while nxt < NST and nxt <= st + max(D, NW-1 if st == 0 else 0) :
            if nxt == 6:
                A(f"s_waitcnt vmcnt({len(ops)-1-ops.index('p')})")
                poll_h(A, 14, False)
            ops += [nxt]*issue_h(nxt); ops += [nxt]*issue_w(nxt); nxt += 1
    if OPT['cpf']:
        A("s_lshl_b32 s34, s32, 2", "s_add_u32 s34, s34, s33", "s_cmp_ge_u32 s34, 1", "s_cbranch_scc1 Lk1_end")
        A("s_mov_b64 exec, 0x7ffffff")
        cpf(A, "k3_kernel", None, s=(36,38))
    A("s_branch Lk1_end")

def g2_compute(A):
    NST = 14
    XA, WA = 208, lambda mt: 209 + mt
    A("s_load_dwordx2 s[8:9], s[0:1], 56", "s_lshr_b32 s30, s32, 2", "s_and_b32 s50, s31, 1")
    A("s_lshl_b32 s35, s30, 8", "s_lshl_b32 s40, s33, 7", "s_add_u32 s35, s35, s40",
      "s_lshl_b32 s40, s50, 31", "s_or_b32 s35, s35, s40", "v_lshl_add_u32 v9, v1, 1, s35")
    A("s_lshl_b32 s35, s34, 13", f"v_lshl_add_u32 v{XA}, v0, 4, s35")
    A("v_bfe_u32 v4, v0, 2, 2", "v_lshl_add_u32 v5, v2, 2, v4", "v_lshlrev_b32 v5, 8, v5",
      "v_bfe_u32 v6, v0, 4, 1", "v_lshl_add_u32 v5, v6, 5, v5", "v_and_b32 v6, 3, v0", "v_lshl_add_u32 v5, v6, 3, v5",
      "s_lshl_b32 s35, s33, 1", "v_xor_b32 v6, s35, v4", f"v_lshl_add_u32 v{WA(0)}, v6, 6, v5", f"v_xor_b32 v{WA(1)}, 64, v{WA(0)}")
    A("s_waitcnt lgkmcnt(0)")
    srd(A, 20, 8, 640*2); srd(A, 24, 6, P_SZ, P_OFF)
    A("buffer_load_ushort v240, v9, s[20:23], 0 offen", "buffer_load_ushort v244, v9, s[20:23], 0 offen offset:64")
    A("s_waitcnt vmcnt(2)", *set_flag(254, 11, "s48", 128))
    for r in (241,242,243,245,246,247,249,250,251): A(f"v_mov_b32 v{r}, 0")
    A("v_cmp_gt_u32 vcc, 32, v0", "v_mov_b32 v5, 0x3f80", "s_nop 0", "v_cndmask_b32 v248, 0, v5, vcc")
    A("v_lshlrev_b32 v5, 9, v2", "v_lshl_add_u32 v7, v1, 3, v5",
      "s_lshl_b32 s40, s29, 2", "s_lshl_b32 s42, s34, 1", "s_add_u32 s40, s40, s42", "s_mul_i32 s40, s40, 10",
      "s_lshl_b32 s42, s30, 1", "s_add_u32 s40, s40, s42", "s_add_u32 s40, s40, s33", "s_lshl_b32 s40, s40, 12",
      f"s_mul_i32 s42, s50, {P_SZ//2}", "s_add_u32 s44, s40, s42", "s_add_u32 s45, s44, 40960")
    A("s_waitcnt vmcnt(1)")
    for mt in range(2):
        for nt in range(2):
            A(f"{M32} {vr(ACC(mt,nt),16)}, v[248:251], {vr(240+4*mt,4)}, 0")
    base = [0]
    def reads(st):
        p = st & 1; slot = (st % RING) * 32768
        L = []
        nb = slot & ~0xffff
        if nb != base[0]:
            for r in range(208, 211): L.append(f"v_xor_b32 v{r}, 0x10000, v{r}")
            base[0] = nb
        so = slot - nb
        for kk in range(4 if st < 13 else 2):
            for mt in range(2):
                for jh in range(2):
                    L.append(f"ds_read_b64_tr_b16 {vr(FB(p,kk,2+mt)+2*jh,2)}, v{WA(mt)} offset:{so+16384+(16*kk+8*jh)*256}")
            for nt in range(2):
                L.append(f"ds_read_b128 {vr(FB(p,kk,nt),4)}, v{XA} offset:{so+nt*4096+kk*1024}")
        return L
    mm = lambda p, kk, mt, nt: f"{M32} {vr(ACC(mt,nt),16)}, {vr(FB(p,kk,nt),4)}, {vr(FB(p,kk,2+mt),4)}, {vr(ACC(mt,nt),16)}"
    def mfmas(st):
        return [mm(st&1, kk, mt, nt) for kk in range(4) for mt in range(2) for nt in range(2)]
    compute_loop(A, NST, reads, mfmas, lambda st: [], lambda st: stamp(A, {0:4,1:5,7:6,13:7}[st]) if st in (0,1,7,13) else None)
    p = (NST-1) & 1
    def outp(mt, nt):
        L = []
        for a in range(4):
            a0 = ACC(mt,nt) + 4*a; o = FB(1-p,0,0) + ((mt*2+nt)*4+a)*2
            L += [f"v_cvt_pk_bf16_f32 v{o}, v{a0}, v{a0+1}", f"v_cvt_pk_bf16_f32 v{o+1}, v{a0+2}, v{a0+3}",
                  f"buffer_store_dwordx2 {vr(o,2)}, v7, s[24:27], s{44+nt} offen offset:{a*1024+mt*256} {OPT['sc_p']}"]
        return L
    tiles = [(mt,nt) for mt in range(2) for nt in range(2)]
    for i, (mt,nt) in enumerate(tiles):
        A(*[mm(p, kk, mt, nt) for kk in range(2)])
        if i >= 2: A(*outp(*tiles[i-2]))
    A(*outp(*tiles[2])); A(*outp(*tiles[3]))
    A("s_branch Lk1_end")

def hgen(Hl, HF, tvar):
    Hl(f"s_lshl_b32 s33, s{tvar}, 4", "v_add_u32 v14, s33, v1", "v_cvt_f32_u32 v15, v14", f"v_mul_f32 v15, {fl(1/160)}, v15", "v_mul_f32 v4, v7, v15")
    for bb in range(5):
        for ep in range(2):
            for e in range(2):
                Hl(f"v_fmamk_f32 v{8+e}, v15, {fl(float(16*bb+2*ep+e))}, v4")
            Hl("v_cos_f32 v10, v8", "v_cos_f32 v11, v9", "v_sin_f32 v12, v8", "v_sin_f32 v13, v9")
            if bb == 0 and ep == 0:
                Hl("v_cmp_gt_u32 vcc, 16, v0", "v_mov_b32 v8, 0.5", "s_nop 0", "v_cndmask_b32 v10, v10, v8, vcc")
            Hl(f"v_cvt_pk_bf16_f32 v{HF(bb)+ep}, v10, v11", f"v_cvt_pk_bf16_f32 v{HF(bb)+2+ep}, -v12, -v13")
    Hl("v_and_b32 v8, 1, v14", "v_lshlrev_b32 v8, 15, v8", "v_or_b32 v8, 0x3f80, v8", f"v_cndmask_b32 v{HF(5)}, 0, v8, vcc",
       f"v_mov_b32 v{HF(5)+1}, 0", f"v_mov_b32 v{HF(5)+2}, 0", f"v_mov_b32 v{HF(5)+3}, 0")

def p2(A):
    C = lambda t, ks: vr(16 + (t*2+ks)*4, 4)
    S = lambda t, ks: vr(48 + (t*2+ks)*4, 4)
    WV = lambda tau, pl, t, e: 80 + tau*32 + pl*16 + t*4 + e
    TB = lambda tau, ks, pl: 144 + tau*24 + (ks*3+pl)*4
    XA = lambda tau, pl, t: 192 + tau*32 + pl*16 + t*4
    PK = 80
    WIMG = 32768
    stamp(A, 8)
    A("s_load_dwordx4 s[8:11], s[0:1], 8", "s_load_dwordx2 s[48:49], s[0:1], 48")
    A("s_sub_u32 s33, s32, 20", "s_mul_i32 s34, s33, 43", "s_lshr_b32 s34, s34, 7", "s_mul_i32 s35, s34, 3", "s_sub_u32 s45, s33, s35",
      "s_lshl_b32 s29, s31, 2", "s_add_u32 s29, s29, s34", "s_and_b32 s46, s28, 3")
    A("s_mov_b32 s34, 0x9a543210", "s_mov_b32 s35, 0x8876", "s_lshl_b32 s33, s45, 2", "s_add_u32 s33, s33, s46", "s_lshl_b32 s33, s33, 2",
      "s_lshr_b64 s[34:35], s[34:35], s33", "s_and_b32 s30, s34, 15")
    A("s_lshl_b32 s47, s45, 6", "s_cmp_eq_u32 s45, 2", "s_cselect_b32 s47, 113, s47")
    A("s_mul_i32 s43, s29, 90112", "s_lshl_b32 s34, s30, 13", "s_add_u32 s43, s43, s34", "s_lshr_b32 s34, s28, 2", "s_lshl_b32 s34, s34, 12",
      "s_add_u32 s43, s43, s34", "s_lshl_b32 s35, s46, 13", "s_add_u32 s44, s35, s34")
    A("v_lshrrev_b32 v4, 3, v0", "v_lshl_add_u32 v4, v4, 5, s29", "v_mul_u32_u24 v4, 642, v4", "v_and_b32 v5, 7, v0", "v_lshl_add_u32 v4, v5, 4, v4",
      "s_lshl_b32 s34, s47, 1", "s_bfe_u32 s36, s28, 0x10001", "s_mulk_i32 s36, 320", "s_add_u32 s34, s34, s36",
      "s_and_b32 s36, s28, 1", f"s_mul_i32 s36, s36, {32*20544}", "s_add_u32 s34, s34, s36", "v_add_u32 v4, s34, v4")
    A("s_waitcnt lgkmcnt(0)")
    srd(A, 12, 6, T_SZ, T_OFF); srd(A, 24, 6, U_SZ, U_OFF)
    A("s_cmp_lt_u32 s28, 4", "s_cselect_b32 s16, s8, s10", "s_cselect_b32 s17, s9, s11", f"s_mov_b32 s18, {WF_SZ}", "s_mov_b32 s19, 0x00020000")
    A("s_barrier")
    A("s_lshl_b32 s36, s28, 12")
    for q in range(4):
        A(f"s_add_u32 m0, s36, {WIMG+1024*q}", f"s_mov_b32 s34, {q*8*20544}", "buffer_load_dwordx4 v4, s[16:19], s34 offen lds")
    A("v_and_b32 v1, 15, v0", "v_lshrrev_b32 v2, 4, v0", "v_cvt_f32_u32 v7, v2", "v_mul_f32 v7, 4.0, v7")
    def tdma():
        A("s_mov_b32 m0, s44", "v_lshlrev_b32 v8, 4, v0")
        for i in range(4): A(f"buffer_load_dwordx4 v8, s[12:15], s43 offen offset:{1024*i} sc1 lds")
    A("s_cmp_lt_u32 s28, 4", "s_cbranch_scc1 Lp2_main")
    A("s_cmp_lg_u32 s28, 4", "s_cbranch_scc1 Lp2_hb")
    A("s_waitcnt vmcnt(0)", "v_mov_b32 v12, 0", "v_mov_b32 v18, 0")
    chk_cleared(A, 18, 12)
    A("v_and_b32 v13, 31, v0", "v_lshlrev_b32 v13, 7, v13", f"s_mov_b32 s34, {32*8192}", "s_mov_b32 s3, 0", "Lp2_poll:",
      "buffer_load_dwordx2 v[20:21], v13, s[52:55], s34 offen sc1", "s_waitcnt vmcnt(0)",
      "v_cmp_eq_u64 vcc, v[20:21], v[18:19]", "s_add_u32 s3, s3, 1", "s_nop 0",
      "s_cmp_eq_u64 vcc, -1", "s_cbranch_scc1 Lp2_hb", "s_sleep 4", f"s_cmp_lt_u32 s3, {SPIN_MAX}", "s_cbranch_scc1 Lp2_poll")
    A("Lp2_hb:", "s_barrier")
    tdma()
    A("s_waitcnt vmcnt(0)", "s_barrier", "s_branch Lk1_end")
    A("Lp2_main:")
    A("v_cvt_f32_u32 v5, v1", f"v_mul_f32 v5, {fl(1/64)}, v5", "v_add_f32 v6, 0x3e800000, v5",
      "v_and_b32 v14, 1, v0", "v_mov_b32 v15, 0x80008000", "v_mul_lo_u32 v14, v14, v15", "v_xor_b32 v15, 0x80000000, v14")
    for t in range(2):
        for jp in range(4):
            for e in range(2):
                j = 2*jp+e
                A(f"v_add_f32 v{8+e}, {fl(float(16*(j>>2)+(j&3)))}, v7", f"v_mul_f32 v{8+e}, v{8+e}, v{5+t}")
            c0 = 16+t*8+jp; s0 = 48+t*8+jp
            A("v_cos_f32 v10, v8", "v_cos_f32 v11, v9", "v_sin_f32 v12, v8", "v_sin_f32 v13, v9",
              f"v_cvt_pk_bf16_f32 v{c0}, v10, v11", f"v_cvt_pk_bf16_f32 v{s0}, v12, v13")
            for b in (c0, s0):
                A(f"v_xor_b32 v{b+4}, v14, v{b}", f"v_xor_b32 v{b+16}, 0x80000000, v{b}", f"v_xor_b32 v{b+20}, v15, v{b}")
    A("v_lshrrev_b32 v5, 2, v0", "v_lshlrev_b32 v5, 7, v5", "v_and_b32 v7, 3, v0", "v_lshl_add_u32 v5, v7, 4, v5", "v_add_u32 v5, s35, v5",
      "v_lshrrev_b32 v8, 3, v0", "s_mov_b32 s33, 45056", "v_mul_lo_u32 v6, v8, s33", "v_and_b32 v9, 7, v0", "v_lshl_add_u32 v6, v9, 4, v6",
      "s_lshl_b32 s36, s30, 12", "s_lshl_b32 s33, s29, 7", "s_add_u32 s36, s36, s33",
      "v_xor_b32 v10, v8, v9", "v_lshl_add_u32 v3, v8, 7, s35", "v_lshl_add_u32 v3, v10, 4, v3",
      "v_xor_b32 v10, v2, v9", "v_lshl_add_u32 v7, v1, 7, s35", "v_lshl_add_u32 v7, v10, 4, v7")
    A("s_lshl_b32 s33, s30, 4", "v_add_u32 v8, s33, v1", "v_sub_u32 v9, 256, v8",
      "s_cmp_lt_u32 s30, 6", "s_cselect_b64 vcc, -1, 0", "v_cndmask_b32 v8, v9, v8, vcc", "v_subrev_u32 v8, s47, v8",
      "v_lshlrev_b32 v4, 9, v2", "v_lshl_add_u32 v4, v8, 1, v4")
    stamp(A, 9)
    A("s_barrier")
    stamp(A, 10)
    tdma()
    A("s_waitcnt vmcnt(0)", "s_barrier")
    stamp(A, 11)
    A("s_lshl_b32 s33, s45, 2", "s_add_u32 s33, s33, s46", "s_cmp_eq_u32 s33, 11", "s_cbranch_scc1 Lk1_end")
    def treads(tau):
        return [f"ds_read_b64_tr_b16 {vr(TB(tau,ks,pl)+2*jh,2)}, v5 offset:{(32*ks+16*jh)*128+tau*64+pl*8}" for ks in range(2) for pl in range(2) for jh in range(2)]
    def wreads(tau):
        return [f"ds_read_u16_d16_hi v{WV(tau,pl,t,e)}, v4 offset:{WIMG+(pl*2+tau)*8192+(16*t+e)*128}" for t in range(4) for e in range(4) for pl in range(2)]
    M = M16
    def st2(tau):
        L = []
        for t in range(4):
            re = vr(XA(tau,0,t),4); im = vr(XA(tau,1,t),4)
            for ks in range(2):
                tr = vr(TB(tau,ks,0),4); ti = vr(TB(tau,ks,1),4)
                L += [f"{M} {re}, {C(t,ks)}, {tr}, {'0' if ks==0 else re}", f"{M} {im}, {C(t,ks)}, {ti}, {'0' if ks==0 else im}",
                      f"{M} {re}, {S(t,ks)}, {ti}, {re}", f"{M} {im}, {S(t,ks)}, {vr(TB(tau,ks,2),4)}, {im}"]
        return L
    def wmul(tau):
        L = []
        for t in range(4):
            for e in range(4):
                xr = XA(tau,0,t)+e; xi = XA(tau,1,t)+e; wr = WV(tau,0,t,e); wi = WV(tau,1,t,e)
                L += [f"v_mul_f32 v{8+e}, v{xr}, v{wr}", f"v_mul_f32 v{12+e}, v{xr}, v{wi}",
                      f"v_fma_f32 v{8+e}, -v{xi}, v{wi}, v{8+e}", f"v_fmac_f32 v{12+e}, v{xi}, v{wr}"]
            for pl in range(2):
                d = TB(tau, t>>1, pl) + (t&1)*2
                L += [f"v_cvt_pk_bf16_f32 v{d}, v{8+4*pl}, v{9+4*pl}", f"v_cvt_pk_bf16_f32 v{d+1}, v{10+4*pl}, v{11+4*pl}"]
            d = TB(tau, t>>1, 2) + (t&1)*2
            L += [f"v_cvt_pk_bf16_f32 v{d}, -v12, -v13", f"v_cvt_pk_bf16_f32 v{d+1}, -v14, -v15"]
        return L
    def negT(tau):
        return [f"v_xor_b32 v{TB(tau,ks,2)+j}, 0x80008000, v{TB(tau,ks,0)+j}" for ks in range(2) for j in range(4)]
    def st3(tau):
        L = []
        for nt in range(4):
            re = vr(XA(tau,0,nt),4); im = vr(XA(tau,1,nt),4)
            for ks in range(2):
                xr = vr(TB(tau,ks,0),4); xi = vr(TB(tau,ks,1),4)
                L += [f"{M} {re}, {xr}, {C(nt,ks)}, {'0' if ks==0 else re}", f"{M} {im}, {xi}, {C(nt,ks)}, {'0' if ks==0 else im}",
                      f"{M} {re}, {vr(TB(tau,ks,2),4)}, {S(nt,ks)}, {re}", f"{M} {im}, {xr}, {S(nt,ks)}, {im}"]
        return L
    def outp(tau):
        L = []
        for nt in range(4):
            pk = PK + 4*nt + 16*tau; re = XA(tau,0,nt); im = XA(tau,1,nt)
            L += [f"v_cvt_pk_bf16_f32 v{pk}, v{re}, v{re+1}", f"v_cvt_pk_bf16_f32 v{pk+1}, v{re+2}, v{re+3}",
                  f"v_cvt_pk_bf16_f32 v{pk+2}, v{im}, v{im+1}", f"v_cvt_pk_bf16_f32 v{pk+3}, v{im+2}, v{im+3}",
                  f"ds_write_b128 v7, {vr(pk,4)} offset:{nt*2048}"]
        return L
    A(*treads(0)); A(*treads(1))
    A("s_waitcnt lgkmcnt(8)")
    A(*negT(0))
    A(*st2(0)[:8])
    A("s_waitcnt lgkmcnt(0)")
    A(*spread(st2(0)[8:], negT(1) + wreads(0)))
    A("s_waitcnt lgkmcnt(0)")
    A(*spread(st2(1), interleave(wmul(0), wreads(1), 2)))
    A("s_waitcnt lgkmcnt(0)")
    A(*spread(st3(0), wmul(1)))
    S3 = st3(1); O1 = outp(1)
    A(*spread(S3[:16], outp(0) + ["v_xor_b32 v7, 64, v7"]))
    rb = lambda nt: [f"ds_read_b128 {vr(112+8*nt+4*q,4)}, v3 offset:{nt*2048+q*1024}" for q in range(2)]
    stq = lambda nt: [x for q in range(2) for x in (f"s_add_u32 s37, s36, {(16*nt+8*q)*45056}", f"buffer_store_dwordx4 {vr(112+8*nt+4*q,4)}, v6, s[24:27], s37 offen {OPT['sc_u']}")]
    A(*spread(S3[16:24], O1[0:5] + rb(0)))
    A(*spread(S3[24:32], O1[5:10] + rb(1)))
    A(*O1[10:15]); A(*rb(2))
    A("s_waitcnt lgkmcnt(6)"); A(*stq(0))
    A(*O1[15:20]); A(*rb(3))
    A("s_waitcnt lgkmcnt(6)"); A(*stq(1))
    A("s_waitcnt lgkmcnt(3)"); A(*stq(2))
    A("s_waitcnt lgkmcnt(0)"); A(*stq(3))

def k3(A):
    A("k3_kernel:")
    A("s_cmp_ge_u32 s2, 256", "s_cbranch_scc1 Lk3_end_x")
    kstart(A)
    A("s_load_dwordx2 s[4:5], s[0:1], 0", "s_load_dwordx2 s[6:7], s[0:1], 64", "s_load_dwordx2 s[40:41], s[0:1], 80")
    A("v_lshrrev_b32 v1, 6, v0", "v_and_b32 v0, 63, v0", "v_readfirstlane_b32 s28, v1")
    A("s_and_b32 s31, s2, 7", "s_lshr_b32 s32, s2, 3")
    A("s_lshl_b32 s29, s31, 3", "s_lshr_b32 s33, s32, 2", "s_add_u32 s29, s29, s33", "s_and_b32 s30, s32, 1")
    A("v_lshlrev_b32 v3, 4, v0", "v_and_b32 v1, 15, v0", "v_lshrrev_b32 v2, 4, v0")
    A("s_lshl_b32 s33, s30, 10", "s_add_u32 s33, s33, s29", "v_lshl_add_u32 v5, v1, 6, s33")
    ZIMG = 49152
    M = M16
    A("s_cmp_ge_u32 s28, 6", "s_cbranch_scc1 Lk3_back")
    A("s_setprio 1")
    GC, GS, GN = 16, 20, 24
    TWc = lambda r: 28 + (r-1)*8
    TWs = lambda r: 32 + (r-1)*8
    UA = lambda ty, tau, pl: 52 + ((ty*2+tau)*2+pl)*4
    VA = lambda ty, tau, pl: 84 + ((ty*2+tau)*2+pl)*4
    TT = 116
    A("s_mul_i32 s33, s29, 45056", "s_lshl_b32 s34, s28, 12", "s_add_u32 s33, s33, s34", f"s_add_u32 s34, s33, {6*4096}",
      "s_lshl_b32 s35, s28, 13", "s_mov_b32 m0, s35",
      "s_cmp_eq_u32 s28, 5", "s_cselect_b32 s36, 0x80000000, 0", "v_or_b32 v4, s36, v3")
    A("s_waitcnt lgkmcnt(0)")
    srd(A, 12, 40, U_SZ, U_OFF)
    for i in range(4): A(f"buffer_load_dwordx4 v3, s[12:15], s33 offen offset:{1024*i} lds")
    A("s_add_u32 m0, s35, 4096", "s_nop 0")
    for i in range(4): A(f"buffer_load_dwordx4 v4, s[12:15], s34 offen offset:{1024*i} lds")
    SC = 2/(640*2048)
    A("v_cvt_f32_u32 v5, v5", f"v_mul_f32 v5, {fl(1/2048)}, v5", "v_cvt_f32_u32 v7, v2", "v_mul_f32 v7, 4.0, v7", f"s_mov_b32 s37, {fl(SC)}", "v_mul_f32 v6, v7, v5")
    for jp in range(4):
        for e in range(2):
            j = 2*jp+e
            A(f"v_fmamk_f32 v{8+e}, v5, {fl(float(16*(j>>2)+(j&3)))}, v6")
        A("v_cos_f32 v10, v8", "v_cos_f32 v11, v9", "v_sin_f32 v12, v8", "v_sin_f32 v13, v9")
        A(f"v_cvt_pk_bf16_f32 v{GC+jp}, v10, v11", f"v_cvt_pk_bf16_f32 v{GS+jp}, v12, v13", f"v_cvt_pk_bf16_f32 v{GN+jp}, -v12, -v13")
    A("v_lshrrev_b32 v5, 2, v0", "v_lshlrev_b32 v5, 7, v5", "v_and_b32 v8, 3, v0", "v_lshl_add_u32 v5, v8, 4, v5", "v_add_u32 v5, s35, v5")
    A("s_lshl_b32 s33, s28, 4", "v_cvt_f32_u32 v8, s33", "v_add_f32 v8, v8, v7")
    for e in range(4):
        A(f"v_add_f32 v9, {fl(float(e))}, v8")
        for r in (1,2,3):
            A(f"v_mul_f32 v10, {fl(r/640)}, v9", f"v_cos_f32 v{TWc(r)+e}, v10", f"v_sin_f32 v{TWs(r)+e}, v10")
    A("s_lshl_b32 s33, s28, 12", f"s_add_u32 s33, s33, {ZIMG}", "v_add_u32 v6, s33, v3")
    stamp(A, 1)
    A("s_waitcnt vmcnt(0)")
    stamp(A, 2)
    order = [(0,0),(1,1),(0,1),(1,0)]
    for ty, tau in order:
        for pl in range(2):
            for jh in range(2):
                A(f"ds_read_b64_tr_b16 {vr(UA(ty,tau,pl)+2*jh,2)}, v5 offset:{ty*4096+jh*2048+tau*64+pl*8}")
    for n, (ty, tau) in enumerate(order):
        re = vr(VA(ty,tau,0),4); im = vr(VA(ty,tau,1),4); ur = vr(UA(ty,tau,0),4); ui = vr(UA(ty,tau,1),4)
        A(f"s_waitcnt lgkmcnt({12-4*n})")
        A(f"{M} {re}, {ur}, {vr(GC,4)}, 0", f"{M} {im}, {ui}, {vr(GC,4)}, 0", f"{M} {re}, {ui}, {vr(GN,4)}, {re}", f"{M} {im}, {ur}, {vr(GS,4)}, {im}")
    def pk(op, d, a, b, c=None, nb=False, na=False):
        s = f"v_pk_{op}_f32 {vr(d,2)}, {vr(a,2)}, {vr(b,2)}" + (f", {vr(c,2)}" if c is not None else "")
        n = [int(na), int(nb)] + ([0] if c is not None else [])
        if na or nb: s += f" neg_lo:[{','.join(map(str,n))}] neg_hi:[{','.join(map(str,n))}]"
        return s
    Ar,Ai,Br,Bi,Dr,Di,Cr,Ci = [VA(ty,tau,pl) for ty in range(2) for tau in range(2) for pl in range(2)]
    pr,pi,qr,qi,ur,ui,wr,wi = [TT+4*i for i in range(8)]
    Z = lambda r, pl: 52 + (r*2+pl)*4
    for e in (0,2):
        A(pk('add',pr+e,Ar+e,Cr+e), pk('add',pi+e,Ai+e,Ci+e,nb=True), pk('add',qr+e,Ar+e,Cr+e,nb=True), pk('add',qi+e,Ai+e,Ci+e))
    for e in (0,2):
        A(pk('add',ur+e,Br+e,Dr+e), pk('add',ui+e,Bi+e,Di+e,nb=True), pk('add',wr+e,Br+e,Dr+e,nb=True), pk('add',wi+e,Bi+e,Di+e))
    b = lambda r, pl: 84 + (r*2+pl)*4
    for e in (0,2):
        A(pk('add',Z(0,0)+e,pr+e,ur+e), pk('add',Z(0,1)+e,pi+e,ui+e), pk('add',b(2,0)+e,pr+e,ur+e,nb=True), pk('add',b(2,1)+e,pi+e,ui+e,nb=True),
          pk('add',b(1,0)+e,qr+e,wi+e,nb=True), pk('add',b(1,1)+e,qi+e,wr+e), pk('add',b(3,0)+e,qr+e,wi+e), pk('add',b(3,1)+e,qi+e,wr+e,nb=True))
    for r in range(4):
        if r:
            for e in (0,2):
                A(pk('mul',Z(r,0)+e,b(r,0)+e,TWc(r)+e), pk('mul',Z(r,1)+e,b(r,0)+e,TWs(r)+e))
            for e in (0,2):
                A(pk('fma',Z(r,0)+e,b(r,1)+e,TWs(r)+e,Z(r,0)+e,na=True), pk('fma',Z(r,1)+e,b(r,1)+e,TWc(r)+e,Z(r,1)+e))
        o = TT + 4*r
        for j in range(4): A(f"v_cvt_pk_bf16_f32 v{o+j}, v{Z(r,0)+2*j}, v{Z(r,0)+2*j+1}")
        A(f"ds_write_b128 v6, {vr(o,4)} offset:{r*1024}")
    A("s_waitcnt lgkmcnt(0)")
    stamp(A, 3)
    A("s_barrier", "s_branch Lk3_end")
    A("Lk3_back:")
    HF = lambda bb: 16 + 4*bb
    XR, P0, P1 = 40, 48, 56
    GU = 64
    XU = 80
    ZF = lambda bb, r: 96 + ((bb % 3)*4+r)*4
    AC = lambda r: 144 + 4*r
    A("s_bfe_u32 s33, s32, 0x10001", "s_mul_i32 s33, s33, 5", "s_add_u32 s42, s33, s28", "s_sub_u32 s42, s42, 6")
    A("s_lshl_b32 s33, s30, 10", "s_add_u32 s33, s33, s29", "v_lshl_add_u32 v6, v2, 8, s33", "v_mul_u32_u24 v6, 1280, v6", "v_lshl_add_u32 v6, v1, 3, v6",
      "s_lshl_b32 s44, s42, 7", "s_add_u32 s45, s44, 81920", "s_add_u32 s46, s45, 81920", "s_add_u32 s47, s46, 81920", "v_lshlrev_b32 v5, 5, v0")
    A("s_mul_i32 s48, s29, 10", "s_add_u32 s48, s48, s42", "s_lshl_b32 s48, s48, 12", "s_lshl_b32 s34, s30, 11", "s_add_u32 s48, s48, s34",
      f"s_add_u32 s49, s48, {P_SZ//2}", "v_cvt_f32_u32 v7, v2", "v_mul_f32 v7, 4.0, v7")
    Hl = Asm(); hgen(Hl, HF, 42)
    n0 = OPT.get('k3d', 100)
    A(*Hl.lines[:n0])
    A("s_waitcnt lgkmcnt(0)")
    srd(A, 20, 40, P_SZ, P_OFF); srd(A, 16, 4, X_SZ); srd(A, 24, 6, X_SZ)
    for half in range(2):
        A(f"buffer_load_dwordx4 {vr(P0+4*half,4)}, v5, s[20:23], s48 offen offset:{16*half}",
          f"buffer_load_dwordx4 {vr(P1+4*half,4)}, v5, s[20:23], s49 offen offset:{16*half}")
    for e in range(4):
        A(f"buffer_load_dwordx2 {vr(XR+2*e,2)}, v6, s[16:19], s{44+e} offen")
    A(*Hl.lines[n0:])
    SC = 2/(640*2048)
    A(f"s_mov_b32 s36, {fl(-1.4426950408889634)}", f"s_mov_b32 s38, {fl(1/SC)}", f"v_add_u32 v4, {ZIMG}, v3")
    stamp(A, 1)
    for half in range(2):
        A(f"s_waitcnt vmcnt({6-2*half})")
        g = GU + 8*half; t = 96
        for q in range(4):
            A(f"v_lshlrev_b32 v{g+2*q}, 16, v{P0+4*half+q}", f"v_and_b32 v{g+2*q+1}, 0xffff0000, v{P0+4*half+q}",
              f"v_lshlrev_b32 v{t+2*q}, 16, v{P1+4*half+q}", f"v_and_b32 v{t+2*q+1}, 0xffff0000, v{P1+4*half+q}")
        for i in range(8): A(f"v_add_f32 v{g+i}, v{g+i}, v{t+i}")
        for i in range(8): A(f"v_mul_f32 v{t+i}, s36, v{g+i}")
        for i in range(8): A(f"v_exp_f32 v{t+i}, v{t+i}")
        for i in range(8): A(f"v_fma_f32 v{t+i}, v{t+i}, s38, s38")
        for i in range(8): A(f"v_rcp_f32 v{t+i}, v{t+i}")
        for i in range(8): A(f"v_mul_f32 v{g+i}, v{g+i}, v{t+i}")
    stamp(A, 2)
    A("s_barrier")
    stamp(A, 3)
    def zr(bb): return [f"ds_read_b128 {vr(ZF(bb,r),4)}, v4 offset:{(bb*4+r)*1024}" for r in range(4)]
    for bb in range(3): A(*zr(bb))
    A("s_waitcnt vmcnt(0)")
    for q in range(8):
        A(f"v_lshlrev_b32 v{XU+2*q}, 16, v{XR+q}", f"v_and_b32 v{XU+2*q+1}, 0xffff0000, v{XR+q}")
    for bb in range(6):
        A(f"s_waitcnt lgkmcnt({min(8,4*(5-bb))})")
        for r in range(4):
            A(f"{M} {vr(AC(r),4)}, {vr(ZF(bb,r),4)}, {vr(HF(bb),4)}, {'0' if bb==0 else vr(AC(r),4)}")
        if bb < 3: A(*zr(bb+3))
    for e in range(4):
        for r in range(4):
            A(f"v_fmac_f32 v{XU+4*e+r}, v{AC(r)+e}, v{GU+4*r+e}")
        for q in (2*e, 2*e+1):
            A(f"v_cvt_pk_bf16_f32 v{XR+q}, v{XU+2*q}, v{XU+2*q+1}")
        A(f"buffer_store_dwordx2 {vr(XR+2*e,2)}, v6, s[24:27], s{44+e} offen {OPT['sc_o']}")
    kend(A, 2, "Lk3_end")

def kd(name, vgpr, sgpr=100, accum=None):
    accum = accum or min(256, (vgpr+3)//4*4)
    return f""".amdhsa_kernel {name}
  .amdhsa_next_free_vgpr {vgpr}
  .amdhsa_next_free_sgpr {sgpr}
  .amdhsa_accum_offset {accum}
  .amdhsa_group_segment_fixed_size 0
  .amdhsa_kernarg_size 88
  .amdhsa_user_sgpr_count 2
  .amdhsa_user_sgpr_kernarg_segment_ptr 1
  .amdhsa_system_sgpr_workgroup_id_x 1
.end_amdhsa_kernel
"""

def build(kernels):
    hdr = open(f"cdna_kernels/{NAME}.s.ref").read().split("; Override")[0]
    out = hdr
    for (name, fn, grid, block, lds, vg) in kernels:
        out += f"; @launch kernel={name} grid=({grid},1,1) block=({block},1,1) lds={lds}\n"
    out += '.amdgcn_target "amdgcn-amd-amdhsa--gfx950"\n.text\n'
    seen = []
    for (name, fn, grid, block, lds, vg) in kernels:
        if name in seen: continue
        seen.append(name)
        A = Asm(); fn(A)
        out += f".globl {name}\n.p2align 8\n.type {name},@function\n" + A.text()
    out += '.section .rodata,"a"\n'
    seen = []
    for (name, fn, grid, block, lds, vg) in kernels:
        if name in seen: continue
        seen.append(name)
        out += ".p2align 6\n" + kd(name, vg)
    return out

KS = [("k1_kernel", k1, 256, 512, 133120, 256), ("k3_kernel", k3, 256, 704, 98304, 160)]

if __name__ == '__main__':
    DIAG = len(sys.argv) > 2 and sys.argv[2] == 'diag'
    for kv in sys.argv[3:]:
        k, v = kv.split('='); OPT[k] = eval(v)
    open(sys.argv[1] if len(sys.argv) > 1 else 'cur.s', 'w').write(build(KS))
```

```python
import sys, math
from asmlib import *

NAME = "recurrent_scan__spectral_gfnet__dense_activation_gelu__prompt"
H_OFF, H_SZ = 0, 2048*1728*2
T_OFF, T_SZ = 0x700000, 32*11*64*128
U_OFF, U_SZ = 0xA00000, 32*11*64*128
P_OFF, P_SZ = 0xD00000, 2*2048*640*2
FL_OFF, FL_SZ = 0x1200000, 33*8192
X_SZ = 2048*640*2
W1_SZ = 640*1728*2
WF_SZ = 2048*321*2
OPT = dict(rot1='xcd', rot2=False, pf=False, mpf=False, lpf=True, ppf=False, nw=2, mpf1=False, sc_h='sc1', sc_t='sc1', sc_u='sc1', sc_p='sc1', sc_o='', map1='4x7', D=2, cpf=True, hpf=False, pfst=None)

def vr(b, n): return f"v[{b}:{b+n-1}]"
def srd(A, d, base, size, off=0):
    if off:
        A(f"s_add_u32 s{d}, s{base}, 0x{off:x}", f"s_addc_u32 s{d+1}, s{base+1}, 0")
    else:
        A(f"s_mov_b32 s{d}, s{base}", f"s_mov_b32 s{d+1}, s{base+1}")
    A(f"s_mov_b32 s{d+2}, {size}", f"s_mov_b32 s{d+3}, 0x00020000")

DIAG = False
DIAG_OFF = 0x2000000
def stamp(A, k):
    if DIAG:
        A(f"s_memrealtime s[{60+2*k}:{61+2*k}]", "s_waitcnt lgkmcnt(0)")
def kstart(A):
    if DIAG:
        for k in range(60, 92): A(f"s_mov_b32 s{k}, 0")
        A("s_memrealtime s[60:61]", "s_memtime s[88:89]", "s_load_dwordx2 s[92:93], s[0:1], 80", "s_waitcnt lgkmcnt(0)")
def kend(A, kid, lab):
    A(f"{lab}:")
    if DIAG:
        A("s_memrealtime s[84:85]", "s_waitcnt vmcnt(0) lgkmcnt(0)", "s_memrealtime s[86:87]", "s_memtime s[90:91]", "s_waitcnt lgkmcnt(0)")
        A(f"s_add_u32 s92, s92, 0x{DIAG_OFF:x}", "s_addc_u32 s93, s93, 0", "s_mov_b32 s94, 0x1000000", "s_mov_b32 s95, 0x00020000")
        A(f"s_add_u32 s96, s2, {kid*256}", "s_lshl_b32 s96, s96, 4", "s_add_u32 s96, s96, s28", "s_lshl_b32 s96, s96, 6", "s_mov_b64 exec, -1", "v_mov_b32 v1, 0")
        for q in range(4):
            for j in range(4): A(f"v_mov_b32 v{4+j}, s{60+2*(4*q+j)}")
            A(f"buffer_store_dwordx4 v[4:7], v1, s[92:95], s96 offen offset:{16*q}", "s_nop 1")
    A("s_endpgm")
    A(f"{lab}_x:", "s_endpgm")

GA = -2*0.7978845608028654*1.4426950408889634
GB = GA*0.044715
ONES = "0x3f803f80"
M32 = "v_mfma_f32_32x32x16_bf16"
M16 = "v_mfma_f32_16x16x32_bf16"

def row_stats(A, sx, sxx, t0, t1, mean, sq):
    A(f"v_mul_f32 v{mean}, {fl(1/640)}, v{sx}",
      f"v_mul_f32 v{t0}, {fl(1/640)}, v{sxx}",
      f"v_fma_f32 v{t0}, -v{mean}, v{mean}, v{t0}",
      f"v_max_f32 v{t0}, 0, v{t0}",
      f"v_cvt_pk_bf16_f32 v{t0}, v{t0}, v{t0}",
      f"v_lshlrev_b32 v{t0}, 16, v{t0}",
      f"v_add_f32 v{t0}, {fl(1e-5)}, v{t0}",
      f"v_cvt_pk_bf16_f32 v{t0}, v{t0}, v{t0}",
      f"v_lshlrev_b32 v{t0}, 16, v{t0}",
      f"v_sqrt_f32 v{sq}, v{t0}")

RING = 4
def set_flag(nv, va, soff, off=0):
    return ["s_mov_b64 exec, 0xffff", f"buffer_store_dwordx2 {vr(nv,2)}, v{va}, s[52:55], {soff} offen offset:{off} sc1", "s_mov_b64 exec, -1"]
SPIN_MAX = 0x20000
_pl = [0]
def sync_srds(A):
    srd(A, 52, 6, FL_SZ, FL_OFF); srd(A, 56, 50, 256)
def chk_cleared(A, v, vz):
    _pl[0] += 1; n = _pl[0]
    A(f"s_mov_b32 s3, 0", f"Lcc{n}:", f"v_readfirstlane_b32 s49, v{v}", "s_add_u32 s3, s3, 1", "s_cmp_lg_u32 s49, 0", f"s_cbranch_scc1 Lcd{n}",
      f"s_cmp_ge_u32 s3, {SPIN_MAX}", f"s_cbranch_scc1 Lcd{n}",
      f"buffer_load_dwordx2 {vr(v,2)}, v{vz}, s[56:59], 0 offen sc1", "s_waitcnt vmcnt(0)", f"s_branch Lcc{n}", f"Lcd{n}:")
_cpf_n = [0]
def cpf(A, target, sel, v=(14,15,13), s=(56,58)):
    _cpf_n[0] += 1; lab = f"Lcpf{_cpf_n[0]}"
    a, t = s
    A(f"s_getpc_b64 s[{a}:{a+1}]", f"{lab}:", f"s_add_u32 s{a}, s{a}, {target}-{lab}", f"s_addc_u32 s{a+1}, s{a+1}, ({target}-{lab})>>32")
    A(f"v_lshlrev_b32 v{v[0]}, 7, v0")
    if sel: A(f"s_lshl_b32 s{t}, {sel}, 13", f"v_add_u32 v{v[0]}, s{t}, v{v[0]}")
    A(f"v_mov_b32 v{v[1]}, s{a+1}", f"v_add_co_u32 v{v[0]}, vcc, s{a}, v{v[0]}", f"v_addc_co_u32 v{v[1]}, vcc, 0, v{v[1]}, vcc",
      f"global_load_dword v{v[2]}, v[{v[0]}:{v[1]}], off")
ACC = lambda mt, nt: 16 + (mt*2+nt)*16
FB = lambda p, kk, w: 80 + p*64 + kk*16 + w*4

def loader_loop(A, NST, issue, extra=None, D=None):
    D = D or OPT['D']
    ops = []
    for st in range(2): ops += [st]*(issue(st) or 8)
    nxt = 2
    for st in range(NST):
        last = max(i for i, x in enumerate(ops) if x == st)
        A(f"s_waitcnt vmcnt({len(ops)-1-last})", "s_barrier")
        while nxt < NST and nxt <= (st+D if st >= 1 else 2):
            ops += [nxt]*(issue(nxt) or 8); nxt += 1
            if extra and nxt == OPT.get('lpfs', NST): ops += ['x']*extra()

def compute_loop(A, NST, reads, mfmas, tail, stampf=None, gap=None):
    A("s_barrier")
    A(*reads(0))
    A("s_waitcnt lgkmcnt(0)")
    if stampf: stampf(0)
    A("s_barrier")
    for st in range(1, NST):
        M = mfmas(st-1)
        G = gap(st-1) if gap else []
        n1 = len(G) - 30 if G else 0
        A(*spread(M[:10], spread(reads(st), G[:n1])))
        A(*spread(M[10:13], G[n1:n1+15]))
        A("s_waitcnt lgkmcnt(0)")
        if stampf: stampf(st)
        if st < NST-1: A("s_barrier")
        A(*spread(M[13:], G[n1+15:]))
        A(*tail(st-1))

def k1(A):
    A("k1_kernel:")
    A("s_cmp_ge_u32 s2, 256", "s_cbranch_scc1 Lk1_end_x")
    kstart(A)
    A("s_load_dwordx2 s[4:5], s[0:1], 0", "s_load_dwordx4 s[8:11], s[0:1], 32", "s_load_dwordx2 s[6:7], s[0:1], 80", "s_load_dwordx2 s[50:51], s[0:1], 72", "s_load_dwordx2 s[36:37], s[0:1], 56")
    A("v_lshrrev_b32 v1, 6, v0", "v_and_b32 v0, 63, v0", "v_readfirstlane_b32 s28, v1")
    A("s_and_b32 s31, s2, 7", "s_lshr_b32 s32, s2, 3")
    if OPT['cpf']:
        A("s_lshl_b32 s33, s32, 3", "s_add_u32 s33, s33, s28", "s_cmp_ge_u32 s33, 4", "s_cbranch_scc1 Lk1_nc")
        cpf(A, "k1_kernel", "s28", v=(14,15,253))
        A("Lk1_nc:")
    A("s_cmp_ge_u32 s32, 28", "s_cbranch_scc1 Lp1")
    A("s_lshr_b32 s29, s31, 1", "s_lshl_b32 s29, s29, 2", "s_and_b32 s33, s32, 3", "s_add_u32 s29, s29, s33")
    A("s_and_b32 s30, s31, 1", "s_mul_i32 s30, s30, 7", "s_lshr_b32 s33, s32, 2", "s_add_u32 s30, s30, s33")
    A("s_cmp_lt_u32 s28, 4", "s_cbranch_scc1 Lg1c")
    g1_loader(A)
    g2_loader(A)
    A("Lg1c:")
    g1_compute(A)
    g2_compute(A)
    A("Lp1:")
    p1(A)
    A("Lp2:")
    p2(A)
    kend(A, 0, "Lk1_end")

def g1_loader(A):
    NST = 10
    A("s_sub_u32 s33, s28, 4")
    A("v_lshrrev_b32 v1, 3, v0", "v_and_b32 v2, 7, v0", "v_lshrrev_b32 v3, 4, v0",
      "s_lshl_b32 s34, s29, 2", "s_add_u32 s34, s34, s33",
      "v_lshl_add_u32 v1, v1, 6, s34", "v_mul_u32_u24 v1, 1280, v1",
      "v_xor_b32 v8, v2, v3", "v_xor_b32 v9, 4, v8",
      "v_lshl_add_u32 v4, v8, 4, v1", "v_lshl_add_u32 v5, v9, 4, v1",
      f"v_add_u32 v5, {8*64*1280}, v5", f"v_add_u32 v6, {16*64*1280}, v4", f"v_add_u32 v7, {16*64*1280}, v5")
    A("v_and_b32 v2, 15, v0", "v_lshlrev_b32 v8, 2, v3", "v_xor_b32 v2, v2, v8",
      "s_lshl_b32 s34, s33, 4", "v_add_u32 v8, s34, v3", "v_mul_u32_u24 v8, 3456, v8",
      "s_lshl_b32 s34, s30, 8", "v_lshl_add_u32 v10, v2, 4, v8", "v_add_u32 v10, s34, v10")
    A("s_cmp_eq_u32 s30, 13", "s_cselect_b32 s34, 8, 16",
      "v_cmp_le_u32 vcc, s34, v2", "v_mov_b32 v8, 0x80000000", "s_nop 0", "v_cndmask_b32 v10, v10, v8, vcc")
    A("s_lshl_b32 s40, s33, 12")
    if OPT['rot1']:
        if OPT['rot1'] == 'xcd':
            A("s_lshr_b32 s43, s31, 1", "s_mul_i32 s43, s43, 5", "s_lshr_b32 s43, s43, 1", "s_and_b32 s34, s31, 1", "s_mul_i32 s34, s34, 5", "s_add_u32 s43, s43, s34")
        elif OPT['map1'] == '2x14':
            A("s_mul_i32 s43, s30, 47", "s_lshr_b32 s43, s43, 6", "s_and_b32 s34, s29, 1", "s_mul_i32 s34, s34, 5", "s_add_u32 s43, s43, s34")
        else:
            A("s_lshr_b32 s43, s32, 2", "s_mul_i32 s43, s43, 92", "s_and_b32 s34, s32, 3", "s_mul_i32 s34, s34, 160", "s_add_u32 s43, s43, s34", "s_lshr_b32 s43, s43, 6")
        A("s_cmp_ge_u32 s43, 10", "s_cselect_b32 s34, 10, 0", "s_sub_u32 s43, s43, s34")
    else:
        A("s_mov_b32 s43, 0")
    A("s_waitcnt lgkmcnt(0)")
    srd(A, 12, 4, X_SZ); srd(A, 16, 8, W1_SZ)
    def issue(st):
        slot = (st % RING) * 32768
        A("s_lshl_b32 s41, s43, 7", f"s_mul_i32 s42, s43, {64*3456}")
        for q in range(4):
            A(f"s_add_u32 m0, s40, {slot + q*1024}", "s_nop 0", f"buffer_load_dwordx4 v{4+q}, s[12:15], s41 offen lds")
            A(f"s_add_u32 m0, s40, {slot + 16384 + q*1024}", "s_nop 0", f"buffer_load_dwordx4 v10, s[16:19], s42 offen lds")
            if q < 3: A(f"s_add_u32 s42, s42, {4*3456}")
        A("s_add_u32 s43, s43, 1", "s_cmp_eq_u32 s43, 10", "s_cselect_b32 s43, 0, s43")
    def extra():
        A("s_load_dwordx4 s[44:47], s[0:1], 8", "s_load_dwordx2 s[48:49], s[0:1], 48",
          "s_lshl_b32 s34, s2, 1", "s_add_u32 s34, s34, s33", "s_cmp_lt_u32 s33, 2", "s_cselect_b32 s34, s34, s2", "s_lshl_b32 s34, s34, 13",
          "v_lshl_add_u32 v11, v0, 7, s34", "s_waitcnt lgkmcnt(0)",
          "s_cmp_eq_u32 s33, 2", "s_cselect_b32 s20, s44, s46", "s_cselect_b32 s21, s45, s47",
          "s_cmp_lt_u32 s33, 2", "s_cselect_b32 s20, s48, s20", "s_cselect_b32 s21, s49, s21", f"s_mov_b32 s22, {W1_SZ}", f"s_cselect_b32 s22, s22, {WF_SZ}",
          "s_mov_b32 s23, 0x00020000", "v_mov_b32 v12, 0")
        sync_srds(A)
        A("buffer_load_dwordx2 v[18:19], v12, s[56:59], 0 offen sc1")
        if OPT['lpf']: A("buffer_load_dword v16, v11, s[20:23], 0 offen")
        return 2 if OPT['lpf'] else 1
    loader_loop(A, NST, issue, extra, OPT.get('D1'))
    A("s_barrier")
    A("s_cmp_ge_u32 s32, 20", "s_cbranch_scc1 Lp2")

def g1_compute(A):
    NST = 10
    XA = lambda kk, nt: 208 + kk*2 + nt
    WA = lambda mt: 216 + mt
    SX, SXX, CS, B1 = 218, 219, 220, 221
    A("s_and_b32 s33, s28, 1", "s_lshr_b32 s34, s28, 1")
    A("v_and_b32 v1, 31, v0", "v_lshrrev_b32 v2, 5, v0")
    A("s_lshl_b32 s35, s30, 7", "s_lshl_b32 s40, s33, 6", "s_add_u32 s35, s35, s40", "s_lshl_b32 s40, s34, 5", "s_add_u32 s35, s35, s40",
      "v_add_lshl_u32 v9, v1, s35, 1", f"v_mov_b32 v{B1}, 0")
    A("s_lshl_b32 s35, s34, 13", "s_lshl_b32 s40, s33, 12", "s_add_u32 s35, s35, s40",
      "v_lshl_add_u32 v3, v1, 7, s35", "v_bfe_u32 v4, v0, 1, 3", "v_xor_b32 v4, v4, v2")
    for kk in range(4):
        A(f"v_xor_b32 v5, {2*kk}, v4", f"v_lshl_add_u32 v{XA(kk,0)}, v5, 4, v3", f"v_xor_b32 v{XA(kk,1)}, 0x1000, v{XA(kk,0)}")
    A("v_bfe_u32 v4, v0, 2, 2", "v_lshl_add_u32 v5, v2, 3, v4", "v_lshlrev_b32 v5, 8, v5",
      "v_bfe_u32 v6, v0, 4, 1", "v_lshl_add_u32 v5, v6, 5, v5", "v_and_b32 v6, 3, v0", "v_lshl_add_u32 v5, v6, 3, v5",
      "s_lshl_b32 s35, s33, 1", "s_add_u32 s35, s35, s34",
      "v_xor_b32 v6, s35, v4", f"v_lshl_add_u32 v{WA(0)}, v6, 6, v5", f"v_xor_b32 v{WA(1)}, 64, v{WA(0)}")
    A(f"v_mov_b32 v{SX}, 0", f"v_mov_b32 v{SXX}, 0", f"v_mov_b32 v{CS}, 0", f"s_mov_b32 s41, {ONES}")
    A("s_waitcnt lgkmcnt(0)")
    srd(A, 20, 10, 1728*2); srd(A, 24, 6, H_SZ, H_OFF)
    A(f"buffer_load_short_d16_hi v{B1}, v9, s[20:23], 0 offen")
    srd(A, 16, 36, 640*2)
    A("s_lshr_b32 s35, s32, 2", "s_lshl_b32 s35, s35, 8", "s_lshl_b32 s40, s33, 7", "s_add_u32 s35, s35, s40",
      "s_lshl_b32 s40, s31, 31", "s_or_b32 s35, s35, s40", "v_lshl_add_u32 v9, v1, 1, s35",
      "buffer_load_ushort v222, v9, s[16:19], 0 offen", "buffer_load_ushort v223, v9, s[16:19], 0 offen offset:64")
    A("s_lshl_b32 s35, s30, 1", "s_add_u32 s35, s35, s33")
    for mt in range(2):
        for nt in range(2):
            s = 44 + mt*2 + nt
            A("s_lshl_b32 s40, s29, 2", "s_lshl_b32 s42, s34, 1", "s_add_u32 s40, s40, s42", f"s_xor_b32 s42, s33, {nt}", "s_add_u32 s40, s40, s42",
              "s_mulk_i32 s40, 108", "s_lshl_b32 s42, s35, 2", "s_add_u32 s40, s40, s42", f"s_xor_b32 s42, s34, {mt}",
              "s_add_u32 s40, s40, s42", f"s_lshl_b32 s{s}, s40, 10")
    XCH = 131072
    A("s_lshl_b32 s42, s34, 9", "s_lshl_b32 s40, s33, 8", "s_add_u32 s42, s42, s40", f"s_add_u32 s42, s42, {XCH}", "v_lshl_add_u32 v7, v1, 3, s42",
      "s_lshl_b32 s42, s33, 9", "s_lshl_b32 s40, s34, 8", "s_add_u32 s42, s42, s40", f"s_add_u32 s42, s42, {XCH}", "v_lshl_add_u32 v8, v1, 3, s42",
      "v_lshlrev_b32 v9, 4, v0")
    XF0, WF0, XF1, WF1 = 224, 228, 232, 236
    for r in (XF0, WF0, XF1, WF1):
        A(f"v_mov_b32 v{r+2}, 0", f"v_mov_b32 v{r+3}, 0")
    sync_srds(A)
    A("s_lshl_b32 s48, s29, 1", "s_add_u32 s48, s48, s34", "s_lshl_b32 s48, s48, 13", "s_lshl_b32 s40, s35, 8", "s_add_u32 s48, s48, s40", "v_mov_b32 v10, 0", "v_lshlrev_b32 v11, 3, v0")
    if OPT.get('tlb'):
        srd(A, 36, 6, 0x1400000)
        A("v_lshlrev_b32 v12, 21, v0", "v_add_u32 v12, 0x1fff80, v12", "s_cmp_lg_u32 s28, 1", "s_cbranch_scc1 Lg1_ntl", "buffer_load_dword v253, v12, s[36:39], 0 offen", "Lg1_ntl:")
    A("s_lshl_b32 s40, s2, 3", "s_add_u32 s40, s40, s28", "s_cmp_lg_u32 s40, 1737", "s_cbranch_scc1 Lg1_ncl")
    A("s_memrealtime s[36:37]", "s_waitcnt lgkmcnt(0)", "s_or_b32 s38, s36, 1", "v_mov_b32 v12, s38", "v_mov_b32 v13, s37",
      "s_mov_b64 exec, 1", "buffer_store_dwordx2 v[12:13], v10, s[56:59], 0 offen sc1", "s_mov_b64 exec, -1", "Lg1_ncl:")
    base = [0]
    def reads(st):
        p = st & 1; slot = (st % RING) * 32768
        L = []
        nb = slot & ~0xffff
        if nb != base[0]:
            for r in range(208, 218): L.append(f"v_xor_b32 v{r}, 0x10000, v{r}")
            base[0] = nb
        so = slot - nb
        for kk in range(4):
            for mt in range(2):
                for jh in range(2):
                    L.append(f"ds_read_b64_tr_b16 {vr(FB(p,kk,2+mt)+2*jh,2)}, v{WA(mt)} offset:{so+16384+(16*kk+4*jh)*256}")
            for nt in range(2):
                L.append(f"ds_read_b128 {vr(FB(p,kk,nt),4)}, v{XA(kk,nt)} offset:{so}")
        return L
    def mfmas(st):
        p = st & 1; L = []
        for kk in range(4):
            for mt in range(2):
                for nt in range(2):
                    c = "0" if (st == 0 and kk == 0) else vr(ACC(mt,nt),16)
                    L.append(f"{M32} {vr(ACC(mt,nt),16)}, {vr(FB(p,kk,2+mt),4)}, {vr(FB(p,kk,nt),4)}, {c}")
        return L
    def dots(st):
        p = st & 1; L = []
        for kk in range(4):
            for j in range(4):
                if not OPT.get('nostat'): L.append(f"v_dot2c_f32_bf16 v{SX}, s41, v{FB(p,kk,0)+j}")
                if (not OPT.get('sqv') or st == NST-1) and not OPT.get('nostat'): L.append(f"v_dot2c_f32_bf16 v{SXX}, v{FB(p,kk,0)+j}, v{FB(p,kk,0)+j}")
                L.append(f"v_dot2c_f32_bf16 v{CS}, s41, v{FB(p,kk,2)+j}")
        if st == 6: L.append("buffer_load_dwordx2 v[254:255], v10, s[56:59], 0 offen sc1")
        return L
    def sqgap(st):
        p = st & 1; L = []
        for kk in range(4):
            for j in range(4):
                r = FB(p,kk,0)+j
                L += [f"v_lshlrev_b32 v3, 16, v{r}", f"v_and_b32 v4, s51, v{r}", "v_fmac_f32 v222, v3, v3", "v_fmac_f32 v223, v4, v4"]
        return L
    pass
    compute_loop(A, NST, reads, mfmas, dots, lambda st: stamp(A, 1) if st == 0 else None)
    A(*dots(NST-1))
    M = mfmas(NST-1)
    F = Asm()
    if OPT.get('sqv'): F(f"v_add_f32 v{SXX}, v{SXX}, v222", f"v_add_f32 v{SXX}, v{SXX}, v223")
    for r in (SX, SXX, CS):
        F(f"v_mov_b32 v3, v{r}", "s_nop 1", f"v_permlane32_swap_b32 v{r}, v3", f"v_add_f32 v{r}, v{r}, v3")
    row_stats(F, SX, SXX, 3, 4, 5, 6)
    F(f"v_cvt_pk_bf16_f32 v{XF0}, -v5, -v5", f"v_cvt_pk_bf16_f32 v{XF0+1}, -v5, v6")
    F(f"v_cvt_pk_bf16_f32 v3, v{CS}, v{CS}", "v_lshlrev_b32 v3, 16, v3", f"v_sub_f32 v3, v{CS}, v3",
      f"v_cvt_pk_bf16_f32 v{WF0}, v{CS}, v3", f"v_and_b32 v4, 0xffff0000, v{WF0}", "v_sub_f32 v3, v3, v4",
      "s_waitcnt vmcnt(0)", f"v_cvt_pk_bf16_f32 v{WF0+1}, v3, v{B1}")
    F(f"ds_write_b64 v7, {vr(XF0,2)}", f"ds_write_b64 v8, {vr(WF0,2)} offset:1024",
      "v_xor_b32 v7, 0x100, v7", "v_xor_b32 v8, 0x100, v8")
    A(*spread(M[:8], F.lines))
    A(M[8], M[9])
    A("s_waitcnt lgkmcnt(0)", "s_barrier")
    A(f"ds_read_b64 {vr(XF1,2)}, v7", f"ds_read_b64 {vr(WF1,2)}, v8 offset:1024")
    A(*M[10:14])
    A("v_cmp_eq_u32 vcc, 0, v2", "s_waitcnt lgkmcnt(0)")
    G = Asm()
    for r in (WF0, WF0+1, WF1, WF1+1):
        G(f"v_cndmask_b32 v{r}, 0, v{r}, vcc")
    for nt in range(2):
        c = 240 + 4*nt
        G(f"v_and_b32 v{c+2}, 0xffff0000, v{(XF0,XF1)[nt]+1}", f"v_rcp_f32 v3, v{c+2}",
          f"v_mul_f32 v{c}, {fl(GA)}, v3", "v_mul_f32 v4, v3, v3", "v_mul_f32 v4, v4, v3", f"v_mul_f32 v{c+1}, {fl(GB)}, v4")
    A(*spread(M[14:], G.lines[:8]))
    X = [f"{M32} {vr(ACC(mt,nt),16)}, {vr((WF0,WF1)[mt],4)}, {vr((XF0,XF1)[nt],4)}, {vr(ACC(mt,nt),16)}" for mt in range(2) for nt in range(2)]
    A(*spread(X, G.lines[8:]))
    stamp(A, 2)
    A("s_cmp_ge_u32 s35, 27", "s_cbranch_scc1 Lp2")
    A("s_waitcnt vmcnt(0)")
    chk_cleared(A, 254, 10)
    n = 0
    for half in range(2):
        for mt in range(2):
            for nt in range(2):
                c = 240 + 4*nt
                a0 = ACC(mt,nt) + 8*half
                t = 80 + (n % 2)*16; o = 112 + (n % 4)*4; n += 1
                P = range(4)
                for i in P: A(f"v_pk_mul_f32 {vr(t+2*i,2)}, {vr(a0+2*i,2)}, {vr(a0+2*i,2)}")
                for i in P: A(f"v_pk_fma_f32 {vr(t+2*i,2)}, {vr(t+2*i,2)}, {vr(c,2)}, {vr(c,2)} op_sel:[0,1,0] op_sel_hi:[1,1,0]")
                for i in P: A(f"v_pk_mul_f32 {vr(t+2*i,2)}, {vr(t+2*i,2)}, {vr(a0+2*i,2)}")
                for i in range(8): A(f"v_exp_f32 v{t+i}, v{t+i}")
                for i in P: A(f"v_pk_fma_f32 {vr(t+2*i,2)}, {vr(t+2*i,2)}, {vr(c+2,2)}, {vr(c+2,2)} op_sel:[0,0,0] op_sel_hi:[1,0,0]")
                for i in range(8): A(f"v_rcp_f32 v{t+i}, v{t+i}")
                for i in P: A(f"v_pk_mul_f32 {vr(t+2*i,2)}, {vr(t+2*i,2)}, {vr(a0+2*i,2)}")
                for i in P: A(f"v_cvt_pk_bf16_f32 v{o+i}, v{t+2*i}, v{t+2*i+1}")
                A(f"buffer_store_dwordx4 {vr(o,4)}, v9, s[24:27], s{44+mt*2+nt} offen offset:{half*2048} sc1")
                if n == OPT.get('efl', 7):
                    A(f"s_waitcnt vmcnt({n-4})", *set_flag(254, 11, "s48"),
                      "s_cmp_ge_u32 s32, 20", "s_cbranch_scc1 Lg1_ng", "s_barrier", "Lg1_ng:")
    stamp(A, 3)
    A("s_cmp_lt_u32 s32, 20", "s_cbranch_scc1 Lg2c")
    A("s_waitcnt vmcnt(0)", *set_flag(254, 11, "s48", 128), "s_branch Lp2")
    A("Lg2c:")

def p1(A):
    BC = lambda u: 16 + 8*u
    BS = lambda u: 20 + 8*u
    TW = 56
    AF = lambda p, u: 64 + p*20 + 4*u
    AP = lambda p: 104 + 8*p
    AQ = lambda p: 108 + 8*p
    OUT = lambda par, i: 120 + par*8 + i
    TMP = 136
    YF = lambda o, pl: 152 + (o*2+pl)*4
    FP = lambda nt, pl: 184 + (nt*3+pl)*4
    TA = 208; PK = 240
    FPIMG, DCT, SCR = 81920, 94208, 98304
    A("s_sub_u32 s29, s32, 28", "s_lshl_b32 s29, s29, 3", "s_add_u32 s29, s29, s31", "s_lshl_b32 s29, s29, 1")
    A("s_lshr_b32 s46, s28, 2", "s_add_u32 s47, s46, s29", "s_and_b32 s48, s28, 3", "s_lshl_b32 s34, s48, 9", "s_add_u32 s47, s47, s34",
      "s_mul_i32 s33, s47, 1280", "s_mul_i32 s34, s28, 10240", "s_mov_b32 s35, 81920")
    A("v_and_b32 v1, 15, v0", "v_lshrrev_b32 v2, 4, v0", "v_lshlrev_b32 v4, 2, v2", "v_xor_b32 v3, v1, v4", "v_mul_u32_u24 v4, s35, v2", "v_lshl_add_u32 v4, v3, 4, v4")
    A("s_waitcnt lgkmcnt(0)")
    srd(A, 12, 4, X_SZ); srd(A, 36, 6, T_SZ, T_OFF)
    for i in range(10):
        A(f"s_add_u32 m0, s34, {1024*i}", f"s_add_u32 s40, s33, {(i//5)*4*81920+(i%5)*256}", "buffer_load_dwordx4 v4, s[12:15], s40 offen lds")
    sync_srds(A)
    if OPT['mpf1']:
        srd(A, 16, 8, W1_SZ)
        A("s_lshl_b32 s40, s29, 2", "s_add_u32 s40, s40, s28", f"s_mul_i32 s40, s40, {68*128}", "v_lshl_add_u32 v3, v0, 7, s40",
          "buffer_load_dword v150, v3, s[16:19], 0 offen", "buffer_load_dword v151, v3, s[16:19], 0 offen offset:512")
    A("s_and_b32 s41, s28, 1", "s_add_u32 s41, s41, 4", "s_bfe_u32 s42, s28, 0x10001",
      "s_cmp_lt_u32 s28, 4", "s_cselect_b32 s43, s28, s41", "s_cselect_b32 s44, 0, s42", "s_cselect_b32 s45, 1, 0")
    A("v_lshl_add_u32 v8, v2, 6, s47", "v_cvt_f32_u32 v8, v8", f"v_mul_f32 v8, {fl(1/2048)}, v8", "v_cvt_f32_u32 v9, v1", "v_add_f32 v10, 0x41800000, v9")
    for tt in range(2):
        if tt: A(f"v_add_f32 v8, {fl(256/2048)}, v8")
        for nt in range(2):
            A(f"v_mul_f32 v12, v8, v{9+nt}", f"v_cos_f32 v{208+nt*2+tt}, v12", f"v_sin_f32 v{212+nt*2+tt}, v12")
    A("v_lshrrev_b32 v8, 5, v0", "v_mul_u32_u24 v9, 5120, v8", "v_add_u32 v9, s34, v9", "v_bfe_u32 v8, v0, 3, 2", "v_lshl_add_u32 v9, v8, 8, v9",
      "v_lshl_add_u32 v224, v1, 4, v9", "v_xor_b32 v225, 128, v224")
    A("v_mov_b32 v228, 0", "v_mov_b32 v229, 0", "v_mov_b32 v230, 0", "v_mov_b32 v231, 0", f"s_mov_b32 s49, {ONES}")
    A("s_mul_i32 s41, s46, 6144", "s_lshl_b32 s42, s48, 2", "s_add_u32 s41, s41, s42", f"s_add_u32 s41, s41, {FPIMG}", "v_lshl_add_u32 v226, v0, 4, s41",
      "s_lshl_b32 s41, s46, 6", "s_add_u32 s41, s41, s42", f"s_add_u32 s41, s41, {DCT}", "v_lshl_add_u32 v227, v2, 4, s41")
    A("s_lshl_b32 s41, s43, 4", "v_add_u32 v3, s41, v1", "v_cvt_f32_u32 v4, v3", f"v_mul_f32 v5, {fl(1/160)}, v4",
      "v_cvt_f32_u32 v6, v2", "v_mul_f32 v6, 4.0, v6", "v_mul_f32 v6, v6, v5")
    A("v_and_b32 v14, 1, v0", "v_mov_b32 v15, 0x80008000", "v_mul_lo_u32 v14, v14, v15")
    for u in range(5):
        for jp in range(2):
            for e in range(2):
                A(f"v_fmamk_f32 v{8+e}, v5, {fl(float(16*u+2*jp+e))}, v6")
            A("v_cos_f32 v10, v8", "v_cos_f32 v11, v9", "v_sin_f32 v12, v8", "v_sin_f32 v13, v9",
              f"v_cvt_pk_bf16_f32 v{BC(u)+jp}, v10, v11", f"v_cvt_pk_bf16_f32 v{BS(u)+jp}, -v12, -v13",
              f"v_xor_b32 v{BC(u)+2+jp}, v14, v{BC(u)+jp}", f"v_xor_b32 v{BS(u)+2+jp}, v14, v{BS(u)+jp}")
    for r in (1,2,3):
        A(f"v_mul_f32 v8, {fl(r/640)}, v4", f"v_cos_f32 v{TW+2*r-2}, v8", f"v_sin_f32 v{TW+2*r-1}, v8")
    A("v_and_b32 v8, 3, v0", "v_bfe_u32 v9, v0, 3, 1", "v_lshl_add_u32 v9, v2, 1, v9", "v_lshlrev_b32 v10, 2, v8", "v_xor_b32 v9, v9, v10",
      "v_lshlrev_b32 v10, 8, v8", "v_lshl_add_u32 v10, v9, 4, v10", "v_bfe_u32 v9, v0, 2, 1", "v_lshl_add_u32 v14, v9, 3, v10",
      "s_mul_i32 s41, s44, 40960", "v_add_u32 v14, s41, v14", "v_xor_b32 v15, 128, v14")
    A("s_mul_i32 s41, s44, 6144", f"s_add_u32 s41, s41, {FPIMG}", "v_lshl_add_u32 v7, v0, 4, s41",
      "s_lshl_b32 s41, s44, 6", f"s_add_u32 s41, s41, {DCT}", "v_lshl_add_u32 v62, v2, 4, s41",
      "v_lshrrev_b32 v8, 3, v0", "s_mov_b32 s41, 90112", "v_mul_lo_u32 v63, v8, s41", "v_and_b32 v9, 7, v0", "v_lshl_add_u32 v63, v9, 4, v63",
      "s_lshl_b32 s41, s28, 12", f"s_add_u32 s41, s41, {SCR}",
      "v_xor_b32 v10, v8, v9", "v_lshl_add_u32 v3, v8, 7, s41", "v_lshl_add_u32 v3, v10, 4, v3",
      "v_xor_b32 v10, v2, v9", "v_lshl_add_u32 v5, v1, 7, s41", "v_lshl_add_u32 v5, v10, 4, v5", "v_xor_b32 v6, 64, v5")
    if OPT['ppf']:
        A("s_load_dwordx4 s[24:27], s[0:1], 8", "s_load_dwordx2 s[16:17], s[0:1], 48",
          "s_mul_i32 s40, s29, 6", "s_add_u32 s40, s40, s28", "s_cmp_lt_u32 s28, 4", "s_cselect_b32 s41, 0, 4", "s_add_u32 s40, s40, s41",
          "s_lshl_b32 s41, s40, 13", "v_lshl_add_u32 v146, v0, 7, s41",
          "s_cmp_lt_u32 s29, 32", f"s_cselect_b32 s41, 0, {192*8192}", "v_subrev_u32 v147, s41, v146", "s_waitcnt lgkmcnt(0)",
          "s_cselect_b32 s20, s24, s26", "s_cselect_b32 s21, s25, s27", f"s_mov_b32 s22, {WF_SZ}", "s_mov_b32 s23, 0x00020000",
          f"s_mov_b32 s18, {W1_SZ}", "s_mov_b32 s19, 0x00020000")
    stamp(A, 1)
    A(f"s_waitcnt vmcnt({2 if OPT['mpf1'] else 0})")
    stamp(A, 2)
    for I in range(5):
        for ii in range(2):
            A(f"ds_read_b128 {vr(64+(I*2+ii)*4,4)}, v{224+ii} offset:{1024*I}")
    for I in range(5):
        A(f"s_waitcnt lgkmcnt({2*(4-I)})")
        for j in range(8):
            r = 64 + I*8 + j
            A(f"v_dot2c_f32_bf16 v{228+(j&1)}, s49, v{r}", f"v_dot2c_f32_bf16 v{230+(j&1)}, v{r}, v{r}")
    A("v_add_f32 v228, v228, v229", "v_add_f32 v230, v230, v231")
    for qp in ("quad_perm:[1,0,3,2]", "quad_perm:[2,3,0,1]", "row_half_mirror"):
        A(f"v_add_f32_dpp v228, v228, v228 {qp} row_mask:0xf bank_mask:0xf", f"v_add_f32_dpp v230, v230, v230 {qp} row_mask:0xf bank_mask:0xf")
    row_stats(A, 228, 230, 8, 9, 10, 11)
    A("v_cvt_pk_bf16_f32 v11, v11, v10", "v_lshlrev_b32 v8, 5, v2", "v_and_b32 v10, 0xffff0000, v11", "v_lshlrev_b32 v11, 16, v11", "v_rcp_f32 v11, v11",
      f"v_fmac_f32 v228, {fl(-640.0)}, v10")
    for tt in range(2):
        A(f"ds_bpermute_b32 v{232+tt}, v8, v11 offset:{128*tt}", f"ds_bpermute_b32 v{234+tt}, v8, v228 offset:{128*tt}")
    A("s_waitcnt lgkmcnt(0)")
    for nt in range(2):
        c = 208+nt*2; sn = 212+nt*2; o = 236 + nt*3
        for tt in range(2):
            A(f"v_mul_f32 v{c+tt}, v{c+tt}, v{232+tt}", f"v_mul_f32 v{sn+tt}, v{sn+tt}, v{232+tt}")
        A(f"v_cvt_pk_bf16_f32 v{o}, v{c}, v{c+1}", f"v_cvt_pk_bf16_f32 v{o+1}, v{sn}, v{sn+1}", f"v_cvt_pk_bf16_f32 v{o+2}, -v{sn}, -v{sn+1}")
        for pl in range(3):
            A(f"ds_write_b32 v226, v{o+pl} offset:{(nt*3+pl)*1024}")
    A("v_cvt_pk_bf16_f32 v8, v234, v235", "ds_write_b32 v227, v8")
    A("s_waitcnt lgkmcnt(0)", "s_barrier")
    stamp(A, 3)
    A("Lp1_unit:")
    stamp(A, 4)
    def reads(t):
        return [f"ds_read_b64_tr_b16 {vr(AF(t&1,u)+2*jh,2)}, v{14+((u+5*jh)&1)} offset:{t*5120+((u+5*jh)>>1)*1024}" for u in range(5) for jh in range(2)]
    def mf(t):
        L = []
        for u in range(5):
            for (acc, B) in ((AP(t&1), BC(u)), (AQ(t&1), BS(u))):
                L.append(f"{M16} {vr(acc,4)}, {vr(AF(t&1,u),4)}, {vr(B,4)}, {'0' if u==0 else vr(acc,4)}")
        return L
    def bfly(t):
        P = AP(t&1); Q = AQ(t&1); O = lambda i: OUT(t&1, i)
        c1,s1,c2,s2,c3,s3 = range(TW, TW+6)
        pr,pi,qr,qi,ar,ai,ur,ui,wr_,wi_ = range(TMP, TMP+10)
        L = [f"v_fma_f32 v{pr}, v{P+2}, v{c2}, v{P}", f"v_fma_f32 v{pi}, v{Q+2}, v{c2}, v{Q}",
             f"v_mul_f32 v{ar}, v{P+1}, v{c1}", f"v_mul_f32 v{ai}, v{Q+1}, v{c1}",
             f"v_fmac_f32 v{pr}, v{Q+2}, v{s2}", f"v_fma_f32 v{pi}, -v{P+2}, v{s2}, v{pi}",
             f"v_fmac_f32 v{ar}, v{Q+1}, v{s1}", f"v_fma_f32 v{ai}, -v{P+1}, v{s1}, v{ai}",
             f"v_fma_f32 v{qr}, 2.0, v{P}, -v{pr}", f"v_fma_f32 v{qi}, 2.0, v{Q}, -v{pi}",
             f"v_fma_f32 v{ur}, v{P+3}, v{c3}, v{ar}", f"v_fma_f32 v{ui}, v{Q+3}, v{c3}, v{ai}",
             f"v_fmac_f32 v{ur}, v{Q+3}, v{s3}", f"v_fma_f32 v{ui}, -v{P+3}, v{s3}, v{ui}",
             f"v_fma_f32 v{wr_}, 2.0, v{ar}, -v{ur}", f"v_fma_f32 v{wi_}, 2.0, v{ai}, -v{ui}",
             f"v_add_f32 v{O(0)}, v{pr}, v{ur}", f"v_add_f32 v{O(1)}, v{pi}, v{ui}",
             f"v_sub_f32 v{O(6)}, v{pr}, v{ur}", f"v_sub_f32 v{O(7)}, v{ui}, v{pi}",
             f"v_sub_f32 v{O(2)}, v{qr}, v{wi_}", f"v_add_f32 v{O(3)}, v{qi}, v{wr_}",
             f"v_add_f32 v{O(4)}, v{qr}, v{wi_}", f"v_sub_f32 v{O(5)}, v{qi}, v{wr_}"]
        if t & 1:
            for i in (0,1,6,7,2,3,4,5):
                n = '-' if i == 3 else ''
                L.append(f"v_cvt_pk_bf16_f32 v{YF(i>>1,i&1)+(t>>1)}, {n}v{OUT(0,i)}, {n}v{OUT(1,i)}")
        return L
    A(*reads(0))
    for t in range(9):
        if t < 8:
            A("s_waitcnt lgkmcnt(0)")
            fill = (reads(t+1) if t < 7 else [f"ds_read_b128 {vr(FP(nt,pl),4)}, v7 offset:{(nt*3+pl)*1024}" for nt in range(2) for pl in range(3)])
            fill = fill + (bfly(t-1) if t >= 1 else [])
            if OPT['ppf'] and t == 0: fill.append("buffer_load_dword v12, v146, s[16:19], 0 offen")
            if OPT['ppf'] and t == 4: fill.append("buffer_load_dword v13, v147, s[20:23], 0 offen")
            A(*spread(mf(t), fill))
        else:
            B = bfly(7)
            A(*B[:25])
            A("s_cmp_lg_u32 s43, 0", "s_cbranch_scc1 Lp1_nodc", "s_mov_b32 exec_lo, 0x10001", "s_mov_b32 exec_hi, 0x10001",
              f"ds_read_b128 {vr(YF(0,0),4)}, v62", "s_mov_b64 exec, -1", "Lp1_nodc:")
            A(*B[25:])
    A("s_add_u32 s41, s29, s44", "s_lshl_b32 s41, s41, 7", "s_lshl_b32 s42, s43, 13", "s_add_u32 s41, s41, s42")
    A("v_mov_b32 v150, 0", "buffer_load_dwordx2 v[148:149], v150, s[56:59], 0 offen sc1")
    A("s_waitcnt lgkmcnt(0)")
    stamp(A, 5)
    def s1m(kinds, base):
        L = []; n = 0
        for tile, o in enumerate(kinds):
            for nt in range(2):
                re = base + n*8; im = re + 4; n += 1
                L += [f"{M16} {vr(re,4)}, {vr(YF(o,0),4)}, {vr(FP(nt,0),4)}, 0", f"{M16} {vr(im,4)}, {vr(YF(o,1),4)}, {vr(FP(nt,0),4)}, 0",
                      f"{M16} {vr(re,4)}, {vr(YF(o,1),4)}, {vr(FP(nt,1),4)}, {vr(re,4)}", f"{M16} {vr(im,4)}, {vr(YF(o,0),4)}, {vr(FP(nt,2),4)}, {vr(im,4)}"]
        return L
    def s1w(base):
        L = []; n = 0
        for tile in range(2):
            for nt in range(2):
                re = base + n*8; pk = PK + n*4; n += 1
                L += [f"v_cvt_pk_bf16_f32 v{pk+j}, v{re+2*j}, v{re+2*j+1}" for j in range(4)]
                L.append(f"ds_write_b128 v{5+tile}, {vr(pk,4)} offset:{nt*2048}")
        L += [f"ds_read_b128 {vr(base+4*q,4)}, v3 offset:{q*1024}" for q in range(4)]
        return L
    def s1s(base, poff):
        L = []
        for q in range(4):
            L += [f"s_add_u32 s42, s41, {q*8*90112+poff}", f"s_waitcnt lgkmcnt({3-q})",
                  f"buffer_store_dwordx4 {vr(base+4*q,4)}, v63, s[36:39], s42 offen {OPT['sc_t']}"]
        return L
    TB_ = 64
    A(*s1m((0,2), TA))
    A("s_cmp_eq_u32 s43, 5", "s_cbranch_scc1 Lp1_b5")
    A(*spread(s1m((1,3), TB_), s1w(TA)))
    A(*s1s(TA, 0))
    A(*s1w(TB_))
    A(*s1s(TB_, 6*8192))
    A("s_cmp_eq_u32 s45, 0", "s_cbranch_scc1 Lp1_done")
    A("s_mov_b32 s45, 0", "s_mov_b32 s44, 1", "v_add_u32 v14, 40960, v14", "v_add_u32 v15, 40960, v15", "v_add_u32 v7, 6144, v7", "v_add_u32 v62, 64, v62", "v_add_u32 v146, 0x8000, v146", "v_add_u32 v147, 0x8000, v147", "s_branch Lp1_unit")
    A("Lp1_b5:", "s_nop 7")
    A(*s1w(TA))
    A(*s1s(TA, 0))
    A("Lp1_done:")
    stamp(A, 6)
    A("s_lshl_b32 s41, s29, 6", f"s_add_u32 s41, s41, {32*8192}", "v_lshlrev_b32 v151, 3, v0", "s_waitcnt vmcnt(0)")
    chk_cleared(A, 148, 150)
    A("v_mov_b32 v18, v148", "v_mov_b32 v19, v149", "v_mov_b32 v12, 0")
    A("s_barrier", "s_cmp_lg_u32 s28, 0", "s_cbranch_scc1 Lp2")
    A(*set_flag(148, 151, "s41"))

HK = [(4*c, 4*c+2) for c in range(7)] + [(4*c+1, 4*c+3) for c in range(6)] + [(25, None)]
def hk_mask(sp, upto):
    m = 0
    for j, (a, b) in enumerate(HK[:upto]):
        if upto == 14 and j < 6: continue
        for hs, x in enumerate((a, b)):
            if x is None: continue
            x = x + 28*sp
            if sp and j == 6 and hs == 1: x = 53
            if sp and j == 13: x = 27
            m |= 1 << x
    return m
def set_mask(A, upto):
    m0, m1 = hk_mask(0, upto), hk_mask(1, upto)
    A("s_cmp_eq_u32 s50, 0", f"s_mov_b32 s36, 0x{m0 & 0xffffffff:x}", f"s_mov_b32 s37, 0x{m0 >> 32:x}",
      f"s_cselect_b32 s36, s36, 0x{m1 & 0xffffffff:x}", f"s_cselect_b32 s37, s37, 0x{m1 >> 32:x}")
def poll_h(A, upto, first):
    _pl[0] += 1; n = _pl[0]
    if first: set_mask(A, upto)
    A("s_mov_b32 s3, 0")
    if not first: A(f"s_branch Lpc{n}")
    A(f"Lpl{n}:", "s_mov_b64 exec, s[36:37]", "buffer_load_dwordx2 v[20:21], v13, s[52:55], 0 offen sc1", "s_mov_b64 exec, -1", "s_waitcnt vmcnt(0)", f"Lpc{n}:",
      "v_cmp_eq_u64 vcc, v[20:21], v[18:19]", "s_add_u32 s3, s3, 1", "s_nop 0", "s_and_b64 s[38:39], vcc, s[36:37]", "s_cmp_eq_u64 s[38:39], s[36:37]", f"s_cbranch_scc1 Lpd{n}",
      f"s_sleep {OPT.get('slp',4)}", f"s_cmp_lt_u32 s3, {SPIN_MAX}", f"s_cbranch_scc1 Lpl{n}", f"Lpd{n}:")

def g2_loader(A):
    NST = 14
    A("s_lshr_b32 s30, s32, 2", "s_and_b32 s50, s31, 1")
    A("s_lshl_b32 s34, s29, 2", "s_add_u32 s34, s34, s33", f"s_mul_i32 s34, s34, {108*1024}", "v_lshl_add_u32 v4, v0, 4, s34")
    A("v_lshrrev_b32 v3, 4, v0", "v_and_b32 v2, 15, v0", "v_lshlrev_b32 v5, 2, v3", "v_xor_b32 v2, v2, v5",
      "s_and_b32 s34, s33, 1", "s_lshl_b32 s34, s34, 5", "v_add_u32 v8, s34, v3", "v_mul_u32_u24 v8, 1280, v8",
      "s_lshl_b32 s34, s30, 8", "v_lshl_add_u32 v10, v2, 4, v8", "v_add_u32 v10, s34, v10")
    A("s_lshl_b32 s34, s29, 1", "s_lshr_b32 s35, s33, 1", "s_add_u32 s34, s34, s35", "s_lshl_b32 s34, s34, 13", "v_lshl_add_u32 v13, v0, 7, s34")
    A(f"s_mul_i32 s44, s50, {28*2048}", f"s_mul_i32 s45, s50, {14*81920}", f"s_mul_i32 s34, s35, 81920", "s_add_u32 s45, s45, s34")
    srd(A, 12, 6, H_SZ, H_OFF); srd(A, 16, 48, W1_SZ)
    def issue_w(st):
        slot = (st % RING) * 32768; a, b = HK[st]
        A(f"s_add_u32 s42, s45, {(a>>1)*81920+(a&1)*20480}")
        if st == 6:
            A("s_and_b32 s34, s50, s35", "s_cmp_eq_u32 s34, 1", f"s_cselect_b32 s42, {26*81920+20480}, s42")
        if st == 13:
            A("s_cmp_eq_u32 s50, 0", f"s_mov_b32 s42, {12*81920+20480}", f"s_cselect_b32 s42, s42, {13*81920+20480}", "s_cmp_eq_u32 s35, 0", "s_cselect_b32 s18, s18, 0")
        for q in range(4):
            A(f"s_add_u32 m0, s40, {slot + 16384 + q*1024}", "s_nop 0", f"buffer_load_dwordx4 v10, s[16:19], s42 offen lds")
            if q < 3: A(f"s_add_u32 s42, s42, {4*1280}")
        return 4
    def issue_h(st):
        slot = (st % RING) * 32768; a, b = HK[st]
        A(f"s_add_u32 s41, s44, {a*2048}", f"s_add_u32 m0, s40, {slot}")
        if st == 13: A("s_cmp_eq_u32 s50, 0", f"s_cselect_b32 s41, s41, {27*2048}")
        else: A(f"s_add_u32 s43, s44, {b*2048-2048}")
        if st == 6: A("s_cmp_eq_u32 s50, 0", f"s_cselect_b32 s43, s43, {53*2048-2048}")
        for q in range(2): A(f"buffer_load_dwordx4 v4, s[12:15], s41 offen offset:{q*1024} sc1 lds")
        if st == 13: return 2
        for q in range(2,4): A(f"buffer_load_dwordx4 v4, s[12:15], s43 offen offset:{q*1024} sc1 lds")
        return 4
    NW = OPT.get('nw', 3)
    for st in range(NW): issue_w(st)
    A(f"s_waitcnt vmcnt({4*NW})")
    chk_cleared(A, 18, 12)
    A("s_barrier")
    stamp(A, 4)
    poll_h(A, 6, True)
    stamp(A, 5)
    ops = []
    D = OPT.get('D2') or 2
    for st in range(NW): ops += [st]*issue_h(st)
    nxt = NW
    for st in range(NST):
        last = max(i for i, x in enumerate(ops) if x == st)
        A(f"s_waitcnt vmcnt({len(ops)-1-last})", "s_barrier")
        if st == 1:
            set_mask(A, 14)
            A("s_mov_b64 exec, s[36:37]", "buffer_load_dwordx2 v[20:21], v13, s[52:55], 0 offen sc1", "s_mov_b64 exec, -1"); ops.append('p')
        while nxt < NST and nxt <= st + max(D, NW-1 if st == 0 else 0) :
            if nxt == 6:
                A(f"s_waitcnt vmcnt({len(ops)-1-ops.index('p')})")
                poll_h(A, 14, False)
            ops += [nxt]*issue_h(nxt); ops += [nxt]*issue_w(nxt); nxt += 1
    if OPT['cpf']:
        A("s_lshl_b32 s34, s32, 2", "s_add_u32 s34, s34, s33", "s_cmp_ge_u32 s34, 1", "s_cbranch_scc1 Lk1_end")
        A("s_mov_b64 exec, 0x7ffffff")
        cpf(A, "k3_kernel", None, s=(36,38))
    A("s_branch Lk1_end")

def g2_compute(A):
    NST = 14
    XA, WA = 208, lambda mt: 209 + mt
    A("s_lshr_b32 s30, s32, 2", "s_and_b32 s50, s31, 1")
    A("s_lshl_b32 s35, s34, 13", f"v_lshl_add_u32 v{XA}, v0, 4, s35")
    A("v_bfe_u32 v4, v0, 2, 2", "v_lshl_add_u32 v5, v2, 2, v4", "v_lshlrev_b32 v5, 8, v5",
      "v_bfe_u32 v6, v0, 4, 1", "v_lshl_add_u32 v5, v6, 5, v5", "v_and_b32 v6, 3, v0", "v_lshl_add_u32 v5, v6, 3, v5",
      "s_lshl_b32 s35, s33, 1", "v_xor_b32 v6, s35, v4", f"v_lshl_add_u32 v{WA(0)}, v6, 6, v5", f"v_xor_b32 v{WA(1)}, 64, v{WA(0)}")
    srd(A, 24, 6, P_SZ, P_OFF)
    A("v_mov_b32 v240, v222", "v_mov_b32 v244, v223")
    for r in (241,242,243,245,246,247,249,250,251): A(f"v_mov_b32 v{r}, 0")
    A("v_cmp_gt_u32 vcc, 32, v0", "v_mov_b32 v5, 0x3f80", "s_nop 0", "v_cndmask_b32 v248, 0, v5, vcc")
    A("v_lshlrev_b32 v5, 9, v2", "v_lshl_add_u32 v7, v1, 3, v5",
      "s_lshl_b32 s40, s29, 2", "s_lshl_b32 s42, s34, 1", "s_add_u32 s40, s40, s42", "s_mul_i32 s40, s40, 10",
      "s_lshl_b32 s42, s30, 1", "s_add_u32 s40, s40, s42", "s_add_u32 s40, s40, s33", "s_lshl_b32 s40, s40, 12",
      f"s_mul_i32 s42, s50, {P_SZ//2}", "s_add_u32 s44, s40, s42", "s_add_u32 s45, s44, 40960")
    for mt in range(2):
        for nt in range(2):
            A(f"{M32} {vr(ACC(mt,nt),16)}, v[248:251], {vr(240+4*mt,4)}, 0")
    A("s_waitcnt vmcnt(0)", *set_flag(254, 11, "s48", 128))
    base = [0]
    def reads(st):
        p = st & 1; slot = (st % RING) * 32768
        L = []
        nb = slot & ~0xffff
        if nb != base[0]:
            for r in range(208, 211): L.append(f"v_xor_b32 v{r}, 0x10000, v{r}")
            base[0] = nb
        so = slot - nb
        for kk in range(4 if st < 13 else 2):
            for mt in range(2):
                for jh in range(2):
                    L.append(f"ds_read_b64_tr_b16 {vr(FB(p,kk,2+mt)+2*jh,2)}, v{WA(mt)} offset:{so+16384+(16*kk+8*jh)*256}")
            for nt in range(2):
                L.append(f"ds_read_b128 {vr(FB(p,kk,nt),4)}, v{XA} offset:{so+nt*4096+kk*1024}")
        return L
    mm = lambda p, kk, mt, nt: f"{M32} {vr(ACC(mt,nt),16)}, {vr(FB(p,kk,nt),4)}, {vr(FB(p,kk,2+mt),4)}, {vr(ACC(mt,nt),16)}"
    def mfmas(st):
        return [mm(st&1, kk, mt, nt) for kk in range(4) for mt in range(2) for nt in range(2)]
    compute_loop(A, NST, reads, mfmas, lambda st: [], lambda st: stamp(A, {0:4,1:5,7:6,13:7}[st]) if st in (0,1,7,13) else None)
    p = (NST-1) & 1
    def outp(mt, nt):
        L = []
        for a in range(4):
            a0 = ACC(mt,nt) + 4*a; o = FB(1-p,0,0) + ((mt*2+nt)*4+a)*2
            L += [f"v_cvt_pk_bf16_f32 v{o}, v{a0}, v{a0+1}", f"v_cvt_pk_bf16_f32 v{o+1}, v{a0+2}, v{a0+3}",
                  f"buffer_store_dwordx2 {vr(o,2)}, v7, s[24:27], s{44+nt} offen offset:{a*1024+mt*256} {OPT['sc_p']}"]
        return L
    tiles = [(mt,nt) for mt in range(2) for nt in range(2)]
    for i, (mt,nt) in enumerate(tiles):
        A(*[mm(p, kk, mt, nt) for kk in range(2)])
        if i >= 2: A(*outp(*tiles[i-2]))
    A(*outp(*tiles[2])); A(*outp(*tiles[3]))
    A("s_branch Lk1_end")

def hgen(Hl, HF, tvar):
    Hl(f"s_lshl_b32 s33, s{tvar}, 4", "v_add_u32 v14, s33, v1", "v_cvt_f32_u32 v15, v14", f"v_mul_f32 v15, {fl(1/160)}, v15", "v_mul_f32 v4, v7, v15")
    for bb in range(5):
        for ep in range(2):
            for e in range(2):
                Hl(f"v_fmamk_f32 v{8+e}, v15, {fl(float(16*bb+2*ep+e))}, v4")
            Hl("v_cos_f32 v10, v8", "v_cos_f32 v11, v9", "v_sin_f32 v12, v8", "v_sin_f32 v13, v9")
            if bb == 0 and ep == 0:
                Hl("v_cmp_gt_u32 vcc, 16, v0", "v_mov_b32 v8, 0.5", "s_nop 0", "v_cndmask_b32 v10, v10, v8, vcc")
            Hl(f"v_cvt_pk_bf16_f32 v{HF(bb)+ep}, v10, v11", f"v_cvt_pk_bf16_f32 v{HF(bb)+2+ep}, -v12, -v13")
    Hl("v_and_b32 v8, 1, v14", "v_lshlrev_b32 v8, 15, v8", "v_or_b32 v8, 0x3f80, v8", f"v_cndmask_b32 v{HF(5)}, 0, v8, vcc",
       f"v_mov_b32 v{HF(5)+1}, 0", f"v_mov_b32 v{HF(5)+2}, 0", f"v_mov_b32 v{HF(5)+3}, 0")

def p2(A):
    C = lambda t, ks: vr(16 + (t*2+ks)*4, 4)
    S = lambda t, ks: vr(48 + (t*2+ks)*4, 4)
    WV = lambda tau, pl, t, e: 80 + tau*32 + pl*16 + t*4 + e
    TB = lambda tau, ks, pl: 144 + tau*24 + (ks*3+pl)*4
    XA = lambda tau, pl, t: 192 + tau*32 + pl*16 + t*4
    PK = 80
    WIMG = 32768
    stamp(A, 8)
    A("s_load_dwordx4 s[8:11], s[0:1], 8", "s_load_dwordx2 s[48:49], s[0:1], 48")
    A("s_sub_u32 s33, s32, 20", "s_mul_i32 s34, s33, 43", "s_lshr_b32 s34, s34, 7", "s_mul_i32 s35, s34, 3", "s_sub_u32 s45, s33, s35",
      "s_lshl_b32 s29, s31, 2", "s_add_u32 s29, s29, s34", "s_and_b32 s46, s28, 3")
    A("s_mov_b32 s34, 0x9a543210", "s_mov_b32 s35, 0x8876", "s_lshl_b32 s33, s45, 2", "s_add_u32 s33, s33, s46", "s_lshl_b32 s33, s33, 2",
      "s_lshr_b64 s[34:35], s[34:35], s33", "s_and_b32 s30, s34, 15")
    A("s_lshl_b32 s47, s45, 6", "s_cmp_eq_u32 s45, 2", "s_cselect_b32 s47, 113, s47")
    A("s_mul_i32 s43, s29, 90112", "s_lshl_b32 s34, s30, 13", "s_add_u32 s43, s43, s34", "s_lshr_b32 s34, s28, 2", "s_lshl_b32 s34, s34, 12",
      "s_add_u32 s43, s43, s34", "s_lshl_b32 s35, s46, 13", "s_add_u32 s44, s35, s34")
    A("v_lshrrev_b32 v4, 3, v0", "v_lshl_add_u32 v4, v4, 5, s29", "v_mul_u32_u24 v4, 642, v4", "v_and_b32 v5, 7, v0", "v_lshl_add_u32 v4, v5, 4, v4",
      "s_lshl_b32 s34, s47, 1", "s_bfe_u32 s36, s28, 0x10001", "s_mulk_i32 s36, 320", "s_add_u32 s34, s34, s36",
      "s_and_b32 s36, s28, 1", f"s_mul_i32 s36, s36, {32*20544}", "s_add_u32 s34, s34, s36", "v_add_u32 v4, s34, v4")
    A("s_waitcnt lgkmcnt(0)")
    srd(A, 12, 6, T_SZ, T_OFF); srd(A, 24, 6, U_SZ, U_OFF)
    A("s_cmp_lt_u32 s28, 4", "s_cselect_b32 s16, s8, s10", "s_cselect_b32 s17, s9, s11", f"s_mov_b32 s18, {WF_SZ}", "s_mov_b32 s19, 0x00020000")
    A("s_barrier")
    A("s_lshl_b32 s36, s28, 12")
    def wdma():
        for q in range(4):
            A(f"s_add_u32 m0, s36, {WIMG+1024*q}", f"s_mov_b32 s34, {q*8*20544}", "buffer_load_dwordx4 v4, s[16:19], s34 offen lds")
    A("s_cmp_lg_u32 s28, 4", "s_cbranch_scc1 Lp2_np")
    A("s_waitcnt vmcnt(0)")
    chk_cleared(A, 18, 12)
    A("v_and_b32 v13, 31, v0", "v_lshlrev_b32 v13, 7, v13", f"s_mov_b32 s37, {32*8192}", "s_mov_b32 s3, 0",
      "buffer_load_dwordx2 v[20:21], v13, s[52:55], s37 offen sc1")
    wdma()
    A("s_waitcnt vmcnt(4)", "s_branch Lp2_pc", "Lp2_poll:",
      "buffer_load_dwordx2 v[20:21], v13, s[52:55], s37 offen sc1", "s_waitcnt vmcnt(0)", "Lp2_pc:",
      "v_cmp_eq_u64 vcc, v[20:21], v[18:19]", "s_add_u32 s3, s3, 1", "s_nop 0",
      "s_cmp_eq_u64 vcc, -1", "s_cbranch_scc1 Lp2_hb", "s_sleep 4", f"s_cmp_lt_u32 s3, {SPIN_MAX}", "s_cbranch_scc1 Lp2_poll", "s_branch Lp2_hb")
    A("Lp2_np:")
    wdma()
    A("v_and_b32 v1, 15, v0", "v_lshrrev_b32 v2, 4, v0", "v_cvt_f32_u32 v7, v2", "v_mul_f32 v7, 4.0, v7")
    def tdma():
        A("s_mov_b32 m0, s44", "v_lshlrev_b32 v8, 4, v0")
        for i in range(4): A(f"buffer_load_dwordx4 v8, s[12:15], s43 offen offset:{1024*i} sc1 lds")
    A("s_cmp_lt_u32 s28, 4", "s_cbranch_scc1 Lp2_main")
    A("Lp2_hb:", "s_barrier")
    tdma()
    A("s_waitcnt vmcnt(0)", "s_barrier", "s_branch Lk1_end")
    A("Lp2_main:")
    A("v_cvt_f32_u32 v5, v1", f"v_mul_f32 v5, {fl(1/64)}, v5", "v_add_f32 v6, 0x3e800000, v5",
      "v_and_b32 v14, 1, v0", "v_mov_b32 v15, 0x80008000", "v_mul_lo_u32 v14, v14, v15", "v_xor_b32 v15, 0x80000000, v14")
    for t in range(2):
        for jp in range(4):
            for e in range(2):
                j = 2*jp+e
                A(f"v_add_f32 v{8+e}, {fl(float(16*(j>>2)+(j&3)))}, v7", f"v_mul_f32 v{8+e}, v{8+e}, v{5+t}")
            c0 = 16+t*8+jp; s0 = 48+t*8+jp
            A("v_cos_f32 v10, v8", "v_cos_f32 v11, v9", "v_sin_f32 v12, v8", "v_sin_f32 v13, v9",
              f"v_cvt_pk_bf16_f32 v{c0}, v10, v11", f"v_cvt_pk_bf16_f32 v{s0}, v12, v13")
            for b in (c0, s0):
                A(f"v_xor_b32 v{b+4}, v14, v{b}", f"v_xor_b32 v{b+16}, 0x80000000, v{b}", f"v_xor_b32 v{b+20}, v15, v{b}")
    A("v_lshrrev_b32 v5, 2, v0", "v_lshlrev_b32 v5, 7, v5", "v_and_b32 v7, 3, v0", "v_lshl_add_u32 v5, v7, 4, v5", "v_add_u32 v5, s35, v5",
      "v_lshrrev_b32 v8, 3, v0", "s_mov_b32 s33, 45056", "v_mul_lo_u32 v6, v8, s33", "v_and_b32 v9, 7, v0", "v_lshl_add_u32 v6, v9, 4, v6",
      "s_lshl_b32 s36, s30, 12", "s_lshl_b32 s33, s29, 7", "s_add_u32 s36, s36, s33",
      "v_xor_b32 v10, v8, v9", "v_lshl_add_u32 v3, v8, 7, s35", "v_lshl_add_u32 v3, v10, 4, v3",
      "v_xor_b32 v10, v2, v9", "v_lshl_add_u32 v7, v1, 7, s35", "v_lshl_add_u32 v7, v10, 4, v7")
    A("s_lshl_b32 s33, s30, 4", "v_add_u32 v8, s33, v1", "v_sub_u32 v9, 256, v8",
      "s_cmp_lt_u32 s30, 6", "s_cselect_b64 vcc, -1, 0", "v_cndmask_b32 v8, v9, v8, vcc", "v_subrev_u32 v8, s47, v8",
      "v_lshlrev_b32 v4, 9, v2", "v_lshl_add_u32 v4, v8, 1, v4")
    stamp(A, 9)
    A("s_barrier")
    stamp(A, 10)
    tdma()
    A("s_waitcnt vmcnt(0)", "s_barrier")
    stamp(A, 11)
    A("s_lshl_b32 s33, s45, 2", "s_add_u32 s33, s33, s46", "s_cmp_eq_u32 s33, 11", "s_cbranch_scc1 Lk1_end")
    def treads(tau):
        return [f"ds_read_b64_tr_b16 {vr(TB(tau,ks,pl)+2*jh,2)}, v5 offset:{(32*ks+16*jh)*128+tau*64+pl*8}" for ks in range(2) for pl in range(2) for jh in range(2)]
    def wreads(tau):
        return [f"ds_read_u16_d16_hi v{WV(tau,pl,t,e)}, v4 offset:{WIMG+(pl*2+tau)*8192+(16*t+e)*128}" for t in range(4) for e in range(4) for pl in range(2)]
    M = M16
    def st2(tau):
        L = []
        for t in range(4):
            re = vr(XA(tau,0,t),4); im = vr(XA(tau,1,t),4)
            for ks in range(2):
                tr = vr(TB(tau,ks,0),4); ti = vr(TB(tau,ks,1),4)
                L += [f"{M} {re}, {C(t,ks)}, {tr}, {'0' if ks==0 else re}", f"{M} {im}, {C(t,ks)}, {ti}, {'0' if ks==0 else im}",
                      f"{M} {re}, {S(t,ks)}, {ti}, {re}", f"{M} {im}, {S(t,ks)}, {vr(TB(tau,ks,2),4)}, {im}"]
        return L
    def wmul(tau):
        L = []
        for t in range(4):
            for e in range(4):
                xr = XA(tau,0,t)+e; xi = XA(tau,1,t)+e; wr = WV(tau,0,t,e); wi = WV(tau,1,t,e)
                L += [f"v_mul_f32 v{8+e}, v{xr}, v{wr}", f"v_mul_f32 v{12+e}, v{xr}, v{wi}",
                      f"v_fma_f32 v{8+e}, -v{xi}, v{wi}, v{8+e}", f"v_fmac_f32 v{12+e}, v{xi}, v{wr}"]
            for pl in range(2):
                d = TB(tau, t>>1, pl) + (t&1)*2
                L += [f"v_cvt_pk_bf16_f32 v{d}, v{8+4*pl}, v{9+4*pl}", f"v_cvt_pk_bf16_f32 v{d+1}, v{10+4*pl}, v{11+4*pl}"]
            d = TB(tau, t>>1, 2) + (t&1)*2
            L += [f"v_cvt_pk_bf16_f32 v{d}, -v12, -v13", f"v_cvt_pk_bf16_f32 v{d+1}, -v14, -v15"]
        return L
    def negT(tau):
        return [f"v_xor_b32 v{TB(tau,ks,2)+j}, 0x80008000, v{TB(tau,ks,0)+j}" for ks in range(2) for j in range(4)]
    def st3(tau):
        L = []
        for nt in range(4):
            re = vr(XA(tau,0,nt),4); im = vr(XA(tau,1,nt),4)
            for ks in range(2):
                xr = vr(TB(tau,ks,0),4); xi = vr(TB(tau,ks,1),4)
                L += [f"{M} {re}, {xr}, {C(nt,ks)}, {'0' if ks==0 else re}", f"{M} {im}, {xi}, {C(nt,ks)}, {'0' if ks==0 else im}",
                      f"{M} {re}, {vr(TB(tau,ks,2),4)}, {S(nt,ks)}, {re}", f"{M} {im}, {xr}, {S(nt,ks)}, {im}"]
        return L
    def outp(tau):
        L = []
        for nt in range(4):
            pk = PK + 4*nt + 16*tau; re = XA(tau,0,nt); im = XA(tau,1,nt)
            L += [f"v_cvt_pk_bf16_f32 v{pk}, v{re}, v{re+1}", f"v_cvt_pk_bf16_f32 v{pk+1}, v{re+2}, v{re+3}",
                  f"v_cvt_pk_bf16_f32 v{pk+2}, v{im}, v{im+1}", f"v_cvt_pk_bf16_f32 v{pk+3}, v{im+2}, v{im+3}",
                  f"ds_write_b128 v7, {vr(pk,4)} offset:{nt*2048}"]
        return L
    A(*treads(0)); A(*treads(1))
    A("s_waitcnt lgkmcnt(8)")
    A(*negT(0))
    A(*st2(0)[:8])
    A("s_waitcnt lgkmcnt(0)")
    A(*spread(st2(0)[8:], negT(1) + wreads(0)))
    A("s_waitcnt lgkmcnt(0)")
    A(*spread(st2(1), interleave(wmul(0), wreads(1), 2)))
    A("s_waitcnt lgkmcnt(0)")
    A(*spread(st3(0), wmul(1)))
    S3 = st3(1); O1 = outp(1)
    A(*spread(S3[:16], outp(0) + ["v_xor_b32 v7, 64, v7"]))
    rb = lambda nt: [f"ds_read_b128 {vr(112+8*nt+4*q,4)}, v3 offset:{nt*2048+q*1024}" for q in range(2)]
    stq = lambda nt: [x for q in range(2) for x in (f"s_add_u32 s37, s36, {(16*nt+8*q)*45056}", f"buffer_store_dwordx4 {vr(112+8*nt+4*q,4)}, v6, s[24:27], s37 offen {OPT['sc_u']}")]
    A(*spread(S3[16:24], O1[0:5] + rb(0)))
    A(*spread(S3[24:32], O1[5:10] + rb(1)))
    A(*O1[10:15]); A(*rb(2))
    A("s_waitcnt lgkmcnt(6)"); A(*stq(0))
    A(*O1[15:20]); A(*rb(3))
    A("s_waitcnt lgkmcnt(6)"); A(*stq(1))
    A("s_waitcnt lgkmcnt(3)"); A(*stq(2))
    A("s_waitcnt lgkmcnt(0)"); A(*stq(3))

def k3(A):
    A("k3_kernel:")
    A("s_cmp_ge_u32 s2, 256", "s_cbranch_scc1 Lk3_end_x")
    kstart(A)
    A("s_load_dwordx2 s[4:5], s[0:1], 0", "s_load_dwordx2 s[6:7], s[0:1], 64", "s_load_dwordx2 s[40:41], s[0:1], 80")
    A("v_lshrrev_b32 v1, 6, v0", "v_and_b32 v0, 63, v0", "v_readfirstlane_b32 s28, v1")
    A("s_and_b32 s31, s2, 7", "s_lshr_b32 s32, s2, 3")
    A("s_lshl_b32 s29, s31, 3", "s_lshr_b32 s33, s32, 2", "s_add_u32 s29, s29, s33", "s_and_b32 s30, s32, 1")
    A("v_lshlrev_b32 v3, 4, v0", "v_and_b32 v1, 15, v0", "v_lshrrev_b32 v2, 4, v0")
    A("s_lshl_b32 s33, s30, 10", "s_add_u32 s33, s33, s29", "v_lshl_add_u32 v5, v1, 6, s33")
    ZIMG = 49152
    M = M16
    A("s_cmp_ge_u32 s28, 6", "s_cbranch_scc1 Lk3_back")
    A("s_setprio 1")
    GC, GS, GN = 16, 20, 24
    TWc = lambda r: 28 + (r-1)*8
    TWs = lambda r: 32 + (r-1)*8
    UA = lambda ty, tau, pl: 52 + ((ty*2+tau)*2+pl)*4
    VA = lambda ty, tau, pl: 84 + ((ty*2+tau)*2+pl)*4
    TT = 116
    A("s_mul_i32 s33, s29, 45056", "s_lshl_b32 s34, s28, 12", "s_add_u32 s33, s33, s34", f"s_add_u32 s34, s33, {6*4096}",
      "s_lshl_b32 s35, s28, 13", "s_mov_b32 m0, s35",
      "s_cmp_eq_u32 s28, 5", "s_cselect_b32 s36, 0x80000000, 0", "v_or_b32 v4, s36, v3")
    A("s_waitcnt lgkmcnt(0)")
    srd(A, 12, 40, U_SZ, U_OFF)
    for i in range(4): A(f"buffer_load_dwordx4 v3, s[12:15], s33 offen offset:{1024*i} lds")
    A("s_add_u32 m0, s35, 4096", "s_nop 0")
    for i in range(4): A(f"buffer_load_dwordx4 v4, s[12:15], s34 offen offset:{1024*i} lds")
    SC = 2/(640*2048)
    A("v_cvt_f32_u32 v5, v5", f"v_mul_f32 v5, {fl(1/2048)}, v5", "v_cvt_f32_u32 v7, v2", "v_mul_f32 v7, 4.0, v7", f"s_mov_b32 s37, {fl(SC)}", "v_mul_f32 v6, v7, v5")
    for jp in range(4):
        for e in range(2):
            j = 2*jp+e
            A(f"v_fmamk_f32 v{8+e}, v5, {fl(float(16*(j>>2)+(j&3)))}, v6")
        A("v_cos_f32 v10, v8", "v_cos_f32 v11, v9", "v_sin_f32 v12, v8", "v_sin_f32 v13, v9")
        A(f"v_cvt_pk_bf16_f32 v{GC+jp}, v10, v11", f"v_cvt_pk_bf16_f32 v{GS+jp}, v12, v13", f"v_cvt_pk_bf16_f32 v{GN+jp}, -v12, -v13")
    A("v_lshrrev_b32 v5, 2, v0", "v_lshlrev_b32 v5, 7, v5", "v_and_b32 v8, 3, v0", "v_lshl_add_u32 v5, v8, 4, v5", "v_add_u32 v5, s35, v5")
    A("s_lshl_b32 s33, s28, 4", "v_cvt_f32_u32 v8, s33", "v_add_f32 v8, v8, v7")
    for e in range(4):
        A(f"v_add_f32 v9, {fl(float(e))}, v8")
        for r in (1,2,3):
            A(f"v_mul_f32 v10, {fl(r/640)}, v9", f"v_cos_f32 v{TWc(r)+e}, v10", f"v_sin_f32 v{TWs(r)+e}, v10")
    A("s_lshl_b32 s33, s28, 12", f"s_add_u32 s33, s33, {ZIMG}", "v_add_u32 v6, s33, v3")
    stamp(A, 1)
    A("s_waitcnt vmcnt(0)")
    stamp(A, 2)
    order = [(0,0),(1,1),(0,1),(1,0)]
    for ty, tau in order:
        for pl in range(2):
            for jh in range(2):
                A(f"ds_read_b64_tr_b16 {vr(UA(ty,tau,pl)+2*jh,2)}, v5 offset:{ty*4096+jh*2048+tau*64+pl*8}")
    for n, (ty, tau) in enumerate(order):
        re = vr(VA(ty,tau,0),4); im = vr(VA(ty,tau,1),4); ur = vr(UA(ty,tau,0),4); ui = vr(UA(ty,tau,1),4)
        A(f"s_waitcnt lgkmcnt({12-4*n})")
        A(f"{M} {re}, {ur}, {vr(GC,4)}, 0", f"{M} {im}, {ui}, {vr(GC,4)}, 0", f"{M} {re}, {ui}, {vr(GN,4)}, {re}", f"{M} {im}, {ur}, {vr(GS,4)}, {im}")
    def pk(op, d, a, b, c=None, nb=False, na=False):
        s = f"v_pk_{op}_f32 {vr(d,2)}, {vr(a,2)}, {vr(b,2)}" + (f", {vr(c,2)}" if c is not None else "")
        n = [int(na), int(nb)] + ([0] if c is not None else [])
        if na or nb: s += f" neg_lo:[{','.join(map(str,n))}] neg_hi:[{','.join(map(str,n))}]"
        return s
    Ar,Ai,Br,Bi,Dr,Di,Cr,Ci = [VA(ty,tau,pl) for ty in range(2) for tau in range(2) for pl in range(2)]
    pr,pi,qr,qi,ur,ui,wr,wi = [TT+4*i for i in range(8)]
    Z = lambda r, pl: 52 + (r*2+pl)*4
    for e in (0,2):
        A(pk('add',pr+e,Ar+e,Cr+e), pk('add',pi+e,Ai+e,Ci+e,nb=True), pk('add',qr+e,Ar+e,Cr+e,nb=True), pk('add',qi+e,Ai+e,Ci+e))
    for e in (0,2):
        A(pk('add',ur+e,Br+e,Dr+e), pk('add',ui+e,Bi+e,Di+e,nb=True), pk('add',wr+e,Br+e,Dr+e,nb=True), pk('add',wi+e,Bi+e,Di+e))
    b = lambda r, pl: 84 + (r*2+pl)*4
    for e in (0,2):
        A(pk('add',Z(0,0)+e,pr+e,ur+e), pk('add',Z(0,1)+e,pi+e,ui+e), pk('add',b(2,0)+e,pr+e,ur+e,nb=True), pk('add',b(2,1)+e,pi+e,ui+e,nb=True),
          pk('add',b(1,0)+e,qr+e,wi+e,nb=True), pk('add',b(1,1)+e,qi+e,wr+e), pk('add',b(3,0)+e,qr+e,wi+e), pk('add',b(3,1)+e,qi+e,wr+e,nb=True))
    for r in range(4):
        if r:
            for e in (0,2):
                A(pk('mul',Z(r,0)+e,b(r,0)+e,TWc(r)+e), pk('mul',Z(r,1)+e,b(r,0)+e,TWs(r)+e))
            for e in (0,2):
                A(pk('fma',Z(r,0)+e,b(r,1)+e,TWs(r)+e,Z(r,0)+e,na=True), pk('fma',Z(r,1)+e,b(r,1)+e,TWc(r)+e,Z(r,1)+e))
        o = TT + 4*r
        for j in range(4): A(f"v_cvt_pk_bf16_f32 v{o+j}, v{Z(r,0)+2*j}, v{Z(r,0)+2*j+1}")
        A(f"ds_write_b128 v6, {vr(o,4)} offset:{r*1024}")
    A("s_waitcnt lgkmcnt(0)")
    stamp(A, 3)
    A("s_barrier", "s_branch Lk3_end")
    A("Lk3_back:")
    HF = lambda bb: 16 + 4*bb
    XR, P0, P1 = 40, 48, 56
    GU = 64
    XU = 80
    ZF = lambda bb, r: 96 + ((bb % 3)*4+r)*4
    AC = lambda r: 144 + 4*r
    A("s_bfe_u32 s33, s32, 0x10001", "s_mul_i32 s33, s33, 5", "s_add_u32 s42, s33, s28", "s_sub_u32 s42, s42, 6")
    A("s_lshl_b32 s33, s30, 10", "s_add_u32 s33, s33, s29", "v_lshl_add_u32 v6, v2, 8, s33", "v_mul_u32_u24 v6, 1280, v6", "v_lshl_add_u32 v6, v1, 3, v6",
      "s_lshl_b32 s44, s42, 7", "s_add_u32 s45, s44, 81920", "s_add_u32 s46, s45, 81920", "s_add_u32 s47, s46, 81920", "v_lshlrev_b32 v5, 5, v0")
    A("s_mul_i32 s48, s29, 10", "s_add_u32 s48, s48, s42", "s_lshl_b32 s48, s48, 12", "s_lshl_b32 s34, s30, 11", "s_add_u32 s48, s48, s34",
      f"s_add_u32 s49, s48, {P_SZ//2}", "v_cvt_f32_u32 v7, v2", "v_mul_f32 v7, 4.0, v7")
    Hl = Asm(); hgen(Hl, HF, 42)
    n0 = OPT.get('k3d', 100)
    A(*Hl.lines[:n0])
    A("s_waitcnt lgkmcnt(0)")
    srd(A, 20, 40, P_SZ, P_OFF); srd(A, 16, 4, X_SZ); srd(A, 24, 6, X_SZ)
    for half in range(2):
        A(f"buffer_load_dwordx4 {vr(P0+4*half,4)}, v5, s[20:23], s48 offen offset:{16*half}",
          f"buffer_load_dwordx4 {vr(P1+4*half,4)}, v5, s[20:23], s49 offen offset:{16*half}")
    for e in range(4):
        A(f"buffer_load_dwordx2 {vr(XR+2*e,2)}, v6, s[16:19], s{44+e} offen")
    A(*Hl.lines[n0:])
    SC = 2/(640*2048)
    A(f"s_mov_b32 s36, {fl(-1.4426950408889634)}", f"s_mov_b32 s38, {fl(1/SC)}", f"v_add_u32 v4, {ZIMG}, v3")
    stamp(A, 1)
    for half in range(2):
        A(f"s_waitcnt vmcnt({6-2*half})")
        g = GU + 8*half; t = 96
        for q in range(4):
            A(f"v_lshlrev_b32 v{g+2*q}, 16, v{P0+4*half+q}", f"v_and_b32 v{g+2*q+1}, 0xffff0000, v{P0+4*half+q}",
              f"v_lshlrev_b32 v{t+2*q}, 16, v{P1+4*half+q}", f"v_and_b32 v{t+2*q+1}, 0xffff0000, v{P1+4*half+q}")
        for i in range(8): A(f"v_add_f32 v{g+i}, v{g+i}, v{t+i}")
        for i in range(8): A(f"v_mul_f32 v{t+i}, s36, v{g+i}")
        for i in range(8): A(f"v_exp_f32 v{t+i}, v{t+i}")
        for i in range(8): A(f"v_fma_f32 v{t+i}, v{t+i}, s38, s38")
        for i in range(8): A(f"v_rcp_f32 v{t+i}, v{t+i}")
        for i in range(8): A(f"v_mul_f32 v{g+i}, v{g+i}, v{t+i}")
    stamp(A, 2)
    A("s_barrier")
    stamp(A, 3)
    def zr(bb): return [f"ds_read_b128 {vr(ZF(bb,r),4)}, v4 offset:{(bb*4+r)*1024}" for r in range(4)]
    for bb in range(3): A(*zr(bb))
    A("s_waitcnt vmcnt(0)")
    for q in range(8):
        A(f"v_lshlrev_b32 v{XU+2*q}, 16, v{XR+q}", f"v_and_b32 v{XU+2*q+1}, 0xffff0000, v{XR+q}")
    for bb in range(6):
        A(f"s_waitcnt lgkmcnt({min(8,4*(5-bb))})")
        for r in range(4):
            A(f"{M} {vr(AC(r),4)}, {vr(ZF(bb,r),4)}, {vr(HF(bb),4)}, {'0' if bb==0 else vr(AC(r),4)}")
        if bb < 3: A(*zr(bb+3))
    for e in range(4):
        for r in range(4):
            A(f"v_fmac_f32 v{XU+4*e+r}, v{AC(r)+e}, v{GU+4*r+e}")
        for q in (2*e, 2*e+1):
            A(f"v_cvt_pk_bf16_f32 v{XR+q}, v{XU+2*q}, v{XU+2*q+1}")
        A(f"buffer_store_dwordx2 {vr(XR+2*e,2)}, v6, s[24:27], s{44+e} offen {OPT['sc_o']}")
    kend(A, 2, "Lk3_end")

def kd(name, vgpr, sgpr=100, accum=None):
    accum = accum or min(256, (vgpr+3)//4*4)
    return f""".amdhsa_kernel {name}
  .amdhsa_next_free_vgpr {vgpr}
  .amdhsa_next_free_sgpr {sgpr}
  .amdhsa_accum_offset {accum}
  .amdhsa_group_segment_fixed_size 0
  .amdhsa_kernarg_size 88
  .amdhsa_user_sgpr_count 2
  .amdhsa_user_sgpr_kernarg_segment_ptr 1
  .amdhsa_system_sgpr_workgroup_id_x 1
.end_amdhsa_kernel
"""

def build(kernels):
    hdr = open(f"cdna_kernels/{NAME}.s.ref").read().split("; Override")[0]
    out = hdr
    for (name, fn, grid, block, lds, vg) in kernels:
        out += f"; @launch kernel={name} grid=({grid},1,1) block=({block},1,1) lds={lds}\n"
    out += '.amdgcn_target "amdgcn-amd-amdhsa--gfx950"\n.text\n'
    seen = []
    for (name, fn, grid, block, lds, vg) in kernels:
        if name in seen: continue
        seen.append(name)
        A = Asm(); fn(A)
        out += f".globl {name}\n.p2align 8\n.type {name},@function\n" + A.text()
    out += '.section .rodata,"a"\n'
    seen = []
    for (name, fn, grid, block, lds, vg) in kernels:
        if name in seen: continue
        seen.append(name)
        out += ".p2align 6\n" + kd(name, vg)
    return out

KS = [("k1_kernel", k1, 256, 512, 133120, 256), ("k3_kernel", k3, 256, 704, 98304, 160)]

if __name__ == '__main__':
    DIAG = len(sys.argv) > 2 and sys.argv[2] == 'diag'
    for kv in sys.argv[3:]:
        k, v = kv.split('='); OPT[k] = eval(v)
    open(sys.argv[1] if len(sys.argv) > 1 else 'cur.s', 'w').write(build(KS))
```

```python
import sys, math
from asmlib import *

NAME = "recurrent_scan__spectral_gfnet__dense_activation_gelu__prompt"
H_OFF, H_SZ = 0, 2048*1728*2
T_OFF, T_SZ = 0x700000, 32*11*64*128
U_OFF, U_SZ = 0xA00000, 32*11*64*128
P_OFF, P_SZ = 0xD00000, 2*2048*640*2
FL_OFF, FL_SZ = 0x1200000, 33*8192
X_SZ = 2048*640*2
W1_SZ = 640*1728*2
WF_SZ = 2048*321*2
OPT = dict(rot1='xcd', rot2=False, pf=False, mpf=False, lpf=True, ppf=False, nw=2, mpf1=False, sc_h='sc1', sc_t='sc1', sc_u='sc1', sc_p='sc1', sc_o='', map1='4x7', D=2, cpf=True, hpf=False, pfst=None)

def vr(b, n): return f"v[{b}:{b+n-1}]"
def srd(A, d, base, size, off=0):
    if off:
        A(f"s_add_u32 s{d}, s{base}, 0x{off:x}", f"s_addc_u32 s{d+1}, s{base+1}, 0")
    else:
        A(f"s_mov_b32 s{d}, s{base}", f"s_mov_b32 s{d+1}, s{base+1}")
    A(f"s_mov_b32 s{d+2}, {size}", f"s_mov_b32 s{d+3}, 0x00020000")

DIAG = False
DIAG_OFF = 0x2000000
def stamp(A, k):
    if DIAG:
        A(f"s_memrealtime s[{60+2*k}:{61+2*k}]", "s_waitcnt lgkmcnt(0)")
def kstart(A):
    if DIAG:
        for k in range(60, 92): A(f"s_mov_b32 s{k}, 0")
        A("s_memrealtime s[60:61]", "s_memtime s[88:89]", "s_load_dwordx2 s[92:93], s[0:1], 80", "s_waitcnt lgkmcnt(0)")
def kend(A, kid, lab):
    A(f"{lab}:")
    if DIAG:
        A("s_memrealtime s[84:85]", "s_waitcnt vmcnt(0) lgkmcnt(0)", "s_memrealtime s[86:87]", "s_memtime s[90:91]", "s_waitcnt lgkmcnt(0)")
        A(f"s_add_u32 s92, s92, 0x{DIAG_OFF:x}", "s_addc_u32 s93, s93, 0", "s_mov_b32 s94, 0x1000000", "s_mov_b32 s95, 0x00020000")
        A(f"s_add_u32 s96, s2, {kid*256}", "s_lshl_b32 s96, s96, 4", "s_add_u32 s96, s96, s28", "s_lshl_b32 s96, s96, 6", "s_mov_b64 exec, -1", "v_mov_b32 v1, 0")
        for q in range(4):
            for j in range(4): A(f"v_mov_b32 v{4+j}, s{60+2*(4*q+j)}")
            A(f"buffer_store_dwordx4 v[4:7], v1, s[92:95], s96 offen offset:{16*q}", "s_nop 1")
    A("s_endpgm")
    A(f"{lab}_x:", "s_endpgm")

GA = -2*0.7978845608028654*1.4426950408889634
GB = GA*0.044715
ONES = "0x3f803f80"
M32 = "v_mfma_f32_32x32x16_bf16"
M16 = "v_mfma_f32_16x16x32_bf16"

def row_stats(A, sx, sxx, t0, t1, mean, sq):
    A(f"v_mul_f32 v{mean}, {fl(1/640)}, v{sx}",
      f"v_mul_f32 v{t0}, {fl(1/640)}, v{sxx}",
      f"v_fma_f32 v{t0}, -v{mean}, v{mean}, v{t0}",
      f"v_max_f32 v{t0}, 0, v{t0}",
      f"v_cvt_pk_bf16_f32 v{t0}, v{t0}, v{t0}",
      f"v_lshlrev_b32 v{t0}, 16, v{t0}",
      f"v_add_f32 v{t0}, {fl(1e-5)}, v{t0}",
      f"v_cvt_pk_bf16_f32 v{t0}, v{t0}, v{t0}",
      f"v_lshlrev_b32 v{t0}, 16, v{t0}",
      f"v_sqrt_f32 v{sq}, v{t0}")

RING = 4
def set_flag(nv, va, soff, off=0):
    return ["s_mov_b64 exec, 0xffff", f"buffer_store_dwordx2 {vr(nv,2)}, v{va}, s[52:55], {soff} offen offset:{off} sc1", "s_mov_b64 exec, -1"]
SPIN_MAX = 0x20000
_pl = [0]
def sync_srds(A):
    srd(A, 52, 6, FL_SZ, FL_OFF); srd(A, 56, 50, 256)
def chk_cleared(A, v, vz):
    _pl[0] += 1; n = _pl[0]
    A(f"s_mov_b32 s3, 0", f"Lcc{n}:", f"v_readfirstlane_b32 s49, v{v}", "s_add_u32 s3, s3, 1", "s_cmp_lg_u32 s49, 0", f"s_cbranch_scc1 Lcd{n}",
      f"s_cmp_ge_u32 s3, {SPIN_MAX}", f"s_cbranch_scc1 Lcd{n}",
      f"buffer_load_dwordx2 {vr(v,2)}, v{vz}, s[56:59], 0 offen sc1", "s_waitcnt vmcnt(0)", f"s_branch Lcc{n}", f"Lcd{n}:")
_cpf_n = [0]
def cpf(A, target, sel, v=(14,15,13), s=(56,58)):
    _cpf_n[0] += 1; lab = f"Lcpf{_cpf_n[0]}"
    a, t = s
    A(f"s_getpc_b64 s[{a}:{a+1}]", f"{lab}:", f"s_add_u32 s{a}, s{a}, {target}-{lab}", f"s_addc_u32 s{a+1}, s{a+1}, ({target}-{lab})>>32")
    A(f"v_lshlrev_b32 v{v[0]}, 7, v0")
    if sel: A(f"s_lshl_b32 s{t}, {sel}, 13", f"v_add_u32 v{v[0]}, s{t}, v{v[0]}")
    A(f"v_mov_b32 v{v[1]}, s{a+1}", f"v_add_co_u32 v{v[0]}, vcc, s{a}, v{v[0]}", f"v_addc_co_u32 v{v[1]}, vcc, 0, v{v[1]}, vcc",
      f"global_load_dword v{v[2]}, v[{v[0]}:{v[1]}], off")
ACC = lambda mt, nt: 16 + (mt*2+nt)*16
FB = lambda p, kk, w: 80 + p*64 + kk*16 + w*4

def loader_loop(A, NST, issue, extra=None, D=None):
    D = D or OPT['D']
    ops = []
    for st in range(2): ops += [st]*(issue(st) or 8)
    nxt = 2
    for st in range(NST):
        last = max(i for i, x in enumerate(ops) if x == st)
        A(f"s_waitcnt vmcnt({len(ops)-1-last})", "s_barrier")
        while nxt < NST and nxt <= (st+D if st >= 1 else 2):
            ops += [nxt]*(issue(nxt) or 8); nxt += 1
            if extra and nxt == OPT.get('lpfs', NST): ops += ['x']*extra()

def compute_loop(A, NST, reads, mfmas, tail, stampf=None, gap=None):
    A("s_barrier")
    A(*reads(0))
    A("s_waitcnt lgkmcnt(0)")
    if stampf: stampf(0)
    A("s_barrier")
    for st in range(1, NST):
        M = mfmas(st-1)
        G = gap(st-1) if gap else []
        n1 = len(G) - 30 if G else 0
        A(*spread(M[:10], spread(reads(st), G[:n1])))
        A(*spread(M[10:13], G[n1:n1+15]))
        A("s_waitcnt lgkmcnt(0)")
        if stampf: stampf(st)
        if st < NST-1: A("s_barrier")
        A(*spread(M[13:], G[n1+15:]))
        A(*tail(st-1))

def k1(A):
    A("k1_kernel:")
    A("s_cmp_ge_u32 s2, 256", "s_cbranch_scc1 Lk1_end_x")
    kstart(A)
    A("s_load_dwordx2 s[4:5], s[0:1], 0", "s_load_dwordx4 s[8:11], s[0:1], 32", "s_load_dwordx2 s[6:7], s[0:1], 80", "s_load_dwordx2 s[50:51], s[0:1], 72", "s_load_dwordx2 s[36:37], s[0:1], 56")
    A("v_lshrrev_b32 v1, 6, v0", "v_and_b32 v0, 63, v0", "v_readfirstlane_b32 s28, v1")
    A("s_and_b32 s31, s2, 7", "s_lshr_b32 s32, s2, 3")
    if OPT['cpf']:
        A("s_lshl_b32 s33, s32, 3", "s_add_u32 s33, s33, s28", "s_cmp_ge_u32 s33, 4", "s_cbranch_scc1 Lk1_nc")
        cpf(A, "k1_kernel", "s28", v=(14,15,253))
        A("Lk1_nc:")
    A("s_cmp_ge_u32 s32, 28", "s_cbranch_scc1 Lp1")
    A("s_lshr_b32 s29, s31, 1", "s_lshl_b32 s29, s29, 2", "s_and_b32 s33, s32, 3", "s_add_u32 s29, s29, s33")
    A("s_and_b32 s30, s31, 1", "s_mul_i32 s30, s30, 7", "s_lshr_b32 s33, s32, 2", "s_add_u32 s30, s30, s33")
    A("s_cmp_lt_u32 s28, 4", "s_cbranch_scc1 Lg1c")
    g1_loader(A)
    g2_loader(A)
    A("Lg1c:")
    g1_compute(A)
    g2_compute(A)
    A("Lp1:")
    p1(A)
    A("Lp2:")
    p2(A)
    kend(A, 0, "Lk1_end")

def g1_loader(A):
    NST = 10
    A("s_sub_u32 s33, s28, 4")
    A("v_lshrrev_b32 v1, 3, v0", "v_and_b32 v2, 7, v0", "v_lshrrev_b32 v3, 4, v0",
      "s_lshl_b32 s34, s29, 2", "s_add_u32 s34, s34, s33",
      "v_lshl_add_u32 v1, v1, 6, s34", "v_mul_u32_u24 v1, 1280, v1",
      "v_xor_b32 v8, v2, v3", "v_xor_b32 v9, 4, v8",
      "v_lshl_add_u32 v4, v8, 4, v1", "v_lshl_add_u32 v5, v9, 4, v1",
      f"v_add_u32 v5, {8*64*1280}, v5", f"v_add_u32 v6, {16*64*1280}, v4", f"v_add_u32 v7, {16*64*1280}, v5")
    A("v_and_b32 v2, 15, v0", "v_lshlrev_b32 v8, 2, v3", "v_xor_b32 v2, v2, v8",
      "s_lshl_b32 s34, s33, 4", "v_add_u32 v8, s34, v3", "v_mul_u32_u24 v8, 3456, v8",
      "s_lshl_b32 s34, s30, 8", "v_lshl_add_u32 v10, v2, 4, v8", "v_add_u32 v10, s34, v10")
    A("s_cmp_eq_u32 s30, 13", "s_cselect_b32 s34, 8, 16",
      "v_cmp_le_u32 vcc, s34, v2", "v_mov_b32 v8, 0x80000000", "s_nop 0", "v_cndmask_b32 v10, v10, v8, vcc")
    A("s_lshl_b32 s40, s33, 12")
    if OPT['rot1']:
        if OPT['rot1'] == 'xcd':
            A("s_lshr_b32 s43, s31, 1", "s_mul_i32 s43, s43, 5", "s_lshr_b32 s43, s43, 1", "s_and_b32 s34, s31, 1", "s_mul_i32 s34, s34, 5", "s_add_u32 s43, s43, s34")
        elif OPT['map1'] == '2x14':
            A("s_mul_i32 s43, s30, 47", "s_lshr_b32 s43, s43, 6", "s_and_b32 s34, s29, 1", "s_mul_i32 s34, s34, 5", "s_add_u32 s43, s43, s34")
        else:
            A("s_lshr_b32 s43, s32, 2", "s_mul_i32 s43, s43, 92", "s_and_b32 s34, s32, 3", "s_mul_i32 s34, s34, 160", "s_add_u32 s43, s43, s34", "s_lshr_b32 s43, s43, 6")
        A("s_cmp_ge_u32 s43, 10", "s_cselect_b32 s34, 10, 0", "s_sub_u32 s43, s43, s34")
    else:
        A("s_mov_b32 s43, 0")
    A("s_waitcnt lgkmcnt(0)")
    srd(A, 12, 4, X_SZ); srd(A, 16, 8, W1_SZ)
    def issue(st):
        slot = (st % RING) * 32768
        A("s_lshl_b32 s41, s43, 7", f"s_mul_i32 s42, s43, {64*3456}")
        for q in range(4):
            A(f"s_add_u32 m0, s40, {slot + q*1024}", "s_nop 0", f"buffer_load_dwordx4 v{4+q}, s[12:15], s41 offen lds")
            A(f"s_add_u32 m0, s40, {slot + 16384 + q*1024}", "s_nop 0", f"buffer_load_dwordx4 v10, s[16:19], s42 offen lds")
            if q < 3: A(f"s_add_u32 s42, s42, {4*3456}")
        A("s_add_u32 s43, s43, 1", "s_cmp_eq_u32 s43, 10", "s_cselect_b32 s43, 0, s43")
    def extra():
        A("s_load_dwordx4 s[44:47], s[0:1], 8", "s_load_dwordx2 s[48:49], s[0:1], 48",
          "s_lshl_b32 s34, s2, 1", "s_add_u32 s34, s34, s33", "s_cmp_lt_u32 s33, 2", "s_cselect_b32 s34, s34, s2", "s_lshl_b32 s34, s34, 13",
          "v_lshl_add_u32 v11, v0, 7, s34", "s_waitcnt lgkmcnt(0)",
          "s_cmp_eq_u32 s33, 2", "s_cselect_b32 s20, s44, s46", "s_cselect_b32 s21, s45, s47",
          "s_cmp_lt_u32 s33, 2", "s_cselect_b32 s20, s48, s20", "s_cselect_b32 s21, s49, s21", f"s_mov_b32 s22, {W1_SZ}", f"s_cselect_b32 s22, s22, {WF_SZ}",
          "s_mov_b32 s23, 0x00020000", "v_mov_b32 v12, 0")
        sync_srds(A)
        A("buffer_load_dwordx2 v[18:19], v12, s[56:59], 0 offen sc1")
        if OPT['lpf']: A("buffer_load_dword v16, v11, s[20:23], 0 offen")
        return 2 if OPT['lpf'] else 1
    loader_loop(A, NST, issue, extra, OPT.get('D1'))
    A("s_barrier")
    A("s_cmp_ge_u32 s32, 20", "s_cbranch_scc1 Lp2")

def g1_compute(A):
    NST = 10
    XA = lambda kk, nt: 208 + kk*2 + nt
    WA = lambda mt: 216 + mt
    SX, SXX, CS, B1 = 218, 219, 220, 221
    A("s_and_b32 s33, s28, 1", "s_lshr_b32 s34, s28, 1")
    A("v_and_b32 v1, 31, v0", "v_lshrrev_b32 v2, 5, v0")
    A("s_lshl_b32 s35, s30, 7", "s_lshl_b32 s40, s33, 6", "s_add_u32 s35, s35, s40", "s_lshl_b32 s40, s34, 5", "s_add_u32 s35, s35, s40",
      "v_add_lshl_u32 v9, v1, s35, 1", f"v_mov_b32 v{B1}, 0")
    A("s_lshl_b32 s35, s34, 13", "s_lshl_b32 s40, s33, 12", "s_add_u32 s35, s35, s40",
      "v_lshl_add_u32 v3, v1, 7, s35", "v_bfe_u32 v4, v0, 1, 3", "v_xor_b32 v4, v4, v2")
    for kk in range(4):
        A(f"v_xor_b32 v5, {2*kk}, v4", f"v_lshl_add_u32 v{XA(kk,0)}, v5, 4, v3", f"v_xor_b32 v{XA(kk,1)}, 0x1000, v{XA(kk,0)}")
    A("v_bfe_u32 v4, v0, 2, 2", "v_lshl_add_u32 v5, v2, 3, v4", "v_lshlrev_b32 v5, 8, v5",
      "v_bfe_u32 v6, v0, 4, 1", "v_lshl_add_u32 v5, v6, 5, v5", "v_and_b32 v6, 3, v0", "v_lshl_add_u32 v5, v6, 3, v5",
      "s_lshl_b32 s35, s33, 1", "s_add_u32 s35, s35, s34",
      "v_xor_b32 v6, s35, v4", f"v_lshl_add_u32 v{WA(0)}, v6, 6, v5", f"v_xor_b32 v{WA(1)}, 64, v{WA(0)}")
    A(f"v_mov_b32 v{SX}, 0", f"v_mov_b32 v{SXX}, 0", f"v_mov_b32 v{CS}, 0", f"s_mov_b32 s41, {ONES}")
    A("s_waitcnt lgkmcnt(0)")
    srd(A, 20, 10, 1728*2); srd(A, 24, 6, H_SZ, H_OFF)
    A(f"buffer_load_short_d16_hi v{B1}, v9, s[20:23], 0 offen")
    srd(A, 16, 36, 640*2)
    A("s_lshr_b32 s35, s32, 2", "s_lshl_b32 s35, s35, 8", "s_lshl_b32 s40, s33, 7", "s_add_u32 s35, s35, s40",
      "s_lshl_b32 s40, s31, 31", "s_or_b32 s35, s35, s40", "v_lshl_add_u32 v9, v1, 1, s35",
      "buffer_load_ushort v222, v9, s[16:19], 0 offen", "buffer_load_ushort v223, v9, s[16:19], 0 offen offset:64")
    A("s_lshl_b32 s35, s30, 1", "s_add_u32 s35, s35, s33")
    for mt in range(2):
        for nt in range(2):
            s = 44 + mt*2 + nt
            A("s_lshl_b32 s40, s29, 2", "s_lshl_b32 s42, s34, 1", "s_add_u32 s40, s40, s42", f"s_xor_b32 s42, s33, {nt}", "s_add_u32 s40, s40, s42",
              "s_mulk_i32 s40, 108", "s_lshl_b32 s42, s35, 2", "s_add_u32 s40, s40, s42", f"s_xor_b32 s42, s34, {mt}",
              "s_add_u32 s40, s40, s42", f"s_lshl_b32 s{s}, s40, 10")
    XCH = 131072
    A("s_lshl_b32 s42, s34, 9", "s_lshl_b32 s40, s33, 8", "s_add_u32 s42, s42, s40", f"s_add_u32 s42, s42, {XCH}", "v_lshl_add_u32 v7, v1, 3, s42",
      "s_lshl_b32 s42, s33, 9", "s_lshl_b32 s40, s34, 8", "s_add_u32 s42, s42, s40", f"s_add_u32 s42, s42, {XCH}", "v_lshl_add_u32 v8, v1, 3, s42",
      "v_lshlrev_b32 v9, 4, v0")
    XF0, WF0, XF1, WF1 = 224, 228, 232, 236
    for r in (XF0, WF0, XF1, WF1):
        A(f"v_mov_b32 v{r+2}, 0", f"v_mov_b32 v{r+3}, 0")
    sync_srds(A)
    A("s_lshl_b32 s48, s29, 1", "s_add_u32 s48, s48, s34", "s_lshl_b32 s48, s48, 13", "s_lshl_b32 s40, s35, 8", "s_add_u32 s48, s48, s40", "v_mov_b32 v10, 0", "v_lshlrev_b32 v11, 3, v0")
    if OPT.get('tlb'):
        srd(A, 36, 6, 0x1400000)
        A("v_lshlrev_b32 v12, 21, v0", "v_add_u32 v12, 0x1fff80, v12", "s_cmp_lg_u32 s28, 1", "s_cbranch_scc1 Lg1_ntl", "buffer_load_dword v253, v12, s[36:39], 0 offen", "Lg1_ntl:")
    A("s_lshl_b32 s40, s2, 3", "s_add_u32 s40, s40, s28", "s_cmp_lg_u32 s40, 1737", "s_cbranch_scc1 Lg1_ncl")
    A("s_memrealtime s[36:37]", "s_waitcnt lgkmcnt(0)", "s_or_b32 s38, s36, 1", "v_mov_b32 v12, s38", "v_mov_b32 v13, s37",
      "s_mov_b64 exec, 1", "buffer_store_dwordx2 v[12:13], v10, s[56:59], 0 offen sc1", "s_mov_b64 exec, -1", "Lg1_ncl:")
    base = [0]
    def reads(st):
        p = st & 1; slot = (st % RING) * 32768
        L = []
        nb = slot & ~0xffff
        if nb != base[0]:
            for r in range(208, 218): L.append(f"v_xor_b32 v{r}, 0x10000, v{r}")
            base[0] = nb
        so = slot - nb
        for kk in range(4):
            for mt in range(2):
                for jh in range(2):
                    L.append(f"ds_read_b64_tr_b16 {vr(FB(p,kk,2+mt)+2*jh,2)}, v{WA(mt)} offset:{so+16384+(16*kk+4*jh)*256}")
            for nt in range(2):
                L.append(f"ds_read_b128 {vr(FB(p,kk,nt),4)}, v{XA(kk,nt)} offset:{so}")
        return L
    def mfmas(st):
        p = st & 1; L = []
        for kk in range(4):
            for mt in range(2):
                for nt in range(2):
                    c = "0" if (st == 0 and kk == 0) else vr(ACC(mt,nt),16)
                    L.append(f"{M32} {vr(ACC(mt,nt),16)}, {vr(FB(p,kk,2+mt),4)}, {vr(FB(p,kk,nt),4)}, {c}")
        return L
    def dots(st):
        p = st & 1; L = []
        for kk in range(4):
            for j in range(4):
                if not OPT.get('nostat'): L.append(f"v_dot2c_f32_bf16 v{SX}, s41, v{FB(p,kk,0)+j}")
                if (not OPT.get('sqv') or st == NST-1) and not OPT.get('nostat'): L.append(f"v_dot2c_f32_bf16 v{SXX}, v{FB(p,kk,0)+j}, v{FB(p,kk,0)+j}")
                L.append(f"v_dot2c_f32_bf16 v{CS}, s41, v{FB(p,kk,2)+j}")
        if st == 6: L.append("buffer_load_dwordx2 v[254:255], v10, s[56:59], 0 offen sc1")
        return L
    def sqgap(st):
        p = st & 1; L = []
        for kk in range(4):
            for j in range(4):
                r = FB(p,kk,0)+j
                L += [f"v_lshlrev_b32 v3, 16, v{r}", f"v_and_b32 v4, s51, v{r}", "v_fmac_f32 v222, v3, v3", "v_fmac_f32 v223, v4, v4"]
        return L
    pass
    compute_loop(A, NST, reads, mfmas, dots, lambda st: stamp(A, 1) if st == 0 else None)
    A(*dots(NST-1))
    M = mfmas(NST-1)
    F = Asm()
    if OPT.get('sqv'): F(f"v_add_f32 v{SXX}, v{SXX}, v222", f"v_add_f32 v{SXX}, v{SXX}, v223")
    for r in (SX, SXX, CS):
        F(f"v_mov_b32 v3, v{r}", "s_nop 1", f"v_permlane32_swap_b32 v{r}, v3", f"v_add_f32 v{r}, v{r}, v3")
    row_stats(F, SX, SXX, 3, 4, 5, 6)
    F(f"v_cvt_pk_bf16_f32 v{XF0}, -v5, -v5", f"v_cvt_pk_bf16_f32 v{XF0+1}, -v5, v6")
    F(f"v_cvt_pk_bf16_f32 v3, v{CS}, v{CS}", "v_lshlrev_b32 v3, 16, v3", f"v_sub_f32 v3, v{CS}, v3",
      f"v_cvt_pk_bf16_f32 v{WF0}, v{CS}, v3", f"v_and_b32 v4, 0xffff0000, v{WF0}", "v_sub_f32 v3, v3, v4",
      "s_waitcnt vmcnt(0)", f"v_cvt_pk_bf16_f32 v{WF0+1}, v3, v{B1}")
    F(f"ds_write_b64 v7, {vr(XF0,2)}", f"ds_write_b64 v8, {vr(WF0,2)} offset:1024",
      "v_xor_b32 v7, 0x100, v7", "v_xor_b32 v8, 0x100, v8")
    A(*spread(M[:8], F.lines))
    A(M[8], M[9])
    A("s_waitcnt lgkmcnt(0)", "s_barrier")
    A(f"ds_read_b64 {vr(XF1,2)}, v7", f"ds_read_b64 {vr(WF1,2)}, v8 offset:1024")
    A(*M[10:14])
    A("v_cmp_eq_u32 vcc, 0, v2", "s_waitcnt lgkmcnt(0)")
    G = Asm()
    for r in (WF0, WF0+1, WF1, WF1+1):
        G(f"v_cndmask_b32 v{r}, 0, v{r}, vcc")
    for nt in range(2):
        c = 240 + 4*nt
        G(f"v_and_b32 v{c+2}, 0xffff0000, v{(XF0,XF1)[nt]+1}", f"v_rcp_f32 v3, v{c+2}",
          f"v_mul_f32 v{c}, {fl(GA)}, v3", "v_mul_f32 v4, v3, v3", "v_mul_f32 v4, v4, v3", f"v_mul_f32 v{c+1}, {fl(GB)}, v4")
    A(*spread(M[14:], G.lines[:8]))
    X = [f"{M32} {vr(ACC(mt,nt),16)}, {vr((WF0,WF1)[mt],4)}, {vr((XF0,XF1)[nt],4)}, {vr(ACC(mt,nt),16)}" for mt in range(2) for nt in range(2)]
    A(*spread(X, G.lines[8:]))
    stamp(A, 2)
    A("s_cmp_ge_u32 s35, 27", "s_cbranch_scc1 Lp2")
    A("s_waitcnt vmcnt(0)")
    chk_cleared(A, 254, 10)
    n = 0
    for half in range(2):
        for mt in range(2):
            for nt in range(2):
                c = 240 + 4*nt
                a0 = ACC(mt,nt) + 8*half
                t = 80 + (n % 2)*16; o = 112 + (n % 4)*4; n += 1
                P = range(4)
                for i in P: A(f"v_pk_mul_f32 {vr(t+2*i,2)}, {vr(a0+2*i,2)}, {vr(a0+2*i,2)}")
                for i in P: A(f"v_pk_fma_f32 {vr(t+2*i,2)}, {vr(t+2*i,2)}, {vr(c,2)}, {vr(c,2)} op_sel:[0,1,0] op_sel_hi:[1,1,0]")
                for i in P: A(f"v_pk_mul_f32 {vr(t+2*i,2)}, {vr(t+2*i,2)}, {vr(a0+2*i,2)}")
                for i in range(8): A(f"v_exp_f32 v{t+i}, v{t+i}")
                for i in P: A(f"v_pk_fma_f32 {vr(t+2*i,2)}, {vr(t+2*i,2)}, {vr(c+2,2)}, {vr(c+2,2)} op_sel:[0,0,0] op_sel_hi:[1,0,0]")
                for i in range(8): A(f"v_rcp_f32 v{t+i}, v{t+i}")
                for i in P: A(f"v_pk_mul_f32 {vr(t+2*i,2)}, {vr(t+2*i,2)}, {vr(a0+2*i,2)}")
                for i in P: A(f"v_cvt_pk_bf16_f32 v{o+i}, v{t+2*i}, v{t+2*i+1}")
                A(f"buffer_store_dwordx4 {vr(o,4)}, v9, s[24:27], s{44+mt*2+nt} offen offset:{half*2048} sc1")
                if n == OPT.get('efl', 7):
                    A(f"s_waitcnt vmcnt({n-4})", *set_flag(254, 11, "s48"),
                      "s_cmp_ge_u32 s32, 20", "s_cbranch_scc1 Lg1_ng", "s_barrier", "Lg1_ng:")
    stamp(A, 3)
    A("s_cmp_lt_u32 s32, 20", "s_cbranch_scc1 Lg2c")
    A("s_waitcnt vmcnt(0)", *set_flag(254, 11, "s48", 128), "s_branch Lp2")
    A("Lg2c:")

def p1(A):
    BC = lambda u: 16 + 8*u
    BS = lambda u: 20 + 8*u
    TW = 56
    AF = lambda p, u: 64 + p*20 + 4*u
    AP = lambda p: 104 + 8*p
    AQ = lambda p: 108 + 8*p
    OUT = lambda par, i: 120 + par*8 + i
    TMP = 136
    YF = lambda o, pl: 152 + (o*2+pl)*4
    FP = lambda nt, pl: 184 + (nt*3+pl)*4
    TA = 208; PK = 240
    FPIMG, DCT, SCR = 81920, 94208, 98304
    A("s_sub_u32 s29, s32, 28", "s_lshl_b32 s29, s29, 3", "s_add_u32 s29, s29, s31", "s_lshl_b32 s29, s29, 1")
    A("s_lshr_b32 s46, s28, 2", "s_add_u32 s47, s46, s29", "s_and_b32 s48, s28, 3", "s_lshl_b32 s34, s48, 9", "s_add_u32 s47, s47, s34",
      "s_mul_i32 s33, s47, 1280", "s_mul_i32 s34, s28, 10240", "s_mov_b32 s35, 81920")
    A("v_and_b32 v1, 15, v0", "v_lshrrev_b32 v2, 4, v0", "v_lshlrev_b32 v4, 2, v2", "v_xor_b32 v3, v1, v4", "v_mul_u32_u24 v4, s35, v2", "v_lshl_add_u32 v4, v3, 4, v4")
    A("s_waitcnt lgkmcnt(0)")
    srd(A, 12, 4, X_SZ); srd(A, 36, 6, T_SZ, T_OFF)
    for i in range(10):
        A(f"s_add_u32 m0, s34, {1024*i}", f"s_add_u32 s40, s33, {(i//5)*4*81920+(i%5)*256}", "buffer_load_dwordx4 v4, s[12:15], s40 offen lds")
    sync_srds(A)
    if OPT['mpf1']:
        srd(A, 16, 8, W1_SZ)
        A("s_lshl_b32 s40, s29, 2", "s_add_u32 s40, s40, s28", f"s_mul_i32 s40, s40, {68*128}", "v_lshl_add_u32 v3, v0, 7, s40",
          "buffer_load_dword v150, v3, s[16:19], 0 offen", "buffer_load_dword v151, v3, s[16:19], 0 offen offset:512")
    A("s_and_b32 s41, s28, 1", "s_add_u32 s41, s41, 4", "s_bfe_u32 s42, s28, 0x10001",
      "s_cmp_lt_u32 s28, 4", "s_cselect_b32 s43, s28, s41", "s_cselect_b32 s44, 0, s42", "s_cselect_b32 s45, 1, 0")
    A("v_lshl_add_u32 v8, v2, 6, s47", "v_cvt_f32_u32 v8, v8", f"v_mul_f32 v8, {fl(1/2048)}, v8", "v_cvt_f32_u32 v9, v1", "v_add_f32 v10, 0x41800000, v9")
    for tt in range(2):
        if tt: A(f"v_add_f32 v8, {fl(256/2048)}, v8")
        for nt in range(2):
            A(f"v_mul_f32 v12, v8, v{9+nt}", f"v_cos_f32 v{208+nt*2+tt}, v12", f"v_sin_f32 v{212+nt*2+tt}, v12")
    A("v_lshrrev_b32 v8, 5, v0", "v_mul_u32_u24 v9, 5120, v8", "v_add_u32 v9, s34, v9", "v_bfe_u32 v8, v0, 3, 2", "v_lshl_add_u32 v9, v8, 8, v9",
      "v_lshl_add_u32 v224, v1, 4, v9", "v_xor_b32 v225, 128, v224")
    A("v_mov_b32 v228, 0", "v_mov_b32 v229, 0", "v_mov_b32 v230, 0", "v_mov_b32 v231, 0", f"s_mov_b32 s49, {ONES}")
    A("s_mul_i32 s41, s46, 6144", "s_lshl_b32 s42, s48, 2", "s_add_u32 s41, s41, s42", f"s_add_u32 s41, s41, {FPIMG}", "v_lshl_add_u32 v226, v0, 4, s41",
      "s_lshl_b32 s41, s46, 6", "s_add_u32 s41, s41, s42", f"s_add_u32 s41, s41, {DCT}", "v_lshl_add_u32 v227, v2, 4, s41")
    A("s_lshl_b32 s41, s43, 4", "v_add_u32 v3, s41, v1", "v_cvt_f32_u32 v4, v3", f"v_mul_f32 v5, {fl(1/160)}, v4",
      "v_cvt_f32_u32 v6, v2", "v_mul_f32 v6, 4.0, v6", "v_mul_f32 v6, v6, v5")
    A("v_and_b32 v14, 1, v0", "v_mov_b32 v15, 0x80008000", "v_mul_lo_u32 v14, v14, v15")
    for u in range(5):
        for jp in range(2):
            for e in range(2):
                A(f"v_fmamk_f32 v{8+e}, v5, {fl(float(16*u+2*jp+e))}, v6")
            A("v_cos_f32 v10, v8", "v_cos_f32 v11, v9", "v_sin_f32 v12, v8", "v_sin_f32 v13, v9",
              f"v_cvt_pk_bf16_f32 v{BC(u)+jp}, v10, v11", f"v_cvt_pk_bf16_f32 v{BS(u)+jp}, -v12, -v13",
              f"v_xor_b32 v{BC(u)+2+jp}, v14, v{BC(u)+jp}", f"v_xor_b32 v{BS(u)+2+jp}, v14, v{BS(u)+jp}")
    for r in (1,2,3):
        A(f"v_mul_f32 v8, {fl(r/640)}, v4", f"v_cos_f32 v{TW+2*r-2}, v8", f"v_sin_f32 v{TW+2*r-1}, v8")
    A("v_and_b32 v8, 3, v0", "v_bfe_u32 v9, v0, 3, 1", "v_lshl_add_u32 v9, v2, 1, v9", "v_lshlrev_b32 v10, 2, v8", "v_xor_b32 v9, v9, v10",
      "v_lshlrev_b32 v10, 8, v8", "v_lshl_add_u32 v10, v9, 4, v10", "v_bfe_u32 v9, v0, 2, 1", "v_lshl_add_u32 v14, v9, 3, v10",
      "s_mul_i32 s41, s44, 40960", "v_add_u32 v14, s41, v14", "v_xor_b32 v15, 128, v14")
    A("s_mul_i32 s41, s44, 6144", f"s_add_u32 s41, s41, {FPIMG}", "v_lshl_add_u32 v7, v0, 4, s41",
      "s_lshl_b32 s41, s44, 6", f"s_add_u32 s41, s41, {DCT}", "v_lshl_add_u32 v62, v2, 4, s41",
      "v_lshrrev_b32 v8, 3, v0", "s_mov_b32 s41, 90112", "v_mul_lo_u32 v63, v8, s41", "v_and_b32 v9, 7, v0", "v_lshl_add_u32 v63, v9, 4, v63",
      "s_lshl_b32 s41, s28, 12", f"s_add_u32 s41, s41, {SCR}",
      "v_xor_b32 v10, v8, v9", "v_lshl_add_u32 v3, v8, 7, s41", "v_lshl_add_u32 v3, v10, 4, v3",
      "v_xor_b32 v10, v2, v9", "v_lshl_add_u32 v5, v1, 7, s41", "v_lshl_add_u32 v5, v10, 4, v5", "v_xor_b32 v6, 64, v5")
    if OPT['ppf']:
        A("s_load_dwordx4 s[24:27], s[0:1], 8", "s_load_dwordx2 s[16:17], s[0:1], 48",
          "s_mul_i32 s40, s29, 6", "s_add_u32 s40, s40, s28", "s_cmp_lt_u32 s28, 4", "s_cselect_b32 s41, 0, 4", "s_add_u32 s40, s40, s41",
          "s_lshl_b32 s41, s40, 13", "v_lshl_add_u32 v146, v0, 7, s41",
          "s_cmp_lt_u32 s29, 32", f"s_cselect_b32 s41, 0, {192*8192}", "v_subrev_u32 v147, s41, v146", "s_waitcnt lgkmcnt(0)",
          "s_cselect_b32 s20, s24, s26", "s_cselect_b32 s21, s25, s27", f"s_mov_b32 s22, {WF_SZ}", "s_mov_b32 s23, 0x00020000",
          f"s_mov_b32 s18, {W1_SZ}", "s_mov_b32 s19, 0x00020000")
    stamp(A, 1)
    A(f"s_waitcnt vmcnt({2 if OPT['mpf1'] else 0})")
    stamp(A, 2)
    for I in range(5):
        for ii in range(2):
            A(f"ds_read_b128 {vr(64+(I*2+ii)*4,4)}, v{224+ii} offset:{1024*I}")
    for I in range(5):
        A(f"s_waitcnt lgkmcnt({2*(4-I)})")
        for j in range(8):
            r = 64 + I*8 + j
            A(f"v_dot2c_f32_bf16 v{228+(j&1)}, s49, v{r}", f"v_dot2c_f32_bf16 v{230+(j&1)}, v{r}, v{r}")
    A("v_add_f32 v228, v228, v229", "v_add_f32 v230, v230, v231")
    for qp in ("quad_perm:[1,0,3,2]", "quad_perm:[2,3,0,1]", "row_half_mirror"):
        A(f"v_add_f32_dpp v228, v228, v228 {qp} row_mask:0xf bank_mask:0xf", f"v_add_f32_dpp v230, v230, v230 {qp} row_mask:0xf bank_mask:0xf")
    row_stats(A, 228, 230, 8, 9, 10, 11)
    A("v_cvt_pk_bf16_f32 v11, v11, v10", "v_lshlrev_b32 v8, 5, v2", "v_and_b32 v10, 0xffff0000, v11", "v_lshlrev_b32 v11, 16, v11", "v_rcp_f32 v11, v11",
      f"v_fmac_f32 v228, {fl(-640.0)}, v10")
    for tt in range(2):
        A(f"ds_bpermute_b32 v{232+tt}, v8, v11 offset:{128*tt}", f"ds_bpermute_b32 v{234+tt}, v8, v228 offset:{128*tt}")
    A("s_waitcnt lgkmcnt(0)")
    for nt in range(2):
        c = 208+nt*2; sn = 212+nt*2; o = 236 + nt*3
        for tt in range(2):
            A(f"v_mul_f32 v{c+tt}, v{c+tt}, v{232+tt}", f"v_mul_f32 v{sn+tt}, v{sn+tt}, v{232+tt}")
        A(f"v_cvt_pk_bf16_f32 v{o}, v{c}, v{c+1}", f"v_cvt_pk_bf16_f32 v{o+1}, v{sn}, v{sn+1}", f"v_cvt_pk_bf16_f32 v{o+2}, -v{sn}, -v{sn+1}")
        for pl in range(3):
            A(f"ds_write_b32 v226, v{o+pl} offset:{(nt*3+pl)*1024}")
    A("v_cvt_pk_bf16_f32 v8, v234, v235", "ds_write_b32 v227, v8")
    A("s_waitcnt lgkmcnt(0)", "s_barrier")
    stamp(A, 3)
    A("Lp1_unit:")
    stamp(A, 4)
    def reads(t):
        return [f"ds_read_b64_tr_b16 {vr(AF(t&1,u)+2*jh,2)}, v{14+((u+5*jh)&1)} offset:{t*5120+((u+5*jh)>>1)*1024}" for u in range(5) for jh in range(2)]
    def mf(t):
        L = []
        for u in range(5):
            for (acc, B) in ((AP(t&1), BC(u)), (AQ(t&1), BS(u))):
                L.append(f"{M16} {vr(acc,4)}, {vr(AF(t&1,u),4)}, {vr(B,4)}, {'0' if u==0 else vr(acc,4)}")
        return L
    def bfly(t):
        P = AP(t&1); Q = AQ(t&1); O = lambda i: OUT(t&1, i)
        c1,s1,c2,s2,c3,s3 = range(TW, TW+6)
        pr,pi,qr,qi,ar,ai,ur,ui,wr_,wi_ = range(TMP, TMP+10)
        L = [f"v_fma_f32 v{pr}, v{P+2}, v{c2}, v{P}", f"v_fma_f32 v{pi}, v{Q+2}, v{c2}, v{Q}",
             f"v_mul_f32 v{ar}, v{P+1}, v{c1}", f"v_mul_f32 v{ai}, v{Q+1}, v{c1}",
             f"v_fmac_f32 v{pr}, v{Q+2}, v{s2}", f"v_fma_f32 v{pi}, -v{P+2}, v{s2}, v{pi}",
             f"v_fmac_f32 v{ar}, v{Q+1}, v{s1}", f"v_fma_f32 v{ai}, -v{P+1}, v{s1}, v{ai}",
             f"v_fma_f32 v{qr}, 2.0, v{P}, -v{pr}", f"v_fma_f32 v{qi}, 2.0, v{Q}, -v{pi}",
             f"v_fma_f32 v{ur}, v{P+3}, v{c3}, v{ar}", f"v_fma_f32 v{ui}, v{Q+3}, v{c3}, v{ai}",
             f"v_fmac_f32 v{ur}, v{Q+3}, v{s3}", f"v_fma_f32 v{ui}, -v{P+3}, v{s3}, v{ui}",
             f"v_fma_f32 v{wr_}, 2.0, v{ar}, -v{ur}", f"v_fma_f32 v{wi_}, 2.0, v{ai}, -v{ui}",
             f"v_add_f32 v{O(0)}, v{pr}, v{ur}", f"v_add_f32 v{O(1)}, v{pi}, v{ui}",
             f"v_sub_f32 v{O(6)}, v{pr}, v{ur}", f"v_sub_f32 v{O(7)}, v{ui}, v{pi}",
             f"v_sub_f32 v{O(2)}, v{qr}, v{wi_}", f"v_add_f32 v{O(3)}, v{qi}, v{wr_}",
             f"v_add_f32 v{O(4)}, v{qr}, v{wi_}", f"v_sub_f32 v{O(5)}, v{qi}, v{wr_}"]
        if t & 1:
            for i in (0,1,6,7,2,3,4,5):
                n = '-' if i == 3 else ''
                L.append(f"v_cvt_pk_bf16_f32 v{YF(i>>1,i&1)+(t>>1)}, {n}v{OUT(0,i)}, {n}v{OUT(1,i)}")
        return L
    A(*reads(0))
    for t in range(9):
        if t < 8:
            A("s_waitcnt lgkmcnt(0)")
            fill = (reads(t+1) if t < 7 else [f"ds_read_b128 {vr(FP(nt,pl),4)}, v7 offset:{(nt*3+pl)*1024}" for nt in range(2) for pl in range(3)])
            fill = fill + (bfly(t-1) if t >= 1 else [])
            if OPT['ppf'] and t == 0: fill.append("buffer_load_dword v12, v146, s[16:19], 0 offen")
            if OPT['ppf'] and t == 4: fill.append("buffer_load_dword v13, v147, s[20:23], 0 offen")
            A(*spread(mf(t), fill))
        else:
            B = bfly(7)
            A(*B[:25])
            A("s_cmp_lg_u32 s43, 0", "s_cbranch_scc1 Lp1_nodc", "s_mov_b32 exec_lo, 0x10001", "s_mov_b32 exec_hi, 0x10001",
              f"ds_read_b128 {vr(YF(0,0),4)}, v62", "s_mov_b64 exec, -1", "Lp1_nodc:")
            A(*B[25:])
    A("s_add_u32 s41, s29, s44", "s_lshl_b32 s41, s41, 7", "s_lshl_b32 s42, s43, 13", "s_add_u32 s41, s41, s42")
    A("v_mov_b32 v150, 0", "buffer_load_dwordx2 v[148:149], v150, s[56:59], 0 offen sc1")
    A("s_waitcnt lgkmcnt(0)")
    stamp(A, 5)
    def s1m(kinds, base):
        L = []; n = 0
        for tile, o in enumerate(kinds):
            for nt in range(2):
                re = base + n*8; im = re + 4; n += 1
                L += [f"{M16} {vr(re,4)}, {vr(YF(o,0),4)}, {vr(FP(nt,0),4)}, 0", f"{M16} {vr(im,4)}, {vr(YF(o,1),4)}, {vr(FP(nt,0),4)}, 0",
                      f"{M16} {vr(re,4)}, {vr(YF(o,1),4)}, {vr(FP(nt,1),4)}, {vr(re,4)}", f"{M16} {vr(im,4)}, {vr(YF(o,0),4)}, {vr(FP(nt,2),4)}, {vr(im,4)}"]
        return L
    def s1w(base):
        L = []; n = 0
        for tile in range(2):
            for nt in range(2):
                re = base + n*8; pk = PK + n*4; n += 1
                L += [f"v_cvt_pk_bf16_f32 v{pk+j}, v{re+2*j}, v{re+2*j+1}" for j in range(4)]
                L.append(f"ds_write_b128 v{5+tile}, {vr(pk,4)} offset:{nt*2048}")
        L += [f"ds_read_b128 {vr(base+4*q,4)}, v3 offset:{q*1024}" for q in range(4)]
        return L
    def s1s(base, poff):
        L = []
        for q in range(4):
            L += [f"s_add_u32 s42, s41, {q*8*90112+poff}", f"s_waitcnt lgkmcnt({3-q})",
                  f"buffer_store_dwordx4 {vr(base+4*q,4)}, v63, s[36:39], s42 offen {OPT['sc_t']}"]
        return L
    TB_ = 64
    A(*s1m((0,2), TA))
    A("s_cmp_eq_u32 s43, 5", "s_cbranch_scc1 Lp1_b5")
    A(*spread(s1m((1,3), TB_), s1w(TA)))
    A(*s1s(TA, 0))
    A(*s1w(TB_))
    A(*s1s(TB_, 6*8192))
    A("s_cmp_eq_u32 s45, 0", "s_cbranch_scc1 Lp1_done")
    A("s_mov_b32 s45, 0", "s_mov_b32 s44, 1", "v_add_u32 v14, 40960, v14", "v_add_u32 v15, 40960, v15", "v_add_u32 v7, 6144, v7", "v_add_u32 v62, 64, v62", "v_add_u32 v146, 0x8000, v146", "v_add_u32 v147, 0x8000, v147", "s_branch Lp1_unit")
    A("Lp1_b5:", "s_nop 7")
    A(*s1w(TA))
    A(*s1s(TA, 0))
    A("Lp1_done:")
    stamp(A, 6)
    A("s_lshl_b32 s41, s29, 6", f"s_add_u32 s41, s41, {32*8192}", "v_lshlrev_b32 v151, 3, v0", "s_waitcnt vmcnt(0)")
    chk_cleared(A, 148, 150)
    A("v_mov_b32 v18, v148", "v_mov_b32 v19, v149", "v_mov_b32 v12, 0")
    A("s_barrier", "s_cmp_lg_u32 s28, 0", "s_cbranch_scc1 Lp2")
    A(*set_flag(148, 151, "s41"))

HK = [(4*c, 4*c+2) for c in range(7)] + [(4*c+1, 4*c+3) for c in range(6)] + [(25, None)]
def hk_mask(sp, upto):
    m = 0
    for j, (a, b) in enumerate(HK[:upto]):
        if upto == 14 and j < 6: continue
        for hs, x in enumerate((a, b)):
            if x is None: continue
            x = x + 28*sp
            if sp and j == 6 and hs == 1: x = 53
            if sp and j == 13: x = 27
            m |= 1 << x
    return m
def set_mask(A, upto):
    m0, m1 = hk_mask(0, upto), hk_mask(1, upto)
    A("s_cmp_eq_u32 s50, 0", f"s_mov_b32 s36, 0x{m0 & 0xffffffff:x}", f"s_mov_b32 s37, 0x{m0 >> 32:x}",
      f"s_cselect_b32 s36, s36, 0x{m1 & 0xffffffff:x}", f"s_cselect_b32 s37, s37, 0x{m1 >> 32:x}")
def poll_h(A, upto, first):
    _pl[0] += 1; n = _pl[0]
    if first: set_mask(A, upto)
    A("s_mov_b32 s3, 0")
    if not first: A(f"s_branch Lpc{n}")
    A(f"Lpl{n}:", "s_mov_b64 exec, s[36:37]", "buffer_load_dwordx2 v[20:21], v13, s[52:55], 0 offen sc1", "s_mov_b64 exec, -1", "s_waitcnt vmcnt(0)", f"Lpc{n}:",
      "v_cmp_eq_u64 vcc, v[20:21], v[18:19]", "s_add_u32 s3, s3, 1", "s_nop 0", "s_and_b64 s[38:39], vcc, s[36:37]", "s_cmp_eq_u64 s[38:39], s[36:37]", f"s_cbranch_scc1 Lpd{n}",
      f"s_sleep {OPT.get('slp',4)}", f"s_cmp_lt_u32 s3, {SPIN_MAX}", f"s_cbranch_scc1 Lpl{n}", f"Lpd{n}:")

def g2_loader(A):
    NST = 14
    A("s_lshr_b32 s30, s32, 2", "s_and_b32 s50, s31, 1")
    A("s_lshl_b32 s34, s29, 2", "s_add_u32 s34, s34, s33", f"s_mul_i32 s34, s34, {108*1024}", "v_lshl_add_u32 v4, v0, 4, s34")
    A("v_lshrrev_b32 v3, 4, v0", "v_and_b32 v2, 15, v0", "v_lshlrev_b32 v5, 2, v3", "v_xor_b32 v2, v2, v5",
      "s_and_b32 s34, s33, 1", "s_lshl_b32 s34, s34, 5", "v_add_u32 v8, s34, v3", "v_mul_u32_u24 v8, 1280, v8",
      "s_lshl_b32 s34, s30, 8", "v_lshl_add_u32 v10, v2, 4, v8", "v_add_u32 v10, s34, v10")
    A("s_lshl_b32 s34, s29, 1", "s_lshr_b32 s35, s33, 1", "s_add_u32 s34, s34, s35", "s_lshl_b32 s34, s34, 13", "v_lshl_add_u32 v13, v0, 7, s34")
    A(f"s_mul_i32 s44, s50, {28*2048}", f"s_mul_i32 s45, s50, {14*81920}", f"s_mul_i32 s34, s35, 81920", "s_add_u32 s45, s45, s34")
    srd(A, 12, 6, H_SZ, H_OFF); srd(A, 16, 48, W1_SZ)
    def issue_w(st):
        slot = (st % RING) * 32768; a, b = HK[st]
        A(f"s_add_u32 s42, s45, {(a>>1)*81920+(a&1)*20480}")
        if st == 6:
            A("s_and_b32 s34, s50, s35", "s_cmp_eq_u32 s34, 1", f"s_cselect_b32 s42, {26*81920+20480}, s42")
        if st == 13:
            A("s_cmp_eq_u32 s50, 0", f"s_mov_b32 s42, {12*81920+20480}", f"s_cselect_b32 s42, s42, {13*81920+20480}", "s_cmp_eq_u32 s35, 0", "s_cselect_b32 s18, s18, 0")
        for q in range(4):
            A(f"s_add_u32 m0, s40, {slot + 16384 + q*1024}", "s_nop 0", f"buffer_load_dwordx4 v10, s[16:19], s42 offen lds")
            if q < 3: A(f"s_add_u32 s42, s42, {4*1280}")
        return 4
    def issue_h(st):
        slot = (st % RING) * 32768; a, b = HK[st]
        A(f"s_add_u32 s41, s44, {a*2048}", f"s_add_u32 m0, s40, {slot}")
        if st == 13: A("s_cmp_eq_u32 s50, 0", f"s_cselect_b32 s41, s41, {27*2048}")
        else: A(f"s_add_u32 s43, s44, {b*2048-2048}")
        if st == 6: A("s_cmp_eq_u32 s50, 0", f"s_cselect_b32 s43, s43, {53*2048-2048}")
        for q in range(2): A(f"buffer_load_dwordx4 v4, s[12:15], s41 offen offset:{q*1024} sc1 lds")
        if st == 13: return 2
        for q in range(2,4): A(f"buffer_load_dwordx4 v4, s[12:15], s43 offen offset:{q*1024} sc1 lds")
        return 4
    NW = OPT.get('nw', 2)
    if OPT.get('wlate'):
        A("s_waitcnt vmcnt(1)")
        chk_cleared(A, 18, 12)
        set_mask(A, 6)
        A("s_barrier")
        stamp(A, 4)
        if OPT.get('gslp'): A(f"s_sleep {OPT['gslp']}")
        A("s_mov_b64 exec, s[36:37]", "buffer_load_dwordx2 v[20:21], v13, s[52:55], 0 offen sc1", "s_mov_b64 exec, -1")
        for st in range(NW): issue_w(st)
        A(f"s_waitcnt vmcnt({4*NW})")
        poll_h(A, 6, False)
    else:
        for st in range(NW): issue_w(st)
        A(f"s_waitcnt vmcnt({4*NW})")
        chk_cleared(A, 18, 12)
        A("s_barrier")
        stamp(A, 4)
        poll_h(A, 6, True)
    stamp(A, 5)
    ops = []
    D = OPT.get('D2') or 2
    for st in range(NW): ops += [st]*issue_h(st)
    nxt = NW
    for st in range(NST):
        last = max(i for i, x in enumerate(ops) if x == st)
        A(f"s_waitcnt vmcnt({len(ops)-1-last})", "s_barrier")
        if st == 1:
            set_mask(A, 14)
            A("s_mov_b64 exec, s[36:37]", "buffer_load_dwordx2 v[20:21], v13, s[52:55], 0 offen sc1", "s_mov_b64 exec, -1"); ops.append('p')
        while nxt < NST and nxt <= st + max(D, NW-1 if st == 0 else 0) :
            if nxt == 6:
                A(f"s_waitcnt vmcnt({len(ops)-1-ops.index('p')})")
                poll_h(A, 14, False)
            ops += [nxt]*issue_h(nxt); ops += [nxt]*issue_w(nxt); nxt += 1
    if OPT['cpf']:
        A("s_lshl_b32 s34, s32, 2", "s_add_u32 s34, s34, s33", "s_cmp_ge_u32 s34, 1", "s_cbranch_scc1 Lk1_end")
        A("s_mov_b64 exec, 0x7ffffff")
        cpf(A, "k3_kernel", None, s=(36,38))
    A("s_branch Lk1_end")

def g2_compute(A):
    NST = 14
    XA, WA = 208, lambda mt: 209 + mt
    A("s_lshr_b32 s30, s32, 2", "s_and_b32 s50, s31, 1")
    A("s_lshl_b32 s35, s34, 13", f"v_lshl_add_u32 v{XA}, v0, 4, s35")
    A("v_bfe_u32 v4, v0, 2, 2", "v_lshl_add_u32 v5, v2, 2, v4", "v_lshlrev_b32 v5, 8, v5",
      "v_bfe_u32 v6, v0, 4, 1", "v_lshl_add_u32 v5, v6, 5, v5", "v_and_b32 v6, 3, v0", "v_lshl_add_u32 v5, v6, 3, v5",
      "s_lshl_b32 s35, s33, 1", "v_xor_b32 v6, s35, v4", f"v_lshl_add_u32 v{WA(0)}, v6, 6, v5", f"v_xor_b32 v{WA(1)}, 64, v{WA(0)}")
    srd(A, 24, 6, P_SZ, P_OFF)
    A("v_mov_b32 v240, v222", "v_mov_b32 v244, v223")
    for r in (241,242,243,245,246,247,249,250,251): A(f"v_mov_b32 v{r}, 0")
    A("v_cmp_gt_u32 vcc, 32, v0", "v_mov_b32 v5, 0x3f80", "s_nop 0", "v_cndmask_b32 v248, 0, v5, vcc")
    A("v_lshlrev_b32 v5, 9, v2", "v_lshl_add_u32 v7, v1, 3, v5",
      "s_lshl_b32 s40, s29, 2", "s_lshl_b32 s42, s34, 1", "s_add_u32 s40, s40, s42", "s_mul_i32 s40, s40, 10",
      "s_lshl_b32 s42, s30, 1", "s_add_u32 s40, s40, s42", "s_add_u32 s40, s40, s33", "s_lshl_b32 s40, s40, 12",
      f"s_mul_i32 s42, s50, {P_SZ//2}", "s_add_u32 s44, s40, s42", "s_add_u32 s45, s44, 40960")
    for mt in range(2):
        for nt in range(2):
            A(f"{M32} {vr(ACC(mt,nt),16)}, v[248:251], {vr(240+4*mt,4)}, 0")
    A("s_waitcnt vmcnt(0)", *set_flag(254, 11, "s48", 128))
    base = [0]
    def reads(st):
        p = st & 1; slot = (st % RING) * 32768
        L = []
        nb = slot & ~0xffff
        if nb != base[0]:
            for r in range(208, 211): L.append(f"v_xor_b32 v{r}, 0x10000, v{r}")
            base[0] = nb
        so = slot - nb
        for kk in range(4 if st < 13 else 2):
            for mt in range(2):
                for jh in range(2):
                    L.append(f"ds_read_b64_tr_b16 {vr(FB(p,kk,2+mt)+2*jh,2)}, v{WA(mt)} offset:{so+16384+(16*kk+8*jh)*256}")
            for nt in range(2):
                L.append(f"ds_read_b128 {vr(FB(p,kk,nt),4)}, v{XA} offset:{so+nt*4096+kk*1024}")
        return L
    mm = lambda p, kk, mt, nt: f"{M32} {vr(ACC(mt,nt),16)}, {vr(FB(p,kk,nt),4)}, {vr(FB(p,kk,2+mt),4)}, {vr(ACC(mt,nt),16)}"
    def mfmas(st):
        return [mm(st&1, kk, mt, nt) for kk in range(4) for mt in range(2) for nt in range(2)]
    compute_loop(A, NST, reads, mfmas, lambda st: [], lambda st: stamp(A, {0:4,1:5,7:6,13:7}[st]) if st in (0,1,7,13) else None)
    p = (NST-1) & 1
    def outp(mt, nt):
        L = []
        for a in range(4):
            a0 = ACC(mt,nt) + 4*a; o = FB(1-p,0,0) + ((mt*2+nt)*4+a)*2
            L += [f"v_cvt_pk_bf16_f32 v{o}, v{a0}, v{a0+1}", f"v_cvt_pk_bf16_f32 v{o+1}, v{a0+2}, v{a0+3}",
                  f"buffer_store_dwordx2 {vr(o,2)}, v7, s[24:27], s{44+nt} offen offset:{a*1024+mt*256} {OPT['sc_p']}"]
        return L
    tiles = [(mt,nt) for mt in range(2) for nt in range(2)]
    for i, (mt,nt) in enumerate(tiles):
        A(*[mm(p, kk, mt, nt) for kk in range(2)])
        if i >= 2: A(*outp(*tiles[i-2]))
    A(*outp(*tiles[2])); A(*outp(*tiles[3]))
    A("s_branch Lk1_end")

def hgen(Hl, HF, tvar):
    Hl(f"s_lshl_b32 s33, s{tvar}, 4", "v_add_u32 v14, s33, v1", "v_cvt_f32_u32 v15, v14", f"v_mul_f32 v15, {fl(1/160)}, v15", "v_mul_f32 v4, v7, v15")
    for bb in range(5):
        for ep in range(2):
            for e in range(2):
                Hl(f"v_fmamk_f32 v{8+e}, v15, {fl(float(16*bb+2*ep+e))}, v4")
            Hl("v_cos_f32 v10, v8", "v_cos_f32 v11, v9", "v_sin_f32 v12, v8", "v_sin_f32 v13, v9")
            if bb == 0 and ep == 0:
                Hl("v_cmp_gt_u32 vcc, 16, v0", "v_mov_b32 v8, 0.5", "s_nop 0", "v_cndmask_b32 v10, v10, v8, vcc")
            Hl(f"v_cvt_pk_bf16_f32 v{HF(bb)+ep}, v10, v11", f"v_cvt_pk_bf16_f32 v{HF(bb)+2+ep}, -v12, -v13")
    Hl("v_and_b32 v8, 1, v14", "v_lshlrev_b32 v8, 15, v8", "v_or_b32 v8, 0x3f80, v8", f"v_cndmask_b32 v{HF(5)}, 0, v8, vcc",
       f"v_mov_b32 v{HF(5)+1}, 0", f"v_mov_b32 v{HF(5)+2}, 0", f"v_mov_b32 v{HF(5)+3}, 0")

def p2(A):
    C = lambda t, ks: vr(16 + (t*2+ks)*4, 4)
    S = lambda t, ks: vr(48 + (t*2+ks)*4, 4)
    WV = lambda tau, pl, t, e: 80 + tau*32 + pl*16 + t*4 + e
    TB = lambda tau, ks, pl: 144 + tau*24 + (ks*3+pl)*4
    XA = lambda tau, pl, t: 192 + tau*32 + pl*16 + t*4
    PK = 80
    WIMG = 32768
    stamp(A, 8)
    A("s_load_dwordx4 s[8:11], s[0:1], 8", "s_load_dwordx2 s[48:49], s[0:1], 48")
    A("s_sub_u32 s33, s32, 20", "s_mul_i32 s34, s33, 43", "s_lshr_b32 s34, s34, 7", "s_mul_i32 s35, s34, 3", "s_sub_u32 s45, s33, s35",
      "s_lshl_b32 s29, s31, 2", "s_add_u32 s29, s29, s34", "s_and_b32 s46, s28, 3")
    A("s_mov_b32 s34, 0x9a543210", "s_mov_b32 s35, 0x8876", "s_lshl_b32 s33, s45, 2", "s_add_u32 s33, s33, s46", "s_lshl_b32 s33, s33, 2",
      "s_lshr_b64 s[34:35], s[34:35], s33", "s_and_b32 s30, s34, 15")
    A("s_lshl_b32 s47, s45, 6", "s_cmp_eq_u32 s45, 2", "s_cselect_b32 s47, 113, s47")
    A("s_mul_i32 s43, s29, 90112", "s_lshl_b32 s34, s30, 13", "s_add_u32 s43, s43, s34", "s_lshr_b32 s34, s28, 2", "s_lshl_b32 s34, s34, 12",
      "s_add_u32 s43, s43, s34", "s_lshl_b32 s35, s46, 13", "s_add_u32 s44, s35, s34")
    A("v_lshrrev_b32 v4, 3, v0", "v_lshl_add_u32 v4, v4, 5, s29", "v_mul_u32_u24 v4, 642, v4", "v_and_b32 v5, 7, v0", "v_lshl_add_u32 v4, v5, 4, v4",
      "s_lshl_b32 s34, s47, 1", "s_bfe_u32 s36, s28, 0x10001", "s_mulk_i32 s36, 320", "s_add_u32 s34, s34, s36",
      "s_and_b32 s36, s28, 1", f"s_mul_i32 s36, s36, {32*20544}", "s_add_u32 s34, s34, s36", "v_add_u32 v4, s34, v4")
    A("s_waitcnt lgkmcnt(0)")
    srd(A, 12, 6, T_SZ, T_OFF); srd(A, 24, 6, U_SZ, U_OFF)
    A("s_cmp_lt_u32 s28, 4", "s_cselect_b32 s16, s8, s10", "s_cselect_b32 s17, s9, s11", f"s_mov_b32 s18, {WF_SZ}", "s_mov_b32 s19, 0x00020000")
    A("s_barrier")
    A("s_lshl_b32 s36, s28, 12")
    def wdma():
        for q in range(4):
            A(f"s_add_u32 m0, s36, {WIMG+1024*q}", f"s_mov_b32 s34, {q*8*20544}", "buffer_load_dwordx4 v4, s[16:19], s34 offen lds")
    A("s_cmp_lg_u32 s28, 4", "s_cbranch_scc1 Lp2_np")
    A("s_waitcnt vmcnt(0)", "v_mov_b32 v12, 0")
    chk_cleared(A, 18, 12)
    A("v_and_b32 v13, 31, v0", "v_lshlrev_b32 v13, 7, v13", f"s_mov_b32 s37, {32*8192}", "s_mov_b32 s3, 0",
      "buffer_load_dwordx2 v[20:21], v13, s[52:55], s37 offen sc1")
    wdma()
    A("s_waitcnt vmcnt(4)", "s_branch Lp2_pc", "Lp2_poll:",
      "buffer_load_dwordx2 v[20:21], v13, s[52:55], s37 offen sc1", "s_waitcnt vmcnt(0)", "Lp2_pc:",
      "v_cmp_eq_u64 vcc, v[20:21], v[18:19]", "s_add_u32 s3, s3, 1", "s_nop 0",
      "s_cmp_eq_u64 vcc, -1", "s_cbranch_scc1 Lp2_hb", "s_sleep 4", f"s_cmp_lt_u32 s3, {SPIN_MAX}", "s_cbranch_scc1 Lp2_poll", "s_branch Lp2_hb")
    A("Lp2_np:")
    wdma()
    A("v_and_b32 v1, 15, v0", "v_lshrrev_b32 v2, 4, v0", "v_cvt_f32_u32 v7, v2", "v_mul_f32 v7, 4.0, v7")
    def tdma():
        A("s_mov_b32 m0, s44", "v_lshlrev_b32 v8, 4, v0")
        for i in range(4): A(f"buffer_load_dwordx4 v8, s[12:15], s43 offen offset:{1024*i} sc1 lds")
    A("s_cmp_lt_u32 s28, 4", "s_cbranch_scc1 Lp2_main")
    A("Lp2_hb:", "s_barrier")
    tdma()
    A("s_waitcnt vmcnt(0)", "s_barrier", "s_branch Lk1_end")
    A("Lp2_main:")
    A("v_cvt_f32_u32 v5, v1", f"v_mul_f32 v5, {fl(1/64)}, v5", "v_add_f32 v6, 0x3e800000, v5",
      "v_and_b32 v14, 1, v0", "v_mov_b32 v15, 0x80008000", "v_mul_lo_u32 v14, v14, v15", "v_xor_b32 v15, 0x80000000, v14")
    for t in range(2):
        for jp in range(4):
            for e in range(2):
                j = 2*jp+e
                A(f"v_add_f32 v{8+e}, {fl(float(16*(j>>2)+(j&3)))}, v7", f"v_mul_f32 v{8+e}, v{8+e}, v{5+t}")
            c0 = 16+t*8+jp; s0 = 48+t*8+jp
            A("v_cos_f32 v10, v8", "v_cos_f32 v11, v9", "v_sin_f32 v12, v8", "v_sin_f32 v13, v9",
              f"v_cvt_pk_bf16_f32 v{c0}, v10, v11", f"v_cvt_pk_bf16_f32 v{s0}, v12, v13")
            for b in (c0, s0):
                A(f"v_xor_b32 v{b+4}, v14, v{b}", f"v_xor_b32 v{b+16}, 0x80000000, v{b}", f"v_xor_b32 v{b+20}, v15, v{b}")
    A("v_lshrrev_b32 v5, 2, v0", "v_lshlrev_b32 v5, 7, v5", "v_and_b32 v7, 3, v0", "v_lshl_add_u32 v5, v7, 4, v5", "v_add_u32 v5, s35, v5",
      "v_lshrrev_b32 v8, 3, v0", "s_mov_b32 s33, 45056", "v_mul_lo_u32 v6, v8, s33", "v_and_b32 v9, 7, v0", "v_lshl_add_u32 v6, v9, 4, v6",
      "s_lshl_b32 s36, s30, 12", "s_lshl_b32 s33, s29, 7", "s_add_u32 s36, s36, s33",
      "v_xor_b32 v10, v8, v9", "v_lshl_add_u32 v3, v8, 7, s35", "v_lshl_add_u32 v3, v10, 4, v3",
      "v_xor_b32 v10, v2, v9", "v_lshl_add_u32 v7, v1, 7, s35", "v_lshl_add_u32 v7, v10, 4, v7")
    A("s_lshl_b32 s33, s30, 4", "v_add_u32 v8, s33, v1", "v_sub_u32 v9, 256, v8",
      "s_cmp_lt_u32 s30, 6", "s_cselect_b64 vcc, -1, 0", "v_cndmask_b32 v8, v9, v8, vcc", "v_subrev_u32 v8, s47, v8",
      "v_lshlrev_b32 v4, 9, v2", "v_lshl_add_u32 v4, v8, 1, v4")
    stamp(A, 9)
    A("s_barrier")
    stamp(A, 10)
    tdma()
    A("s_waitcnt vmcnt(0)", "s_barrier")
    stamp(A, 11)
    A("s_lshl_b32 s33, s45, 2", "s_add_u32 s33, s33, s46", "s_cmp_eq_u32 s33, 11", "s_cbranch_scc1 Lk1_end")
    def treads(tau):
        return [f"ds_read_b64_tr_b16 {vr(TB(tau,ks,pl)+2*jh,2)}, v5 offset:{(32*ks+16*jh)*128+tau*64+pl*8}" for ks in range(2) for pl in range(2) for jh in range(2)]
    def wreads(tau):
        return [f"ds_read_u16_d16_hi v{WV(tau,pl,t,e)}, v4 offset:{WIMG+(pl*2+tau)*8192+(16*t+e)*128}" for t in range(4) for e in range(4) for pl in range(2)]
    M = M16
    def st2(tau):
        L = []
        for t in range(4):
            re = vr(XA(tau,0,t),4); im = vr(XA(tau,1,t),4)
            for ks in range(2):
                tr = vr(TB(tau,ks,0),4); ti = vr(TB(tau,ks,1),4)
                L += [f"{M} {re}, {C(t,ks)}, {tr}, {'0' if ks==0 else re}", f"{M} {im}, {C(t,ks)}, {ti}, {'0' if ks==0 else im}",
                      f"{M} {re}, {S(t,ks)}, {ti}, {re}", f"{M} {im}, {S(t,ks)}, {vr(TB(tau,ks,2),4)}, {im}"]
        return L
    def wmul(tau):
        L = []
        for t in range(4):
            for e in range(4):
                xr = XA(tau,0,t)+e; xi = XA(tau,1,t)+e; wr = WV(tau,0,t,e); wi = WV(tau,1,t,e)
                L += [f"v_mul_f32 v{8+e}, v{xr}, v{wr}", f"v_mul_f32 v{12+e}, v{xr}, v{wi}",
                      f"v_fma_f32 v{8+e}, -v{xi}, v{wi}, v{8+e}", f"v_fmac_f32 v{12+e}, v{xi}, v{wr}"]
            for pl in range(2):
                d = TB(tau, t>>1, pl) + (t&1)*2
                L += [f"v_cvt_pk_bf16_f32 v{d}, v{8+4*pl}, v{9+4*pl}", f"v_cvt_pk_bf16_f32 v{d+1}, v{10+4*pl}, v{11+4*pl}"]
            d = TB(tau, t>>1, 2) + (t&1)*2
            L += [f"v_cvt_pk_bf16_f32 v{d}, -v12, -v13", f"v_cvt_pk_bf16_f32 v{d+1}, -v14, -v15"]
        return L
    def negT(tau):
        return [f"v_xor_b32 v{TB(tau,ks,2)+j}, 0x80008000, v{TB(tau,ks,0)+j}" for ks in range(2) for j in range(4)]
    def st3(tau):
        L = []
        for nt in range(4):
            re = vr(XA(tau,0,nt),4); im = vr(XA(tau,1,nt),4)
            for ks in range(2):
                xr = vr(TB(tau,ks,0),4); xi = vr(TB(tau,ks,1),4)
                L += [f"{M} {re}, {xr}, {C(nt,ks)}, {'0' if ks==0 else re}", f"{M} {im}, {xi}, {C(nt,ks)}, {'0' if ks==0 else im}",
                      f"{M} {re}, {vr(TB(tau,ks,2),4)}, {S(nt,ks)}, {re}", f"{M} {im}, {xr}, {S(nt,ks)}, {im}"]
        return L
    def outp(tau):
        L = []
        for nt in range(4):
            pk = PK + 4*nt + 16*tau; re = XA(tau,0,nt); im = XA(tau,1,nt)
            L += [f"v_cvt_pk_bf16_f32 v{pk}, v{re}, v{re+1}", f"v_cvt_pk_bf16_f32 v{pk+1}, v{re+2}, v{re+3}",
                  f"v_cvt_pk_bf16_f32 v{pk+2}, v{im}, v{im+1}", f"v_cvt_pk_bf16_f32 v{pk+3}, v{im+2}, v{im+3}",
                  f"ds_write_b128 v7, {vr(pk,4)} offset:{nt*2048}"]
        return L
    A(*treads(0)); A(*treads(1))
    A("s_waitcnt lgkmcnt(8)")
    A(*negT(0))
    A(*st2(0)[:8])
    A("s_waitcnt lgkmcnt(0)")
    A(*spread(st2(0)[8:], negT(1) + wreads(0)))
    A("s_waitcnt lgkmcnt(0)")
    A(*spread(st2(1), interleave(wmul(0), wreads(1), 2)))
    A("s_waitcnt lgkmcnt(0)")
    A(*spread(st3(0), wmul(1)))
    S3 = st3(1); O1 = outp(1)
    A(*spread(S3[:16], outp(0) + ["v_xor_b32 v7, 64, v7"]))
    rb = lambda nt: [f"ds_read_b128 {vr(112+8*nt+4*q,4)}, v3 offset:{nt*2048+q*1024}" for q in range(2)]
    stq = lambda nt: [x for q in range(2) for x in (f"s_add_u32 s37, s36, {(16*nt+8*q)*45056}", f"buffer_store_dwordx4 {vr(112+8*nt+4*q,4)}, v6, s[24:27], s37 offen {OPT['sc_u']}")]
    A(*spread(S3[16:24], O1[0:5] + rb(0)))
    A(*spread(S3[24:32], O1[5:10] + rb(1)))
    A(*O1[10:15]); A(*rb(2))
    A("s_waitcnt lgkmcnt(6)"); A(*stq(0))
    A(*O1[15:20]); A(*rb(3))
    A("s_waitcnt lgkmcnt(6)"); A(*stq(1))
    A("s_waitcnt lgkmcnt(3)"); A(*stq(2))
    A("s_waitcnt lgkmcnt(0)"); A(*stq(3))

def k3(A):
    A("k3_kernel:")
    A("s_cmp_ge_u32 s2, 256", "s_cbranch_scc1 Lk3_end_x")
    kstart(A)
    A("s_load_dwordx2 s[4:5], s[0:1], 0", "s_load_dwordx2 s[6:7], s[0:1], 64", "s_load_dwordx2 s[40:41], s[0:1], 80")
    A("v_lshrrev_b32 v1, 6, v0", "v_and_b32 v0, 63, v0", "v_readfirstlane_b32 s28, v1")
    A("s_and_b32 s31, s2, 7", "s_lshr_b32 s32, s2, 3")
    A("s_lshl_b32 s29, s31, 3", "s_lshr_b32 s33, s32, 2", "s_add_u32 s29, s29, s33", "s_and_b32 s30, s32, 1")
    A("v_lshlrev_b32 v3, 4, v0", "v_and_b32 v1, 15, v0", "v_lshrrev_b32 v2, 4, v0")
    A("s_lshl_b32 s33, s30, 10", "s_add_u32 s33, s33, s29", "v_lshl_add_u32 v5, v1, 6, s33")
    ZIMG = 49152
    M = M16
    A("s_cmp_ge_u32 s28, 6", "s_cbranch_scc1 Lk3_back")
    A("s_setprio 1")
    GC, GS, GN = 16, 20, 24
    TWc = lambda r: 28 + (r-1)*8
    TWs = lambda r: 32 + (r-1)*8
    UA = lambda ty, tau, pl: 52 + ((ty*2+tau)*2+pl)*4
    VA = lambda ty, tau, pl: 84 + ((ty*2+tau)*2+pl)*4
    TT = 116
    A("s_mul_i32 s33, s29, 45056", "s_lshl_b32 s34, s28, 12", "s_add_u32 s33, s33, s34", f"s_add_u32 s34, s33, {6*4096}",
      "s_lshl_b32 s35, s28, 13", "s_mov_b32 m0, s35",
      "s_cmp_eq_u32 s28, 5", "s_cselect_b32 s36, 0x80000000, 0", "v_or_b32 v4, s36, v3")
    A("s_waitcnt lgkmcnt(0)")
    srd(A, 12, 40, U_SZ, U_OFF)
    for i in range(4): A(f"buffer_load_dwordx4 v3, s[12:15], s33 offen offset:{1024*i} lds")
    A("s_add_u32 m0, s35, 4096", "s_nop 0")
    for i in range(4): A(f"buffer_load_dwordx4 v4, s[12:15], s34 offen offset:{1024*i} lds")
    SC = 2/(640*2048)
    A("v_cvt_f32_u32 v5, v5", f"v_mul_f32 v5, {fl(1/2048)}, v5", "v_cvt_f32_u32 v7, v2", "v_mul_f32 v7, 4.0, v7", f"s_mov_b32 s37, {fl(SC)}", "v_mul_f32 v6, v7, v5")
    for jp in range(4):
        for e in range(2):
            j = 2*jp+e
            A(f"v_fmamk_f32 v{8+e}, v5, {fl(float(16*(j>>2)+(j&3)))}, v6")
        A("v_cos_f32 v10, v8", "v_cos_f32 v11, v9", "v_sin_f32 v12, v8", "v_sin_f32 v13, v9")
        A(f"v_cvt_pk_bf16_f32 v{GC+jp}, v10, v11", f"v_cvt_pk_bf16_f32 v{GS+jp}, v12, v13", f"v_cvt_pk_bf16_f32 v{GN+jp}, -v12, -v13")
    A("v_lshrrev_b32 v5, 2, v0", "v_lshlrev_b32 v5, 7, v5", "v_and_b32 v8, 3, v0", "v_lshl_add_u32 v5, v8, 4, v5", "v_add_u32 v5, s35, v5")
    A("s_lshl_b32 s33, s28, 4", "v_cvt_f32_u32 v8, s33", "v_add_f32 v8, v8, v7")
    for e in range(4):
        A(f"v_add_f32 v9, {fl(float(e))}, v8")
        for r in (1,2,3):
            A(f"v_mul_f32 v10, {fl(r/640)}, v9", f"v_cos_f32 v{TWc(r)+e}, v10", f"v_sin_f32 v{TWs(r)+e}, v10")
    A("s_lshl_b32 s33, s28, 12", f"s_add_u32 s33, s33, {ZIMG}", "v_add_u32 v6, s33, v3")
    stamp(A, 1)
    A("s_waitcnt vmcnt(0)")
    stamp(A, 2)
    order = [(0,0),(1,1),(0,1),(1,0)]
    for ty, tau in order:
        for pl in range(2):
            for jh in range(2):
                A(f"ds_read_b64_tr_b16 {vr(UA(ty,tau,pl)+2*jh,2)}, v5 offset:{ty*4096+jh*2048+tau*64+pl*8}")
    for n, (ty, tau) in enumerate(order):
        re = vr(VA(ty,tau,0),4); im = vr(VA(ty,tau,1),4); ur = vr(UA(ty,tau,0),4); ui = vr(UA(ty,tau,1),4)
        A(f"s_waitcnt lgkmcnt({12-4*n})")
        A(f"{M} {re}, {ur}, {vr(GC,4)}, 0", f"{M} {im}, {ui}, {vr(GC,4)}, 0", f"{M} {re}, {ui}, {vr(GN,4)}, {re}", f"{M} {im}, {ur}, {vr(GS,4)}, {im}")
    def pk(op, d, a, b, c=None, nb=False, na=False):
        s = f"v_pk_{op}_f32 {vr(d,2)}, {vr(a,2)}, {vr(b,2)}" + (f", {vr(c,2)}" if c is not None else "")
        n = [int(na), int(nb)] + ([0] if c is not None else [])
        if na or nb: s += f" neg_lo:[{','.join(map(str,n))}] neg_hi:[{','.join(map(str,n))}]"
        return s
    Ar,Ai,Br,Bi,Dr,Di,Cr,Ci = [VA(ty,tau,pl) for ty in range(2) for tau in range(2) for pl in range(2)]
    pr,pi,qr,qi,ur,ui,wr,wi = [TT+4*i for i in range(8)]
    Z = lambda r, pl: 52 + (r*2+pl)*4
    for e in (0,2):
        A(pk('add',pr+e,Ar+e,Cr+e), pk('add',pi+e,Ai+e,Ci+e,nb=True), pk('add',qr+e,Ar+e,Cr+e,nb=True), pk('add',qi+e,Ai+e,Ci+e))
    for e in (0,2):
        A(pk('add',ur+e,Br+e,Dr+e), pk('add',ui+e,Bi+e,Di+e,nb=True), pk('add',wr+e,Br+e,Dr+e,nb=True), pk('add',wi+e,Bi+e,Di+e))
    b = lambda r, pl: 84 + (r*2+pl)*4
    for e in (0,2):
        A(pk('add',Z(0,0)+e,pr+e,ur+e), pk('add',Z(0,1)+e,pi+e,ui+e), pk('add',b(2,0)+e,pr+e,ur+e,nb=True), pk('add',b(2,1)+e,pi+e,ui+e,nb=True),
          pk('add',b(1,0)+e,qr+e,wi+e,nb=True), pk('add',b(1,1)+e,qi+e,wr+e), pk('add',b(3,0)+e,qr+e,wi+e), pk('add',b(3,1)+e,qi+e,wr+e,nb=True))
    for r in range(4):
        if r:
            for e in (0,2):
                A(pk('mul',Z(r,0)+e,b(r,0)+e,TWc(r)+e), pk('mul',Z(r,1)+e,b(r,0)+e,TWs(r)+e))
            for e in (0,2):
                A(pk('fma',Z(r,0)+e,b(r,1)+e,TWs(r)+e,Z(r,0)+e,na=True), pk('fma',Z(r,1)+e,b(r,1)+e,TWc(r)+e,Z(r,1)+e))
        o = TT + 4*r
        for j in range(4): A(f"v_cvt_pk_bf16_f32 v{o+j}, v{Z(r,0)+2*j}, v{Z(r,0)+2*j+1}")
        A(f"ds_write_b128 v6, {vr(o,4)} offset:{r*1024}")
    A("s_waitcnt lgkmcnt(0)")
    stamp(A, 3)
    A("s_barrier", "s_branch Lk3_end")
    A("Lk3_back:")
    HF = lambda bb: 16 + 4*bb
    XR, P0, P1 = 40, 48, 56
    GU = 64
    XU = 80
    ZF = lambda bb, r: 96 + ((bb % 3)*4+r)*4
    AC = lambda r: 144 + 4*r
    A("s_bfe_u32 s33, s32, 0x10001", "s_mul_i32 s33, s33, 5", "s_add_u32 s42, s33, s28", "s_sub_u32 s42, s42, 6")
    A("s_lshl_b32 s33, s30, 10", "s_add_u32 s33, s33, s29", "v_lshl_add_u32 v6, v2, 8, s33", "v_mul_u32_u24 v6, 1280, v6", "v_lshl_add_u32 v6, v1, 3, v6",
      "s_lshl_b32 s44, s42, 7", "s_add_u32 s45, s44, 81920", "s_add_u32 s46, s45, 81920", "s_add_u32 s47, s46, 81920", "v_lshlrev_b32 v5, 5, v0")
    A("s_mul_i32 s48, s29, 10", "s_add_u32 s48, s48, s42", "s_lshl_b32 s48, s48, 12", "s_lshl_b32 s34, s30, 11", "s_add_u32 s48, s48, s34",
      f"s_add_u32 s49, s48, {P_SZ//2}", "v_cvt_f32_u32 v7, v2", "v_mul_f32 v7, 4.0, v7")
    Hl = Asm(); hgen(Hl, HF, 42)
    n0 = OPT.get('k3d', 100)
    A(*Hl.lines[:n0])
    A("s_waitcnt lgkmcnt(0)")
    srd(A, 20, 40, P_SZ, P_OFF); srd(A, 16, 4, X_SZ); srd(A, 24, 6, X_SZ)
    for half in range(2):
        A(f"buffer_load_dwordx4 {vr(P0+4*half,4)}, v5, s[20:23], s48 offen offset:{16*half}",
          f"buffer_load_dwordx4 {vr(P1+4*half,4)}, v5, s[20:23], s49 offen offset:{16*half}")
    for e in range(4):
        A(f"buffer_load_dwordx2 {vr(XR+2*e,2)}, v6, s[16:19], s{44+e} offen")
    A(*Hl.lines[n0:])
    SC = 2/(640*2048)
    A(f"s_mov_b32 s36, {fl(-1.4426950408889634)}", f"s_mov_b32 s38, {fl(1/SC)}", f"v_add_u32 v4, {ZIMG}, v3")
    stamp(A, 1)
    def gpart(half):
        G = Asm(); g = GU + 8*half; t = XU
        G(f"s_waitcnt vmcnt({6-2*half})")
        for q in range(4):
            G(f"v_lshlrev_b32 v{g+2*q}, 16, v{P0+4*half+q}", f"v_and_b32 v{g+2*q+1}, 0xffff0000, v{P0+4*half+q}",
              f"v_lshlrev_b32 v{t+2*q}, 16, v{P1+4*half+q}", f"v_and_b32 v{t+2*q+1}, 0xffff0000, v{P1+4*half+q}")
        for i in range(8): G(f"v_add_f32 v{g+i}, v{g+i}, v{t+i}")
        for i in range(8): G(f"v_mul_f32 v{t+i}, s36, v{g+i}")
        for i in range(8): G(f"v_exp_f32 v{t+i}, v{t+i}")
        for i in range(8): G(f"v_fma_f32 v{t+i}, v{t+i}, s38, s38")
        for i in range(8): G(f"v_rcp_f32 v{t+i}, v{t+i}")
        for i in range(8): G(f"v_mul_f32 v{g+i}, v{g+i}, v{t+i}")
        return G.lines
    ng = OPT.get('k3g', 2)
    for half in range(ng): A(*gpart(half))
    stamp(A, 2)
    A("s_barrier")
    stamp(A, 3)
    def zr(bb): return [f"ds_read_b128 {vr(ZF(bb,r),4)}, v4 offset:{(bb*4+r)*1024}" for r in range(4)]
    for bb in range(3): A(*zr(bb))
    for bb in range(6):
        A(f"s_waitcnt lgkmcnt({min(8,4*(5-bb))})")
        for r in range(4):
            A(f"{M} {vr(AC(r),4)}, {vr(ZF(bb,r),4)}, {vr(HF(bb),4)}, {'0' if bb==0 else vr(AC(r),4)}")
        if bb < 3: A(*zr(bb+3))
    for half in range(ng, 2): A(*gpart(half))
    A("s_waitcnt vmcnt(0)")
    for q in range(8):
        A(f"v_lshlrev_b32 v{XU+2*q}, 16, v{XR+q}", f"v_and_b32 v{XU+2*q+1}, 0xffff0000, v{XR+q}")
    for e in range(4):
        for r in range(4):
            A(f"v_fmac_f32 v{XU+4*e+r}, v{AC(r)+e}, v{GU+4*r+e}")
        for q in (2*e, 2*e+1):
            A(f"v_cvt_pk_bf16_f32 v{XR+q}, v{XU+2*q}, v{XU+2*q+1}")
        A(f"buffer_store_dwordx2 {vr(XR+2*e,2)}, v6, s[24:27], s{44+e} offen {OPT['sc_o']}")
    kend(A, 2, "Lk3_end")

def kd(name, vgpr, sgpr=100, accum=None):
    accum = accum or min(256, (vgpr+3)//4*4)
    return f""".amdhsa_kernel {name}
  .amdhsa_next_free_vgpr {vgpr}
  .amdhsa_next_free_sgpr {sgpr}
  .amdhsa_accum_offset {accum}
  .amdhsa_group_segment_fixed_size 0
  .amdhsa_kernarg_size 88
  .amdhsa_user_sgpr_count 2
  .amdhsa_user_sgpr_kernarg_segment_ptr 1
  .amdhsa_system_sgpr_workgroup_id_x 1
.end_amdhsa_kernel
"""

def build(kernels):
    hdr = open(f"cdna_kernels/{NAME}.s.ref").read().split("; Override")[0]
    out = hdr
    for (name, fn, grid, block, lds, vg) in kernels:
        out += f"; @launch kernel={name} grid=({grid},1,1) block=({block},1,1) lds={lds}\n"
    out += '.amdgcn_target "amdgcn-amd-amdhsa--gfx950"\n.text\n'
    seen = []
    for (name, fn, grid, block, lds, vg) in kernels:
        if name in seen: continue
        seen.append(name)
        A = Asm(); fn(A)
        out += f".globl {name}\n.p2align 8\n.type {name},@function\n" + A.text()
    out += '.section .rodata,"a"\n'
    seen = []
    for (name, fn, grid, block, lds, vg) in kernels:
        if name in seen: continue
        seen.append(name)
        out += ".p2align 6\n" + kd(name, vg)
    return out

KS = [("k1_kernel", k1, 256, 512, 133120, 256), ("k3_kernel", k3, 256, 704, 98304, 160)]

if __name__ == '__main__':
    DIAG = len(sys.argv) > 2 and sys.argv[2] == 'diag'
    for kv in sys.argv[3:]:
        k, v = kv.split('='); OPT[k] = eval(v)
    open(sys.argv[1] if len(sys.argv) > 1 else 'cur.s', 'w').write(build(KS))
```

```python
import sys, math
from asmlib import *

NAME = "recurrent_scan__spectral_gfnet__dense_activation_gelu__prompt"
H_OFF, H_SZ = 0, 2048*1728*2
T_OFF, T_SZ = 0x700000, 32*11*64*128
U_OFF, U_SZ = 0xA00000, 32*11*64*128
P_OFF, P_SZ = 0xD00000, 2*2048*640*2
FL_OFF, FL_SZ = 0x1200000, 33*8192
X_SZ = 2048*640*2
W1_SZ = 640*1728*2
WF_SZ = 2048*321*2
OPT = dict(rot1='xcd', rot2=False, pf=False, mpf=False, lpf=True, ppf=False, nw=2, mpf1=False, sc_h='sc1', sc_t='sc1', sc_u='sc1', sc_p='sc1', sc_o='', map1='4x7', D=2, cpf=True, hpf=False, pfst=None)

def vr(b, n): return f"v[{b}:{b+n-1}]"
def srd(A, d, base, size, off=0):
    if off:
        A(f"s_add_u32 s{d}, s{base}, 0x{off:x}", f"s_addc_u32 s{d+1}, s{base+1}, 0")
    else:
        A(f"s_mov_b32 s{d}, s{base}", f"s_mov_b32 s{d+1}, s{base+1}")
    A(f"s_mov_b32 s{d+2}, {size}", f"s_mov_b32 s{d+3}, 0x00020000")

DIAG = False
DIAG_OFF = 0x2000000
def stamp(A, k):
    if DIAG:
        A(f"s_memrealtime s[{60+2*k}:{61+2*k}]", "s_waitcnt lgkmcnt(0)")
def kstart(A):
    if DIAG:
        for k in range(60, 92): A(f"s_mov_b32 s{k}, 0")
        A("s_memrealtime s[60:61]", "s_memtime s[88:89]", "s_load_dwordx2 s[92:93], s[0:1], 80", "s_waitcnt lgkmcnt(0)")
def kend(A, kid, lab):
    A(f"{lab}:")
    if DIAG:
        A("s_memrealtime s[84:85]", "s_waitcnt vmcnt(0) lgkmcnt(0)", "s_memrealtime s[86:87]", "s_memtime s[90:91]", "s_waitcnt lgkmcnt(0)")
        A(f"s_add_u32 s92, s92, 0x{DIAG_OFF:x}", "s_addc_u32 s93, s93, 0", "s_mov_b32 s94, 0x1000000", "s_mov_b32 s95, 0x00020000")
        A(f"s_add_u32 s96, s2, {kid*256}", "s_lshl_b32 s96, s96, 4", "s_add_u32 s96, s96, s28", "s_lshl_b32 s96, s96, 6", "s_mov_b64 exec, -1", "v_mov_b32 v1, 0")
        for q in range(4):
            for j in range(4): A(f"v_mov_b32 v{4+j}, s{60+2*(4*q+j)}")
            A(f"buffer_store_dwordx4 v[4:7], v1, s[92:95], s96 offen offset:{16*q}", "s_nop 1")
    A("s_endpgm")
    A(f"{lab}_x:", "s_endpgm")

GA = -2*0.7978845608028654*1.4426950408889634
GB = GA*0.044715
ONES = "0x3f803f80"
M32 = "v_mfma_f32_32x32x16_bf16"
M16 = "v_mfma_f32_16x16x32_bf16"

def row_stats(A, sx, sxx, t0, t1, mean, sq):
    A(f"v_mul_f32 v{mean}, {fl(1/640)}, v{sx}",
      f"v_mul_f32 v{t0}, {fl(1/640)}, v{sxx}",
      f"v_fma_f32 v{t0}, -v{mean}, v{mean}, v{t0}",
      f"v_max_f32 v{t0}, 0, v{t0}",
      f"v_cvt_pk_bf16_f32 v{t0}, v{t0}, v{t0}",
      f"v_lshlrev_b32 v{t0}, 16, v{t0}",
      f"v_add_f32 v{t0}, {fl(1e-5)}, v{t0}",
      f"v_cvt_pk_bf16_f32 v{t0}, v{t0}, v{t0}",
      f"v_lshlrev_b32 v{t0}, 16, v{t0}",
      f"v_sqrt_f32 v{sq}, v{t0}")

RING = 4
def set_flag(nv, va, soff, off=0):
    return ["s_mov_b64 exec, 0xffff", f"buffer_store_dwordx2 {vr(nv,2)}, v{va}, s[52:55], {soff} offen offset:{off} sc1", "s_mov_b64 exec, -1"]
SPIN_MAX = 0x20000
_pl = [0]
def sync_srds(A):
    srd(A, 52, 6, FL_SZ, FL_OFF); srd(A, 56, 50, 256)
def chk_cleared(A, v, vz):
    _pl[0] += 1; n = _pl[0]
    A(f"s_mov_b32 s3, 0", f"Lcc{n}:", f"v_readfirstlane_b32 s49, v{v}", "s_add_u32 s3, s3, 1", "s_cmp_lg_u32 s49, 0", f"s_cbranch_scc1 Lcd{n}",
      f"s_cmp_ge_u32 s3, {SPIN_MAX}", f"s_cbranch_scc1 Lcd{n}",
      f"buffer_load_dwordx2 {vr(v,2)}, v{vz}, s[56:59], 0 offen sc1", "s_waitcnt vmcnt(0)", f"s_branch Lcc{n}", f"Lcd{n}:")
_cpf_n = [0]
def cpf(A, target, sel, v=(14,15,13), s=(56,58)):
    _cpf_n[0] += 1; lab = f"Lcpf{_cpf_n[0]}"
    a, t = s
    A(f"s_getpc_b64 s[{a}:{a+1}]", f"{lab}:", f"s_add_u32 s{a}, s{a}, {target}-{lab}", f"s_addc_u32 s{a+1}, s{a+1}, ({target}-{lab})>>32")
    A(f"v_lshlrev_b32 v{v[0]}, 7, v0")
    if sel: A(f"s_lshl_b32 s{t}, {sel}, 13", f"v_add_u32 v{v[0]}, s{t}, v{v[0]}")
    A(f"v_mov_b32 v{v[1]}, s{a+1}", f"v_add_co_u32 v{v[0]}, vcc, s{a}, v{v[0]}", f"v_addc_co_u32 v{v[1]}, vcc, 0, v{v[1]}, vcc",
      f"global_load_dword v{v[2]}, v[{v[0]}:{v[1]}], off")
ACC = lambda mt, nt: 16 + (mt*2+nt)*16
FB = lambda p, kk, w: 80 + p*64 + kk*16 + w*4

def loader_loop(A, NST, issue, extra=None, D=None):
    D = D or OPT['D']
    ops = []
    for st in range(2): ops += [st]*(issue(st) or 8)
    nxt = 2
    if extra and OPT.get('lpfs') == 2: ops += ['x']*extra()
    for st in range(NST):
        last = max(i for i, x in enumerate(ops) if x == st)
        A(f"s_waitcnt vmcnt({len(ops)-1-last})", "s_barrier")
        while nxt < NST and nxt <= (st+D if st >= 1 else 2):
            ops += [nxt]*(issue(nxt) or 8); nxt += 1
            if extra and nxt == OPT.get('lpfs', NST): ops += ['x']*extra()

def compute_loop(A, NST, reads, mfmas, tail, stampf=None, gap=None):
    A("s_barrier")
    A(*reads(0))
    A("s_waitcnt lgkmcnt(0)")
    if stampf: stampf(0)
    A("s_barrier")
    for st in range(1, NST):
        M = mfmas(st-1)
        G = gap(st-1) if gap else []
        n1 = len(G) - 30 if G else 0
        A(*spread(M[:10], spread(reads(st), G[:n1])))
        A(*spread(M[10:13], G[n1:n1+15]))
        A("s_waitcnt lgkmcnt(0)")
        if stampf: stampf(st)
        if st < NST-1: A("s_barrier")
        A(*spread(M[13:], G[n1+15:]))
        A(*tail(st-1))

def k1(A):
    A("k1_kernel:")
    A("s_cmp_ge_u32 s2, 256", "s_cbranch_scc1 Lk1_end_x")
    kstart(A)
    A("s_load_dwordx2 s[4:5], s[0:1], 0", "s_load_dwordx4 s[8:11], s[0:1], 32", "s_load_dwordx2 s[6:7], s[0:1], 80", "s_load_dwordx2 s[50:51], s[0:1], 72", "s_load_dwordx2 s[36:37], s[0:1], 56")
    A("v_lshrrev_b32 v1, 6, v0", "v_and_b32 v0, 63, v0", "v_readfirstlane_b32 s28, v1")
    A("s_and_b32 s31, s2, 7", "s_lshr_b32 s32, s2, 3")
    if OPT['cpf']:
        A("s_lshl_b32 s33, s32, 3", "s_add_u32 s33, s33, s28", "s_cmp_ge_u32 s33, 4", "s_cbranch_scc1 Lk1_nc")
        cpf(A, "k1_kernel", "s28", v=(14,15,253))
        A("Lk1_nc:")
    A("s_cmp_ge_u32 s32, 28", "s_cbranch_scc1 Lp1")
    A("s_lshr_b32 s29, s31, 1", "s_lshl_b32 s29, s29, 2", "s_and_b32 s33, s32, 3", "s_add_u32 s29, s29, s33")
    A("s_and_b32 s30, s31, 1", "s_mul_i32 s30, s30, 7", "s_lshr_b32 s33, s32, 2", "s_add_u32 s30, s30, s33")
    A("s_cmp_lt_u32 s28, 4", "s_cbranch_scc1 Lg1c")
    g1_loader(A)
    g2_loader(A)
    A("Lg1c:")
    g1_compute(A)
    g2_compute(A)
    A("Lp1:")
    p1(A)
    A("Lp2:")
    p2(A)
    kend(A, 0, "Lk1_end")

def g1_loader(A):
    NST = 10
    A("s_sub_u32 s33, s28, 4")
    A("v_lshrrev_b32 v1, 3, v0", "v_and_b32 v2, 7, v0", "v_lshrrev_b32 v3, 4, v0",
      "s_lshl_b32 s34, s29, 2", "s_add_u32 s34, s34, s33",
      "v_lshl_add_u32 v1, v1, 6, s34", "v_mul_u32_u24 v1, 1280, v1",
      "v_xor_b32 v8, v2, v3", "v_xor_b32 v9, 4, v8",
      "v_lshl_add_u32 v4, v8, 4, v1", "v_lshl_add_u32 v5, v9, 4, v1",
      f"v_add_u32 v5, {8*64*1280}, v5", f"v_add_u32 v6, {16*64*1280}, v4", f"v_add_u32 v7, {16*64*1280}, v5")
    A("v_and_b32 v2, 15, v0", "v_lshlrev_b32 v8, 2, v3", "v_xor_b32 v2, v2, v8",
      "s_lshl_b32 s34, s33, 4", "v_add_u32 v8, s34, v3", "v_mul_u32_u24 v8, 3456, v8",
      "s_lshl_b32 s34, s30, 8", "v_lshl_add_u32 v10, v2, 4, v8", "v_add_u32 v10, s34, v10")
    A("s_cmp_eq_u32 s30, 13", "s_cselect_b32 s34, 8, 16",
      "v_cmp_le_u32 vcc, s34, v2", "v_mov_b32 v8, 0x80000000", "s_nop 0", "v_cndmask_b32 v10, v10, v8, vcc")
    A("s_lshl_b32 s40, s33, 12")
    if OPT['rot1']:
        if OPT['rot1'] == 'xcd':
            A("s_lshr_b32 s43, s31, 1", "s_mul_i32 s43, s43, 5", "s_lshr_b32 s43, s43, 1", "s_and_b32 s34, s31, 1", "s_mul_i32 s34, s34, 5", "s_add_u32 s43, s43, s34")
        elif OPT['map1'] == '2x14':
            A("s_mul_i32 s43, s30, 47", "s_lshr_b32 s43, s43, 6", "s_and_b32 s34, s29, 1", "s_mul_i32 s34, s34, 5", "s_add_u32 s43, s43, s34")
        else:
            A("s_lshr_b32 s43, s32, 2", "s_mul_i32 s43, s43, 92", "s_and_b32 s34, s32, 3", "s_mul_i32 s34, s34, 160", "s_add_u32 s43, s43, s34", "s_lshr_b32 s43, s43, 6")
        A("s_cmp_ge_u32 s43, 10", "s_cselect_b32 s34, 10, 0", "s_sub_u32 s43, s43, s34")
    else:
        A("s_mov_b32 s43, 0")
    A("s_waitcnt lgkmcnt(0)")
    srd(A, 12, 4, X_SZ); srd(A, 16, 8, W1_SZ)
    def issue(st):
        slot = (st % RING) * 32768
        A("s_lshl_b32 s41, s43, 7", f"s_mul_i32 s42, s43, {64*3456}")
        for q in range(4):
            A(f"s_add_u32 m0, s40, {slot + q*1024}", "s_nop 0", f"buffer_load_dwordx4 v{4+q}, s[12:15], s41 offen lds")
            A(f"s_add_u32 m0, s40, {slot + 16384 + q*1024}", "s_nop 0", f"buffer_load_dwordx4 v10, s[16:19], s42 offen lds")
            if q < 3: A(f"s_add_u32 s42, s42, {4*3456}")
        A("s_add_u32 s43, s43, 1", "s_cmp_eq_u32 s43, 10", "s_cselect_b32 s43, 0, s43")
    def extra():
        A("s_load_dwordx4 s[44:47], s[0:1], 8", "s_load_dwordx2 s[48:49], s[0:1], 48",
          "s_lshl_b32 s34, s2, 1", "s_add_u32 s34, s34, s33", "s_cmp_lt_u32 s33, 2", "s_cselect_b32 s34, s34, s2", "s_lshl_b32 s34, s34, 13",
          "v_lshl_add_u32 v11, v0, 7, s34", "s_waitcnt lgkmcnt(0)",
          "s_cmp_eq_u32 s33, 2", "s_cselect_b32 s20, s44, s46", "s_cselect_b32 s21, s45, s47",
          "s_cmp_lt_u32 s33, 2", "s_cselect_b32 s20, s48, s20", "s_cselect_b32 s21, s49, s21", f"s_mov_b32 s22, {W1_SZ}", f"s_cselect_b32 s22, s22, {WF_SZ}",
          "s_mov_b32 s23, 0x00020000", "v_mov_b32 v12, 0")
        sync_srds(A)
        A("buffer_load_dwordx2 v[18:19], v12, s[56:59], 0 offen sc1")
        if OPT['lpf']: A("buffer_load_dword v16, v11, s[20:23], 0 offen")
        return 2 if OPT['lpf'] else 1
    loader_loop(A, NST, issue, extra, OPT.get('D1'))
    A("s_barrier")
    A("s_cmp_ge_u32 s32, 20", "s_cbranch_scc1 Lp2")

def g1_compute(A):
    NST = 10
    XA = lambda kk, nt: 208 + kk*2 + nt
    WA = lambda mt: 216 + mt
    SX, SXX, CS, B1 = 218, 219, 220, 221
    A("s_and_b32 s33, s28, 1", "s_lshr_b32 s34, s28, 1")
    A("v_and_b32 v1, 31, v0", "v_lshrrev_b32 v2, 5, v0")
    A("s_lshl_b32 s35, s30, 7", "s_lshl_b32 s40, s33, 6", "s_add_u32 s35, s35, s40", "s_lshl_b32 s40, s34, 5", "s_add_u32 s35, s35, s40",
      "v_add_lshl_u32 v9, v1, s35, 1", f"v_mov_b32 v{B1}, 0")
    A("s_lshl_b32 s35, s34, 13", "s_lshl_b32 s40, s33, 12", "s_add_u32 s35, s35, s40",
      "v_lshl_add_u32 v3, v1, 7, s35", "v_bfe_u32 v4, v0, 1, 3", "v_xor_b32 v4, v4, v2")
    for kk in range(4):
        A(f"v_xor_b32 v5, {2*kk}, v4", f"v_lshl_add_u32 v{XA(kk,0)}, v5, 4, v3", f"v_xor_b32 v{XA(kk,1)}, 0x1000, v{XA(kk,0)}")
    A("v_bfe_u32 v4, v0, 2, 2", "v_lshl_add_u32 v5, v2, 3, v4", "v_lshlrev_b32 v5, 8, v5",
      "v_bfe_u32 v6, v0, 4, 1", "v_lshl_add_u32 v5, v6, 5, v5", "v_and_b32 v6, 3, v0", "v_lshl_add_u32 v5, v6, 3, v5",
      "s_lshl_b32 s35, s33, 1", "s_add_u32 s35, s35, s34",
      "v_xor_b32 v6, s35, v4", f"v_lshl_add_u32 v{WA(0)}, v6, 6, v5", f"v_xor_b32 v{WA(1)}, 64, v{WA(0)}")
    A(f"v_mov_b32 v{SX}, 0", f"v_mov_b32 v{SXX}, 0", f"v_mov_b32 v{CS}, 0", f"s_mov_b32 s41, {ONES}")
    A("s_waitcnt lgkmcnt(0)")
    srd(A, 20, 10, 1728*2); srd(A, 24, 6, H_SZ, H_OFF)
    A(f"buffer_load_short_d16_hi v{B1}, v9, s[20:23], 0 offen")
    srd(A, 16, 36, 640*2)
    A("s_lshr_b32 s35, s32, 2", "s_lshl_b32 s35, s35, 8", "s_lshl_b32 s40, s33, 7", "s_add_u32 s35, s35, s40",
      "s_lshl_b32 s40, s31, 31", "s_or_b32 s35, s35, s40", "v_lshl_add_u32 v9, v1, 1, s35",
      "buffer_load_ushort v222, v9, s[16:19], 0 offen", "buffer_load_ushort v223, v9, s[16:19], 0 offen offset:64")
    A("s_lshl_b32 s35, s30, 1", "s_add_u32 s35, s35, s33")
    for mt in range(2):
        for nt in range(2):
            s = 44 + mt*2 + nt
            A("s_lshl_b32 s40, s29, 2", "s_lshl_b32 s42, s34, 1", "s_add_u32 s40, s40, s42", f"s_xor_b32 s42, s33, {nt}", "s_add_u32 s40, s40, s42",
              "s_mulk_i32 s40, 108", "s_lshl_b32 s42, s35, 2", "s_add_u32 s40, s40, s42", f"s_xor_b32 s42, s34, {mt}",
              "s_add_u32 s40, s40, s42", f"s_lshl_b32 s{s}, s40, 10")
    XCH = 131072
    A("s_lshl_b32 s42, s34, 9", "s_lshl_b32 s40, s33, 8", "s_add_u32 s42, s42, s40", f"s_add_u32 s42, s42, {XCH}", "v_lshl_add_u32 v7, v1, 3, s42",
      "s_lshl_b32 s42, s33, 9", "s_lshl_b32 s40, s34, 8", "s_add_u32 s42, s42, s40", f"s_add_u32 s42, s42, {XCH}", "v_lshl_add_u32 v8, v1, 3, s42",
      "v_lshlrev_b32 v9, 4, v0")
    XF0, WF0, XF1, WF1 = 224, 228, 232, 236
    for r in (XF0, WF0, XF1, WF1):
        A(f"v_mov_b32 v{r+2}, 0", f"v_mov_b32 v{r+3}, 0")
    sync_srds(A)
    A("s_lshl_b32 s48, s29, 1", "s_add_u32 s48, s48, s34", "s_lshl_b32 s48, s48, 13", "s_lshl_b32 s40, s35, 8", "s_add_u32 s48, s48, s40", "v_mov_b32 v10, 0", "v_lshlrev_b32 v11, 3, v0")
    if OPT.get('tlb'):
        srd(A, 36, 6, 0x1400000)
        A("v_lshlrev_b32 v12, 21, v0", "v_add_u32 v12, 0x1fff80, v12", "s_cmp_lg_u32 s28, 1", "s_cbranch_scc1 Lg1_ntl", "buffer_load_dword v253, v12, s[36:39], 0 offen", "Lg1_ntl:")
    A("s_lshl_b32 s40, s2, 3", "s_add_u32 s40, s40, s28", "s_cmp_lg_u32 s40, 1737", "s_cbranch_scc1 Lg1_ncl")
    A("s_memrealtime s[36:37]", "s_waitcnt lgkmcnt(0)", "s_or_b32 s38, s36, 1", "v_mov_b32 v12, s38", "v_mov_b32 v13, s37",
      "s_mov_b64 exec, 1", "buffer_store_dwordx2 v[12:13], v10, s[56:59], 0 offen sc1", "s_mov_b64 exec, -1", "Lg1_ncl:")
    base = [0]
    def reads(st):
        p = st & 1; slot = (st % RING) * 32768
        L = []
        nb = slot & ~0xffff
        if nb != base[0]:
            for r in range(208, 218): L.append(f"v_xor_b32 v{r}, 0x10000, v{r}")
            base[0] = nb
        so = slot - nb
        for kk in range(4):
            for mt in range(2):
                for jh in range(2):
                    L.append(f"ds_read_b64_tr_b16 {vr(FB(p,kk,2+mt)+2*jh,2)}, v{WA(mt)} offset:{so+16384+(16*kk+4*jh)*256}")
            for nt in range(2):
                L.append(f"ds_read_b128 {vr(FB(p,kk,nt),4)}, v{XA(kk,nt)} offset:{so}")
        return L
    def mfmas(st):
        p = st & 1; L = []
        for kk in range(4):
            for mt in range(2):
                for nt in range(2):
                    c = "0" if (st == 0 and kk == 0) else vr(ACC(mt,nt),16)
                    L.append(f"{M32} {vr(ACC(mt,nt),16)}, {vr(FB(p,kk,2+mt),4)}, {vr(FB(p,kk,nt),4)}, {c}")
        return L
    def dots(st):
        p = st & 1; L = []
        for kk in range(4):
            for j in range(4):
                if not OPT.get('nostat'): L.append(f"v_dot2c_f32_bf16 v{SX}, s41, v{FB(p,kk,0)+j}")
                if (not OPT.get('sqv') or st == NST-1) and not OPT.get('nostat'): L.append(f"v_dot2c_f32_bf16 v{SXX}, v{FB(p,kk,0)+j}, v{FB(p,kk,0)+j}")
                L.append(f"v_dot2c_f32_bf16 v{CS}, s41, v{FB(p,kk,2)+j}")
        if st == 6: L.append("buffer_load_dwordx2 v[254:255], v10, s[56:59], 0 offen sc1")
        return L
    def sqgap(st):
        p = st & 1; L = []
        for kk in range(4):
            for j in range(4):
                r = FB(p,kk,0)+j
                L += [f"v_lshlrev_b32 v3, 16, v{r}", f"v_and_b32 v4, s51, v{r}", "v_fmac_f32 v222, v3, v3", "v_fmac_f32 v223, v4, v4"]
        return L
    pass
    compute_loop(A, NST, reads, mfmas, dots, lambda st: stamp(A, 1) if st == 0 else None)
    A(*dots(NST-1))
    M = mfmas(NST-1)
    F = Asm()
    if OPT.get('sqv'): F(f"v_add_f32 v{SXX}, v{SXX}, v222", f"v_add_f32 v{SXX}, v{SXX}, v223")
    for r in (SX, SXX, CS):
        F(f"v_mov_b32 v3, v{r}", "s_nop 1", f"v_permlane32_swap_b32 v{r}, v3", f"v_add_f32 v{r}, v{r}, v3")
    row_stats(F, SX, SXX, 3, 4, 5, 6)
    F(f"v_cvt_pk_bf16_f32 v{XF0}, -v5, -v5", f"v_cvt_pk_bf16_f32 v{XF0+1}, -v5, v6")
    F(f"v_cvt_pk_bf16_f32 v3, v{CS}, v{CS}", "v_lshlrev_b32 v3, 16, v3", f"v_sub_f32 v3, v{CS}, v3",
      f"v_cvt_pk_bf16_f32 v{WF0}, v{CS}, v3", f"v_and_b32 v4, 0xffff0000, v{WF0}", "v_sub_f32 v3, v3, v4",
      "s_waitcnt vmcnt(0)", f"v_cvt_pk_bf16_f32 v{WF0+1}, v3, v{B1}")
    F(f"ds_write_b64 v7, {vr(XF0,2)}", f"ds_write_b64 v8, {vr(WF0,2)} offset:1024",
      "v_xor_b32 v7, 0x100, v7", "v_xor_b32 v8, 0x100, v8")
    A(*spread(M[:8], F.lines))
    A(M[8], M[9])
    A("s_waitcnt lgkmcnt(0)", "s_barrier")
    A(f"ds_read_b64 {vr(XF1,2)}, v7", f"ds_read_b64 {vr(WF1,2)}, v8 offset:1024")
    A(*M[10:14])
    A("v_cmp_eq_u32 vcc, 0, v2", "s_waitcnt lgkmcnt(0)")
    G = Asm()
    for r in (WF0, WF0+1, WF1, WF1+1):
        G(f"v_cndmask_b32 v{r}, 0, v{r}, vcc")
    for nt in range(2):
        c = 240 + 4*nt
        G(f"v_and_b32 v{c+2}, 0xffff0000, v{(XF0,XF1)[nt]+1}", f"v_rcp_f32 v3, v{c+2}",
          f"v_mul_f32 v{c}, {fl(GA)}, v3", "v_mul_f32 v4, v3, v3", "v_mul_f32 v4, v4, v3", f"v_mul_f32 v{c+1}, {fl(GB)}, v4")
    A(*spread(M[14:], G.lines[:8]))
    X = [f"{M32} {vr(ACC(mt,nt),16)}, {vr((WF0,WF1)[mt],4)}, {vr((XF0,XF1)[nt],4)}, {vr(ACC(mt,nt),16)}" for mt in range(2) for nt in range(2)]
    A(*spread(X, G.lines[8:]))
    stamp(A, 2)
    A("s_cmp_ge_u32 s35, 27", "s_cbranch_scc1 Lp2")
    A("s_waitcnt vmcnt(0)")
    chk_cleared(A, 254, 10)
    n = 0
    for half in range(2):
        for mt in range(2):
            for nt in range(2):
                c = 240 + 4*nt
                a0 = ACC(mt,nt) + 8*half
                t = 80 + (n % 2)*16; o = 112 + (n % 4)*4; n += 1
                P = range(4)
                for i in P: A(f"v_pk_mul_f32 {vr(t+2*i,2)}, {vr(a0+2*i,2)}, {vr(a0+2*i,2)}")
                for i in P: A(f"v_pk_fma_f32 {vr(t+2*i,2)}, {vr(t+2*i,2)}, {vr(c,2)}, {vr(c,2)} op_sel:[0,1,0] op_sel_hi:[1,1,0]")
                for i in P: A(f"v_pk_mul_f32 {vr(t+2*i,2)}, {vr(t+2*i,2)}, {vr(a0+2*i,2)}")
                for i in range(8): A(f"v_exp_f32 v{t+i}, v{t+i}")
                for i in P: A(f"v_pk_fma_f32 {vr(t+2*i,2)}, {vr(t+2*i,2)}, {vr(c+2,2)}, {vr(c+2,2)} op_sel:[0,0,0] op_sel_hi:[1,0,0]")
                for i in range(8): A(f"v_rcp_f32 v{t+i}, v{t+i}")
                for i in P: A(f"v_pk_mul_f32 {vr(t+2*i,2)}, {vr(t+2*i,2)}, {vr(a0+2*i,2)}")
                for i in P: A(f"v_cvt_pk_bf16_f32 v{o+i}, v{t+2*i}, v{t+2*i+1}")
                A(f"buffer_store_dwordx4 {vr(o,4)}, v9, s[24:27], s{44+mt*2+nt} offen offset:{half*2048} sc1")
                if n == OPT.get('efl', 7):
                    A(f"s_waitcnt vmcnt({n-4})", *set_flag(254, 11, "s48"),
                      "s_cmp_ge_u32 s32, 20", "s_cbranch_scc1 Lg1_ng", "s_barrier", "Lg1_ng:")
    stamp(A, 3)
    A("s_cmp_lt_u32 s32, 20", "s_cbranch_scc1 Lg2c")
    A("s_waitcnt vmcnt(0)", *set_flag(254, 11, "s48", 128), "s_branch Lp2")
    A("Lg2c:")

def p1(A):
    BC = lambda u: 16 + 8*u
    BS = lambda u: 20 + 8*u
    TW = 56
    AF = lambda p, u: 64 + p*20 + 4*u
    AP = lambda p: 104 + 8*p
    AQ = lambda p: 108 + 8*p
    OUT = lambda par, i: 120 + par*8 + i
    TMP = 136
    YF = lambda o, pl: 152 + (o*2+pl)*4
    FP = lambda nt, pl: 184 + (nt*3+pl)*4
    TA = 208; PK = 240
    FPIMG, DCT, SCR = 81920, 94208, 98304
    A("s_sub_u32 s29, s32, 28", "s_lshl_b32 s29, s29, 3", "s_add_u32 s29, s29, s31", "s_lshl_b32 s29, s29, 1")
    A("s_lshr_b32 s46, s28, 2", "s_add_u32 s47, s46, s29", "s_and_b32 s48, s28, 3", "s_lshl_b32 s34, s48, 9", "s_add_u32 s47, s47, s34",
      "s_mul_i32 s33, s47, 1280", "s_mul_i32 s34, s28, 10240", "s_mov_b32 s35, 81920")
    A("v_and_b32 v1, 15, v0", "v_lshrrev_b32 v2, 4, v0", "v_lshlrev_b32 v4, 2, v2", "v_xor_b32 v3, v1, v4", "v_mul_u32_u24 v4, s35, v2", "v_lshl_add_u32 v4, v3, 4, v4")
    A("s_waitcnt lgkmcnt(0)")
    srd(A, 12, 4, X_SZ); srd(A, 36, 6, T_SZ, T_OFF)
    for i in range(10):
        A(f"s_add_u32 m0, s34, {1024*i}", f"s_add_u32 s40, s33, {(i//5)*4*81920+(i%5)*256}", "buffer_load_dwordx4 v4, s[12:15], s40 offen lds")
    sync_srds(A)
    if OPT['mpf1']:
        srd(A, 16, 8, W1_SZ)
        A("s_lshl_b32 s40, s29, 2", "s_add_u32 s40, s40, s28", f"s_mul_i32 s40, s40, {68*128}", "v_lshl_add_u32 v3, v0, 7, s40",
          "buffer_load_dword v150, v3, s[16:19], 0 offen", "buffer_load_dword v151, v3, s[16:19], 0 offen offset:512")
    A("s_and_b32 s41, s28, 1", "s_add_u32 s41, s41, 4", "s_bfe_u32 s42, s28, 0x10001",
      "s_cmp_lt_u32 s28, 4", "s_cselect_b32 s43, s28, s41", "s_cselect_b32 s44, 0, s42", "s_cselect_b32 s45, 1, 0")
    A("v_lshl_add_u32 v8, v2, 6, s47", "v_cvt_f32_u32 v8, v8", f"v_mul_f32 v8, {fl(1/2048)}, v8", "v_cvt_f32_u32 v9, v1", "v_add_f32 v10, 0x41800000, v9")
    for tt in range(2):
        if tt: A(f"v_add_f32 v8, {fl(256/2048)}, v8")
        for nt in range(2):
            A(f"v_mul_f32 v12, v8, v{9+nt}", f"v_cos_f32 v{208+nt*2+tt}, v12", f"v_sin_f32 v{212+nt*2+tt}, v12")
    A("v_lshrrev_b32 v8, 5, v0", "v_mul_u32_u24 v9, 5120, v8", "v_add_u32 v9, s34, v9", "v_bfe_u32 v8, v0, 3, 2", "v_lshl_add_u32 v9, v8, 8, v9",
      "v_lshl_add_u32 v224, v1, 4, v9", "v_xor_b32 v225, 128, v224")
    A("v_mov_b32 v228, 0", "v_mov_b32 v229, 0", "v_mov_b32 v230, 0", "v_mov_b32 v231, 0", f"s_mov_b32 s49, {ONES}")
    A("s_mul_i32 s41, s46, 6144", "s_lshl_b32 s42, s48, 2", "s_add_u32 s41, s41, s42", f"s_add_u32 s41, s41, {FPIMG}", "v_lshl_add_u32 v226, v0, 4, s41",
      "s_lshl_b32 s41, s46, 6", "s_add_u32 s41, s41, s42", f"s_add_u32 s41, s41, {DCT}", "v_lshl_add_u32 v227, v2, 4, s41")
    A("s_lshl_b32 s41, s43, 4", "v_add_u32 v3, s41, v1", "v_cvt_f32_u32 v4, v3", f"v_mul_f32 v5, {fl(1/160)}, v4",
      "v_cvt_f32_u32 v6, v2", "v_mul_f32 v6, 4.0, v6", "v_mul_f32 v6, v6, v5")
    A("v_and_b32 v14, 1, v0", "v_mov_b32 v15, 0x80008000", "v_mul_lo_u32 v14, v14, v15")
    for u in range(5):
        for jp in range(2):
            for e in range(2):
                A(f"v_fmamk_f32 v{8+e}, v5, {fl(float(16*u+2*jp+e))}, v6")
            A("v_cos_f32 v10, v8", "v_cos_f32 v11, v9", "v_sin_f32 v12, v8", "v_sin_f32 v13, v9",
              f"v_cvt_pk_bf16_f32 v{BC(u)+jp}, v10, v11", f"v_cvt_pk_bf16_f32 v{BS(u)+jp}, -v12, -v13",
              f"v_xor_b32 v{BC(u)+2+jp}, v14, v{BC(u)+jp}", f"v_xor_b32 v{BS(u)+2+jp}, v14, v{BS(u)+jp}")
    for r in (1,2,3):
        A(f"v_mul_f32 v8, {fl(r/640)}, v4", f"v_cos_f32 v{TW+2*r-2}, v8", f"v_sin_f32 v{TW+2*r-1}, v8")
    A("v_and_b32 v8, 3, v0", "v_bfe_u32 v9, v0, 3, 1", "v_lshl_add_u32 v9, v2, 1, v9", "v_lshlrev_b32 v10, 2, v8", "v_xor_b32 v9, v9, v10",
      "v_lshlrev_b32 v10, 8, v8", "v_lshl_add_u32 v10, v9, 4, v10", "v_bfe_u32 v9, v0, 2, 1", "v_lshl_add_u32 v14, v9, 3, v10",
      "s_mul_i32 s41, s44, 40960", "v_add_u32 v14, s41, v14", "v_xor_b32 v15, 128, v14")
    A("s_mul_i32 s41, s44, 6144", f"s_add_u32 s41, s41, {FPIMG}", "v_lshl_add_u32 v7, v0, 4, s41",
      "s_lshl_b32 s41, s44, 6", f"s_add_u32 s41, s41, {DCT}", "v_lshl_add_u32 v62, v2, 4, s41",
      "v_lshrrev_b32 v8, 3, v0", "s_mov_b32 s41, 90112", "v_mul_lo_u32 v63, v8, s41", "v_and_b32 v9, 7, v0", "v_lshl_add_u32 v63, v9, 4, v63",
      "s_lshl_b32 s41, s28, 12", f"s_add_u32 s41, s41, {SCR}",
      "v_xor_b32 v10, v8, v9", "v_lshl_add_u32 v3, v8, 7, s41", "v_lshl_add_u32 v3, v10, 4, v3",
      "v_xor_b32 v10, v2, v9", "v_lshl_add_u32 v5, v1, 7, s41", "v_lshl_add_u32 v5, v10, 4, v5", "v_xor_b32 v6, 64, v5")
    if OPT['ppf']:
        A("s_load_dwordx4 s[24:27], s[0:1], 8", "s_load_dwordx2 s[16:17], s[0:1], 48",
          "s_mul_i32 s40, s29, 6", "s_add_u32 s40, s40, s28", "s_cmp_lt_u32 s28, 4", "s_cselect_b32 s41, 0, 4", "s_add_u32 s40, s40, s41",
          "s_lshl_b32 s41, s40, 13", "v_lshl_add_u32 v146, v0, 7, s41",
          "s_cmp_lt_u32 s29, 32", f"s_cselect_b32 s41, 0, {192*8192}", "v_subrev_u32 v147, s41, v146", "s_waitcnt lgkmcnt(0)",
          "s_cselect_b32 s20, s24, s26", "s_cselect_b32 s21, s25, s27", f"s_mov_b32 s22, {WF_SZ}", "s_mov_b32 s23, 0x00020000",
          f"s_mov_b32 s18, {W1_SZ}", "s_mov_b32 s19, 0x00020000")
    stamp(A, 1)
    A(f"s_waitcnt vmcnt({2 if OPT['mpf1'] else 0})")
    stamp(A, 2)
    for I in range(5):
        for ii in range(2):
            A(f"ds_read_b128 {vr(64+(I*2+ii)*4,4)}, v{224+ii} offset:{1024*I}")
    for I in range(5):
        A(f"s_waitcnt lgkmcnt({2*(4-I)})")
        for j in range(8):
            r = 64 + I*8 + j
            A(f"v_dot2c_f32_bf16 v{228+(j&1)}, s49, v{r}", f"v_dot2c_f32_bf16 v{230+(j&1)}, v{r}, v{r}")
    A("v_add_f32 v228, v228, v229", "v_add_f32 v230, v230, v231")
    for qp in ("quad_perm:[1,0,3,2]", "quad_perm:[2,3,0,1]", "row_half_mirror"):
        A(f"v_add_f32_dpp v228, v228, v228 {qp} row_mask:0xf bank_mask:0xf", f"v_add_f32_dpp v230, v230, v230 {qp} row_mask:0xf bank_mask:0xf")
    row_stats(A, 228, 230, 8, 9, 10, 11)
    A("v_cvt_pk_bf16_f32 v11, v11, v10", "v_lshlrev_b32 v8, 5, v2", "v_and_b32 v10, 0xffff0000, v11", "v_lshlrev_b32 v11, 16, v11", "v_rcp_f32 v11, v11",
      f"v_fmac_f32 v228, {fl(-640.0)}, v10")
    for tt in range(2):
        A(f"ds_bpermute_b32 v{232+tt}, v8, v11 offset:{128*tt}", f"ds_bpermute_b32 v{234+tt}, v8, v228 offset:{128*tt}")
    A("s_waitcnt lgkmcnt(0)")
    for nt in range(2):
        c = 208+nt*2; sn = 212+nt*2; o = 236 + nt*3
        for tt in range(2):
            A(f"v_mul_f32 v{c+tt}, v{c+tt}, v{232+tt}", f"v_mul_f32 v{sn+tt}, v{sn+tt}, v{232+tt}")
        A(f"v_cvt_pk_bf16_f32 v{o}, v{c}, v{c+1}", f"v_cvt_pk_bf16_f32 v{o+1}, v{sn}, v{sn+1}", f"v_cvt_pk_bf16_f32 v{o+2}, -v{sn}, -v{sn+1}")
        for pl in range(3):
            A(f"ds_write_b32 v226, v{o+pl} offset:{(nt*3+pl)*1024}")
    A("v_cvt_pk_bf16_f32 v8, v234, v235", "ds_write_b32 v227, v8")
    A("s_waitcnt lgkmcnt(0)", "s_barrier")
    stamp(A, 3)
    A("Lp1_unit:")
    stamp(A, 4)
    def reads(t):
        return [f"ds_read_b64_tr_b16 {vr(AF(t&1,u)+2*jh,2)}, v{14+((u+5*jh)&1)} offset:{t*5120+((u+5*jh)>>1)*1024}" for u in range(5) for jh in range(2)]
    def mf(t):
        L = []
        for u in range(5):
            for (acc, B) in ((AP(t&1), BC(u)), (AQ(t&1), BS(u))):
                L.append(f"{M16} {vr(acc,4)}, {vr(AF(t&1,u),4)}, {vr(B,4)}, {'0' if u==0 else vr(acc,4)}")
        return L
    def bfly(t):
        P = AP(t&1); Q = AQ(t&1); O = lambda i: OUT(t&1, i)
        c1,s1,c2,s2,c3,s3 = range(TW, TW+6)
        pr,pi,qr,qi,ar,ai,ur,ui,wr_,wi_ = range(TMP, TMP+10)
        L = [f"v_fma_f32 v{pr}, v{P+2}, v{c2}, v{P}", f"v_fma_f32 v{pi}, v{Q+2}, v{c2}, v{Q}",
             f"v_mul_f32 v{ar}, v{P+1}, v{c1}", f"v_mul_f32 v{ai}, v{Q+1}, v{c1}",
             f"v_fmac_f32 v{pr}, v{Q+2}, v{s2}", f"v_fma_f32 v{pi}, -v{P+2}, v{s2}, v{pi}",
             f"v_fmac_f32 v{ar}, v{Q+1}, v{s1}", f"v_fma_f32 v{ai}, -v{P+1}, v{s1}, v{ai}",
             f"v_fma_f32 v{qr}, 2.0, v{P}, -v{pr}", f"v_fma_f32 v{qi}, 2.0, v{Q}, -v{pi}",
             f"v_fma_f32 v{ur}, v{P+3}, v{c3}, v{ar}", f"v_fma_f32 v{ui}, v{Q+3}, v{c3}, v{ai}",
             f"v_fmac_f32 v{ur}, v{Q+3}, v{s3}", f"v_fma_f32 v{ui}, -v{P+3}, v{s3}, v{ui}",
             f"v_fma_f32 v{wr_}, 2.0, v{ar}, -v{ur}", f"v_fma_f32 v{wi_}, 2.0, v{ai}, -v{ui}",
             f"v_add_f32 v{O(0)}, v{pr}, v{ur}", f"v_add_f32 v{O(1)}, v{pi}, v{ui}",
             f"v_sub_f32 v{O(6)}, v{pr}, v{ur}", f"v_sub_f32 v{O(7)}, v{ui}, v{pi}",
             f"v_sub_f32 v{O(2)}, v{qr}, v{wi_}", f"v_add_f32 v{O(3)}, v{qi}, v{wr_}",
             f"v_add_f32 v{O(4)}, v{qr}, v{wi_}", f"v_sub_f32 v{O(5)}, v{qi}, v{wr_}"]
        if t & 1:
            for i in (0,1,6,7,2,3,4,5):
                n = '-' if i == 3 else ''
                L.append(f"v_cvt_pk_bf16_f32 v{YF(i>>1,i&1)+(t>>1)}, {n}v{OUT(0,i)}, {n}v{OUT(1,i)}")
        return L
    A(*reads(0))
    for t in range(9):
        if t < 8:
            A("s_waitcnt lgkmcnt(0)")
            fill = (reads(t+1) if t < 7 else [f"ds_read_b128 {vr(FP(nt,pl),4)}, v7 offset:{(nt*3+pl)*1024}" for nt in range(2) for pl in range(3)])
            fill = fill + (bfly(t-1) if t >= 1 else [])
            if OPT['ppf'] and t == 0: fill.append("buffer_load_dword v12, v146, s[16:19], 0 offen")
            if OPT['ppf'] and t == 4: fill.append("buffer_load_dword v13, v147, s[20:23], 0 offen")
            A(*spread(mf(t), fill))
        else:
            B = bfly(7)
            A(*B[:25])
            A("s_cmp_lg_u32 s43, 0", "s_cbranch_scc1 Lp1_nodc", "s_mov_b32 exec_lo, 0x10001", "s_mov_b32 exec_hi, 0x10001",
              f"ds_read_b128 {vr(YF(0,0),4)}, v62", "s_mov_b64 exec, -1", "Lp1_nodc:")
            A(*B[25:])
    A("s_add_u32 s41, s29, s44", "s_lshl_b32 s41, s41, 7", "s_lshl_b32 s42, s43, 13", "s_add_u32 s41, s41, s42")
    A("v_mov_b32 v150, 0", "buffer_load_dwordx2 v[148:149], v150, s[56:59], 0 offen sc1")
    A("s_waitcnt lgkmcnt(0)")
    stamp(A, 5)
    def s1m(kinds, base):
        L = []; n = 0
        for tile, o in enumerate(kinds):
            for nt in range(2):
                re = base + n*8; im = re + 4; n += 1
                L += [f"{M16} {vr(re,4)}, {vr(YF(o,0),4)}, {vr(FP(nt,0),4)}, 0", f"{M16} {vr(im,4)}, {vr(YF(o,1),4)}, {vr(FP(nt,0),4)}, 0",
                      f"{M16} {vr(re,4)}, {vr(YF(o,1),4)}, {vr(FP(nt,1),4)}, {vr(re,4)}", f"{M16} {vr(im,4)}, {vr(YF(o,0),4)}, {vr(FP(nt,2),4)}, {vr(im,4)}"]
        return L
    def s1w(base):
        L = []; n = 0
        for tile in range(2):
            for nt in range(2):
                re = base + n*8; pk = PK + n*4; n += 1
                L += [f"v_cvt_pk_bf16_f32 v{pk+j}, v{re+2*j}, v{re+2*j+1}" for j in range(4)]
                L.append(f"ds_write_b128 v{5+tile}, {vr(pk,4)} offset:{nt*2048}")
        L += [f"ds_read_b128 {vr(base+4*q,4)}, v3 offset:{q*1024}" for q in range(4)]
        return L
    def s1s(base, poff):
        L = []
        for q in range(4):
            L += [f"s_add_u32 s42, s41, {q*8*90112+poff}", f"s_waitcnt lgkmcnt({3-q})",
                  f"buffer_store_dwordx4 {vr(base+4*q,4)}, v63, s[36:39], s42 offen {OPT['sc_t']}"]
        return L
    TB_ = 64
    A(*s1m((0,2), TA))
    A("s_cmp_eq_u32 s43, 5", "s_cbranch_scc1 Lp1_b5")
    A(*spread(s1m((1,3), TB_), s1w(TA)))
    A(*s1s(TA, 0))
    A(*s1w(TB_))
    A(*s1s(TB_, 6*8192))
    A("s_cmp_eq_u32 s45, 0", "s_cbranch_scc1 Lp1_done")
    A("s_mov_b32 s45, 0", "s_mov_b32 s44, 1", "v_add_u32 v14, 40960, v14", "v_add_u32 v15, 40960, v15", "v_add_u32 v7, 6144, v7", "v_add_u32 v62, 64, v62", "v_add_u32 v146, 0x8000, v146", "v_add_u32 v147, 0x8000, v147", "s_branch Lp1_unit")
    A("Lp1_b5:", "s_nop 7")
    A(*s1w(TA))
    A(*s1s(TA, 0))
    A("Lp1_done:")
    stamp(A, 6)
    A("s_lshl_b32 s41, s29, 6", f"s_add_u32 s41, s41, {32*8192}", "v_lshlrev_b32 v151, 3, v0", "s_waitcnt vmcnt(0)")
    chk_cleared(A, 148, 150)
    A("v_mov_b32 v18, v148", "v_mov_b32 v19, v149", "v_mov_b32 v12, 0")
    A("s_barrier", "s_cmp_lg_u32 s28, 0", "s_cbranch_scc1 Lp2")
    A(*set_flag(148, 151, "s41"))

HK = [(4*c, 4*c+2) for c in range(7)] + [(4*c+1, 4*c+3) for c in range(6)] + [(25, None)]
def hk_mask(sp, upto):
    m = 0
    for j, (a, b) in enumerate(HK[:upto]):
        if upto == 14 and j < 6: continue
        for hs, x in enumerate((a, b)):
            if x is None: continue
            x = x + 28*sp
            if sp and j == 6 and hs == 1: x = 53
            if sp and j == 13: x = 27
            m |= 1 << x
    return m
def set_mask(A, upto):
    m0, m1 = hk_mask(0, upto), hk_mask(1, upto)
    A("s_cmp_eq_u32 s50, 0", f"s_mov_b32 s36, 0x{m0 & 0xffffffff:x}", f"s_mov_b32 s37, 0x{m0 >> 32:x}",
      f"s_cselect_b32 s36, s36, 0x{m1 & 0xffffffff:x}", f"s_cselect_b32 s37, s37, 0x{m1 >> 32:x}")
def poll_h(A, upto, first):
    _pl[0] += 1; n = _pl[0]
    if first: set_mask(A, upto)
    A("s_mov_b32 s3, 0")
    if not first: A(f"s_branch Lpc{n}")
    A(f"Lpl{n}:", "s_mov_b64 exec, s[36:37]", "buffer_load_dwordx2 v[20:21], v13, s[52:55], 0 offen sc1", "s_mov_b64 exec, -1", "s_waitcnt vmcnt(0)", f"Lpc{n}:",
      "v_cmp_eq_u64 vcc, v[20:21], v[18:19]", "s_add_u32 s3, s3, 1", "s_nop 0", "s_and_b64 s[38:39], vcc, s[36:37]", "s_cmp_eq_u64 s[38:39], s[36:37]", f"s_cbranch_scc1 Lpd{n}",
      f"s_sleep {OPT.get('slp',4)}", f"s_cmp_lt_u32 s3, {SPIN_MAX}", f"s_cbranch_scc1 Lpl{n}", f"Lpd{n}:")

def g2_loader(A):
    NST = 14
    A("s_lshr_b32 s30, s32, 2", "s_and_b32 s50, s31, 1")
    A("s_lshl_b32 s34, s29, 2", "s_add_u32 s34, s34, s33", f"s_mul_i32 s34, s34, {108*1024}", "v_lshl_add_u32 v4, v0, 4, s34")
    A("v_lshrrev_b32 v3, 4, v0", "v_and_b32 v2, 15, v0", "v_lshlrev_b32 v5, 2, v3", "v_xor_b32 v2, v2, v5",
      "s_and_b32 s34, s33, 1", "s_lshl_b32 s34, s34, 5", "v_add_u32 v8, s34, v3", "v_mul_u32_u24 v8, 1280, v8",
      "s_lshl_b32 s34, s30, 8", "v_lshl_add_u32 v10, v2, 4, v8", "v_add_u32 v10, s34, v10")
    A("s_lshl_b32 s34, s29, 1", "s_lshr_b32 s35, s33, 1", "s_add_u32 s34, s34, s35", "s_lshl_b32 s34, s34, 13", "v_lshl_add_u32 v13, v0, 7, s34")
    A(f"s_mul_i32 s44, s50, {28*2048}", f"s_mul_i32 s45, s50, {14*81920}", f"s_mul_i32 s34, s35, 81920", "s_add_u32 s45, s45, s34")
    srd(A, 12, 6, H_SZ, H_OFF); srd(A, 16, 48, W1_SZ)
    def issue_w(st):
        slot = (st % RING) * 32768; a, b = HK[st]
        A(f"s_add_u32 s42, s45, {(a>>1)*81920+(a&1)*20480}")
        if st == 6:
            A("s_and_b32 s34, s50, s35", "s_cmp_eq_u32 s34, 1", f"s_cselect_b32 s42, {26*81920+20480}, s42")
        if st == 13:
            A("s_cmp_eq_u32 s50, 0", f"s_mov_b32 s42, {12*81920+20480}", f"s_cselect_b32 s42, s42, {13*81920+20480}", "s_cmp_eq_u32 s35, 0", "s_cselect_b32 s18, s18, 0")
        for q in range(4):
            A(f"s_add_u32 m0, s40, {slot + 16384 + q*1024}", "s_nop 0", f"buffer_load_dwordx4 v10, s[16:19], s42 offen lds")
            if q < 3: A(f"s_add_u32 s42, s42, {4*1280}")
        return 4
    def issue_h(st):
        slot = (st % RING) * 32768; a, b = HK[st]
        A(f"s_add_u32 s41, s44, {a*2048}", f"s_add_u32 m0, s40, {slot}")
        if st == 13: A("s_cmp_eq_u32 s50, 0", f"s_cselect_b32 s41, s41, {27*2048}")
        else: A(f"s_add_u32 s43, s44, {b*2048-2048}")
        if st == 6: A("s_cmp_eq_u32 s50, 0", f"s_cselect_b32 s43, s43, {53*2048-2048}")
        for q in range(2): A(f"buffer_load_dwordx4 v4, s[12:15], s41 offen offset:{q*1024} sc1 lds")
        if st == 13: return 2
        for q in range(2,4): A(f"buffer_load_dwordx4 v4, s[12:15], s43 offen offset:{q*1024} sc1 lds")
        return 4
    NW = OPT.get('nw', 2)
    if OPT.get('wlate'):
        A("s_waitcnt vmcnt(1)" if 'lpfs' not in OPT else "s_waitcnt vmcnt(0)")
        chk_cleared(A, 18, 12)
        set_mask(A, 6)
        A("s_barrier")
        stamp(A, 4)
        if OPT.get('gslp'): A(f"s_sleep {OPT['gslp']}")
        A("s_mov_b64 exec, s[36:37]", "buffer_load_dwordx2 v[20:21], v13, s[52:55], 0 offen sc1", "s_mov_b64 exec, -1")
        for st in range(NW): issue_w(st)
        A(f"s_waitcnt vmcnt({4*NW})")
        poll_h(A, 6, False)
    else:
        for st in range(NW): issue_w(st)
        A(f"s_waitcnt vmcnt({4*NW})")
        chk_cleared(A, 18, 12)
        A("s_barrier")
        stamp(A, 4)
        poll_h(A, 6, True)
    stamp(A, 5)
    ops = []
    D = OPT.get('D2') or 2
    for st in range(NW): ops += [st]*issue_h(st)
    nxt = NW
    for st in range(NST):
        last = max(i for i, x in enumerate(ops) if x == st)
        A(f"s_waitcnt vmcnt({len(ops)-1-last})", "s_barrier")
        if st == 1:
            set_mask(A, 14)
            A("s_mov_b64 exec, s[36:37]", "buffer_load_dwordx2 v[20:21], v13, s[52:55], 0 offen sc1", "s_mov_b64 exec, -1"); ops.append('p')
        while nxt < NST and nxt <= st + max(D, NW-1 if st == 0 else 0) :
            if nxt == 6:
                A(f"s_waitcnt vmcnt({len(ops)-1-ops.index('p')})")
                poll_h(A, 14, False)
            ops += [nxt]*issue_h(nxt); ops += [nxt]*issue_w(nxt); nxt += 1
    if OPT['cpf']:
        A("s_lshl_b32 s34, s32, 2", "s_add_u32 s34, s34, s33", "s_cmp_ge_u32 s34, 1", "s_cbranch_scc1 Lk1_end")
        A("s_mov_b64 exec, 0x7ffffff")
        cpf(A, "k3_kernel", None, s=(36,38))
    A("s_branch Lk1_end")

def g2_compute(A):
    NST = 14
    XA, WA = 208, lambda mt: 209 + mt
    A("s_lshr_b32 s30, s32, 2", "s_and_b32 s50, s31, 1")
    A("s_lshl_b32 s35, s34, 13", f"v_lshl_add_u32 v{XA}, v0, 4, s35")
    A("v_bfe_u32 v4, v0, 2, 2", "v_lshl_add_u32 v5, v2, 2, v4", "v_lshlrev_b32 v5, 8, v5",
      "v_bfe_u32 v6, v0, 4, 1", "v_lshl_add_u32 v5, v6, 5, v5", "v_and_b32 v6, 3, v0", "v_lshl_add_u32 v5, v6, 3, v5",
      "s_lshl_b32 s35, s33, 1", "v_xor_b32 v6, s35, v4", f"v_lshl_add_u32 v{WA(0)}, v6, 6, v5", f"v_xor_b32 v{WA(1)}, 64, v{WA(0)}")
    srd(A, 24, 6, P_SZ, P_OFF)
    A("v_mov_b32 v240, v222", "v_mov_b32 v244, v223")
    for r in (241,242,243,245,246,247,249,250,251): A(f"v_mov_b32 v{r}, 0")
    A("v_cmp_gt_u32 vcc, 32, v0", "v_mov_b32 v5, 0x3f80", "s_nop 0", "v_cndmask_b32 v248, 0, v5, vcc")
    A("v_lshlrev_b32 v5, 9, v2", "v_lshl_add_u32 v7, v1, 3, v5",
      "s_lshl_b32 s40, s29, 2", "s_lshl_b32 s42, s34, 1", "s_add_u32 s40, s40, s42", "s_mul_i32 s40, s40, 10",
      "s_lshl_b32 s42, s30, 1", "s_add_u32 s40, s40, s42", "s_add_u32 s40, s40, s33", "s_lshl_b32 s40, s40, 12",
      f"s_mul_i32 s42, s50, {P_SZ//2}", "s_add_u32 s44, s40, s42", "s_add_u32 s45, s44, 40960")
    for mt in range(2):
        for nt in range(2):
            A(f"{M32} {vr(ACC(mt,nt),16)}, v[248:251], {vr(240+4*mt,4)}, 0")
    A("s_waitcnt vmcnt(0)", *set_flag(254, 11, "s48", 128))
    base = [0]
    def reads(st):
        p = st & 1; slot = (st % RING) * 32768
        L = []
        nb = slot & ~0xffff
        if nb != base[0]:
            for r in range(208, 211): L.append(f"v_xor_b32 v{r}, 0x10000, v{r}")
            base[0] = nb
        so = slot - nb
        for kk in range(4 if st < 13 else 2):
            for mt in range(2):
                for jh in range(2):
                    L.append(f"ds_read_b64_tr_b16 {vr(FB(p,kk,2+mt)+2*jh,2)}, v{WA(mt)} offset:{so+16384+(16*kk+8*jh)*256}")
            for nt in range(2):
                L.append(f"ds_read_b128 {vr(FB(p,kk,nt),4)}, v{XA} offset:{so+nt*4096+kk*1024}")
        return L
    mm = lambda p, kk, mt, nt: f"{M32} {vr(ACC(mt,nt),16)}, {vr(FB(p,kk,nt),4)}, {vr(FB(p,kk,2+mt),4)}, {vr(ACC(mt,nt),16)}"
    def mfmas(st):
        return [mm(st&1, kk, mt, nt) for kk in range(4) for mt in range(2) for nt in range(2)]
    compute_loop(A, NST, reads, mfmas, lambda st: [], lambda st: stamp(A, {0:4,1:5,7:6,13:7}[st]) if st in (0,1,7,13) else None)
    p = (NST-1) & 1
    def outp(mt, nt):
        L = []
        for a in range(4):
            a0 = ACC(mt,nt) + 4*a; o = FB(1-p,0,0) + ((mt*2+nt)*4+a)*2
            L += [f"v_cvt_pk_bf16_f32 v{o}, v{a0}, v{a0+1}", f"v_cvt_pk_bf16_f32 v{o+1}, v{a0+2}, v{a0+3}",
                  f"buffer_store_dwordx2 {vr(o,2)}, v7, s[24:27], s{44+nt} offen offset:{a*1024+mt*256} {OPT['sc_p']}"]
        return L
    tiles = [(mt,nt) for mt in range(2) for nt in range(2)]
    for i, (mt,nt) in enumerate(tiles):
        A(*[mm(p, kk, mt, nt) for kk in range(2)])
        if i >= 2: A(*outp(*tiles[i-2]))
    A(*outp(*tiles[2])); A(*outp(*tiles[3]))
    A("s_branch Lk1_end")

def hgen(Hl, HF, tvar):
    Hl(f"s_lshl_b32 s33, s{tvar}, 4", "v_add_u32 v14, s33, v1", "v_cvt_f32_u32 v15, v14", f"v_mul_f32 v15, {fl(1/160)}, v15", "v_mul_f32 v4, v7, v15")
    for bb in range(5):
        for ep in range(2):
            for e in range(2):
                Hl(f"v_fmamk_f32 v{8+e}, v15, {fl(float(16*bb+2*ep+e))}, v4")
            Hl("v_cos_f32 v10, v8", "v_cos_f32 v11, v9", "v_sin_f32 v12, v8", "v_sin_f32 v13, v9")
            if bb == 0 and ep == 0:
                Hl("v_cmp_gt_u32 vcc, 16, v0", "v_mov_b32 v8, 0.5", "s_nop 0", "v_cndmask_b32 v10, v10, v8, vcc")
            Hl(f"v_cvt_pk_bf16_f32 v{HF(bb)+ep}, v10, v11", f"v_cvt_pk_bf16_f32 v{HF(bb)+2+ep}, -v12, -v13")
    Hl("v_and_b32 v8, 1, v14", "v_lshlrev_b32 v8, 15, v8", "v_or_b32 v8, 0x3f80, v8", f"v_cndmask_b32 v{HF(5)}, 0, v8, vcc",
       f"v_mov_b32 v{HF(5)+1}, 0", f"v_mov_b32 v{HF(5)+2}, 0", f"v_mov_b32 v{HF(5)+3}, 0")

def p2(A):
    C = lambda t, ks: vr(16 + (t*2+ks)*4, 4)
    S = lambda t, ks: vr(48 + (t*2+ks)*4, 4)
    WV = lambda tau, pl, t, e: 80 + tau*32 + pl*16 + t*4 + e
    TB = lambda tau, ks, pl: 144 + tau*24 + (ks*3+pl)*4
    XA = lambda tau, pl, t: 192 + tau*32 + pl*16 + t*4
    PK = 80
    WIMG = 32768
    stamp(A, 8)
    A("s_load_dwordx4 s[8:11], s[0:1], 8", "s_load_dwordx2 s[48:49], s[0:1], 48")
    A("s_sub_u32 s33, s32, 20", "s_mul_i32 s34, s33, 43", "s_lshr_b32 s34, s34, 7", "s_mul_i32 s35, s34, 3", "s_sub_u32 s45, s33, s35",
      "s_lshl_b32 s29, s31, 2", "s_add_u32 s29, s29, s34", "s_and_b32 s46, s28, 3")
    A("s_mov_b32 s34, 0x9a543210", "s_mov_b32 s35, 0x8876", "s_lshl_b32 s33, s45, 2", "s_add_u32 s33, s33, s46", "s_lshl_b32 s33, s33, 2",
      "s_lshr_b64 s[34:35], s[34:35], s33", "s_and_b32 s30, s34, 15")
    A("s_lshl_b32 s47, s45, 6", "s_cmp_eq_u32 s45, 2", "s_cselect_b32 s47, 113, s47")
    A("s_mul_i32 s43, s29, 90112", "s_lshl_b32 s34, s30, 13", "s_add_u32 s43, s43, s34", "s_lshr_b32 s34, s28, 2", "s_lshl_b32 s34, s34, 12",
      "s_add_u32 s43, s43, s34", "s_lshl_b32 s35, s46, 13", "s_add_u32 s44, s35, s34")
    A("v_lshrrev_b32 v4, 3, v0", "v_lshl_add_u32 v4, v4, 5, s29", "v_mul_u32_u24 v4, 642, v4", "v_and_b32 v5, 7, v0", "v_lshl_add_u32 v4, v5, 4, v4",
      "s_lshl_b32 s34, s47, 1", "s_bfe_u32 s36, s28, 0x10001", "s_mulk_i32 s36, 320", "s_add_u32 s34, s34, s36",
      "s_and_b32 s36, s28, 1", f"s_mul_i32 s36, s36, {32*20544}", "s_add_u32 s34, s34, s36", "v_add_u32 v4, s34, v4")
    A("s_waitcnt lgkmcnt(0)")
    srd(A, 12, 6, T_SZ, T_OFF); srd(A, 24, 6, U_SZ, U_OFF)
    A("s_cmp_lt_u32 s28, 4", "s_cselect_b32 s16, s8, s10", "s_cselect_b32 s17, s9, s11", f"s_mov_b32 s18, {WF_SZ}", "s_mov_b32 s19, 0x00020000")
    A("s_barrier")
    A("s_lshl_b32 s36, s28, 12")
    def wdma():
        for q in range(4):
            A(f"s_add_u32 m0, s36, {WIMG+1024*q}", f"s_mov_b32 s34, {q*8*20544}", "buffer_load_dwordx4 v4, s[16:19], s34 offen lds")
    A("s_cmp_lg_u32 s28, 4", "s_cbranch_scc1 Lp2_np")
    A("s_waitcnt vmcnt(0)", "v_mov_b32 v12, 0")
    chk_cleared(A, 18, 12)
    A("v_and_b32 v13, 31, v0", "v_lshlrev_b32 v13, 7, v13", f"s_mov_b32 s37, {32*8192}", "s_mov_b32 s3, 0",
      "buffer_load_dwordx2 v[20:21], v13, s[52:55], s37 offen sc1")
    wdma()
    A("s_waitcnt vmcnt(4)", "s_branch Lp2_pc", "Lp2_poll:",
      "buffer_load_dwordx2 v[20:21], v13, s[52:55], s37 offen sc1", "s_waitcnt vmcnt(0)", "Lp2_pc:",
      "v_cmp_eq_u64 vcc, v[20:21], v[18:19]", "s_add_u32 s3, s3, 1", "s_nop 0",
      "s_cmp_eq_u64 vcc, -1", "s_cbranch_scc1 Lp2_hb", "s_sleep 4", f"s_cmp_lt_u32 s3, {SPIN_MAX}", "s_cbranch_scc1 Lp2_poll", "s_branch Lp2_hb")
    A("Lp2_np:")
    wdma()
    A("v_and_b32 v1, 15, v0", "v_lshrrev_b32 v2, 4, v0", "v_cvt_f32_u32 v7, v2", "v_mul_f32 v7, 4.0, v7")
    def tdma():
        A("s_mov_b32 m0, s44", "v_lshlrev_b32 v8, 4, v0")
        for i in range(4): A(f"buffer_load_dwordx4 v8, s[12:15], s43 offen offset:{1024*i} sc1 lds")
    A("s_cmp_lt_u32 s28, 4", "s_cbranch_scc1 Lp2_main")
    A("Lp2_hb:", "s_barrier")
    tdma()
    A("s_waitcnt vmcnt(0)", "s_barrier", "s_branch Lk1_end")
    A("Lp2_main:")
    A("v_cvt_f32_u32 v5, v1", f"v_mul_f32 v5, {fl(1/64)}, v5", "v_add_f32 v6, 0x3e800000, v5",
      "v_and_b32 v14, 1, v0", "v_mov_b32 v15, 0x80008000", "v_mul_lo_u32 v14, v14, v15", "v_xor_b32 v15, 0x80000000, v14")
    for t in range(2):
        for jp in range(4):
            for e in range(2):
                j = 2*jp+e
                A(f"v_add_f32 v{8+e}, {fl(float(16*(j>>2)+(j&3)))}, v7", f"v_mul_f32 v{8+e}, v{8+e}, v{5+t}")
            c0 = 16+t*8+jp; s0 = 48+t*8+jp
            A("v_cos_f32 v10, v8", "v_cos_f32 v11, v9", "v_sin_f32 v12, v8", "v_sin_f32 v13, v9",
              f"v_cvt_pk_bf16_f32 v{c0}, v10, v11", f"v_cvt_pk_bf16_f32 v{s0}, v12, v13")
            for b in (c0, s0):
                A(f"v_xor_b32 v{b+4}, v14, v{b}", f"v_xor_b32 v{b+16}, 0x80000000, v{b}", f"v_xor_b32 v{b+20}, v15, v{b}")
    A("v_lshrrev_b32 v5, 2, v0", "v_lshlrev_b32 v5, 7, v5", "v_and_b32 v7, 3, v0", "v_lshl_add_u32 v5, v7, 4, v5", "v_add_u32 v5, s35, v5",
      "v_lshrrev_b32 v8, 3, v0", "s_mov_b32 s33, 45056", "v_mul_lo_u32 v6, v8, s33", "v_and_b32 v9, 7, v0", "v_lshl_add_u32 v6, v9, 4, v6",
      "s_lshl_b32 s36, s30, 12", "s_lshl_b32 s33, s29, 7", "s_add_u32 s36, s36, s33",
      "v_xor_b32 v10, v8, v9", "v_lshl_add_u32 v3, v8, 7, s35", "v_lshl_add_u32 v3, v10, 4, v3",
      "v_xor_b32 v10, v2, v9", "v_lshl_add_u32 v7, v1, 7, s35", "v_lshl_add_u32 v7, v10, 4, v7")
    A("s_lshl_b32 s33, s30, 4", "v_add_u32 v8, s33, v1", "v_sub_u32 v9, 256, v8",
      "s_cmp_lt_u32 s30, 6", "s_cselect_b64 vcc, -1, 0", "v_cndmask_b32 v8, v9, v8, vcc", "v_subrev_u32 v8, s47, v8",
      "v_lshlrev_b32 v4, 9, v2", "v_lshl_add_u32 v4, v8, 1, v4")
    stamp(A, 9)
    A("s_barrier")
    stamp(A, 10)
    tdma()
    A("s_waitcnt vmcnt(0)", "s_barrier")
    stamp(A, 11)
    A("s_lshl_b32 s33, s45, 2", "s_add_u32 s33, s33, s46", "s_cmp_eq_u32 s33, 11", "s_cbranch_scc1 Lk1_end")
    def treads(tau):
        return [f"ds_read_b64_tr_b16 {vr(TB(tau,ks,pl)+2*jh,2)}, v5 offset:{(32*ks+16*jh)*128+tau*64+pl*8}" for ks in range(2) for pl in range(2) for jh in range(2)]
    def wreads(tau):
        return [f"ds_read_u16_d16_hi v{WV(tau,pl,t,e)}, v4 offset:{WIMG+(pl*2+tau)*8192+(16*t+e)*128}" for t in range(4) for e in range(4) for pl in range(2)]
    M = M16
    def st2(tau):
        L = []
        for t in range(4):
            re = vr(XA(tau,0,t),4); im = vr(XA(tau,1,t),4)
            for ks in range(2):
                tr = vr(TB(tau,ks,0),4); ti = vr(TB(tau,ks,1),4)
                L += [f"{M} {re}, {C(t,ks)}, {tr}, {'0' if ks==0 else re}", f"{M} {im}, {C(t,ks)}, {ti}, {'0' if ks==0 else im}",
                      f"{M} {re}, {S(t,ks)}, {ti}, {re}", f"{M} {im}, {S(t,ks)}, {vr(TB(tau,ks,2),4)}, {im}"]
        return L
    def wmul(tau):
        L = []
        for t in range(4):
            for e in range(4):
                xr = XA(tau,0,t)+e; xi = XA(tau,1,t)+e; wr = WV(tau,0,t,e); wi = WV(tau,1,t,e)
                L += [f"v_mul_f32 v{8+e}, v{xr}, v{wr}", f"v_mul_f32 v{12+e}, v{xr}, v{wi}",
                      f"v_fma_f32 v{8+e}, -v{xi}, v{wi}, v{8+e}", f"v_fmac_f32 v{12+e}, v{xi}, v{wr}"]
            for pl in range(2):
                d = TB(tau, t>>1, pl) + (t&1)*2
                L += [f"v_cvt_pk_bf16_f32 v{d}, v{8+4*pl}, v{9+4*pl}", f"v_cvt_pk_bf16_f32 v{d+1}, v{10+4*pl}, v{11+4*pl}"]
            d = TB(tau, t>>1, 2) + (t&1)*2
            L += [f"v_cvt_pk_bf16_f32 v{d}, -v12, -v13", f"v_cvt_pk_bf16_f32 v{d+1}, -v14, -v15"]
        return L
    def negT(tau):
        return [f"v_xor_b32 v{TB(tau,ks,2)+j}, 0x80008000, v{TB(tau,ks,0)+j}" for ks in range(2) for j in range(4)]
    def st3(tau):
        L = []
        for nt in range(4):
            re = vr(XA(tau,0,nt),4); im = vr(XA(tau,1,nt),4)
            for ks in range(2):
                xr = vr(TB(tau,ks,0),4); xi = vr(TB(tau,ks,1),4)
                L += [f"{M} {re}, {xr}, {C(nt,ks)}, {'0' if ks==0 else re}", f"{M} {im}, {xi}, {C(nt,ks)}, {'0' if ks==0 else im}",
                      f"{M} {re}, {vr(TB(tau,ks,2),4)}, {S(nt,ks)}, {re}", f"{M} {im}, {xr}, {S(nt,ks)}, {im}"]
        return L
    def outp(tau):
        L = []
        for nt in range(4):
            pk = PK + 4*nt + 16*tau; re = XA(tau,0,nt); im = XA(tau,1,nt)
            L += [f"v_cvt_pk_bf16_f32 v{pk}, v{re}, v{re+1}", f"v_cvt_pk_bf16_f32 v{pk+1}, v{re+2}, v{re+3}",
                  f"v_cvt_pk_bf16_f32 v{pk+2}, v{im}, v{im+1}", f"v_cvt_pk_bf16_f32 v{pk+3}, v{im+2}, v{im+3}",
                  f"ds_write_b128 v7, {vr(pk,4)} offset:{nt*2048}"]
        return L
    A(*treads(0)); A(*treads(1))
    A("s_waitcnt lgkmcnt(8)")
    A(*negT(0))
    A(*st2(0)[:8])
    A("s_waitcnt lgkmcnt(0)")
    A(*spread(st2(0)[8:], negT(1) + wreads(0)))
    A("s_waitcnt lgkmcnt(0)")
    A(*spread(st2(1), interleave(wmul(0), wreads(1), 2)))
    A("s_waitcnt lgkmcnt(0)")
    A(*spread(st3(0), wmul(1)))
    S3 = st3(1); O1 = outp(1)
    A(*spread(S3[:16], outp(0) + ["v_xor_b32 v7, 64, v7"]))
    rb = lambda nt: [f"ds_read_b128 {vr(112+8*nt+4*q,4)}, v3 offset:{nt*2048+q*1024}" for q in range(2)]
    stq = lambda nt: [x for q in range(2) for x in (f"s_add_u32 s37, s36, {(16*nt+8*q)*45056}", f"buffer_store_dwordx4 {vr(112+8*nt+4*q,4)}, v6, s[24:27], s37 offen {OPT['sc_u']}")]
    A(*spread(S3[16:24], O1[0:5] + rb(0)))
    A(*spread(S3[24:32], O1[5:10] + rb(1)))
    A(*O1[10:15]); A(*rb(2))
    A("s_waitcnt lgkmcnt(6)"); A(*stq(0))
    A(*O1[15:20]); A(*rb(3))
    A("s_waitcnt lgkmcnt(6)"); A(*stq(1))
    A("s_waitcnt lgkmcnt(3)"); A(*stq(2))
    A("s_waitcnt lgkmcnt(0)"); A(*stq(3))

def k3(A):
    A("k3_kernel:")
    A("s_cmp_ge_u32 s2, 256", "s_cbranch_scc1 Lk3_end_x")
    kstart(A)
    A("s_load_dwordx2 s[4:5], s[0:1], 0", "s_load_dwordx2 s[6:7], s[0:1], 64", "s_load_dwordx2 s[40:41], s[0:1], 80")
    A("v_lshrrev_b32 v1, 6, v0", "v_and_b32 v0, 63, v0", "v_readfirstlane_b32 s28, v1")
    A("s_and_b32 s31, s2, 7", "s_lshr_b32 s32, s2, 3")
    A("s_lshl_b32 s29, s31, 3", "s_lshr_b32 s33, s32, 2", "s_add_u32 s29, s29, s33", "s_and_b32 s30, s32, 1")
    A("v_lshlrev_b32 v3, 4, v0", "v_and_b32 v1, 15, v0", "v_lshrrev_b32 v2, 4, v0")
    A("s_lshl_b32 s33, s30, 10", "s_add_u32 s33, s33, s29", "v_lshl_add_u32 v5, v1, 6, s33")
    ZIMG = 49152
    M = M16
    A("s_cmp_ge_u32 s28, 6", "s_cbranch_scc1 Lk3_back")
    A("s_setprio 1")
    GC, GS, GN = 16, 20, 24
    TWc = lambda r: 28 + (r-1)*8
    TWs = lambda r: 32 + (r-1)*8
    UA = lambda ty, tau, pl: 52 + ((ty*2+tau)*2+pl)*4
    VA = lambda ty, tau, pl: 84 + ((ty*2+tau)*2+pl)*4
    TT = 116
    A("s_mul_i32 s33, s29, 45056", "s_lshl_b32 s34, s28, 12", "s_add_u32 s33, s33, s34", f"s_add_u32 s34, s33, {6*4096}",
      "s_lshl_b32 s35, s28, 13", "s_mov_b32 m0, s35",
      "s_cmp_eq_u32 s28, 5", "s_cselect_b32 s36, 0x80000000, 0", "v_or_b32 v4, s36, v3")
    A("s_waitcnt lgkmcnt(0)")
    srd(A, 12, 40, U_SZ, U_OFF)
    for i in range(4): A(f"buffer_load_dwordx4 v3, s[12:15], s33 offen offset:{1024*i} lds")
    A("s_add_u32 m0, s35, 4096", "s_nop 0")
    for i in range(4): A(f"buffer_load_dwordx4 v4, s[12:15], s34 offen offset:{1024*i} lds")
    SC = 2/(640*2048)
    A("v_cvt_f32_u32 v5, v5", f"v_mul_f32 v5, {fl(1/2048)}, v5", "v_cvt_f32_u32 v7, v2", "v_mul_f32 v7, 4.0, v7", f"s_mov_b32 s37, {fl(SC)}", "v_mul_f32 v6, v7, v5")
    for jp in range(4):
        for e in range(2):
            j = 2*jp+e
            A(f"v_fmamk_f32 v{8+e}, v5, {fl(float(16*(j>>2)+(j&3)))}, v6")
        A("v_cos_f32 v10, v8", "v_cos_f32 v11, v9", "v_sin_f32 v12, v8", "v_sin_f32 v13, v9")
        A(f"v_cvt_pk_bf16_f32 v{GC+jp}, v10, v11", f"v_cvt_pk_bf16_f32 v{GS+jp}, v12, v13", f"v_cvt_pk_bf16_f32 v{GN+jp}, -v12, -v13")
    A("v_lshrrev_b32 v5, 2, v0", "v_lshlrev_b32 v5, 7, v5", "v_and_b32 v8, 3, v0", "v_lshl_add_u32 v5, v8, 4, v5", "v_add_u32 v5, s35, v5")
    A("s_lshl_b32 s33, s28, 4", "v_cvt_f32_u32 v8, s33", "v_add_f32 v8, v8, v7")
    for e in range(4):
        A(f"v_add_f32 v9, {fl(float(e))}, v8")
        for r in (1,2,3):
            A(f"v_mul_f32 v10, {fl(r/640)}, v9", f"v_cos_f32 v{TWc(r)+e}, v10", f"v_sin_f32 v{TWs(r)+e}, v10")
    A("s_lshl_b32 s33, s28, 12", f"s_add_u32 s33, s33, {ZIMG}", "v_add_u32 v6, s33, v3")
    stamp(A, 1)
    A("s_waitcnt vmcnt(0)")
    stamp(A, 2)
    order = [(0,0),(1,1),(0,1),(1,0)]
    for ty, tau in order:
        for pl in range(2):
            for jh in range(2):
                A(f"ds_read_b64_tr_b16 {vr(UA(ty,tau,pl)+2*jh,2)}, v5 offset:{ty*4096+jh*2048+tau*64+pl*8}")
    for n, (ty, tau) in enumerate(order):
        re = vr(VA(ty,tau,0),4); im = vr(VA(ty,tau,1),4); ur = vr(UA(ty,tau,0),4); ui = vr(UA(ty,tau,1),4)
        A(f"s_waitcnt lgkmcnt({12-4*n})")
        A(f"{M} {re}, {ur}, {vr(GC,4)}, 0", f"{M} {im}, {ui}, {vr(GC,4)}, 0", f"{M} {re}, {ui}, {vr(GN,4)}, {re}", f"{M} {im}, {ur}, {vr(GS,4)}, {im}")
    def pk(op, d, a, b, c=None, nb=False, na=False):
        s = f"v_pk_{op}_f32 {vr(d,2)}, {vr(a,2)}, {vr(b,2)}" + (f", {vr(c,2)}" if c is not None else "")
        n = [int(na), int(nb)] + ([0] if c is not None else [])
        if na or nb: s += f" neg_lo:[{','.join(map(str,n))}] neg_hi:[{','.join(map(str,n))}]"
        return s
    Ar,Ai,Br,Bi,Dr,Di,Cr,Ci = [VA(ty,tau,pl) for ty in range(2) for tau in range(2) for pl in range(2)]
    pr,pi,qr,qi,ur,ui,wr,wi = [TT+4*i for i in range(8)]
    Z = lambda r, pl: 52 + (r*2+pl)*4
    for e in (0,2):
        A(pk('add',pr+e,Ar+e,Cr+e), pk('add',pi+e,Ai+e,Ci+e,nb=True), pk('add',qr+e,Ar+e,Cr+e,nb=True), pk('add',qi+e,Ai+e,Ci+e))
    for e in (0,2):
        A(pk('add',ur+e,Br+e,Dr+e), pk('add',ui+e,Bi+e,Di+e,nb=True), pk('add',wr+e,Br+e,Dr+e,nb=True), pk('add',wi+e,Bi+e,Di+e))
    b = lambda r, pl: 84 + (r*2+pl)*4
    for e in (0,2):
        A(pk('add',Z(0,0)+e,pr+e,ur+e), pk('add',Z(0,1)+e,pi+e,ui+e), pk('add',b(2,0)+e,pr+e,ur+e,nb=True), pk('add',b(2,1)+e,pi+e,ui+e,nb=True),
          pk('add',b(1,0)+e,qr+e,wi+e,nb=True), pk('add',b(1,1)+e,qi+e,wr+e), pk('add',b(3,0)+e,qr+e,wi+e), pk('add',b(3,1)+e,qi+e,wr+e,nb=True))
    for r in range(4):
        if r:
            for e in (0,2):
                A(pk('mul',Z(r,0)+e,b(r,0)+e,TWc(r)+e), pk('mul',Z(r,1)+e,b(r,0)+e,TWs(r)+e))
            for e in (0,2):
                A(pk('fma',Z(r,0)+e,b(r,1)+e,TWs(r)+e,Z(r,0)+e,na=True), pk('fma',Z(r,1)+e,b(r,1)+e,TWc(r)+e,Z(r,1)+e))
        o = TT + 4*r
        for j in range(4): A(f"v_cvt_pk_bf16_f32 v{o+j}, v{Z(r,0)+2*j}, v{Z(r,0)+2*j+1}")
        A(f"ds_write_b128 v6, {vr(o,4)} offset:{r*1024}")
    A("s_waitcnt lgkmcnt(0)")
    stamp(A, 3)
    A("s_barrier", "s_branch Lk3_end")
    A("Lk3_back:")
    HF = lambda bb: 16 + 4*bb
    XR, P0, P1 = 40, 48, 56
    GU = 64
    XU = 80
    ZF = lambda bb, r: 96 + ((bb % 3)*4+r)*4
    AC = lambda r: 144 + 4*r
    A("s_bfe_u32 s33, s32, 0x10001", "s_mul_i32 s33, s33, 5", "s_add_u32 s42, s33, s28", "s_sub_u32 s42, s42, 6")
    A("s_lshl_b32 s33, s30, 10", "s_add_u32 s33, s33, s29", "v_lshl_add_u32 v6, v2, 8, s33", "v_mul_u32_u24 v6, 1280, v6", "v_lshl_add_u32 v6, v1, 3, v6",
      "s_lshl_b32 s44, s42, 7", "s_add_u32 s45, s44, 81920", "s_add_u32 s46, s45, 81920", "s_add_u32 s47, s46, 81920", "v_lshlrev_b32 v5, 5, v0")
    A("s_mul_i32 s48, s29, 10", "s_add_u32 s48, s48, s42", "s_lshl_b32 s48, s48, 12", "s_lshl_b32 s34, s30, 11", "s_add_u32 s48, s48, s34",
      f"s_add_u32 s49, s48, {P_SZ//2}", "v_cvt_f32_u32 v7, v2", "v_mul_f32 v7, 4.0, v7")
    Hl = Asm(); hgen(Hl, HF, 42)
    n0 = OPT.get('k3d', 60)
    A(*Hl.lines[:n0])
    A("s_waitcnt lgkmcnt(0)")
    srd(A, 20, 40, P_SZ, P_OFF); srd(A, 16, 4, X_SZ); srd(A, 24, 6, X_SZ)
    for half in range(2):
        A(f"buffer_load_dwordx4 {vr(P0+4*half,4)}, v5, s[20:23], s48 offen offset:{16*half}",
          f"buffer_load_dwordx4 {vr(P1+4*half,4)}, v5, s[20:23], s49 offen offset:{16*half}")
    for e in range(4):
        A(f"buffer_load_dwordx2 {vr(XR+2*e,2)}, v6, s[16:19], s{44+e} offen")
    A(*Hl.lines[n0:])
    SC = 2/(640*2048)
    A(f"s_mov_b32 s36, {fl(-1.4426950408889634)}", f"s_mov_b32 s38, {fl(1/SC)}", f"v_add_u32 v4, {ZIMG}, v3")
    stamp(A, 1)
    def gpart(half):
        G = Asm(); g = GU + 8*half; t = XU
        G(f"s_waitcnt vmcnt({6-2*half})")
        for q in range(4):
            G(f"v_lshlrev_b32 v{g+2*q}, 16, v{P0+4*half+q}", f"v_and_b32 v{g+2*q+1}, 0xffff0000, v{P0+4*half+q}",
              f"v_lshlrev_b32 v{t+2*q}, 16, v{P1+4*half+q}", f"v_and_b32 v{t+2*q+1}, 0xffff0000, v{P1+4*half+q}")
        for i in range(8): G(f"v_add_f32 v{g+i}, v{g+i}, v{t+i}")
        for i in range(8): G(f"v_mul_f32 v{t+i}, s36, v{g+i}")
        for i in range(8): G(f"v_exp_f32 v{t+i}, v{t+i}")
        for i in range(8): G(f"v_fma_f32 v{t+i}, v{t+i}, s38, s38")
        for i in range(8): G(f"v_rcp_f32 v{t+i}, v{t+i}")
        for i in range(8): G(f"v_mul_f32 v{g+i}, v{g+i}, v{t+i}")
        return G.lines
    ng = OPT.get('k3g', 1)
    for half in range(ng): A(*gpart(half))
    stamp(A, 2)
    A("s_barrier")
    stamp(A, 3)
    def zr(bb): return [f"ds_read_b128 {vr(ZF(bb,r),4)}, v4 offset:{(bb*4+r)*1024}" for r in range(4)]
    for bb in range(3): A(*zr(bb))
    for bb in range(6):
        A(f"s_waitcnt lgkmcnt({min(8,4*(5-bb))})")
        for r in range(4):
            A(f"{M} {vr(AC(r),4)}, {vr(ZF(bb,r),4)}, {vr(HF(bb),4)}, {'0' if bb==0 else vr(AC(r),4)}")
        if bb < 3: A(*zr(bb+3))
    for half in range(ng, 2): A(*gpart(half))
    A("s_waitcnt vmcnt(0)")
    for q in range(8):
        A(f"v_lshlrev_b32 v{XU+2*q}, 16, v{XR+q}", f"v_and_b32 v{XU+2*q+1}, 0xffff0000, v{XR+q}")
    for e in range(4):
        for r in range(4):
            A(f"v_fmac_f32 v{XU+4*e+r}, v{AC(r)+e}, v{GU+4*r+e}")
        for q in (2*e, 2*e+1):
            A(f"v_cvt_pk_bf16_f32 v{XR+q}, v{XU+2*q}, v{XU+2*q+1}")
        A(f"buffer_store_dwordx2 {vr(XR+2*e,2)}, v6, s[24:27], s{44+e} offen {OPT['sc_o']}")
    kend(A, 2, "Lk3_end")

def kd(name, vgpr, sgpr=100, accum=None):
    accum = accum or min(256, (vgpr+3)//4*4)
    return f""".amdhsa_kernel {name}
  .amdhsa_next_free_vgpr {vgpr}
  .amdhsa_next_free_sgpr {sgpr}
  .amdhsa_accum_offset {accum}
  .amdhsa_group_segment_fixed_size 0
  .amdhsa_kernarg_size 88
  .amdhsa_user_sgpr_count 2
  .amdhsa_user_sgpr_kernarg_segment_ptr 1
  .amdhsa_system_sgpr_workgroup_id_x 1
.end_amdhsa_kernel
"""

def build(kernels):
    hdr = open(f"cdna_kernels/{NAME}.s.ref").read().split("; Override")[0]
    out = hdr
    for (name, fn, grid, block, lds, vg) in kernels:
        out += f"; @launch kernel={name} grid=({grid},1,1) block=({block},1,1) lds={lds}\n"
    out += '.amdgcn_target "amdgcn-amd-amdhsa--gfx950"\n.text\n'
    seen = []
    for (name, fn, grid, block, lds, vg) in kernels:
        if name in seen: continue
        seen.append(name)
        A = Asm(); fn(A)
        out += f".globl {name}\n.p2align 8\n.type {name},@function\n" + A.text()
    out += '.section .rodata,"a"\n'
    seen = []
    for (name, fn, grid, block, lds, vg) in kernels:
        if name in seen: continue
        seen.append(name)
        out += ".p2align 6\n" + kd(name, vg)
    return out

KS = [("k1_kernel", k1, 256, 512, 133120, 256), ("k3_kernel", k3, 256, 704, 98304, 160)]

if __name__ == '__main__':
    DIAG = len(sys.argv) > 2 and sys.argv[2] == 'diag'
    for kv in sys.argv[3:]:
        k, v = kv.split('='); OPT[k] = eval(v)
    open(sys.argv[1] if len(sys.argv) > 1 else 'cur.s', 'w').write(build(KS))
```

```python
import sys, math
from asmlib import *

NAME = "recurrent_scan__spectral_gfnet__dense_activation_gelu__prompt"
H_OFF, H_SZ = 0, 2048*1728*2
T_OFF, T_SZ = 0x700000, 32*11*64*128
U_OFF, U_SZ = 0xA00000, 32*11*64*128
P_OFF, P_SZ = 0xD00000, 2*2048*640*2
FL_OFF, FL_SZ = 0x1200000, 33*8192
X_SZ = 2048*640*2
W1_SZ = 640*1728*2
WF_SZ = 2048*321*2
OPT = dict(rot1='xcd', rot2=False, pf=False, mpf=False, lpf=True, ppf=False, nw=2, mpf1=False, sc_h='sc1', sc_t='sc1', sc_u='sc1', sc_p='sc1', sc_o='', map1='4x7', D=2, cpf=True, hpf=False, pfst=None)

def vr(b, n): return f"v[{b}:{b+n-1}]"
def srd(A, d, base, size, off=0):
    if off:
        A(f"s_add_u32 s{d}, s{base}, 0x{off:x}", f"s_addc_u32 s{d+1}, s{base+1}, 0")
    else:
        A(f"s_mov_b32 s{d}, s{base}", f"s_mov_b32 s{d+1}, s{base+1}")
    A(f"s_mov_b32 s{d+2}, {size}", f"s_mov_b32 s{d+3}, 0x00020000")

DIAG = False
DIAG_OFF = 0x2000000
def stamp(A, k):
    if DIAG:
        A(f"s_memrealtime s[{60+2*k}:{61+2*k}]", "s_waitcnt lgkmcnt(0)")
def kstart(A):
    if DIAG:
        for k in range(60, 92): A(f"s_mov_b32 s{k}, 0")
        A("s_memrealtime s[60:61]", "s_memtime s[88:89]", "s_load_dwordx2 s[92:93], s[0:1], 80", "s_waitcnt lgkmcnt(0)")
def kend(A, kid, lab):
    A(f"{lab}:")
    if DIAG:
        A("s_memrealtime s[84:85]", "s_waitcnt vmcnt(0) lgkmcnt(0)", "s_memrealtime s[86:87]", "s_memtime s[90:91]", "s_waitcnt lgkmcnt(0)")
        A(f"s_add_u32 s92, s92, 0x{DIAG_OFF:x}", "s_addc_u32 s93, s93, 0", "s_mov_b32 s94, 0x1000000", "s_mov_b32 s95, 0x00020000")
        A(f"s_add_u32 s96, s2, {kid*256}", "s_lshl_b32 s96, s96, 4", "s_add_u32 s96, s96, s28", "s_lshl_b32 s96, s96, 6", "s_mov_b64 exec, -1", "v_mov_b32 v1, 0")
        for q in range(4):
            for j in range(4): A(f"v_mov_b32 v{4+j}, s{60+2*(4*q+j)}")
            A(f"buffer_store_dwordx4 v[4:7], v1, s[92:95], s96 offen offset:{16*q}", "s_nop 1")
    A("s_endpgm")
    A(f"{lab}_x:", "s_endpgm")

GA = -2*0.7978845608028654*1.4426950408889634
GB = GA*0.044715
ONES = "0x3f803f80"
M32 = "v_mfma_f32_32x32x16_bf16"
M16 = "v_mfma_f32_16x16x32_bf16"

def row_stats(A, sx, sxx, t0, t1, mean, sq):
    A(f"v_mul_f32 v{mean}, {fl(1/640)}, v{sx}",
      f"v_mul_f32 v{t0}, {fl(1/640)}, v{sxx}",
      f"v_fma_f32 v{t0}, -v{mean}, v{mean}, v{t0}",
      f"v_max_f32 v{t0}, 0, v{t0}",
      f"v_cvt_pk_bf16_f32 v{t0}, v{t0}, v{t0}",
      f"v_lshlrev_b32 v{t0}, 16, v{t0}",
      f"v_add_f32 v{t0}, {fl(1e-5)}, v{t0}",
      f"v_cvt_pk_bf16_f32 v{t0}, v{t0}, v{t0}",
      f"v_lshlrev_b32 v{t0}, 16, v{t0}",
      f"v_sqrt_f32 v{sq}, v{t0}")

RING = 4
def set_flag(nv, va, soff, off=0):
    return ["s_mov_b64 exec, 0xffff", f"buffer_store_dwordx2 {vr(nv,2)}, v{va}, s[52:55], {soff} offen offset:{off} sc1", "s_mov_b64 exec, -1"]
SPIN_MAX = 0x20000
_pl = [0]
def sync_srds(A):
    srd(A, 52, 6, FL_SZ, FL_OFF); srd(A, 56, 50, 256)
def chk_cleared(A, v, vz):
    _pl[0] += 1; n = _pl[0]
    A(f"s_mov_b32 s3, 0", f"Lcc{n}:", f"v_readfirstlane_b32 s49, v{v}", "s_add_u32 s3, s3, 1", "s_cmp_lg_u32 s49, 0", f"s_cbranch_scc1 Lcd{n}",
      f"s_cmp_ge_u32 s3, {SPIN_MAX}", f"s_cbranch_scc1 Lcd{n}",
      f"buffer_load_dwordx2 {vr(v,2)}, v{vz}, s[56:59], 0 offen sc1", "s_waitcnt vmcnt(0)", f"s_branch Lcc{n}", f"Lcd{n}:")
_cpf_n = [0]
def cpf(A, target, sel, v=(14,15,13), s=(56,58)):
    _cpf_n[0] += 1; lab = f"Lcpf{_cpf_n[0]}"
    a, t = s
    A(f"s_getpc_b64 s[{a}:{a+1}]", f"{lab}:", f"s_add_u32 s{a}, s{a}, {target}-{lab}", f"s_addc_u32 s{a+1}, s{a+1}, ({target}-{lab})>>32")
    A(f"v_lshlrev_b32 v{v[0]}, 7, v0")
    if sel: A(f"s_lshl_b32 s{t}, {sel}, 13", f"v_add_u32 v{v[0]}, s{t}, v{v[0]}")
    A(f"v_mov_b32 v{v[1]}, s{a+1}", f"v_add_co_u32 v{v[0]}, vcc, s{a}, v{v[0]}", f"v_addc_co_u32 v{v[1]}, vcc, 0, v{v[1]}, vcc",
      f"global_load_dword v{v[2]}, v[{v[0]}:{v[1]}], off")
ACC = lambda mt, nt: 16 + (mt*2+nt)*16
FB = lambda p, kk, w: 80 + p*64 + kk*16 + w*4

def loader_loop(A, NST, issue, extra=None, D=None):
    D = D or OPT['D']
    ops = []
    for st in range(2): ops += [st]*(issue(st) or 8)
    nxt = 2
    if extra and OPT.get('lpfs') == 2: ops += ['x']*extra()
    for st in range(NST):
        last = max(i for i, x in enumerate(ops) if x == st)
        A(f"s_waitcnt vmcnt({len(ops)-1-last})", "s_barrier")
        while nxt < NST and nxt <= (st+D if st >= 1 else 2):
            ops += [nxt]*(issue(nxt) or 8); nxt += 1
            if extra and nxt == OPT.get('lpfs', NST): ops += ['x']*extra()

def compute_loop(A, NST, reads, mfmas, tail, stampf=None, gap=None):
    A("s_barrier")
    A(*reads(0))
    A("s_waitcnt lgkmcnt(0)")
    if stampf: stampf(0)
    A("s_barrier")
    for st in range(1, NST):
        M = mfmas(st-1)
        G = gap(st-1) if gap else []
        n1 = len(G) - 30 if G else 0
        A(*spread(M[:10], spread(reads(st), G[:n1])))
        A(*spread(M[10:13], G[n1:n1+15]))
        A("s_waitcnt lgkmcnt(0)")
        if stampf: stampf(st)
        if st < NST-1: A("s_barrier")
        A(*spread(M[13:], G[n1+15:]))
        A(*tail(st-1))

def k1(A):
    A("k1_kernel:")
    A("s_cmp_ge_u32 s2, 256", "s_cbranch_scc1 Lk1_end_x")
    kstart(A)
    A("s_load_dwordx2 s[4:5], s[0:1], 0", "s_load_dwordx4 s[8:11], s[0:1], 32", "s_load_dwordx2 s[6:7], s[0:1], 80", "s_load_dwordx2 s[50:51], s[0:1], 72", "s_load_dwordx2 s[36:37], s[0:1], 56")
    A("v_lshrrev_b32 v1, 6, v0", "v_and_b32 v0, 63, v0", "v_readfirstlane_b32 s28, v1")
    A("s_and_b32 s31, s2, 7", "s_lshr_b32 s32, s2, 3")
    if OPT['cpf']:
        A("s_lshl_b32 s33, s32, 3", "s_add_u32 s33, s33, s28", "s_cmp_ge_u32 s33, 4", "s_cbranch_scc1 Lk1_nc")
        cpf(A, "k1_kernel", "s28", v=(14,15,253))
        A("Lk1_nc:")
    A("s_cmp_ge_u32 s32, 28", "s_cbranch_scc1 Lp1")
    A("s_lshr_b32 s29, s31, 1", "s_lshl_b32 s29, s29, 2", "s_and_b32 s33, s32, 3", "s_add_u32 s29, s29, s33")
    A("s_and_b32 s30, s31, 1", "s_mul_i32 s30, s30, 7", "s_lshr_b32 s33, s32, 2", "s_add_u32 s30, s30, s33")
    A("s_cmp_lt_u32 s28, 4", "s_cbranch_scc1 Lg1c")
    g1_loader(A)
    g2_loader(A)
    A("Lg1c:")
    g1_compute(A)
    g2_compute(A)
    A("Lp1:")
    p1(A)
    A("Lp2:")
    p2(A)
    kend(A, 0, "Lk1_end")

def g1_loader(A):
    NST = 10
    A("s_sub_u32 s33, s28, 4")
    A("v_lshrrev_b32 v1, 3, v0", "v_and_b32 v2, 7, v0", "v_lshrrev_b32 v3, 4, v0",
      "s_lshl_b32 s34, s29, 2", "s_add_u32 s34, s34, s33",
      "v_lshl_add_u32 v1, v1, 6, s34", "v_mul_u32_u24 v1, 1280, v1",
      "v_xor_b32 v8, v2, v3", "v_xor_b32 v9, 4, v8",
      "v_lshl_add_u32 v4, v8, 4, v1", "v_lshl_add_u32 v5, v9, 4, v1",
      f"v_add_u32 v5, {8*64*1280}, v5", f"v_add_u32 v6, {16*64*1280}, v4", f"v_add_u32 v7, {16*64*1280}, v5")
    A("v_and_b32 v2, 15, v0", "v_lshlrev_b32 v8, 2, v3", "v_xor_b32 v2, v2, v8",
      "s_lshl_b32 s34, s33, 4", "v_add_u32 v8, s34, v3", "v_mul_u32_u24 v8, 3456, v8",
      "s_lshl_b32 s34, s30, 8", "v_lshl_add_u32 v10, v2, 4, v8", "v_add_u32 v10, s34, v10")
    A("s_cmp_eq_u32 s30, 13", "s_cselect_b32 s34, 8, 16",
      "v_cmp_le_u32 vcc, s34, v2", "v_mov_b32 v8, 0x80000000", "s_nop 0", "v_cndmask_b32 v10, v10, v8, vcc")
    A("s_lshl_b32 s40, s33, 12")
    if OPT['rot1']:
        if OPT['rot1'] == 'xcd':
            A("s_lshr_b32 s43, s31, 1", "s_mul_i32 s43, s43, 5", "s_lshr_b32 s43, s43, 1", "s_and_b32 s34, s31, 1", "s_mul_i32 s34, s34, 5", "s_add_u32 s43, s43, s34")
        elif OPT['map1'] == '2x14':
            A("s_mul_i32 s43, s30, 47", "s_lshr_b32 s43, s43, 6", "s_and_b32 s34, s29, 1", "s_mul_i32 s34, s34, 5", "s_add_u32 s43, s43, s34")
        else:
            A("s_lshr_b32 s43, s32, 2", "s_mul_i32 s43, s43, 92", "s_and_b32 s34, s32, 3", "s_mul_i32 s34, s34, 160", "s_add_u32 s43, s43, s34", "s_lshr_b32 s43, s43, 6")
        A("s_cmp_ge_u32 s43, 10", "s_cselect_b32 s34, 10, 0", "s_sub_u32 s43, s43, s34")
    else:
        A("s_mov_b32 s43, 0")
    A("s_waitcnt lgkmcnt(0)")
    srd(A, 12, 4, X_SZ); srd(A, 16, 8, W1_SZ)
    def issue(st):
        slot = (st % RING) * 32768
        A("s_lshl_b32 s41, s43, 7", f"s_mul_i32 s42, s43, {64*3456}")
        for q in range(4):
            A(f"s_add_u32 m0, s40, {slot + q*1024}", "s_nop 0", f"buffer_load_dwordx4 v{4+q}, s[12:15], s41 offen lds")
            A(f"s_add_u32 m0, s40, {slot + 16384 + q*1024}", "s_nop 0", f"buffer_load_dwordx4 v10, s[16:19], s42 offen lds")
            if q < 3: A(f"s_add_u32 s42, s42, {4*3456}")
        A("s_add_u32 s43, s43, 1", "s_cmp_eq_u32 s43, 10", "s_cselect_b32 s43, 0, s43")
    def extra():
        A("s_load_dwordx4 s[44:47], s[0:1], 8", "s_load_dwordx2 s[48:49], s[0:1], 48",
          "s_lshl_b32 s34, s2, 1", "s_add_u32 s34, s34, s33", "s_cmp_lt_u32 s33, 2", "s_cselect_b32 s34, s34, s2", "s_lshl_b32 s34, s34, 13",
          "v_lshl_add_u32 v11, v0, 7, s34", "s_waitcnt lgkmcnt(0)",
          "s_cmp_eq_u32 s33, 2", "s_cselect_b32 s20, s44, s46", "s_cselect_b32 s21, s45, s47",
          "s_cmp_lt_u32 s33, 2", "s_cselect_b32 s20, s48, s20", "s_cselect_b32 s21, s49, s21", f"s_mov_b32 s22, {W1_SZ}", f"s_cselect_b32 s22, s22, {WF_SZ}",
          "s_mov_b32 s23, 0x00020000", "v_mov_b32 v12, 0")
        sync_srds(A)
        A("buffer_load_dwordx2 v[18:19], v12, s[56:59], 0 offen sc1")
        if OPT.get('ftouch'):
            A("s_lshl_b32 s34, s29, 1", "s_lshr_b32 s35, s33, 1", "s_add_u32 s34, s34, s35", "s_cmp_lt_u32 s32, 20", "s_cselect_b32 s34, s34, 32", "s_lshl_b32 s34, s34, 13",
              "v_lshl_add_u32 v13, v0, 7, s34", "buffer_load_dword v22, v13, s[52:55], 0 offen sc1")
        A("buffer_load_dword v16, v11, s[20:23], 0 offen")
        return 3 if OPT.get('ftouch') else 2
    loader_loop(A, NST, issue, extra, OPT.get('D1'))
    A("s_barrier")
    A("s_cmp_ge_u32 s32, 20", "s_cbranch_scc1 Lp2")

def g1_compute(A):
    NST = 10
    XA = lambda kk, nt: 208 + kk*2 + nt
    WA = lambda mt: 216 + mt
    SX, SXX, CS, B1 = 218, 219, 220, 221
    A("s_and_b32 s33, s28, 1", "s_lshr_b32 s34, s28, 1")
    A("v_and_b32 v1, 31, v0", "v_lshrrev_b32 v2, 5, v0")
    A("s_lshl_b32 s35, s30, 7", "s_lshl_b32 s40, s33, 6", "s_add_u32 s35, s35, s40", "s_lshl_b32 s40, s34, 5", "s_add_u32 s35, s35, s40",
      "v_add_lshl_u32 v9, v1, s35, 1", f"v_mov_b32 v{B1}, 0")
    A("s_lshl_b32 s35, s34, 13", "s_lshl_b32 s40, s33, 12", "s_add_u32 s35, s35, s40",
      "v_lshl_add_u32 v3, v1, 7, s35", "v_bfe_u32 v4, v0, 1, 3", "v_xor_b32 v4, v4, v2")
    for kk in range(4):
        A(f"v_xor_b32 v5, {2*kk}, v4", f"v_lshl_add_u32 v{XA(kk,0)}, v5, 4, v3", f"v_xor_b32 v{XA(kk,1)}, 0x1000, v{XA(kk,0)}")
    A("v_bfe_u32 v4, v0, 2, 2", "v_lshl_add_u32 v5, v2, 3, v4", "v_lshlrev_b32 v5, 8, v5",
      "v_bfe_u32 v6, v0, 4, 1", "v_lshl_add_u32 v5, v6, 5, v5", "v_and_b32 v6, 3, v0", "v_lshl_add_u32 v5, v6, 3, v5",
      "s_lshl_b32 s35, s33, 1", "s_add_u32 s35, s35, s34",
      "v_xor_b32 v6, s35, v4", f"v_lshl_add_u32 v{WA(0)}, v6, 6, v5", f"v_xor_b32 v{WA(1)}, 64, v{WA(0)}")
    A(f"v_mov_b32 v{SX}, 0", f"v_mov_b32 v{SXX}, 0", f"v_mov_b32 v{CS}, 0", f"s_mov_b32 s41, {ONES}")
    A("s_waitcnt lgkmcnt(0)")
    srd(A, 20, 10, 1728*2); srd(A, 24, 6, H_SZ, H_OFF)
    A(f"buffer_load_short_d16_hi v{B1}, v9, s[20:23], 0 offen")
    srd(A, 16, 36, 640*2)
    A("s_lshr_b32 s35, s32, 2", "s_lshl_b32 s35, s35, 8", "s_lshl_b32 s40, s33, 7", "s_add_u32 s35, s35, s40",
      "s_lshl_b32 s40, s31, 31", "s_or_b32 s35, s35, s40", "v_lshl_add_u32 v9, v1, 1, s35",
      "buffer_load_ushort v222, v9, s[16:19], 0 offen", "buffer_load_ushort v223, v9, s[16:19], 0 offen offset:64")
    A("s_lshl_b32 s35, s30, 1", "s_add_u32 s35, s35, s33")
    for mt in range(2):
        for nt in range(2):
            s = 44 + mt*2 + nt
            A("s_lshl_b32 s40, s29, 2", "s_lshl_b32 s42, s34, 1", "s_add_u32 s40, s40, s42", f"s_xor_b32 s42, s33, {nt}", "s_add_u32 s40, s40, s42",
              "s_mulk_i32 s40, 108", "s_lshl_b32 s42, s35, 2", "s_add_u32 s40, s40, s42", f"s_xor_b32 s42, s34, {mt}",
              "s_add_u32 s40, s40, s42", f"s_lshl_b32 s{s}, s40, 10")
    XCH = 131072
    A("s_lshl_b32 s42, s34, 9", "s_lshl_b32 s40, s33, 8", "s_add_u32 s42, s42, s40", f"s_add_u32 s42, s42, {XCH}", "v_lshl_add_u32 v7, v1, 3, s42",
      "s_lshl_b32 s42, s33, 9", "s_lshl_b32 s40, s34, 8", "s_add_u32 s42, s42, s40", f"s_add_u32 s42, s42, {XCH}", "v_lshl_add_u32 v8, v1, 3, s42",
      "v_lshlrev_b32 v9, 4, v0")
    XF0, WF0, XF1, WF1 = 224, 228, 232, 236
    for r in (XF0, WF0, XF1, WF1):
        A(f"v_mov_b32 v{r+2}, 0", f"v_mov_b32 v{r+3}, 0")
    sync_srds(A)
    A("s_lshl_b32 s48, s29, 1", "s_add_u32 s48, s48, s34", "s_lshl_b32 s48, s48, 13", "s_lshl_b32 s40, s35, 8", "s_add_u32 s48, s48, s40", "v_mov_b32 v10, 0", "v_lshlrev_b32 v11, 3, v0")
    if OPT.get('tlb'):
        srd(A, 36, 6, 0x1400000)
        A("v_lshlrev_b32 v12, 21, v0", "v_add_u32 v12, 0x1fff80, v12", "s_cmp_lg_u32 s28, 1", "s_cbranch_scc1 Lg1_ntl", "buffer_load_dword v253, v12, s[36:39], 0 offen", "Lg1_ntl:")
    A("s_lshl_b32 s40, s2, 3", "s_add_u32 s40, s40, s28", "s_cmp_lg_u32 s40, 1737", "s_cbranch_scc1 Lg1_ncl")
    A("s_memrealtime s[36:37]", "s_waitcnt lgkmcnt(0)", "s_or_b32 s38, s36, 1", "v_mov_b32 v12, s38", "v_mov_b32 v13, s37",
      "s_mov_b64 exec, 1", "buffer_store_dwordx2 v[12:13], v10, s[56:59], 0 offen sc1", "s_mov_b64 exec, -1", "Lg1_ncl:")
    base = [0]
    def reads(st):
        p = st & 1; slot = (st % RING) * 32768
        L = []
        nb = slot & ~0xffff
        if nb != base[0]:
            for r in range(208, 218): L.append(f"v_xor_b32 v{r}, 0x10000, v{r}")
            base[0] = nb
        so = slot - nb
        for kk in range(4):
            for mt in range(2):
                for jh in range(2):
                    L.append(f"ds_read_b64_tr_b16 {vr(FB(p,kk,2+mt)+2*jh,2)}, v{WA(mt)} offset:{so+16384+(16*kk+4*jh)*256}")
            for nt in range(2):
                L.append(f"ds_read_b128 {vr(FB(p,kk,nt),4)}, v{XA(kk,nt)} offset:{so}")
        return L
    def mfmas(st):
        p = st & 1; L = []
        for kk in range(4):
            for mt in range(2):
                for nt in range(2):
                    c = "0" if (st == 0 and kk == 0) else vr(ACC(mt,nt),16)
                    L.append(f"{M32} {vr(ACC(mt,nt),16)}, {vr(FB(p,kk,2+mt),4)}, {vr(FB(p,kk,nt),4)}, {c}")
        return L
    def dots(st):
        p = st & 1; L = []
        for kk in range(4):
            for j in range(4):
                if not OPT.get('nostat'): L.append(f"v_dot2c_f32_bf16 v{SX}, s41, v{FB(p,kk,0)+j}")
                if (not OPT.get('sqv') or st == NST-1) and not OPT.get('nostat'): L.append(f"v_dot2c_f32_bf16 v{SXX}, v{FB(p,kk,0)+j}, v{FB(p,kk,0)+j}")
                L.append(f"v_dot2c_f32_bf16 v{CS}, s41, v{FB(p,kk,2)+j}")
        if st == 6: L.append("buffer_load_dwordx2 v[254:255], v10, s[56:59], 0 offen sc1")
        return L
    def sqgap(st):
        p = st & 1; L = []
        for kk in range(4):
            for j in range(4):
                r = FB(p,kk,0)+j
                L += [f"v_lshlrev_b32 v3, 16, v{r}", f"v_and_b32 v4, s51, v{r}", "v_fmac_f32 v222, v3, v3", "v_fmac_f32 v223, v4, v4"]
        return L
    pass
    compute_loop(A, NST, reads, mfmas, dots, lambda st: stamp(A, 1) if st == 0 else None)
    A(*dots(NST-1))
    M = mfmas(NST-1)
    F = Asm()
    if OPT.get('sqv'): F(f"v_add_f32 v{SXX}, v{SXX}, v222", f"v_add_f32 v{SXX}, v{SXX}, v223")
    for r in (SX, SXX, CS):
        F(f"v_mov_b32 v3, v{r}", "s_nop 1", f"v_permlane32_swap_b32 v{r}, v3", f"v_add_f32 v{r}, v{r}, v3")
    row_stats(F, SX, SXX, 3, 4, 5, 6)
    F(f"v_cvt_pk_bf16_f32 v{XF0}, -v5, -v5", f"v_cvt_pk_bf16_f32 v{XF0+1}, -v5, v6")
    F(f"v_cvt_pk_bf16_f32 v3, v{CS}, v{CS}", "v_lshlrev_b32 v3, 16, v3", f"v_sub_f32 v3, v{CS}, v3",
      f"v_cvt_pk_bf16_f32 v{WF0}, v{CS}, v3", f"v_and_b32 v4, 0xffff0000, v{WF0}", "v_sub_f32 v3, v3, v4",
      "s_waitcnt vmcnt(0)", f"v_cvt_pk_bf16_f32 v{WF0+1}, v3, v{B1}")
    F(f"ds_write_b64 v7, {vr(XF0,2)}", f"ds_write_b64 v8, {vr(WF0,2)} offset:1024",
      "v_xor_b32 v7, 0x100, v7", "v_xor_b32 v8, 0x100, v8")
    A(*spread(M[:8], F.lines))
    A(M[8], M[9])
    A("s_waitcnt lgkmcnt(0)", "s_barrier")
    A(f"ds_read_b64 {vr(XF1,2)}, v7", f"ds_read_b64 {vr(WF1,2)}, v8 offset:1024")
    A(*M[10:14])
    A("v_cmp_eq_u32 vcc, 0, v2", "s_waitcnt lgkmcnt(0)")
    G = Asm()
    for r in (WF0, WF0+1, WF1, WF1+1):
        G(f"v_cndmask_b32 v{r}, 0, v{r}, vcc")
    for nt in range(2):
        c = 240 + 4*nt
        G(f"v_and_b32 v{c+2}, 0xffff0000, v{(XF0,XF1)[nt]+1}", f"v_rcp_f32 v3, v{c+2}",
          f"v_mul_f32 v{c}, {fl(GA)}, v3", "v_mul_f32 v4, v3, v3", "v_mul_f32 v4, v4, v3", f"v_mul_f32 v{c+1}, {fl(GB)}, v4")
    A(*spread(M[14:], G.lines[:8]))
    X = [f"{M32} {vr(ACC(mt,nt),16)}, {vr((WF0,WF1)[mt],4)}, {vr((XF0,XF1)[nt],4)}, {vr(ACC(mt,nt),16)}" for mt in range(2) for nt in range(2)]
    A(*spread(X, G.lines[8:]))
    stamp(A, 2)
    A("s_cmp_ge_u32 s35, 27", "s_cbranch_scc1 Lp2")
    A("s_waitcnt vmcnt(0)")
    chk_cleared(A, 254, 10)
    n = 0
    for half in range(2):
        for mt in range(2):
            for nt in range(2):
                c = 240 + 4*nt
                a0 = ACC(mt,nt) + 8*half
                t = 80 + (n % 2)*16; o = 112 + (n % 4)*4; n += 1
                P = range(4)
                for i in P: A(f"v_pk_mul_f32 {vr(t+2*i,2)}, {vr(a0+2*i,2)}, {vr(a0+2*i,2)}")
                for i in P: A(f"v_pk_fma_f32 {vr(t+2*i,2)}, {vr(t+2*i,2)}, {vr(c,2)}, {vr(c,2)} op_sel:[0,1,0] op_sel_hi:[1,1,0]")
                for i in P: A(f"v_pk_mul_f32 {vr(t+2*i,2)}, {vr(t+2*i,2)}, {vr(a0+2*i,2)}")
                for i in range(8): A(f"v_exp_f32 v{t+i}, v{t+i}")
                for i in P: A(f"v_pk_fma_f32 {vr(t+2*i,2)}, {vr(t+2*i,2)}, {vr(c+2,2)}, {vr(c+2,2)} op_sel:[0,0,0] op_sel_hi:[1,0,0]")
                for i in range(8): A(f"v_rcp_f32 v{t+i}, v{t+i}")
                for i in P: A(f"v_pk_mul_f32 {vr(t+2*i,2)}, {vr(t+2*i,2)}, {vr(a0+2*i,2)}")
                for i in P: A(f"v_cvt_pk_bf16_f32 v{o+i}, v{t+2*i}, v{t+2*i+1}")
                A(f"buffer_store_dwordx4 {vr(o,4)}, v9, s[24:27], s{44+mt*2+nt} offen offset:{half*2048} sc1")
                if n == OPT.get('efl', 7):
                    A(f"s_waitcnt vmcnt({n-4})", *set_flag(254, 11, "s48"),
                      *(["s_cmp_ge_u32 s32, 20", "s_cbranch_scc1 Lg1_ng", "s_barrier", "Lg1_ng:"] if OPT.get('gate', 'e') == 'e' else []))
    stamp(A, 3)
    A("s_cmp_lt_u32 s32, 20", "s_cbranch_scc1 Lg2c")
    A("s_waitcnt vmcnt(0)", *set_flag(254, 11, "s48", 128), "s_branch Lp2")
    A("Lg2c:")

def p1(A):
    BC = lambda u: 16 + 8*u
    BS = lambda u: 20 + 8*u
    TW = 56
    AF = lambda p, u: 64 + p*20 + 4*u
    AP = lambda p: 104 + 8*p
    AQ = lambda p: 108 + 8*p
    OUT = lambda par, i: 120 + par*8 + i
    TMP = 136
    YF = lambda o, pl: 152 + (o*2+pl)*4
    FP = lambda nt, pl: 184 + (nt*3+pl)*4
    TA = 208; PK = 240
    FPIMG, DCT, SCR = 81920, 94208, 98304
    A("s_sub_u32 s29, s32, 28", "s_lshl_b32 s29, s29, 3", "s_add_u32 s29, s29, s31", "s_lshl_b32 s29, s29, 1")
    A("s_lshr_b32 s46, s28, 2", "s_add_u32 s47, s46, s29", "s_and_b32 s48, s28, 3", "s_lshl_b32 s34, s48, 9", "s_add_u32 s47, s47, s34",
      "s_mul_i32 s33, s47, 1280", "s_mul_i32 s34, s28, 10240", "s_mov_b32 s35, 81920")
    A("v_and_b32 v1, 15, v0", "v_lshrrev_b32 v2, 4, v0", "v_lshlrev_b32 v4, 2, v2", "v_xor_b32 v3, v1, v4", "v_mul_u32_u24 v4, s35, v2", "v_lshl_add_u32 v4, v3, 4, v4")
    A("s_waitcnt lgkmcnt(0)")
    srd(A, 12, 4, X_SZ); srd(A, 36, 6, T_SZ, T_OFF)
    for i in range(10):
        A(f"s_add_u32 m0, s34, {1024*i}", f"s_add_u32 s40, s33, {(i//5)*4*81920+(i%5)*256}", "buffer_load_dwordx4 v4, s[12:15], s40 offen lds")
    sync_srds(A)
    if OPT['mpf1']:
        srd(A, 16, 8, W1_SZ)
        A("s_lshl_b32 s40, s29, 2", "s_add_u32 s40, s40, s28", f"s_mul_i32 s40, s40, {68*128}", "v_lshl_add_u32 v3, v0, 7, s40",
          "buffer_load_dword v150, v3, s[16:19], 0 offen", "buffer_load_dword v151, v3, s[16:19], 0 offen offset:512")
    A("s_and_b32 s41, s28, 1", "s_add_u32 s41, s41, 4", "s_bfe_u32 s42, s28, 0x10001",
      "s_cmp_lt_u32 s28, 4", "s_cselect_b32 s43, s28, s41", "s_cselect_b32 s44, 0, s42", "s_cselect_b32 s45, 1, 0")
    A("v_lshl_add_u32 v8, v2, 6, s47", "v_cvt_f32_u32 v8, v8", f"v_mul_f32 v8, {fl(1/2048)}, v8", "v_cvt_f32_u32 v9, v1", "v_add_f32 v10, 0x41800000, v9")
    for tt in range(2):
        if tt: A(f"v_add_f32 v8, {fl(256/2048)}, v8")
        for nt in range(2):
            A(f"v_mul_f32 v12, v8, v{9+nt}", f"v_cos_f32 v{208+nt*2+tt}, v12", f"v_sin_f32 v{212+nt*2+tt}, v12")
    A("v_lshrrev_b32 v8, 5, v0", "v_mul_u32_u24 v9, 5120, v8", "v_add_u32 v9, s34, v9", "v_bfe_u32 v8, v0, 3, 2", "v_lshl_add_u32 v9, v8, 8, v9",
      "v_lshl_add_u32 v224, v1, 4, v9", "v_xor_b32 v225, 128, v224")
    A("v_mov_b32 v228, 0", "v_mov_b32 v229, 0", "v_mov_b32 v230, 0", "v_mov_b32 v231, 0", f"s_mov_b32 s49, {ONES}")
    A("s_mul_i32 s41, s46, 6144", "s_lshl_b32 s42, s48, 2", "s_add_u32 s41, s41, s42", f"s_add_u32 s41, s41, {FPIMG}", "v_lshl_add_u32 v226, v0, 4, s41",
      "s_lshl_b32 s41, s46, 6", "s_add_u32 s41, s41, s42", f"s_add_u32 s41, s41, {DCT}", "v_lshl_add_u32 v227, v2, 4, s41")
    A("s_lshl_b32 s41, s43, 4", "v_add_u32 v3, s41, v1", "v_cvt_f32_u32 v4, v3", f"v_mul_f32 v5, {fl(1/160)}, v4",
      "v_cvt_f32_u32 v6, v2", "v_mul_f32 v6, 4.0, v6", "v_mul_f32 v6, v6, v5")
    A("v_and_b32 v14, 1, v0", "v_mov_b32 v15, 0x80008000", "v_mul_lo_u32 v14, v14, v15")
    for u in range(5):
        for jp in range(2):
            for e in range(2):
                A(f"v_fmamk_f32 v{8+e}, v5, {fl(float(16*u+2*jp+e))}, v6")
            A("v_cos_f32 v10, v8", "v_cos_f32 v11, v9", "v_sin_f32 v12, v8", "v_sin_f32 v13, v9",
              f"v_cvt_pk_bf16_f32 v{BC(u)+jp}, v10, v11", f"v_cvt_pk_bf16_f32 v{BS(u)+jp}, -v12, -v13",
              f"v_xor_b32 v{BC(u)+2+jp}, v14, v{BC(u)+jp}", f"v_xor_b32 v{BS(u)+2+jp}, v14, v{BS(u)+jp}")
    for r in (1,2,3):
        A(f"v_mul_f32 v8, {fl(r/640)}, v4", f"v_cos_f32 v{TW+2*r-2}, v8", f"v_sin_f32 v{TW+2*r-1}, v8")
    A("v_and_b32 v8, 3, v0", "v_bfe_u32 v9, v0, 3, 1", "v_lshl_add_u32 v9, v2, 1, v9", "v_lshlrev_b32 v10, 2, v8", "v_xor_b32 v9, v9, v10",
      "v_lshlrev_b32 v10, 8, v8", "v_lshl_add_u32 v10, v9, 4, v10", "v_bfe_u32 v9, v0, 2, 1", "v_lshl_add_u32 v14, v9, 3, v10",
      "s_mul_i32 s41, s44, 40960", "v_add_u32 v14, s41, v14", "v_xor_b32 v15, 128, v14")
    A("s_mul_i32 s41, s44, 6144", f"s_add_u32 s41, s41, {FPIMG}", "v_lshl_add_u32 v7, v0, 4, s41",
      "s_lshl_b32 s41, s44, 6", f"s_add_u32 s41, s41, {DCT}", "v_lshl_add_u32 v62, v2, 4, s41",
      "v_lshrrev_b32 v8, 3, v0", "s_mov_b32 s41, 90112", "v_mul_lo_u32 v63, v8, s41", "v_and_b32 v9, 7, v0", "v_lshl_add_u32 v63, v9, 4, v63",
      "s_lshl_b32 s41, s28, 12", f"s_add_u32 s41, s41, {SCR}",
      "v_xor_b32 v10, v8, v9", "v_lshl_add_u32 v3, v8, 7, s41", "v_lshl_add_u32 v3, v10, 4, v3",
      "v_xor_b32 v10, v2, v9", "v_lshl_add_u32 v5, v1, 7, s41", "v_lshl_add_u32 v5, v10, 4, v5", "v_xor_b32 v6, 64, v5")
    if OPT['ppf']:
        A("s_load_dwordx4 s[24:27], s[0:1], 8", "s_load_dwordx2 s[16:17], s[0:1], 48",
          "s_mul_i32 s40, s29, 6", "s_add_u32 s40, s40, s28", "s_cmp_lt_u32 s28, 4", "s_cselect_b32 s41, 0, 4", "s_add_u32 s40, s40, s41",
          "s_lshl_b32 s41, s40, 13", "v_lshl_add_u32 v146, v0, 7, s41",
          "s_cmp_lt_u32 s29, 32", f"s_cselect_b32 s41, 0, {192*8192}", "v_subrev_u32 v147, s41, v146", "s_waitcnt lgkmcnt(0)",
          "s_cselect_b32 s20, s24, s26", "s_cselect_b32 s21, s25, s27", f"s_mov_b32 s22, {WF_SZ}", "s_mov_b32 s23, 0x00020000",
          f"s_mov_b32 s18, {W1_SZ}", "s_mov_b32 s19, 0x00020000")
    stamp(A, 1)
    A(f"s_waitcnt vmcnt({2 if OPT['mpf1'] else 0})")
    stamp(A, 2)
    for I in range(5):
        for ii in range(2):
            A(f"ds_read_b128 {vr(64+(I*2+ii)*4,4)}, v{224+ii} offset:{1024*I}")
    for I in range(5):
        A(f"s_waitcnt lgkmcnt({2*(4-I)})")
        for j in range(8):
            r = 64 + I*8 + j
            A(f"v_dot2c_f32_bf16 v{228+(j&1)}, s49, v{r}", f"v_dot2c_f32_bf16 v{230+(j&1)}, v{r}, v{r}")
    A("v_add_f32 v228, v228, v229", "v_add_f32 v230, v230, v231")
    for qp in ("quad_perm:[1,0,3,2]", "quad_perm:[2,3,0,1]", "row_half_mirror"):
        A(f"v_add_f32_dpp v228, v228, v228 {qp} row_mask:0xf bank_mask:0xf", f"v_add_f32_dpp v230, v230, v230 {qp} row_mask:0xf bank_mask:0xf")
    row_stats(A, 228, 230, 8, 9, 10, 11)
    A("v_cvt_pk_bf16_f32 v11, v11, v10", "v_lshlrev_b32 v8, 5, v2", "v_and_b32 v10, 0xffff0000, v11", "v_lshlrev_b32 v11, 16, v11", "v_rcp_f32 v11, v11",
      f"v_fmac_f32 v228, {fl(-640.0)}, v10")
    for tt in range(2):
        A(f"ds_bpermute_b32 v{232+tt}, v8, v11 offset:{128*tt}", f"ds_bpermute_b32 v{234+tt}, v8, v228 offset:{128*tt}")
    A("s_waitcnt lgkmcnt(0)")
    for nt in range(2):
        c = 208+nt*2; sn = 212+nt*2; o = 236 + nt*3
        for tt in range(2):
            A(f"v_mul_f32 v{c+tt}, v{c+tt}, v{232+tt}", f"v_mul_f32 v{sn+tt}, v{sn+tt}, v{232+tt}")
        A(f"v_cvt_pk_bf16_f32 v{o}, v{c}, v{c+1}", f"v_cvt_pk_bf16_f32 v{o+1}, v{sn}, v{sn+1}", f"v_cvt_pk_bf16_f32 v{o+2}, -v{sn}, -v{sn+1}")
        for pl in range(3):
            A(f"ds_write_b32 v226, v{o+pl} offset:{(nt*3+pl)*1024}")
    A("v_cvt_pk_bf16_f32 v8, v234, v235", "ds_write_b32 v227, v8")
    A("s_waitcnt lgkmcnt(0)", "s_barrier")
    stamp(A, 3)
    A("Lp1_unit:")
    stamp(A, 4)
    def reads(t):
        return [f"ds_read_b64_tr_b16 {vr(AF(t&1,u)+2*jh,2)}, v{14+((u+5*jh)&1)} offset:{t*5120+((u+5*jh)>>1)*1024}" for u in range(5) for jh in range(2)]
    def mf(t):
        L = []
        for u in range(5):
            for (acc, B) in ((AP(t&1), BC(u)), (AQ(t&1), BS(u))):
                L.append(f"{M16} {vr(acc,4)}, {vr(AF(t&1,u),4)}, {vr(B,4)}, {'0' if u==0 else vr(acc,4)}")
        return L
    def bfly(t):
        P = AP(t&1); Q = AQ(t&1); O = lambda i: OUT(t&1, i)
        c1,s1,c2,s2,c3,s3 = range(TW, TW+6)
        pr,pi,qr,qi,ar,ai,ur,ui,wr_,wi_ = range(TMP, TMP+10)
        L = [f"v_fma_f32 v{pr}, v{P+2}, v{c2}, v{P}", f"v_fma_f32 v{pi}, v{Q+2}, v{c2}, v{Q}",
             f"v_mul_f32 v{ar}, v{P+1}, v{c1}", f"v_mul_f32 v{ai}, v{Q+1}, v{c1}",
             f"v_fmac_f32 v{pr}, v{Q+2}, v{s2}", f"v_fma_f32 v{pi}, -v{P+2}, v{s2}, v{pi}",
             f"v_fmac_f32 v{ar}, v{Q+1}, v{s1}", f"v_fma_f32 v{ai}, -v{P+1}, v{s1}, v{ai}",
             f"v_fma_f32 v{qr}, 2.0, v{P}, -v{pr}", f"v_fma_f32 v{qi}, 2.0, v{Q}, -v{pi}",
             f"v_fma_f32 v{ur}, v{P+3}, v{c3}, v{ar}", f"v_fma_f32 v{ui}, v{Q+3}, v{c3}, v{ai}",
             f"v_fmac_f32 v{ur}, v{Q+3}, v{s3}", f"v_fma_f32 v{ui}, -v{P+3}, v{s3}, v{ui}",
             f"v_fma_f32 v{wr_}, 2.0, v{ar}, -v{ur}", f"v_fma_f32 v{wi_}, 2.0, v{ai}, -v{ui}",
             f"v_add_f32 v{O(0)}, v{pr}, v{ur}", f"v_add_f32 v{O(1)}, v{pi}, v{ui}",
             f"v_sub_f32 v{O(6)}, v{pr}, v{ur}", f"v_sub_f32 v{O(7)}, v{ui}, v{pi}",
             f"v_sub_f32 v{O(2)}, v{qr}, v{wi_}", f"v_add_f32 v{O(3)}, v{qi}, v{wr_}",
             f"v_add_f32 v{O(4)}, v{qr}, v{wi_}", f"v_sub_f32 v{O(5)}, v{qi}, v{wr_}"]
        if t & 1:
            for i in (0,1,6,7,2,3,4,5):
                n = '-' if i == 3 else ''
                L.append(f"v_cvt_pk_bf16_f32 v{YF(i>>1,i&1)+(t>>1)}, {n}v{OUT(0,i)}, {n}v{OUT(1,i)}")
        return L
    A(*reads(0))
    for t in range(9):
        if t < 8:
            A("s_waitcnt lgkmcnt(0)")
            fill = (reads(t+1) if t < 7 else [f"ds_read_b128 {vr(FP(nt,pl),4)}, v7 offset:{(nt*3+pl)*1024}" for nt in range(2) for pl in range(3)])
            fill = fill + (bfly(t-1) if t >= 1 else [])
            if OPT['ppf'] and t == 0: fill.append("buffer_load_dword v12, v146, s[16:19], 0 offen")
            if OPT['ppf'] and t == 4: fill.append("buffer_load_dword v13, v147, s[20:23], 0 offen")
            A(*spread(mf(t), fill))
        else:
            B = bfly(7)
            A(*B[:25])
            A("s_cmp_lg_u32 s43, 0", "s_cbranch_scc1 Lp1_nodc", "s_mov_b32 exec_lo, 0x10001", "s_mov_b32 exec_hi, 0x10001",
              f"ds_read_b128 {vr(YF(0,0),4)}, v62", "s_mov_b64 exec, -1", "Lp1_nodc:")
            A(*B[25:])
    A("s_add_u32 s41, s29, s44", "s_lshl_b32 s41, s41, 7", "s_lshl_b32 s42, s43, 13", "s_add_u32 s41, s41, s42")
    A("v_mov_b32 v150, 0", "buffer_load_dwordx2 v[148:149], v150, s[56:59], 0 offen sc1")
    A("s_waitcnt lgkmcnt(0)")
    stamp(A, 5)
    def s1m(kinds, base):
        L = []; n = 0
        for tile, o in enumerate(kinds):
            for nt in range(2):
                re = base + n*8; im = re + 4; n += 1
                L += [f"{M16} {vr(re,4)}, {vr(YF(o,0),4)}, {vr(FP(nt,0),4)}, 0", f"{M16} {vr(im,4)}, {vr(YF(o,1),4)}, {vr(FP(nt,0),4)}, 0",
                      f"{M16} {vr(re,4)}, {vr(YF(o,1),4)}, {vr(FP(nt,1),4)}, {vr(re,4)}", f"{M16} {vr(im,4)}, {vr(YF(o,0),4)}, {vr(FP(nt,2),4)}, {vr(im,4)}"]
        return L
    def s1w(base):
        L = []; n = 0
        for tile in range(2):
            for nt in range(2):
                re = base + n*8; pk = PK + n*4; n += 1
                L += [f"v_cvt_pk_bf16_f32 v{pk+j}, v{re+2*j}, v{re+2*j+1}" for j in range(4)]
                L.append(f"ds_write_b128 v{5+tile}, {vr(pk,4)} offset:{nt*2048}")
        L += [f"ds_read_b128 {vr(base+4*q,4)}, v3 offset:{q*1024}" for q in range(4)]
        return L
    def s1s(base, poff):
        L = []
        for q in range(4):
            L += [f"s_add_u32 s42, s41, {q*8*90112+poff}", f"s_waitcnt lgkmcnt({3-q})",
                  f"buffer_store_dwordx4 {vr(base+4*q,4)}, v63, s[36:39], s42 offen {OPT['sc_t']}"]
        return L
    TB_ = 64
    A(*s1m((0,2), TA))
    A("s_cmp_eq_u32 s43, 5", "s_cbranch_scc1 Lp1_b5")
    A(*spread(s1m((1,3), TB_), s1w(TA)))
    A(*s1s(TA, 0))
    A(*s1w(TB_))
    A(*s1s(TB_, 6*8192))
    A("s_cmp_eq_u32 s45, 0", "s_cbranch_scc1 Lp1_done")
    A("s_mov_b32 s45, 0", "s_mov_b32 s44, 1", "v_add_u32 v14, 40960, v14", "v_add_u32 v15, 40960, v15", "v_add_u32 v7, 6144, v7", "v_add_u32 v62, 64, v62", "v_add_u32 v146, 0x8000, v146", "v_add_u32 v147, 0x8000, v147", "s_branch Lp1_unit")
    A("Lp1_b5:", "s_nop 7")
    A(*s1w(TA))
    A(*s1s(TA, 0))
    A("Lp1_done:")
    stamp(A, 6)
    A("s_lshl_b32 s41, s29, 6", f"s_add_u32 s41, s41, {32*8192}", "v_lshlrev_b32 v151, 3, v0", "s_waitcnt vmcnt(0)")
    chk_cleared(A, 148, 150)
    A("v_mov_b32 v18, v148", "v_mov_b32 v19, v149", "v_mov_b32 v12, 0")
    A("s_barrier", "s_cmp_lg_u32 s28, 0", "s_cbranch_scc1 Lp2")
    A(*set_flag(148, 151, "s41"))

HK = [(4*c, 4*c+2) for c in range(7)] + [(4*c+1, 4*c+3) for c in range(6)] + [(25, None)]
def hk_mask(sp, upto):
    m = 0
    for j, (a, b) in enumerate(HK[:upto]):
        if upto == 14 and j < 6: continue
        for hs, x in enumerate((a, b)):
            if x is None: continue
            x = x + 28*sp
            if sp and j == 6 and hs == 1: x = 53
            if sp and j == 13: x = 27
            m |= 1 << x
    return m
def set_mask(A, upto):
    m0, m1 = hk_mask(0, upto), hk_mask(1, upto)
    A("s_cmp_eq_u32 s50, 0", f"s_mov_b32 s36, 0x{m0 & 0xffffffff:x}", f"s_mov_b32 s37, 0x{m0 >> 32:x}",
      f"s_cselect_b32 s36, s36, 0x{m1 & 0xffffffff:x}", f"s_cselect_b32 s37, s37, 0x{m1 >> 32:x}")
def poll_h(A, upto, first):
    _pl[0] += 1; n = _pl[0]
    if first: set_mask(A, upto)
    A("s_mov_b32 s3, 0")
    if not first: A(f"s_branch Lpc{n}")
    A(f"Lpl{n}:", "s_mov_b64 exec, s[36:37]", "buffer_load_dwordx2 v[20:21], v13, s[52:55], 0 offen sc1", "s_mov_b64 exec, -1", "s_waitcnt vmcnt(0)", f"Lpc{n}:",
      "v_cmp_eq_u64 vcc, v[20:21], v[18:19]", "s_add_u32 s3, s3, 1", "s_nop 0", "s_and_b64 s[38:39], vcc, s[36:37]", "s_cmp_eq_u64 s[38:39], s[36:37]", f"s_cbranch_scc1 Lpd{n}",
      f"s_sleep {OPT.get('slp',4)}", f"s_cmp_lt_u32 s3, {SPIN_MAX}", f"s_cbranch_scc1 Lpl{n}", f"Lpd{n}:")

def g2_loader(A):
    NST = 14
    A("s_lshr_b32 s30, s32, 2", "s_and_b32 s50, s31, 1")
    A("s_lshl_b32 s34, s29, 2", "s_add_u32 s34, s34, s33", f"s_mul_i32 s34, s34, {108*1024}", "v_lshl_add_u32 v4, v0, 4, s34")
    A("v_lshrrev_b32 v3, 4, v0", "v_and_b32 v2, 15, v0", "v_lshlrev_b32 v5, 2, v3", "v_xor_b32 v2, v2, v5",
      "s_and_b32 s34, s33, 1", "s_lshl_b32 s34, s34, 5", "v_add_u32 v8, s34, v3", "v_mul_u32_u24 v8, 1280, v8",
      "s_lshl_b32 s34, s30, 8", "v_lshl_add_u32 v10, v2, 4, v8", "v_add_u32 v10, s34, v10")
    A("s_lshl_b32 s34, s29, 1", "s_lshr_b32 s35, s33, 1", "s_add_u32 s34, s34, s35", "s_lshl_b32 s34, s34, 13", "v_lshl_add_u32 v13, v0, 7, s34")
    A(f"s_mul_i32 s44, s50, {28*2048}", f"s_mul_i32 s45, s50, {14*81920}", f"s_mul_i32 s34, s35, 81920", "s_add_u32 s45, s45, s34")
    srd(A, 12, 6, H_SZ, H_OFF); srd(A, 16, 48, W1_SZ)
    def issue_w(st):
        slot = (st % RING) * 32768; a, b = HK[st]
        A(f"s_add_u32 s42, s45, {(a>>1)*81920+(a&1)*20480}")
        if st == 6:
            A("s_and_b32 s34, s50, s35", "s_cmp_eq_u32 s34, 1", f"s_cselect_b32 s42, {26*81920+20480}, s42")
        if st == 13:
            A("s_cmp_eq_u32 s50, 0", f"s_mov_b32 s42, {12*81920+20480}", f"s_cselect_b32 s42, s42, {13*81920+20480}", "s_cmp_eq_u32 s35, 0", "s_cselect_b32 s18, s18, 0")
        for q in range(4):
            A(f"s_add_u32 m0, s40, {slot + 16384 + q*1024}", "s_nop 0", f"buffer_load_dwordx4 v10, s[16:19], s42 offen lds")
            if q < 3: A(f"s_add_u32 s42, s42, {4*1280}")
        return 4
    def issue_h(st):
        slot = (st % RING) * 32768; a, b = HK[st]
        A(f"s_add_u32 s41, s44, {a*2048}", f"s_add_u32 m0, s40, {slot}")
        if st == 13: A("s_cmp_eq_u32 s50, 0", f"s_cselect_b32 s41, s41, {27*2048}")
        else: A(f"s_add_u32 s43, s44, {b*2048-2048}")
        if st == 6: A("s_cmp_eq_u32 s50, 0", f"s_cselect_b32 s43, s43, {53*2048-2048}")
        for q in range(2): A(f"buffer_load_dwordx4 v4, s[12:15], s41 offen offset:{q*1024} sc1 lds")
        if st == 13: return 2
        for q in range(2,4): A(f"buffer_load_dwordx4 v4, s[12:15], s43 offen offset:{q*1024} sc1 lds")
        return 4
    NW = OPT.get('nw', 2)
    if OPT.get('wlate'):
        A("s_waitcnt vmcnt(1)" if 'lpfs' not in OPT else "s_waitcnt vmcnt(0)")
        chk_cleared(A, 18, 12)
        set_mask(A, 6)
        A("s_barrier")
        stamp(A, 4)
        if OPT.get('gslp'): A(f"s_sleep {OPT['gslp']}")
        A("s_mov_b64 exec, s[36:37]", "buffer_load_dwordx2 v[20:21], v13, s[52:55], 0 offen sc1", "s_mov_b64 exec, -1")
        for st in range(NW): issue_w(st)
        A(f"s_waitcnt vmcnt({4*NW})")
        poll_h(A, 6, False)
    else:
        for st in range(NW): issue_w(st)
        A(f"s_waitcnt vmcnt({4*NW})")
        chk_cleared(A, 18, 12)
        A("s_barrier")
        stamp(A, 4)
        poll_h(A, 6, True)
    stamp(A, 5)
    ops = []
    D = OPT.get('D2') or 2
    for st in range(NW): ops += [st]*issue_h(st)
    nxt = NW
    for st in range(NST):
        last = max(i for i, x in enumerate(ops) if x == st)
        A(f"s_waitcnt vmcnt({len(ops)-1-last})", "s_barrier")
        if st == 1:
            set_mask(A, 14)
            A("s_mov_b64 exec, s[36:37]", "buffer_load_dwordx2 v[20:21], v13, s[52:55], 0 offen sc1", "s_mov_b64 exec, -1"); ops.append('p')
        while nxt < NST and nxt <= st + max(D, NW-1 if st == 0 else 0) :
            if nxt == 6:
                A(f"s_waitcnt vmcnt({len(ops)-1-ops.index('p')})")
                poll_h(A, 14, False)
            ops += [nxt]*issue_h(nxt); ops += [nxt]*issue_w(nxt); nxt += 1
    if OPT['cpf']:
        A("s_lshl_b32 s34, s32, 2", "s_add_u32 s34, s34, s33", "s_cmp_ge_u32 s34, 1", "s_cbranch_scc1 Lk1_end")
        A("s_mov_b64 exec, 0x7ffffff")
        cpf(A, "k3_kernel", None, s=(36,38))
    A("s_branch Lk1_end")

def g2_compute(A):
    NST = 14
    XA, WA = 208, lambda mt: 209 + mt
    A("s_lshr_b32 s30, s32, 2", "s_and_b32 s50, s31, 1")
    A("s_lshl_b32 s35, s34, 13", f"v_lshl_add_u32 v{XA}, v0, 4, s35")
    A("v_bfe_u32 v4, v0, 2, 2", "v_lshl_add_u32 v5, v2, 2, v4", "v_lshlrev_b32 v5, 8, v5",
      "v_bfe_u32 v6, v0, 4, 1", "v_lshl_add_u32 v5, v6, 5, v5", "v_and_b32 v6, 3, v0", "v_lshl_add_u32 v5, v6, 3, v5",
      "s_lshl_b32 s35, s33, 1", "v_xor_b32 v6, s35, v4", f"v_lshl_add_u32 v{WA(0)}, v6, 6, v5", f"v_xor_b32 v{WA(1)}, 64, v{WA(0)}")
    srd(A, 24, 6, P_SZ, P_OFF)
    A("v_mov_b32 v240, v222", "v_mov_b32 v244, v223")
    for r in (241,242,243,245,246,247,249,250,251): A(f"v_mov_b32 v{r}, 0")
    A("v_cmp_gt_u32 vcc, 32, v0", "v_mov_b32 v5, 0x3f80", "s_nop 0", "v_cndmask_b32 v248, 0, v5, vcc")
    A("v_lshlrev_b32 v5, 9, v2", "v_lshl_add_u32 v7, v1, 3, v5",
      "s_lshl_b32 s40, s29, 2", "s_lshl_b32 s42, s34, 1", "s_add_u32 s40, s40, s42", "s_mul_i32 s40, s40, 10",
      "s_lshl_b32 s42, s30, 1", "s_add_u32 s40, s40, s42", "s_add_u32 s40, s40, s33", "s_lshl_b32 s40, s40, 12",
      f"s_mul_i32 s42, s50, {P_SZ//2}", "s_add_u32 s44, s40, s42", "s_add_u32 s45, s44, 40960")
    for mt in range(2):
        for nt in range(2):
            A(f"{M32} {vr(ACC(mt,nt),16)}, v[248:251], {vr(240+4*mt,4)}, 0")
    if OPT.get('gate') == 'm': A("s_barrier")
    A("s_waitcnt vmcnt(0)", *set_flag(254, 11, "s48", 128))
    if OPT.get('gate') == 'l': A("s_barrier")
    base = [0]
    def reads(st):
        p = st & 1; slot = (st % RING) * 32768
        L = []
        nb = slot & ~0xffff
        if nb != base[0]:
            for r in range(208, 211): L.append(f"v_xor_b32 v{r}, 0x10000, v{r}")
            base[0] = nb
        so = slot - nb
        for kk in range(4 if st < 13 else 2):
            for mt in range(2):
                for jh in range(2):
                    L.append(f"ds_read_b64_tr_b16 {vr(FB(p,kk,2+mt)+2*jh,2)}, v{WA(mt)} offset:{so+16384+(16*kk+8*jh)*256}")
            for nt in range(2):
                L.append(f"ds_read_b128 {vr(FB(p,kk,nt),4)}, v{XA} offset:{so+nt*4096+kk*1024}")
        return L
    mm = lambda p, kk, mt, nt: f"{M32} {vr(ACC(mt,nt),16)}, {vr(FB(p,kk,nt),4)}, {vr(FB(p,kk,2+mt),4)}, {vr(ACC(mt,nt),16)}"
    def mfmas(st):
        return [mm(st&1, kk, mt, nt) for kk in range(4) for mt in range(2) for nt in range(2)]
    compute_loop(A, NST, reads, mfmas, lambda st: [], lambda st: stamp(A, {0:4,1:5,7:6,13:7}[st]) if st in (0,1,7,13) else None)
    p = (NST-1) & 1
    def outp(mt, nt):
        L = []
        for a in range(4):
            a0 = ACC(mt,nt) + 4*a; o = FB(1-p,0,0) + ((mt*2+nt)*4+a)*2
            L += [f"v_cvt_pk_bf16_f32 v{o}, v{a0}, v{a0+1}", f"v_cvt_pk_bf16_f32 v{o+1}, v{a0+2}, v{a0+3}",
                  f"buffer_store_dwordx2 {vr(o,2)}, v7, s[24:27], s{44+nt} offen offset:{a*1024+mt*256} {OPT['sc_p']}"]
        return L
    tiles = [(mt,nt) for mt in range(2) for nt in range(2)]
    for i, (mt,nt) in enumerate(tiles):
        A(*[mm(p, kk, mt, nt) for kk in range(2)])
        if i >= 2: A(*outp(*tiles[i-2]))
    A(*outp(*tiles[2])); A(*outp(*tiles[3]))
    A("s_branch Lk1_end")

def hgen(Hl, HF, tvar):
    Hl(f"s_lshl_b32 s33, s{tvar}, 4", "v_add_u32 v14, s33, v1", "v_cvt_f32_u32 v15, v14", f"v_mul_f32 v15, {fl(1/160)}, v15", "v_mul_f32 v4, v7, v15")
    for bb in range(5):
        for ep in range(2):
            for e in range(2):
                Hl(f"v_fmamk_f32 v{8+e}, v15, {fl(float(16*bb+2*ep+e))}, v4")
            Hl("v_cos_f32 v10, v8", "v_cos_f32 v11, v9", "v_sin_f32 v12, v8", "v_sin_f32 v13, v9")
            if bb == 0 and ep == 0:
                Hl("v_cmp_gt_u32 vcc, 16, v0", "v_mov_b32 v8, 0.5", "s_nop 0", "v_cndmask_b32 v10, v10, v8, vcc")
            Hl(f"v_cvt_pk_bf16_f32 v{HF(bb)+ep}, v10, v11", f"v_cvt_pk_bf16_f32 v{HF(bb)+2+ep}, -v12, -v13")
    Hl("v_and_b32 v8, 1, v14", "v_lshlrev_b32 v8, 15, v8", "v_or_b32 v8, 0x3f80, v8", f"v_cndmask_b32 v{HF(5)}, 0, v8, vcc",
       f"v_mov_b32 v{HF(5)+1}, 0", f"v_mov_b32 v{HF(5)+2}, 0", f"v_mov_b32 v{HF(5)+3}, 0")

def p2(A):
    C = lambda t, ks: vr(16 + (t*2+ks)*4, 4)
    S = lambda t, ks: vr(48 + (t*2+ks)*4, 4)
    WV = lambda tau, pl, t, e: 80 + tau*32 + pl*16 + t*4 + e
    TB = lambda tau, ks, pl: 144 + tau*24 + (ks*3+pl)*4
    XA = lambda tau, pl, t: 192 + tau*32 + pl*16 + t*4
    PK = 80
    WIMG = 32768
    stamp(A, 8)
    A("s_load_dwordx4 s[8:11], s[0:1], 8", "s_load_dwordx2 s[48:49], s[0:1], 48")
    A("s_sub_u32 s33, s32, 20", "s_mul_i32 s34, s33, 43", "s_lshr_b32 s34, s34, 7", "s_mul_i32 s35, s34, 3", "s_sub_u32 s45, s33, s35",
      "s_lshl_b32 s29, s31, 2", "s_add_u32 s29, s29, s34", "s_and_b32 s46, s28, 3")
    A("s_mov_b32 s34, 0x9a543210", "s_mov_b32 s35, 0x8876", "s_lshl_b32 s33, s45, 2", "s_add_u32 s33, s33, s46", "s_lshl_b32 s33, s33, 2",
      "s_lshr_b64 s[34:35], s[34:35], s33", "s_and_b32 s30, s34, 15")
    A("s_lshl_b32 s47, s45, 6", "s_cmp_eq_u32 s45, 2", "s_cselect_b32 s47, 113, s47")
    A("s_mul_i32 s43, s29, 90112", "s_lshl_b32 s34, s30, 13", "s_add_u32 s43, s43, s34", "s_lshr_b32 s34, s28, 2", "s_lshl_b32 s34, s34, 12",
      "s_add_u32 s43, s43, s34", "s_lshl_b32 s35, s46, 13", "s_add_u32 s44, s35, s34")
    A("v_lshrrev_b32 v4, 3, v0", "v_lshl_add_u32 v4, v4, 5, s29", "v_mul_u32_u24 v4, 642, v4", "v_and_b32 v5, 7, v0", "v_lshl_add_u32 v4, v5, 4, v4",
      "s_lshl_b32 s34, s47, 1", "s_bfe_u32 s36, s28, 0x10001", "s_mulk_i32 s36, 320", "s_add_u32 s34, s34, s36",
      "s_and_b32 s36, s28, 1", f"s_mul_i32 s36, s36, {32*20544}", "s_add_u32 s34, s34, s36", "v_add_u32 v4, s34, v4")
    A("s_waitcnt lgkmcnt(0)")
    srd(A, 12, 6, T_SZ, T_OFF); srd(A, 24, 6, U_SZ, U_OFF)
    A("s_cmp_lt_u32 s28, 4", "s_cselect_b32 s16, s8, s10", "s_cselect_b32 s17, s9, s11", f"s_mov_b32 s18, {WF_SZ}", "s_mov_b32 s19, 0x00020000")
    A("s_barrier")
    A("s_lshl_b32 s36, s28, 12")
    def wdma():
        for q in range(4):
            A(f"s_add_u32 m0, s36, {WIMG+1024*q}", f"s_mov_b32 s34, {q*8*20544}", "buffer_load_dwordx4 v4, s[16:19], s34 offen lds")
    A("s_cmp_lg_u32 s28, 4", "s_cbranch_scc1 Lp2_np")
    A("s_waitcnt vmcnt(0)", "v_mov_b32 v12, 0")
    chk_cleared(A, 18, 12)
    A("v_and_b32 v13, 31, v0", "v_lshlrev_b32 v13, 7, v13", f"s_mov_b32 s37, {32*8192}", "s_mov_b32 s3, 0",
      "buffer_load_dwordx2 v[20:21], v13, s[52:55], s37 offen sc1")
    wdma()
    A("s_waitcnt vmcnt(4)", "s_branch Lp2_pc", "Lp2_poll:",
      "buffer_load_dwordx2 v[20:21], v13, s[52:55], s37 offen sc1", "s_waitcnt vmcnt(0)", "Lp2_pc:",
      "v_cmp_eq_u64 vcc, v[20:21], v[18:19]", "s_add_u32 s3, s3, 1", "s_nop 0",
      "s_cmp_eq_u64 vcc, -1", "s_cbranch_scc1 Lp2_hb", "s_sleep 4", f"s_cmp_lt_u32 s3, {SPIN_MAX}", "s_cbranch_scc1 Lp2_poll", "s_branch Lp2_hb")
    A("Lp2_np:")
    wdma()
    A("v_and_b32 v1, 15, v0", "v_lshrrev_b32 v2, 4, v0", "v_cvt_f32_u32 v7, v2", "v_mul_f32 v7, 4.0, v7")
    def tdma():
        A("s_mov_b32 m0, s44", "v_lshlrev_b32 v8, 4, v0")
        for i in range(4): A(f"buffer_load_dwordx4 v8, s[12:15], s43 offen offset:{1024*i} sc1 lds")
    A("s_cmp_lt_u32 s28, 4", "s_cbranch_scc1 Lp2_main")
    A("Lp2_hb:", "s_barrier")
    tdma()
    A("s_waitcnt vmcnt(0)", "s_barrier", "s_branch Lk1_end")
    A("Lp2_main:")
    A("v_cvt_f32_u32 v5, v1", f"v_mul_f32 v5, {fl(1/64)}, v5", "v_add_f32 v6, 0x3e800000, v5",
      "v_and_b32 v14, 1, v0", "v_mov_b32 v15, 0x80008000", "v_mul_lo_u32 v14, v14, v15", "v_xor_b32 v15, 0x80000000, v14")
    for t in range(2):
        for jp in range(4):
            for e in range(2):
                j = 2*jp+e
                A(f"v_add_f32 v{8+e}, {fl(float(16*(j>>2)+(j&3)))}, v7", f"v_mul_f32 v{8+e}, v{8+e}, v{5+t}")
            c0 = 16+t*8+jp; s0 = 48+t*8+jp
            A("v_cos_f32 v10, v8", "v_cos_f32 v11, v9", "v_sin_f32 v12, v8", "v_sin_f32 v13, v9",
              f"v_cvt_pk_bf16_f32 v{c0}, v10, v11", f"v_cvt_pk_bf16_f32 v{s0}, v12, v13")
            for b in (c0, s0):
                A(f"v_xor_b32 v{b+4}, v14, v{b}", f"v_xor_b32 v{b+16}, 0x80000000, v{b}", f"v_xor_b32 v{b+20}, v15, v{b}")
    A("v_lshrrev_b32 v5, 2, v0", "v_lshlrev_b32 v5, 7, v5", "v_and_b32 v7, 3, v0", "v_lshl_add_u32 v5, v7, 4, v5", "v_add_u32 v5, s35, v5",
      "v_lshrrev_b32 v8, 3, v0", "s_mov_b32 s33, 45056", "v_mul_lo_u32 v6, v8, s33", "v_and_b32 v9, 7, v0", "v_lshl_add_u32 v6, v9, 4, v6",
      "s_lshl_b32 s36, s30, 12", "s_lshl_b32 s33, s29, 7", "s_add_u32 s36, s36, s33",
      "v_xor_b32 v10, v8, v9", "v_lshl_add_u32 v3, v8, 7, s35", "v_lshl_add_u32 v3, v10, 4, v3",
      "v_xor_b32 v10, v2, v9", "v_lshl_add_u32 v7, v1, 7, s35", "v_lshl_add_u32 v7, v10, 4, v7")
    A("s_lshl_b32 s33, s30, 4", "v_add_u32 v8, s33, v1", "v_sub_u32 v9, 256, v8",
      "s_cmp_lt_u32 s30, 6", "s_cselect_b64 vcc, -1, 0", "v_cndmask_b32 v8, v9, v8, vcc", "v_subrev_u32 v8, s47, v8",
      "v_lshlrev_b32 v4, 9, v2", "v_lshl_add_u32 v4, v8, 1, v4")
    stamp(A, 9)
    A("s_barrier")
    stamp(A, 10)
    tdma()
    A("s_waitcnt vmcnt(0)", "s_barrier")
    stamp(A, 11)
    A("s_lshl_b32 s33, s45, 2", "s_add_u32 s33, s33, s46", "s_cmp_eq_u32 s33, 11", "s_cbranch_scc1 Lk1_end")
    def treads(tau):
        return [f"ds_read_b64_tr_b16 {vr(TB(tau,ks,pl)+2*jh,2)}, v5 offset:{(32*ks+16*jh)*128+tau*64+pl*8}" for ks in range(2) for pl in range(2) for jh in range(2)]
    def wreads(tau):
        return [f"ds_read_u16_d16_hi v{WV(tau,pl,t,e)}, v4 offset:{WIMG+(pl*2+tau)*8192+(16*t+e)*128}" for t in range(4) for e in range(4) for pl in range(2)]
    M = M16
    def st2(tau):
        L = []
        for t in range(4):
            re = vr(XA(tau,0,t),4); im = vr(XA(tau,1,t),4)
            for ks in range(2):
                tr = vr(TB(tau,ks,0),4); ti = vr(TB(tau,ks,1),4)
                L += [f"{M} {re}, {C(t,ks)}, {tr}, {'0' if ks==0 else re}", f"{M} {im}, {C(t,ks)}, {ti}, {'0' if ks==0 else im}",
                      f"{M} {re}, {S(t,ks)}, {ti}, {re}", f"{M} {im}, {S(t,ks)}, {vr(TB(tau,ks,2),4)}, {im}"]
        return L
    def wmul(tau):
        L = []
        for t in range(4):
            for e in range(4):
                xr = XA(tau,0,t)+e; xi = XA(tau,1,t)+e; wr = WV(tau,0,t,e); wi = WV(tau,1,t,e)
                L += [f"v_mul_f32 v{8+e}, v{xr}, v{wr}", f"v_mul_f32 v{12+e}, v{xr}, v{wi}",
                      f"v_fma_f32 v{8+e}, -v{xi}, v{wi}, v{8+e}", f"v_fmac_f32 v{12+e}, v{xi}, v{wr}"]
            for pl in range(2):
                d = TB(tau, t>>1, pl) + (t&1)*2
                L += [f"v_cvt_pk_bf16_f32 v{d}, v{8+4*pl}, v{9+4*pl}", f"v_cvt_pk_bf16_f32 v{d+1}, v{10+4*pl}, v{11+4*pl}"]
            d = TB(tau, t>>1, 2) + (t&1)*2
            L += [f"v_cvt_pk_bf16_f32 v{d}, -v12, -v13", f"v_cvt_pk_bf16_f32 v{d+1}, -v14, -v15"]
        return L
    def negT(tau):
        return [f"v_xor_b32 v{TB(tau,ks,2)+j}, 0x80008000, v{TB(tau,ks,0)+j}" for ks in range(2) for j in range(4)]
    def st3(tau):
        L = []
        for nt in range(4):
            re = vr(XA(tau,0,nt),4); im = vr(XA(tau,1,nt),4)
            for ks in range(2):
                xr = vr(TB(tau,ks,0),4); xi = vr(TB(tau,ks,1),4)
                L += [f"{M} {re}, {xr}, {C(nt,ks)}, {'0' if ks==0 else re}", f"{M} {im}, {xi}, {C(nt,ks)}, {'0' if ks==0 else im}",
                      f"{M} {re}, {vr(TB(tau,ks,2),4)}, {S(nt,ks)}, {re}", f"{M} {im}, {xr}, {S(nt,ks)}, {im}"]
        return L
    def outp(tau):
        L = []
        for nt in range(4):
            pk = PK + 4*nt + 16*tau; re = XA(tau,0,nt); im = XA(tau,1,nt)
            L += [f"v_cvt_pk_bf16_f32 v{pk}, v{re}, v{re+1}", f"v_cvt_pk_bf16_f32 v{pk+1}, v{re+2}, v{re+3}",
                  f"v_cvt_pk_bf16_f32 v{pk+2}, v{im}, v{im+1}", f"v_cvt_pk_bf16_f32 v{pk+3}, v{im+2}, v{im+3}",
                  f"ds_write_b128 v7, {vr(pk,4)} offset:{nt*2048}"]
        return L
    A(*treads(0)); A(*treads(1))
    A("s_waitcnt lgkmcnt(8)")
    A(*negT(0))
    A(*st2(0)[:8])
    A("s_waitcnt lgkmcnt(0)")
    A(*spread(st2(0)[8:], negT(1) + wreads(0)))
    A("s_waitcnt lgkmcnt(0)")
    A(*spread(st2(1), interleave(wmul(0), wreads(1), 2)))
    A("s_waitcnt lgkmcnt(0)")
    A(*spread(st3(0), wmul(1)))
    S3 = st3(1); O1 = outp(1)
    A(*spread(S3[:16], outp(0) + ["v_xor_b32 v7, 64, v7"]))
    rb = lambda nt: [f"ds_read_b128 {vr(112+8*nt+4*q,4)}, v3 offset:{nt*2048+q*1024}" for q in range(2)]
    stq = lambda nt: [x for q in range(2) for x in (f"s_add_u32 s37, s36, {(16*nt+8*q)*45056}", f"buffer_store_dwordx4 {vr(112+8*nt+4*q,4)}, v6, s[24:27], s37 offen {OPT['sc_u']}")]
    A(*spread(S3[16:24], O1[0:5] + rb(0)))
    A(*spread(S3[24:32], O1[5:10] + rb(1)))
    A(*O1[10:15]); A(*rb(2))
    A("s_waitcnt lgkmcnt(6)"); A(*stq(0))
    A(*O1[15:20]); A(*rb(3))
    A("s_waitcnt lgkmcnt(6)"); A(*stq(1))
    A("s_waitcnt lgkmcnt(3)"); A(*stq(2))
    A("s_waitcnt lgkmcnt(0)"); A(*stq(3))

def k3(A):
    A("k3_kernel:")
    A("s_cmp_ge_u32 s2, 256", "s_cbranch_scc1 Lk3_end_x")
    kstart(A)
    A("s_load_dwordx2 s[4:5], s[0:1], 0", "s_load_dwordx2 s[6:7], s[0:1], 64", "s_load_dwordx2 s[40:41], s[0:1], 80")
    A("v_lshrrev_b32 v1, 6, v0", "v_and_b32 v0, 63, v0", "v_readfirstlane_b32 s28, v1")
    A("s_and_b32 s31, s2, 7", "s_lshr_b32 s32, s2, 3")
    A("s_lshl_b32 s29, s31, 3", "s_lshr_b32 s33, s32, 2", "s_add_u32 s29, s29, s33", "s_and_b32 s30, s32, 1")
    A("v_lshlrev_b32 v3, 4, v0", "v_and_b32 v1, 15, v0", "v_lshrrev_b32 v2, 4, v0")
    A("s_lshl_b32 s33, s30, 10", "s_add_u32 s33, s33, s29", "v_lshl_add_u32 v5, v1, 6, s33")
    ZIMG = 49152
    M = M16
    A("s_cmp_ge_u32 s28, 6", "s_cbranch_scc1 Lk3_back")
    A("s_setprio 1")
    GC, GS, GN = 16, 20, 24
    TWc = lambda r: 28 + (r-1)*8
    TWs = lambda r: 32 + (r-1)*8
    UA = lambda ty, tau, pl: 52 + ((ty*2+tau)*2+pl)*4
    VA = lambda ty, tau, pl: 84 + ((ty*2+tau)*2+pl)*4
    TT = 116
    A("s_mul_i32 s33, s29, 45056", "s_lshl_b32 s34, s28, 12", "s_add_u32 s33, s33, s34", f"s_add_u32 s34, s33, {6*4096}",
      "s_lshl_b32 s35, s28, 13", "s_mov_b32 m0, s35",
      "s_cmp_eq_u32 s28, 5", "s_cselect_b32 s36, 0x80000000, 0", "v_or_b32 v4, s36, v3")
    A("s_waitcnt lgkmcnt(0)")
    srd(A, 12, 40, U_SZ, U_OFF)
    for i in range(4): A(f"buffer_load_dwordx4 v3, s[12:15], s33 offen offset:{1024*i} lds")
    A("s_add_u32 m0, s35, 4096", "s_nop 0")
    for i in range(4): A(f"buffer_load_dwordx4 v4, s[12:15], s34 offen offset:{1024*i} lds")
    SC = 2/(640*2048)
    A("v_cvt_f32_u32 v5, v5", f"v_mul_f32 v5, {fl(1/2048)}, v5", "v_cvt_f32_u32 v7, v2", "v_mul_f32 v7, 4.0, v7", f"s_mov_b32 s37, {fl(SC)}", "v_mul_f32 v6, v7, v5")
    for jp in range(4):
        for e in range(2):
            j = 2*jp+e
            A(f"v_fmamk_f32 v{8+e}, v5, {fl(float(16*(j>>2)+(j&3)))}, v6")
        A("v_cos_f32 v10, v8", "v_cos_f32 v11, v9", "v_sin_f32 v12, v8", "v_sin_f32 v13, v9")
        A(f"v_cvt_pk_bf16_f32 v{GC+jp}, v10, v11", f"v_cvt_pk_bf16_f32 v{GS+jp}, v12, v13", f"v_cvt_pk_bf16_f32 v{GN+jp}, -v12, -v13")
    A("v_lshrrev_b32 v5, 2, v0", "v_lshlrev_b32 v5, 7, v5", "v_and_b32 v8, 3, v0", "v_lshl_add_u32 v5, v8, 4, v5", "v_add_u32 v5, s35, v5")
    A("s_lshl_b32 s33, s28, 4", "v_cvt_f32_u32 v8, s33", "v_add_f32 v8, v8, v7")
    for e in range(4):
        A(f"v_add_f32 v9, {fl(float(e))}, v8")
        for r in (1,2,3):
            A(f"v_mul_f32 v10, {fl(r/640)}, v9", f"v_cos_f32 v{TWc(r)+e}, v10", f"v_sin_f32 v{TWs(r)+e}, v10")
    A("s_lshl_b32 s33, s28, 12", f"s_add_u32 s33, s33, {ZIMG}", "v_add_u32 v6, s33, v3")
    stamp(A, 1)
    A("s_waitcnt vmcnt(0)")
    stamp(A, 2)
    order = [(0,0),(1,1),(0,1),(1,0)]
    for ty, tau in order:
        for pl in range(2):
            for jh in range(2):
                A(f"ds_read_b64_tr_b16 {vr(UA(ty,tau,pl)+2*jh,2)}, v5 offset:{ty*4096+jh*2048+tau*64+pl*8}")
    for n, (ty, tau) in enumerate(order):
        re = vr(VA(ty,tau,0),4); im = vr(VA(ty,tau,1),4); ur = vr(UA(ty,tau,0),4); ui = vr(UA(ty,tau,1),4)
        A(f"s_waitcnt lgkmcnt({12-4*n})")
        A(f"{M} {re}, {ur}, {vr(GC,4)}, 0", f"{M} {im}, {ui}, {vr(GC,4)}, 0", f"{M} {re}, {ui}, {vr(GN,4)}, {re}", f"{M} {im}, {ur}, {vr(GS,4)}, {im}")
    def pk(op, d, a, b, c=None, nb=False, na=False):
        s = f"v_pk_{op}_f32 {vr(d,2)}, {vr(a,2)}, {vr(b,2)}" + (f", {vr(c,2)}" if c is not None else "")
        n = [int(na), int(nb)] + ([0] if c is not None else [])
        if na or nb: s += f" neg_lo:[{','.join(map(str,n))}] neg_hi:[{','.join(map(str,n))}]"
        return s
    Ar,Ai,Br,Bi,Dr,Di,Cr,Ci = [VA(ty,tau,pl) for ty in range(2) for tau in range(2) for pl in range(2)]
    pr,pi,qr,qi,ur,ui,wr,wi = [TT+4*i for i in range(8)]
    Z = lambda r, pl: 52 + (r*2+pl)*4
    for e in (0,2):
        A(pk('add',pr+e,Ar+e,Cr+e), pk('add',pi+e,Ai+e,Ci+e,nb=True), pk('add',qr+e,Ar+e,Cr+e,nb=True), pk('add',qi+e,Ai+e,Ci+e))
    for e in (0,2):
        A(pk('add',ur+e,Br+e,Dr+e), pk('add',ui+e,Bi+e,Di+e,nb=True), pk('add',wr+e,Br+e,Dr+e,nb=True), pk('add',wi+e,Bi+e,Di+e))
    b = lambda r, pl: 84 + (r*2+pl)*4
    for e in (0,2):
        A(pk('add',Z(0,0)+e,pr+e,ur+e), pk('add',Z(0,1)+e,pi+e,ui+e), pk('add',b(2,0)+e,pr+e,ur+e,nb=True), pk('add',b(2,1)+e,pi+e,ui+e,nb=True),
          pk('add',b(1,0)+e,qr+e,wi+e,nb=True), pk('add',b(1,1)+e,qi+e,wr+e), pk('add',b(3,0)+e,qr+e,wi+e), pk('add',b(3,1)+e,qi+e,wr+e,nb=True))
    for r in range(4):
        if r:
            for e in (0,2):
                A(pk('mul',Z(r,0)+e,b(r,0)+e,TWc(r)+e), pk('mul',Z(r,1)+e,b(r,0)+e,TWs(r)+e))
            for e in (0,2):
                A(pk('fma',Z(r,0)+e,b(r,1)+e,TWs(r)+e,Z(r,0)+e,na=True), pk('fma',Z(r,1)+e,b(r,1)+e,TWc(r)+e,Z(r,1)+e))
        o = TT + 4*r
        for j in range(4): A(f"v_cvt_pk_bf16_f32 v{o+j}, v{Z(r,0)+2*j}, v{Z(r,0)+2*j+1}")
        A(f"ds_write_b128 v6, {vr(o,4)} offset:{r*1024}")
    A("s_waitcnt lgkmcnt(0)")
    stamp(A, 3)
    A("s_barrier", "s_branch Lk3_end")
    A("Lk3_back:")
    HF = lambda bb: 16 + 4*bb
    XR, P0, P1 = 40, 48, 56
    GU = 64
    XU = 80
    ZF = lambda bb, r: 96 + ((bb % 3)*4+r)*4
    AC = lambda r: 144 + 4*r
    A("s_bfe_u32 s33, s32, 0x10001", "s_mul_i32 s33, s33, 5", "s_add_u32 s42, s33, s28", "s_sub_u32 s42, s42, 6")
    A("s_lshl_b32 s33, s30, 10", "s_add_u32 s33, s33, s29", "v_lshl_add_u32 v6, v2, 8, s33", "v_mul_u32_u24 v6, 1280, v6", "v_lshl_add_u32 v6, v1, 3, v6",
      "s_lshl_b32 s44, s42, 7", "s_add_u32 s45, s44, 81920", "s_add_u32 s46, s45, 81920", "s_add_u32 s47, s46, 81920", "v_lshlrev_b32 v5, 5, v0")
    A("s_mul_i32 s48, s29, 10", "s_add_u32 s48, s48, s42", "s_lshl_b32 s48, s48, 12", "s_lshl_b32 s34, s30, 11", "s_add_u32 s48, s48, s34",
      f"s_add_u32 s49, s48, {P_SZ//2}", "v_cvt_f32_u32 v7, v2", "v_mul_f32 v7, 4.0, v7")
    Hl = Asm(); hgen(Hl, HF, 42)
    n0 = OPT.get('k3d', 60)
    A(*Hl.lines[:n0])
    A("s_waitcnt lgkmcnt(0)")
    srd(A, 20, 40, P_SZ, P_OFF); srd(A, 16, 4, X_SZ); srd(A, 24, 6, X_SZ)
    for half in range(2):
        A(f"buffer_load_dwordx4 {vr(P0+4*half,4)}, v5, s[20:23], s48 offen offset:{16*half}",
          f"buffer_load_dwordx4 {vr(P1+4*half,4)}, v5, s[20:23], s49 offen offset:{16*half}")
    for e in range(4):
        A(f"buffer_load_dwordx2 {vr(XR+2*e,2)}, v6, s[16:19], s{44+e} offen")
    A(*Hl.lines[n0:])
    SC = 2/(640*2048)
    A(f"s_mov_b32 s36, {fl(-1.4426950408889634)}", f"s_mov_b32 s38, {fl(1/SC)}", f"v_add_u32 v4, {ZIMG}, v3")
    stamp(A, 1)
    def gpart(half):
        G = Asm(); g = GU + 8*half; t = XU
        G(f"s_waitcnt vmcnt({6-2*half})")
        for q in range(4):
            G(f"v_lshlrev_b32 v{g+2*q}, 16, v{P0+4*half+q}", f"v_and_b32 v{g+2*q+1}, 0xffff0000, v{P0+4*half+q}",
              f"v_lshlrev_b32 v{t+2*q}, 16, v{P1+4*half+q}", f"v_and_b32 v{t+2*q+1}, 0xffff0000, v{P1+4*half+q}")
        for i in range(8): G(f"v_add_f32 v{g+i}, v{g+i}, v{t+i}")
        for i in range(8): G(f"v_mul_f32 v{t+i}, s36, v{g+i}")
        for i in range(8): G(f"v_exp_f32 v{t+i}, v{t+i}")
        for i in range(8): G(f"v_fma_f32 v{t+i}, v{t+i}, s38, s38")
        for i in range(8): G(f"v_rcp_f32 v{t+i}, v{t+i}")
        for i in range(8): G(f"v_mul_f32 v{g+i}, v{g+i}, v{t+i}")
        return G.lines
    ng = OPT.get('k3g', 1)
    for half in range(ng): A(*gpart(half))
    stamp(A, 2)
    A("s_barrier")
    stamp(A, 3)
    def zr(bb): return [f"ds_read_b128 {vr(ZF(bb,r),4)}, v4 offset:{(bb*4+r)*1024}" for r in range(4)]
    for bb in range(3): A(*zr(bb))
    for bb in range(6):
        A(f"s_waitcnt lgkmcnt({min(8,4*(5-bb))})")
        for r in range(4):
            A(f"{M} {vr(AC(r),4)}, {vr(ZF(bb,r),4)}, {vr(HF(bb),4)}, {'0' if bb==0 else vr(AC(r),4)}")
        if bb < 3: A(*zr(bb+3))
    for half in range(ng, 2): A(*gpart(half))
    A("s_waitcnt vmcnt(0)")
    for q in range(8):
        A(f"v_lshlrev_b32 v{XU+2*q}, 16, v{XR+q}", f"v_and_b32 v{XU+2*q+1}, 0xffff0000, v{XR+q}")
    for e in range(4):
        for r in range(4):
            A(f"v_fmac_f32 v{XU+4*e+r}, v{AC(r)+e}, v{GU+4*r+e}")
        for q in (2*e, 2*e+1):
            A(f"v_cvt_pk_bf16_f32 v{XR+q}, v{XU+2*q}, v{XU+2*q+1}")
        A(f"buffer_store_dwordx2 {vr(XR+2*e,2)}, v6, s[24:27], s{44+e} offen {OPT['sc_o']}")
    kend(A, 2, "Lk3_end")

def kd(name, vgpr, sgpr=100, accum=None):
    accum = accum or min(256, (vgpr+3)//4*4)
    return f""".amdhsa_kernel {name}
  .amdhsa_next_free_vgpr {vgpr}
  .amdhsa_next_free_sgpr {sgpr}
  .amdhsa_accum_offset {accum}
  .amdhsa_group_segment_fixed_size 0
  .amdhsa_kernarg_size 88
  .amdhsa_user_sgpr_count 2
  .amdhsa_user_sgpr_kernarg_segment_ptr 1
  .amdhsa_system_sgpr_workgroup_id_x 1
.end_amdhsa_kernel
"""

def build(kernels):
    hdr = open(f"cdna_kernels/{NAME}.s.ref").read().split("; Override")[0]
    out = hdr
    for (name, fn, grid, block, lds, vg) in kernels:
        out += f"; @launch kernel={name} grid=({grid},1,1) block=({block},1,1) lds={lds}\n"
    out += '.amdgcn_target "amdgcn-amd-amdhsa--gfx950"\n.text\n'
    seen = []
    for (name, fn, grid, block, lds, vg) in kernels:
        if name in seen: continue
        seen.append(name)
        A = Asm(); fn(A)
        out += f".globl {name}\n.p2align 8\n.type {name},@function\n" + A.text()
    out += '.section .rodata,"a"\n'
    seen = []
    for (name, fn, grid, block, lds, vg) in kernels:
        if name in seen: continue
        seen.append(name)
        out += ".p2align 6\n" + kd(name, vg)
    return out

KS = [("k1_kernel", k1, 256, 512, 133120, 256), ("k3_kernel", k3, 256, 704, 98304, 160)]

if __name__ == '__main__':
    DIAG = len(sys.argv) > 2 and sys.argv[2] == 'diag'
    for kv in sys.argv[3:]:
        k, v = kv.split('='); OPT[k] = eval(v)
    open(sys.argv[1] if len(sys.argv) > 1 else 'cur.s', 'w').write(build(KS))
```

```python
import sys, math
from asmlib import *

NAME = "recurrent_scan__spectral_gfnet__dense_activation_gelu__prompt"
H_OFF, H_SZ = 0, 2048*1728*2
T_OFF, T_SZ = 0x700000, 32*11*64*128
U_OFF, U_SZ = 0xA00000, 32*11*64*128
P_OFF, P_SZ = 0xD00000, 2*2048*640*2
FL_OFF, FL_SZ = 0x1200000, 33*8192
X_SZ = 2048*640*2
W1_SZ = 640*1728*2
WF_SZ = 2048*321*2
OPT = dict(rot1='xcd', rot2=False, pf=False, mpf=False, lpf=True, ppf=False, nw=2, mpf1=False, sc_h='sc1', sc_t='sc1', sc_u='sc1', sc_p='sc1', sc_o='', map1='4x7', D=2, cpf=True, hpf=False, pfst=None)

def vr(b, n): return f"v[{b}:{b+n-1}]"
def srd(A, d, base, size, off=0):
    if off:
        A(f"s_add_u32 s{d}, s{base}, 0x{off:x}", f"s_addc_u32 s{d+1}, s{base+1}, 0")
    else:
        A(f"s_mov_b32 s{d}, s{base}", f"s_mov_b32 s{d+1}, s{base+1}")
    A(f"s_mov_b32 s{d+2}, {size}", f"s_mov_b32 s{d+3}, 0x00020000")

DIAG = False
DIAG_OFF = 0x2000000
def stamp(A, k):
    if DIAG:
        A(f"s_memrealtime s[{60+2*k}:{61+2*k}]", "s_waitcnt lgkmcnt(0)")
def kstart(A):
    if DIAG:
        for k in range(60, 92): A(f"s_mov_b32 s{k}, 0")
        A("s_memrealtime s[60:61]", "s_memtime s[88:89]", "s_load_dwordx2 s[92:93], s[0:1], 80", "s_waitcnt lgkmcnt(0)")
def kend(A, kid, lab):
    A(f"{lab}:")
    if DIAG:
        A("s_memrealtime s[84:85]", "s_waitcnt vmcnt(0) lgkmcnt(0)", "s_memrealtime s[86:87]", "s_memtime s[90:91]", "s_waitcnt lgkmcnt(0)")
        A(f"s_add_u32 s92, s92, 0x{DIAG_OFF:x}", "s_addc_u32 s93, s93, 0", "s_mov_b32 s94, 0x1000000", "s_mov_b32 s95, 0x00020000")
        A(f"s_add_u32 s96, s2, {kid*256}", "s_lshl_b32 s96, s96, 4", "s_add_u32 s96, s96, s28", "s_lshl_b32 s96, s96, 6", "s_mov_b64 exec, -1", "v_mov_b32 v1, 0")
        for q in range(4):
            for j in range(4): A(f"v_mov_b32 v{4+j}, s{60+2*(4*q+j)}")
            A(f"buffer_store_dwordx4 v[4:7], v1, s[92:95], s96 offen offset:{16*q}", "s_nop 1")
    A("s_endpgm")
    A(f"{lab}_x:", "s_endpgm")

GA = -2*0.7978845608028654*1.4426950408889634
GB = GA*0.044715
ONES = "0x3f803f80"
M32 = "v_mfma_f32_32x32x16_bf16"
M16 = "v_mfma_f32_16x16x32_bf16"

def row_stats(A, sx, sxx, t0, t1, mean, sq):
    A(f"v_mul_f32 v{mean}, {fl(1/640)}, v{sx}",
      f"v_mul_f32 v{t0}, {fl(1/640)}, v{sxx}",
      f"v_fma_f32 v{t0}, -v{mean}, v{mean}, v{t0}",
      f"v_max_f32 v{t0}, 0, v{t0}",
      f"v_cvt_pk_bf16_f32 v{t0}, v{t0}, v{t0}",
      f"v_lshlrev_b32 v{t0}, 16, v{t0}",
      f"v_add_f32 v{t0}, {fl(1e-5)}, v{t0}",
      f"v_cvt_pk_bf16_f32 v{t0}, v{t0}, v{t0}",
      f"v_lshlrev_b32 v{t0}, 16, v{t0}",
      f"v_sqrt_f32 v{sq}, v{t0}")

RING = 4
def pollop(so):
    m = OPT.get('pm', 'ld')
    if m == 'ld': return [f"buffer_load_dwordx2 v[20:21], v13, s[52:55], {so} offen sc1"]
    if m == 'sys': return [f"buffer_load_dwordx2 v[20:21], v13, s[52:55], {so} offen sc0 sc1"]
    if m == 'nt': return [f"buffer_load_dwordx2 v[20:21], v13, s[52:55], {so} offen sc1 nt"]
    return ["v_mov_b32 v20, 0", "v_mov_b32 v21, 0", f"buffer_atomic_add_x2 v[20:21], v13, s[52:55], {so} offen sc0 sc1"]
def set_flag(nv, va, soff, off=0):
    return ["s_mov_b64 exec, 0xffff", f"buffer_store_dwordx2 {vr(nv,2)}, v{va}, s[52:55], {soff} offen offset:{off} sc1", "s_mov_b64 exec, -1"]
SPIN_MAX = 0x20000
_pl = [0]
def sync_srds(A):
    srd(A, 52, 6, FL_SZ, FL_OFF); srd(A, 56, 50, 256)
def chk_cleared(A, v, vz):
    _pl[0] += 1; n = _pl[0]
    A(f"s_mov_b32 s3, 0", f"Lcc{n}:", f"v_readfirstlane_b32 s49, v{v}", "s_add_u32 s3, s3, 1", "s_cmp_lg_u32 s49, 0", f"s_cbranch_scc1 Lcd{n}",
      f"s_cmp_ge_u32 s3, {SPIN_MAX}", f"s_cbranch_scc1 Lcd{n}",
      f"buffer_load_dwordx2 {vr(v,2)}, v{vz}, s[56:59], 0 offen sc1", "s_waitcnt vmcnt(0)", f"s_branch Lcc{n}", f"Lcd{n}:")
_cpf_n = [0]
def cpf(A, target, sel, v=(14,15,13), s=(56,58)):
    _cpf_n[0] += 1; lab = f"Lcpf{_cpf_n[0]}"
    a, t = s
    A(f"s_getpc_b64 s[{a}:{a+1}]", f"{lab}:", f"s_add_u32 s{a}, s{a}, {target}-{lab}", f"s_addc_u32 s{a+1}, s{a+1}, ({target}-{lab})>>32")
    A(f"v_lshlrev_b32 v{v[0]}, 7, v0")
    if sel: A(f"s_lshl_b32 s{t}, {sel}, 13", f"v_add_u32 v{v[0]}, s{t}, v{v[0]}")
    A(f"v_mov_b32 v{v[1]}, s{a+1}", f"v_add_co_u32 v{v[0]}, vcc, s{a}, v{v[0]}", f"v_addc_co_u32 v{v[1]}, vcc, 0, v{v[1]}, vcc",
      f"global_load_dword v{v[2]}, v[{v[0]}:{v[1]}], off")
ACC = lambda mt, nt: 16 + (mt*2+nt)*16
FB = lambda p, kk, w: 80 + p*64 + kk*16 + w*4

def loader_loop(A, NST, issue, extra=None, D=None):
    D = D or OPT['D']
    ops = []
    for st in range(2): ops += [st]*(issue(st) or 8)
    nxt = 2
    if extra and OPT.get('lpfs') == 2: ops += ['x']*extra()
    for st in range(NST):
        last = max(i for i, x in enumerate(ops) if x == st)
        A(f"s_waitcnt vmcnt({len(ops)-1-last})", "s_barrier")
        while nxt < NST and nxt <= (st+D if st >= 1 else 2):
            ops += [nxt]*(issue(nxt) or 8); nxt += 1
            if extra and nxt == OPT.get('lpfs', NST): ops += ['x']*extra()

def compute_loop(A, NST, reads, mfmas, tail, stampf=None, gap=None):
    A("s_barrier")
    A(*reads(0))
    A("s_waitcnt lgkmcnt(0)")
    if stampf: stampf(0)
    A("s_barrier")
    for st in range(1, NST):
        M = mfmas(st-1)
        G = gap(st-1) if gap else []
        n1 = len(G) - 30 if G else 0
        A(*spread(M[:10], spread(reads(st), G[:n1])))
        A(*spread(M[10:13], G[n1:n1+15]))
        A("s_waitcnt lgkmcnt(0)")
        if stampf: stampf(st)
        if st < NST-1: A("s_barrier")
        A(*spread(M[13:], G[n1+15:]))
        A(*tail(st-1))

def k1(A):
    A("k1_kernel:")
    A("s_cmp_ge_u32 s2, 256", "s_cbranch_scc1 Lk1_end_x")
    kstart(A)
    A("s_load_dwordx2 s[4:5], s[0:1], 0", "s_load_dwordx4 s[8:11], s[0:1], 32", "s_load_dwordx2 s[6:7], s[0:1], 80", "s_load_dwordx2 s[50:51], s[0:1], 72", "s_load_dwordx2 s[36:37], s[0:1], 56")
    A("v_lshrrev_b32 v1, 6, v0", "v_and_b32 v0, 63, v0", "v_readfirstlane_b32 s28, v1")
    A("s_and_b32 s31, s2, 7", "s_lshr_b32 s32, s2, 3")
    if OPT['cpf']:
        A("s_lshl_b32 s33, s32, 3", "s_add_u32 s33, s33, s28", "s_cmp_ge_u32 s33, 4", "s_cbranch_scc1 Lk1_nc")
        cpf(A, "k1_kernel", "s28", v=(14,15,253))
        A("Lk1_nc:")
    A("s_cmp_ge_u32 s32, 28", "s_cbranch_scc1 Lp1")
    A("s_lshr_b32 s29, s31, 1", "s_lshl_b32 s29, s29, 2", "s_and_b32 s33, s32, 3", "s_add_u32 s29, s29, s33")
    A("s_and_b32 s30, s31, 1", "s_mul_i32 s30, s30, 7", "s_lshr_b32 s33, s32, 2", "s_add_u32 s30, s30, s33")
    A("s_cmp_lt_u32 s28, 4", "s_cbranch_scc1 Lg1c")
    g1_loader(A)
    g2_loader(A)
    A("Lg1c:")
    g1_compute(A)
    g2_compute(A)
    A("Lp1:")
    p1(A)
    A("Lp2:")
    p2(A)
    kend(A, 0, "Lk1_end")

def g1_loader(A):
    NST = 10
    A("s_sub_u32 s33, s28, 4")
    A("v_lshrrev_b32 v1, 3, v0", "v_and_b32 v2, 7, v0", "v_lshrrev_b32 v3, 4, v0",
      "s_lshl_b32 s34, s29, 2", "s_add_u32 s34, s34, s33",
      "v_lshl_add_u32 v1, v1, 6, s34", "v_mul_u32_u24 v1, 1280, v1",
      "v_xor_b32 v8, v2, v3", "v_xor_b32 v9, 4, v8",
      "v_lshl_add_u32 v4, v8, 4, v1", "v_lshl_add_u32 v5, v9, 4, v1",
      f"v_add_u32 v5, {8*64*1280}, v5", f"v_add_u32 v6, {16*64*1280}, v4", f"v_add_u32 v7, {16*64*1280}, v5")
    A("v_and_b32 v2, 15, v0", "v_lshlrev_b32 v8, 2, v3", "v_xor_b32 v2, v2, v8",
      "s_lshl_b32 s34, s33, 4", "v_add_u32 v8, s34, v3", "v_mul_u32_u24 v8, 3456, v8",
      "s_lshl_b32 s34, s30, 8", "v_lshl_add_u32 v10, v2, 4, v8", "v_add_u32 v10, s34, v10")
    A("s_cmp_eq_u32 s30, 13", "s_cselect_b32 s34, 8, 16",
      "v_cmp_le_u32 vcc, s34, v2", "v_mov_b32 v8, 0x80000000", "s_nop 0", "v_cndmask_b32 v10, v10, v8, vcc")
    A("s_lshl_b32 s40, s33, 12")
    if OPT['rot1']:
        if OPT['rot1'] == 'xcd':
            A("s_lshr_b32 s43, s31, 1", "s_mul_i32 s43, s43, 5", "s_lshr_b32 s43, s43, 1", "s_and_b32 s34, s31, 1", "s_mul_i32 s34, s34, 5", "s_add_u32 s43, s43, s34")
        elif OPT['map1'] == '2x14':
            A("s_mul_i32 s43, s30, 47", "s_lshr_b32 s43, s43, 6", "s_and_b32 s34, s29, 1", "s_mul_i32 s34, s34, 5", "s_add_u32 s43, s43, s34")
        else:
            A("s_lshr_b32 s43, s32, 2", "s_mul_i32 s43, s43, 92", "s_and_b32 s34, s32, 3", "s_mul_i32 s34, s34, 160", "s_add_u32 s43, s43, s34", "s_lshr_b32 s43, s43, 6")
        A("s_cmp_ge_u32 s43, 10", "s_cselect_b32 s34, 10, 0", "s_sub_u32 s43, s43, s34")
    else:
        A("s_mov_b32 s43, 0")
    A("s_waitcnt lgkmcnt(0)")
    srd(A, 12, 4, X_SZ); srd(A, 16, 8, W1_SZ)
    def issue(st):
        slot = (st % RING) * 32768
        A("s_lshl_b32 s41, s43, 7", f"s_mul_i32 s42, s43, {64*3456}")
        for q in range(4):
            A(f"s_add_u32 m0, s40, {slot + q*1024}", "s_nop 0", f"buffer_load_dwordx4 v{4+q}, s[12:15], s41 offen lds")
            A(f"s_add_u32 m0, s40, {slot + 16384 + q*1024}", "s_nop 0", f"buffer_load_dwordx4 v10, s[16:19], s42 offen lds")
            if q < 3: A(f"s_add_u32 s42, s42, {4*3456}")
        A("s_add_u32 s43, s43, 1", "s_cmp_eq_u32 s43, 10", "s_cselect_b32 s43, 0, s43")
    def extra():
        A("s_load_dwordx4 s[44:47], s[0:1], 8", "s_load_dwordx2 s[48:49], s[0:1], 48",
          "s_lshl_b32 s34, s2, 1", "s_add_u32 s34, s34, s33", "s_cmp_lt_u32 s33, 2", "s_cselect_b32 s34, s34, s2", "s_lshl_b32 s34, s34, 13",
          "v_lshl_add_u32 v11, v0, 7, s34", "s_waitcnt lgkmcnt(0)",
          "s_cmp_eq_u32 s33, 2", "s_cselect_b32 s20, s44, s46", "s_cselect_b32 s21, s45, s47",
          "s_cmp_lt_u32 s33, 2", "s_cselect_b32 s20, s48, s20", "s_cselect_b32 s21, s49, s21", f"s_mov_b32 s22, {W1_SZ}", f"s_cselect_b32 s22, s22, {WF_SZ}",
          "s_mov_b32 s23, 0x00020000", "v_mov_b32 v12, 0")
        sync_srds(A)
        A("buffer_load_dwordx2 v[18:19], v12, s[56:59], 0 offen sc1")
        if OPT.get('ftouch'):
            A("s_lshl_b32 s34, s29, 1", "s_lshr_b32 s35, s33, 1", "s_add_u32 s34, s34, s35", "s_cmp_lt_u32 s32, 20", "s_cselect_b32 s34, s34, 32", "s_lshl_b32 s34, s34, 13",
              "v_lshl_add_u32 v13, v0, 7, s34", "buffer_load_dword v22, v13, s[52:55], 0 offen sc1")
        A("buffer_load_dword v16, v11, s[20:23], 0 offen")
        return 3 if OPT.get('ftouch') else 2
    loader_loop(A, NST, issue, extra, OPT.get('D1'))
    A("s_barrier")
    A("s_cmp_ge_u32 s32, 20", "s_cbranch_scc1 Lp2")

def g1_compute(A):
    NST = 10
    XA = lambda kk, nt: 208 + kk*2 + nt
    WA = lambda mt: 216 + mt
    SX, SXX, CS, B1 = 218, 219, 220, 221
    A("s_and_b32 s33, s28, 1", "s_lshr_b32 s34, s28, 1")
    A("v_and_b32 v1, 31, v0", "v_lshrrev_b32 v2, 5, v0")
    A("s_lshl_b32 s35, s30, 7", "s_lshl_b32 s40, s33, 6", "s_add_u32 s35, s35, s40", "s_lshl_b32 s40, s34, 5", "s_add_u32 s35, s35, s40",
      "v_add_lshl_u32 v9, v1, s35, 1", f"v_mov_b32 v{B1}, 0")
    A("s_lshl_b32 s35, s34, 13", "s_lshl_b32 s40, s33, 12", "s_add_u32 s35, s35, s40",
      "v_lshl_add_u32 v3, v1, 7, s35", "v_bfe_u32 v4, v0, 1, 3", "v_xor_b32 v4, v4, v2")
    for kk in range(4):
        A(f"v_xor_b32 v5, {2*kk}, v4", f"v_lshl_add_u32 v{XA(kk,0)}, v5, 4, v3", f"v_xor_b32 v{XA(kk,1)}, 0x1000, v{XA(kk,0)}")
    A("v_bfe_u32 v4, v0, 2, 2", "v_lshl_add_u32 v5, v2, 3, v4", "v_lshlrev_b32 v5, 8, v5",
      "v_bfe_u32 v6, v0, 4, 1", "v_lshl_add_u32 v5, v6, 5, v5", "v_and_b32 v6, 3, v0", "v_lshl_add_u32 v5, v6, 3, v5",
      "s_lshl_b32 s35, s33, 1", "s_add_u32 s35, s35, s34",
      "v_xor_b32 v6, s35, v4", f"v_lshl_add_u32 v{WA(0)}, v6, 6, v5", f"v_xor_b32 v{WA(1)}, 64, v{WA(0)}")
    A(f"v_mov_b32 v{SX}, 0", f"v_mov_b32 v{SXX}, 0", f"v_mov_b32 v{CS}, 0", f"s_mov_b32 s41, {ONES}")
    A("s_waitcnt lgkmcnt(0)")
    srd(A, 20, 10, 1728*2); srd(A, 24, 6, H_SZ, H_OFF)
    A(f"buffer_load_short_d16_hi v{B1}, v9, s[20:23], 0 offen")
    srd(A, 16, 36, 640*2)
    A("s_lshr_b32 s35, s32, 2", "s_lshl_b32 s35, s35, 8", "s_lshl_b32 s40, s33, 7", "s_add_u32 s35, s35, s40",
      "s_lshl_b32 s40, s31, 31", "s_or_b32 s35, s35, s40", "v_lshl_add_u32 v9, v1, 1, s35",
      "buffer_load_ushort v222, v9, s[16:19], 0 offen", "buffer_load_ushort v223, v9, s[16:19], 0 offen offset:64")
    A("s_lshl_b32 s35, s30, 1", "s_add_u32 s35, s35, s33")
    for mt in range(2):
        for nt in range(2):
            s = 44 + mt*2 + nt
            A("s_lshl_b32 s40, s29, 2", "s_lshl_b32 s42, s34, 1", "s_add_u32 s40, s40, s42", f"s_xor_b32 s42, s33, {nt}", "s_add_u32 s40, s40, s42",
              "s_mulk_i32 s40, 108", "s_lshl_b32 s42, s35, 2", "s_add_u32 s40, s40, s42", f"s_xor_b32 s42, s34, {mt}",
              "s_add_u32 s40, s40, s42", f"s_lshl_b32 s{s}, s40, 10")
    XCH = 131072
    A("s_lshl_b32 s42, s34, 9", "s_lshl_b32 s40, s33, 8", "s_add_u32 s42, s42, s40", f"s_add_u32 s42, s42, {XCH}", "v_lshl_add_u32 v7, v1, 3, s42",
      "s_lshl_b32 s42, s33, 9", "s_lshl_b32 s40, s34, 8", "s_add_u32 s42, s42, s40", f"s_add_u32 s42, s42, {XCH}", "v_lshl_add_u32 v8, v1, 3, s42",
      "v_lshlrev_b32 v9, 4, v0")
    XF0, WF0, XF1, WF1 = 224, 228, 232, 236
    for r in (XF0, WF0, XF1, WF1):
        A(f"v_mov_b32 v{r+2}, 0", f"v_mov_b32 v{r+3}, 0")
    sync_srds(A)
    A("s_lshl_b32 s48, s29, 1", "s_add_u32 s48, s48, s34", "s_lshl_b32 s48, s48, 13", "s_lshl_b32 s40, s35, 8", "s_add_u32 s48, s48, s40", "v_mov_b32 v10, 0", "v_lshlrev_b32 v11, 3, v0")
    if OPT.get('tlb'):
        srd(A, 36, 6, 0x1400000)
        A("v_lshlrev_b32 v12, 21, v0", "v_add_u32 v12, 0x1fff80, v12", "s_cmp_lg_u32 s28, 1", "s_cbranch_scc1 Lg1_ntl", "buffer_load_dword v253, v12, s[36:39], 0 offen", "Lg1_ntl:")
    A("s_lshl_b32 s40, s2, 3", "s_add_u32 s40, s40, s28", "s_cmp_lg_u32 s40, 1737", "s_cbranch_scc1 Lg1_ncl")
    A("s_memrealtime s[36:37]", "s_waitcnt lgkmcnt(0)", "s_or_b32 s38, s36, 1", "v_mov_b32 v12, s38", "v_mov_b32 v13, s37",
      "s_mov_b64 exec, 1", "buffer_store_dwordx2 v[12:13], v10, s[56:59], 0 offen sc1", "s_mov_b64 exec, -1", "Lg1_ncl:")
    base = [0]
    def reads(st):
        p = st & 1; slot = (st % RING) * 32768
        L = []
        nb = slot & ~0xffff
        if nb != base[0]:
            for r in range(208, 218): L.append(f"v_xor_b32 v{r}, 0x10000, v{r}")
            base[0] = nb
        so = slot - nb
        for kk in range(4):
            for mt in range(2):
                for jh in range(2):
                    L.append(f"ds_read_b64_tr_b16 {vr(FB(p,kk,2+mt)+2*jh,2)}, v{WA(mt)} offset:{so+16384+(16*kk+4*jh)*256}")
            for nt in range(2):
                L.append(f"ds_read_b128 {vr(FB(p,kk,nt),4)}, v{XA(kk,nt)} offset:{so}")
        return L
    def mfmas(st):
        p = st & 1; L = []
        for kk in range(4):
            for mt in range(2):
                for nt in range(2):
                    c = "0" if (st == 0 and kk == 0) else vr(ACC(mt,nt),16)
                    L.append(f"{M32} {vr(ACC(mt,nt),16)}, {vr(FB(p,kk,2+mt),4)}, {vr(FB(p,kk,nt),4)}, {c}")
        return L
    def dots(st):
        p = st & 1; L = []
        for kk in range(4):
            for j in range(4):
                if not OPT.get('nostat'): L.append(f"v_dot2c_f32_bf16 v{SX}, s41, v{FB(p,kk,0)+j}")
                if (not OPT.get('sqv') or st == NST-1) and not OPT.get('nostat'): L.append(f"v_dot2c_f32_bf16 v{SXX}, v{FB(p,kk,0)+j}, v{FB(p,kk,0)+j}")
                L.append(f"v_dot2c_f32_bf16 v{CS}, s41, v{FB(p,kk,2)+j}")
        if st == 6: L.append("buffer_load_dwordx2 v[254:255], v10, s[56:59], 0 offen sc1")
        return L
    def sqgap(st):
        p = st & 1; L = []
        for kk in range(4):
            for j in range(4):
                r = FB(p,kk,0)+j
                L += [f"v_lshlrev_b32 v3, 16, v{r}", f"v_and_b32 v4, s51, v{r}", "v_fmac_f32 v222, v3, v3", "v_fmac_f32 v223, v4, v4"]
        return L
    pass
    compute_loop(A, NST, reads, mfmas, dots, lambda st: stamp(A, 1) if st == 0 else None)
    A(*dots(NST-1))
    M = mfmas(NST-1)
    F = Asm()
    if OPT.get('sqv'): F(f"v_add_f32 v{SXX}, v{SXX}, v222", f"v_add_f32 v{SXX}, v{SXX}, v223")
    for r in (SX, SXX, CS):
        F(f"v_mov_b32 v3, v{r}", "s_nop 1", f"v_permlane32_swap_b32 v{r}, v3", f"v_add_f32 v{r}, v{r}, v3")
    row_stats(F, SX, SXX, 3, 4, 5, 6)
    F(f"v_cvt_pk_bf16_f32 v{XF0}, -v5, -v5", f"v_cvt_pk_bf16_f32 v{XF0+1}, -v5, v6")
    F(f"v_cvt_pk_bf16_f32 v3, v{CS}, v{CS}", "v_lshlrev_b32 v3, 16, v3", f"v_sub_f32 v3, v{CS}, v3",
      f"v_cvt_pk_bf16_f32 v{WF0}, v{CS}, v3", f"v_and_b32 v4, 0xffff0000, v{WF0}", "v_sub_f32 v3, v3, v4",
      "s_waitcnt vmcnt(0)", f"v_cvt_pk_bf16_f32 v{WF0+1}, v3, v{B1}")
    F(f"ds_write_b64 v7, {vr(XF0,2)}", f"ds_write_b64 v8, {vr(WF0,2)} offset:1024",
      "v_xor_b32 v7, 0x100, v7", "v_xor_b32 v8, 0x100, v8")
    A(*spread(M[:8], F.lines))
    A(M[8], M[9])
    A("s_waitcnt lgkmcnt(0)", "s_barrier")
    A(f"ds_read_b64 {vr(XF1,2)}, v7", f"ds_read_b64 {vr(WF1,2)}, v8 offset:1024")
    A(*M[10:14])
    A("v_cmp_eq_u32 vcc, 0, v2", "s_waitcnt lgkmcnt(0)")
    G = Asm()
    for r in (WF0, WF0+1, WF1, WF1+1):
        G(f"v_cndmask_b32 v{r}, 0, v{r}, vcc")
    for nt in range(2):
        c = 240 + 4*nt
        G(f"v_and_b32 v{c+2}, 0xffff0000, v{(XF0,XF1)[nt]+1}", f"v_rcp_f32 v3, v{c+2}",
          f"v_mul_f32 v{c}, {fl(GA)}, v3", "v_mul_f32 v4, v3, v3", "v_mul_f32 v4, v4, v3", f"v_mul_f32 v{c+1}, {fl(GB)}, v4")
    A(*spread(M[14:], G.lines[:8]))
    X = [f"{M32} {vr(ACC(mt,nt),16)}, {vr((WF0,WF1)[mt],4)}, {vr((XF0,XF1)[nt],4)}, {vr(ACC(mt,nt),16)}" for mt in range(2) for nt in range(2)]
    A(*spread(X, G.lines[8:]))
    stamp(A, 2)
    A("s_cmp_ge_u32 s35, 27", "s_cbranch_scc1 Lp2")
    A("s_waitcnt vmcnt(0)")
    chk_cleared(A, 254, 10)
    n = 0
    for half in range(2):
        for mt in range(2):
            for nt in range(2):
                c = 240 + 4*nt
                a0 = ACC(mt,nt) + 8*half
                t = 80 + (n % 2)*16; o = 112 + (n % 4)*4; n += 1
                P = range(4)
                for i in P: A(f"v_pk_mul_f32 {vr(t+2*i,2)}, {vr(a0+2*i,2)}, {vr(a0+2*i,2)}")
                for i in P: A(f"v_pk_fma_f32 {vr(t+2*i,2)}, {vr(t+2*i,2)}, {vr(c,2)}, {vr(c,2)} op_sel:[0,1,0] op_sel_hi:[1,1,0]")
                for i in P: A(f"v_pk_mul_f32 {vr(t+2*i,2)}, {vr(t+2*i,2)}, {vr(a0+2*i,2)}")
                for i in range(8): A(f"v_exp_f32 v{t+i}, v{t+i}")
                for i in P: A(f"v_pk_fma_f32 {vr(t+2*i,2)}, {vr(t+2*i,2)}, {vr(c+2,2)}, {vr(c+2,2)} op_sel:[0,0,0] op_sel_hi:[1,0,0]")
                for i in range(8): A(f"v_rcp_f32 v{t+i}, v{t+i}")
                for i in P: A(f"v_pk_mul_f32 {vr(t+2*i,2)}, {vr(t+2*i,2)}, {vr(a0+2*i,2)}")
                for i in P: A(f"v_cvt_pk_bf16_f32 v{o+i}, v{t+2*i}, v{t+2*i+1}")
                A(f"buffer_store_dwordx4 {vr(o,4)}, v9, s[24:27], s{44+mt*2+nt} offen offset:{half*2048} sc1")
                if n == OPT.get('efl', 7):
                    A(f"s_waitcnt vmcnt({n-4})", *set_flag(254, 11, "s48"),
                      *(["s_cmp_ge_u32 s32, 20", "s_cbranch_scc1 Lg1_ng", "s_barrier", "Lg1_ng:"] if OPT.get('gate', 'e') == 'e' else []))
    stamp(A, 3)
    A("s_cmp_lt_u32 s32, 20", "s_cbranch_scc1 Lg2c")
    A("s_waitcnt vmcnt(0)", *set_flag(254, 11, "s48", 128), "s_branch Lp2")
    A("Lg2c:")

def p1(A):
    BC = lambda u: 16 + 8*u
    BS = lambda u: 20 + 8*u
    TW = 56
    AF = lambda p, u: 64 + p*20 + 4*u
    AP = lambda p: 104 + 8*p
    AQ = lambda p: 108 + 8*p
    OUT = lambda par, i: 120 + par*8 + i
    TMP = 136
    YF = lambda o, pl: 152 + (o*2+pl)*4
    FP = lambda nt, pl: 184 + (nt*3+pl)*4
    TA = 208; PK = 240
    FPIMG, DCT, SCR = 81920, 94208, 98304
    A("s_sub_u32 s29, s32, 28", "s_lshl_b32 s29, s29, 3", "s_add_u32 s29, s29, s31", "s_lshl_b32 s29, s29, 1")
    A("s_lshr_b32 s46, s28, 2", "s_add_u32 s47, s46, s29", "s_and_b32 s48, s28, 3", "s_lshl_b32 s34, s48, 9", "s_add_u32 s47, s47, s34",
      "s_mul_i32 s33, s47, 1280", "s_mul_i32 s34, s28, 10240", "s_mov_b32 s35, 81920")
    A("v_and_b32 v1, 15, v0", "v_lshrrev_b32 v2, 4, v0", "v_lshlrev_b32 v4, 2, v2", "v_xor_b32 v3, v1, v4", "v_mul_u32_u24 v4, s35, v2", "v_lshl_add_u32 v4, v3, 4, v4")
    A("s_waitcnt lgkmcnt(0)")
    srd(A, 12, 4, X_SZ); srd(A, 36, 6, T_SZ, T_OFF)
    for i in range(10):
        A(f"s_add_u32 m0, s34, {1024*i}", f"s_add_u32 s40, s33, {(i//5)*4*81920+(i%5)*256}", "buffer_load_dwordx4 v4, s[12:15], s40 offen lds")
    sync_srds(A)
    if OPT['mpf1']:
        srd(A, 16, 8, W1_SZ)
        A("s_lshl_b32 s40, s29, 2", "s_add_u32 s40, s40, s28", f"s_mul_i32 s40, s40, {68*128}", "v_lshl_add_u32 v3, v0, 7, s40",
          "buffer_load_dword v150, v3, s[16:19], 0 offen", "buffer_load_dword v151, v3, s[16:19], 0 offen offset:512")
    A("s_and_b32 s41, s28, 1", "s_add_u32 s41, s41, 4", "s_bfe_u32 s42, s28, 0x10001",
      "s_cmp_lt_u32 s28, 4", "s_cselect_b32 s43, s28, s41", "s_cselect_b32 s44, 0, s42", "s_cselect_b32 s45, 1, 0")
    A("v_lshl_add_u32 v8, v2, 6, s47", "v_cvt_f32_u32 v8, v8", f"v_mul_f32 v8, {fl(1/2048)}, v8", "v_cvt_f32_u32 v9, v1", "v_add_f32 v10, 0x41800000, v9")
    for tt in range(2):
        if tt: A(f"v_add_f32 v8, {fl(256/2048)}, v8")
        for nt in range(2):
            A(f"v_mul_f32 v12, v8, v{9+nt}", f"v_cos_f32 v{208+nt*2+tt}, v12", f"v_sin_f32 v{212+nt*2+tt}, v12")
    A("v_lshrrev_b32 v8, 5, v0", "v_mul_u32_u24 v9, 5120, v8", "v_add_u32 v9, s34, v9", "v_bfe_u32 v8, v0, 3, 2", "v_lshl_add_u32 v9, v8, 8, v9",
      "v_lshl_add_u32 v224, v1, 4, v9", "v_xor_b32 v225, 128, v224")
    A("v_mov_b32 v228, 0", "v_mov_b32 v229, 0", "v_mov_b32 v230, 0", "v_mov_b32 v231, 0", f"s_mov_b32 s49, {ONES}")
    A("s_mul_i32 s41, s46, 6144", "s_lshl_b32 s42, s48, 2", "s_add_u32 s41, s41, s42", f"s_add_u32 s41, s41, {FPIMG}", "v_lshl_add_u32 v226, v0, 4, s41",
      "s_lshl_b32 s41, s46, 6", "s_add_u32 s41, s41, s42", f"s_add_u32 s41, s41, {DCT}", "v_lshl_add_u32 v227, v2, 4, s41")
    A("s_lshl_b32 s41, s43, 4", "v_add_u32 v3, s41, v1", "v_cvt_f32_u32 v4, v3", f"v_mul_f32 v5, {fl(1/160)}, v4",
      "v_cvt_f32_u32 v6, v2", "v_mul_f32 v6, 4.0, v6", "v_mul_f32 v6, v6, v5")
    A("v_and_b32 v14, 1, v0", "v_mov_b32 v15, 0x80008000", "v_mul_lo_u32 v14, v14, v15")
    for u in range(5):
        for jp in range(2):
            for e in range(2):
                A(f"v_fmamk_f32 v{8+e}, v5, {fl(float(16*u+2*jp+e))}, v6")
            A("v_cos_f32 v10, v8", "v_cos_f32 v11, v9", "v_sin_f32 v12, v8", "v_sin_f32 v13, v9",
              f"v_cvt_pk_bf16_f32 v{BC(u)+jp}, v10, v11", f"v_cvt_pk_bf16_f32 v{BS(u)+jp}, -v12, -v13",
              f"v_xor_b32 v{BC(u)+2+jp}, v14, v{BC(u)+jp}", f"v_xor_b32 v{BS(u)+2+jp}, v14, v{BS(u)+jp}")
    for r in (1,2,3):
        A(f"v_mul_f32 v8, {fl(r/640)}, v4", f"v_cos_f32 v{TW+2*r-2}, v8", f"v_sin_f32 v{TW+2*r-1}, v8")
    A("v_and_b32 v8, 3, v0", "v_bfe_u32 v9, v0, 3, 1", "v_lshl_add_u32 v9, v2, 1, v9", "v_lshlrev_b32 v10, 2, v8", "v_xor_b32 v9, v9, v10",
      "v_lshlrev_b32 v10, 8, v8", "v_lshl_add_u32 v10, v9, 4, v10", "v_bfe_u32 v9, v0, 2, 1", "v_lshl_add_u32 v14, v9, 3, v10",
      "s_mul_i32 s41, s44, 40960", "v_add_u32 v14, s41, v14", "v_xor_b32 v15, 128, v14")
    A("s_mul_i32 s41, s44, 6144", f"s_add_u32 s41, s41, {FPIMG}", "v_lshl_add_u32 v7, v0, 4, s41",
      "s_lshl_b32 s41, s44, 6", f"s_add_u32 s41, s41, {DCT}", "v_lshl_add_u32 v62, v2, 4, s41",
      "v_lshrrev_b32 v8, 3, v0", "s_mov_b32 s41, 90112", "v_mul_lo_u32 v63, v8, s41", "v_and_b32 v9, 7, v0", "v_lshl_add_u32 v63, v9, 4, v63",
      "s_lshl_b32 s41, s28, 12", f"s_add_u32 s41, s41, {SCR}",
      "v_xor_b32 v10, v8, v9", "v_lshl_add_u32 v3, v8, 7, s41", "v_lshl_add_u32 v3, v10, 4, v3",
      "v_xor_b32 v10, v2, v9", "v_lshl_add_u32 v5, v1, 7, s41", "v_lshl_add_u32 v5, v10, 4, v5", "v_xor_b32 v6, 64, v5")
    if OPT['ppf']:
        A("s_load_dwordx4 s[24:27], s[0:1], 8", "s_load_dwordx2 s[16:17], s[0:1], 48",
          "s_mul_i32 s40, s29, 6", "s_add_u32 s40, s40, s28", "s_cmp_lt_u32 s28, 4", "s_cselect_b32 s41, 0, 4", "s_add_u32 s40, s40, s41",
          "s_lshl_b32 s41, s40, 13", "v_lshl_add_u32 v146, v0, 7, s41",
          "s_cmp_lt_u32 s29, 32", f"s_cselect_b32 s41, 0, {192*8192}", "v_subrev_u32 v147, s41, v146", "s_waitcnt lgkmcnt(0)",
          "s_cselect_b32 s20, s24, s26", "s_cselect_b32 s21, s25, s27", f"s_mov_b32 s22, {WF_SZ}", "s_mov_b32 s23, 0x00020000",
          f"s_mov_b32 s18, {W1_SZ}", "s_mov_b32 s19, 0x00020000")
    stamp(A, 1)
    A(f"s_waitcnt vmcnt({2 if OPT['mpf1'] else 0})")
    stamp(A, 2)
    for I in range(5):
        for ii in range(2):
            A(f"ds_read_b128 {vr(64+(I*2+ii)*4,4)}, v{224+ii} offset:{1024*I}")
    for I in range(5):
        A(f"s_waitcnt lgkmcnt({2*(4-I)})")
        for j in range(8):
            r = 64 + I*8 + j
            A(f"v_dot2c_f32_bf16 v{228+(j&1)}, s49, v{r}", f"v_dot2c_f32_bf16 v{230+(j&1)}, v{r}, v{r}")
    A("v_add_f32 v228, v228, v229", "v_add_f32 v230, v230, v231")
    for qp in ("quad_perm:[1,0,3,2]", "quad_perm:[2,3,0,1]", "row_half_mirror"):
        A(f"v_add_f32_dpp v228, v228, v228 {qp} row_mask:0xf bank_mask:0xf", f"v_add_f32_dpp v230, v230, v230 {qp} row_mask:0xf bank_mask:0xf")
    row_stats(A, 228, 230, 8, 9, 10, 11)
    A("v_cvt_pk_bf16_f32 v11, v11, v10", "v_lshlrev_b32 v8, 5, v2", "v_and_b32 v10, 0xffff0000, v11", "v_lshlrev_b32 v11, 16, v11", "v_rcp_f32 v11, v11",
      f"v_fmac_f32 v228, {fl(-640.0)}, v10")
    for tt in range(2):
        A(f"ds_bpermute_b32 v{232+tt}, v8, v11 offset:{128*tt}", f"ds_bpermute_b32 v{234+tt}, v8, v228 offset:{128*tt}")
    A("s_waitcnt lgkmcnt(0)")
    for nt in range(2):
        c = 208+nt*2; sn = 212+nt*2; o = 236 + nt*3
        for tt in range(2):
            A(f"v_mul_f32 v{c+tt}, v{c+tt}, v{232+tt}", f"v_mul_f32 v{sn+tt}, v{sn+tt}, v{232+tt}")
        A(f"v_cvt_pk_bf16_f32 v{o}, v{c}, v{c+1}", f"v_cvt_pk_bf16_f32 v{o+1}, v{sn}, v{sn+1}", f"v_cvt_pk_bf16_f32 v{o+2}, -v{sn}, -v{sn+1}")
        for pl in range(3):
            A(f"ds_write_b32 v226, v{o+pl} offset:{(nt*3+pl)*1024}")
    A("v_cvt_pk_bf16_f32 v8, v234, v235", "ds_write_b32 v227, v8")
    A("s_waitcnt lgkmcnt(0)", "s_barrier")
    stamp(A, 3)
    A("Lp1_unit:")
    stamp(A, 4)
    def reads(t):
        return [f"ds_read_b64_tr_b16 {vr(AF(t&1,u)+2*jh,2)}, v{14+((u+5*jh)&1)} offset:{t*5120+((u+5*jh)>>1)*1024}" for u in range(5) for jh in range(2)]
    def mf(t):
        L = []
        for u in range(5):
            for (acc, B) in ((AP(t&1), BC(u)), (AQ(t&1), BS(u))):
                L.append(f"{M16} {vr(acc,4)}, {vr(AF(t&1,u),4)}, {vr(B,4)}, {'0' if u==0 else vr(acc,4)}")
        return L
    def bfly(t):
        P = AP(t&1); Q = AQ(t&1); O = lambda i: OUT(t&1, i)
        c1,s1,c2,s2,c3,s3 = range(TW, TW+6)
        pr,pi,qr,qi,ar,ai,ur,ui,wr_,wi_ = range(TMP, TMP+10)
        L = [f"v_fma_f32 v{pr}, v{P+2}, v{c2}, v{P}", f"v_fma_f32 v{pi}, v{Q+2}, v{c2}, v{Q}",
             f"v_mul_f32 v{ar}, v{P+1}, v{c1}", f"v_mul_f32 v{ai}, v{Q+1}, v{c1}",
             f"v_fmac_f32 v{pr}, v{Q+2}, v{s2}", f"v_fma_f32 v{pi}, -v{P+2}, v{s2}, v{pi}",
             f"v_fmac_f32 v{ar}, v{Q+1}, v{s1}", f"v_fma_f32 v{ai}, -v{P+1}, v{s1}, v{ai}",
             f"v_fma_f32 v{qr}, 2.0, v{P}, -v{pr}", f"v_fma_f32 v{qi}, 2.0, v{Q}, -v{pi}",
             f"v_fma_f32 v{ur}, v{P+3}, v{c3}, v{ar}", f"v_fma_f32 v{ui}, v{Q+3}, v{c3}, v{ai}",
             f"v_fmac_f32 v{ur}, v{Q+3}, v{s3}", f"v_fma_f32 v{ui}, -v{P+3}, v{s3}, v{ui}",
             f"v_fma_f32 v{wr_}, 2.0, v{ar}, -v{ur}", f"v_fma_f32 v{wi_}, 2.0, v{ai}, -v{ui}",
             f"v_add_f32 v{O(0)}, v{pr}, v{ur}", f"v_add_f32 v{O(1)}, v{pi}, v{ui}",
             f"v_sub_f32 v{O(6)}, v{pr}, v{ur}", f"v_sub_f32 v{O(7)}, v{ui}, v{pi}",
             f"v_sub_f32 v{O(2)}, v{qr}, v{wi_}", f"v_add_f32 v{O(3)}, v{qi}, v{wr_}",
             f"v_add_f32 v{O(4)}, v{qr}, v{wi_}", f"v_sub_f32 v{O(5)}, v{qi}, v{wr_}"]
        if t & 1:
            for i in (0,1,6,7,2,3,4,5):
                n = '-' if i == 3 else ''
                L.append(f"v_cvt_pk_bf16_f32 v{YF(i>>1,i&1)+(t>>1)}, {n}v{OUT(0,i)}, {n}v{OUT(1,i)}")
        return L
    A(*reads(0))
    for t in range(9):
        if t < 8:
            A("s_waitcnt lgkmcnt(0)")
            fill = (reads(t+1) if t < 7 else [f"ds_read_b128 {vr(FP(nt,pl),4)}, v7 offset:{(nt*3+pl)*1024}" for nt in range(2) for pl in range(3)])
            fill = fill + (bfly(t-1) if t >= 1 else [])
            if OPT['ppf'] and t == 0: fill.append("buffer_load_dword v12, v146, s[16:19], 0 offen")
            if OPT['ppf'] and t == 4: fill.append("buffer_load_dword v13, v147, s[20:23], 0 offen")
            A(*spread(mf(t), fill))
        else:
            B = bfly(7)
            A(*B[:25])
            A("s_cmp_lg_u32 s43, 0", "s_cbranch_scc1 Lp1_nodc", "s_mov_b32 exec_lo, 0x10001", "s_mov_b32 exec_hi, 0x10001",
              f"ds_read_b128 {vr(YF(0,0),4)}, v62", "s_mov_b64 exec, -1", "Lp1_nodc:")
            A(*B[25:])
    A("s_add_u32 s41, s29, s44", "s_lshl_b32 s41, s41, 7", "s_lshl_b32 s42, s43, 13", "s_add_u32 s41, s41, s42")
    A("v_mov_b32 v150, 0", "buffer_load_dwordx2 v[148:149], v150, s[56:59], 0 offen sc1")
    A("s_waitcnt lgkmcnt(0)")
    stamp(A, 5)
    def s1m(kinds, base):
        L = []; n = 0
        for tile, o in enumerate(kinds):
            for nt in range(2):
                re = base + n*8; im = re + 4; n += 1
                L += [f"{M16} {vr(re,4)}, {vr(YF(o,0),4)}, {vr(FP(nt,0),4)}, 0", f"{M16} {vr(im,4)}, {vr(YF(o,1),4)}, {vr(FP(nt,0),4)}, 0",
                      f"{M16} {vr(re,4)}, {vr(YF(o,1),4)}, {vr(FP(nt,1),4)}, {vr(re,4)}", f"{M16} {vr(im,4)}, {vr(YF(o,0),4)}, {vr(FP(nt,2),4)}, {vr(im,4)}"]
        return L
    def s1w(base):
        L = []; n = 0
        for tile in range(2):
            for nt in range(2):
                re = base + n*8; pk = PK + n*4; n += 1
                L += [f"v_cvt_pk_bf16_f32 v{pk+j}, v{re+2*j}, v{re+2*j+1}" for j in range(4)]
                L.append(f"ds_write_b128 v{5+tile}, {vr(pk,4)} offset:{nt*2048}")
        L += [f"ds_read_b128 {vr(base+4*q,4)}, v3 offset:{q*1024}" for q in range(4)]
        return L
    def s1s(base, poff):
        L = []
        for q in range(4):
            L += [f"s_add_u32 s42, s41, {q*8*90112+poff}", f"s_waitcnt lgkmcnt({3-q})",
                  f"buffer_store_dwordx4 {vr(base+4*q,4)}, v63, s[36:39], s42 offen {OPT['sc_t']}"]
        return L
    TB_ = 64
    A(*s1m((0,2), TA))
    A("s_cmp_eq_u32 s43, 5", "s_cbranch_scc1 Lp1_b5")
    A(*spread(s1m((1,3), TB_), s1w(TA)))
    A(*s1s(TA, 0))
    A(*s1w(TB_))
    A(*s1s(TB_, 6*8192))
    A("s_cmp_eq_u32 s45, 0", "s_cbranch_scc1 Lp1_done")
    A("s_mov_b32 s45, 0", "s_mov_b32 s44, 1", "v_add_u32 v14, 40960, v14", "v_add_u32 v15, 40960, v15", "v_add_u32 v7, 6144, v7", "v_add_u32 v62, 64, v62", "v_add_u32 v146, 0x8000, v146", "v_add_u32 v147, 0x8000, v147", "s_branch Lp1_unit")
    A("Lp1_b5:", "s_nop 7")
    A(*s1w(TA))
    A(*s1s(TA, 0))
    A("Lp1_done:")
    stamp(A, 6)
    A("s_lshl_b32 s41, s29, 6", f"s_add_u32 s41, s41, {32*8192}", "v_lshlrev_b32 v151, 3, v0", "s_waitcnt vmcnt(0)")
    chk_cleared(A, 148, 150)
    A("v_mov_b32 v18, v148", "v_mov_b32 v19, v149", "v_mov_b32 v12, 0")
    A("s_barrier", "s_cmp_lg_u32 s28, 0", "s_cbranch_scc1 Lp2")
    A(*set_flag(148, 151, "s41"))

HK = [(4*c, 4*c+2) for c in range(7)] + [(4*c+1, 4*c+3) for c in range(6)] + [(25, None)]
def hk_mask(sp, upto):
    m = 0
    for j, (a, b) in enumerate(HK[:upto]):
        if upto == 14 and j < 6: continue
        for hs, x in enumerate((a, b)):
            if x is None: continue
            x = x + 28*sp
            if sp and j == 6 and hs == 1: x = 53
            if sp and j == 13: x = 27
            m |= 1 << x
    return m
def set_mask(A, upto):
    m0, m1 = hk_mask(0, upto), hk_mask(1, upto)
    A("s_cmp_eq_u32 s50, 0", f"s_mov_b32 s36, 0x{m0 & 0xffffffff:x}", f"s_mov_b32 s37, 0x{m0 >> 32:x}",
      f"s_cselect_b32 s36, s36, 0x{m1 & 0xffffffff:x}", f"s_cselect_b32 s37, s37, 0x{m1 >> 32:x}")
def poll_h(A, upto, first):
    _pl[0] += 1; n = _pl[0]
    if first: set_mask(A, upto)
    A("s_mov_b32 s3, 0")
    if not first: A(f"s_branch Lpc{n}")
    A(f"Lpl{n}:", "s_mov_b64 exec, s[36:37]", *pollop("0"), "s_mov_b64 exec, -1", "s_waitcnt vmcnt(0)", f"Lpc{n}:",
      "v_cmp_eq_u64 vcc, v[20:21], v[18:19]", "s_add_u32 s3, s3, 1", "s_nop 0", "s_and_b64 s[38:39], vcc, s[36:37]", "s_cmp_eq_u64 s[38:39], s[36:37]", f"s_cbranch_scc1 Lpd{n}",
      f"s_sleep {OPT.get('slp',4)}", f"s_cmp_lt_u32 s3, {SPIN_MAX}", f"s_cbranch_scc1 Lpl{n}", f"Lpd{n}:")

def g2_loader(A):
    NST = 14
    A("s_lshr_b32 s30, s32, 2", "s_and_b32 s50, s31, 1")
    A("s_lshl_b32 s34, s29, 2", "s_add_u32 s34, s34, s33", f"s_mul_i32 s34, s34, {108*1024}", "v_lshl_add_u32 v4, v0, 4, s34")
    A("v_lshrrev_b32 v3, 4, v0", "v_and_b32 v2, 15, v0", "v_lshlrev_b32 v5, 2, v3", "v_xor_b32 v2, v2, v5",
      "s_and_b32 s34, s33, 1", "s_lshl_b32 s34, s34, 5", "v_add_u32 v8, s34, v3", "v_mul_u32_u24 v8, 1280, v8",
      "s_lshl_b32 s34, s30, 8", "v_lshl_add_u32 v10, v2, 4, v8", "v_add_u32 v10, s34, v10")
    A("s_lshl_b32 s34, s29, 1", "s_lshr_b32 s35, s33, 1", "s_add_u32 s34, s34, s35", "s_lshl_b32 s34, s34, 13", "v_lshl_add_u32 v13, v0, 7, s34")
    A(f"s_mul_i32 s44, s50, {28*2048}", f"s_mul_i32 s45, s50, {14*81920}", f"s_mul_i32 s34, s35, 81920", "s_add_u32 s45, s45, s34")
    srd(A, 12, 6, H_SZ, H_OFF); srd(A, 16, 48, W1_SZ)
    def issue_w(st):
        slot = (st % RING) * 32768; a, b = HK[st]
        A(f"s_add_u32 s42, s45, {(a>>1)*81920+(a&1)*20480}")
        if st == 6:
            A("s_and_b32 s34, s50, s35", "s_cmp_eq_u32 s34, 1", f"s_cselect_b32 s42, {26*81920+20480}, s42")
        if st == 13:
            A("s_cmp_eq_u32 s50, 0", f"s_mov_b32 s42, {12*81920+20480}", f"s_cselect_b32 s42, s42, {13*81920+20480}", "s_cmp_eq_u32 s35, 0", "s_cselect_b32 s18, s18, 0")
        for q in range(4):
            A(f"s_add_u32 m0, s40, {slot + 16384 + q*1024}", "s_nop 0", f"buffer_load_dwordx4 v10, s[16:19], s42 offen lds")
            if q < 3: A(f"s_add_u32 s42, s42, {4*1280}")
        return 4
    def issue_h(st):
        slot = (st % RING) * 32768; a, b = HK[st]
        A(f"s_add_u32 s41, s44, {a*2048}", f"s_add_u32 m0, s40, {slot}")
        if st == 13: A("s_cmp_eq_u32 s50, 0", f"s_cselect_b32 s41, s41, {27*2048}")
        else: A(f"s_add_u32 s43, s44, {b*2048-2048}")
        if st == 6: A("s_cmp_eq_u32 s50, 0", f"s_cselect_b32 s43, s43, {53*2048-2048}")
        for q in range(2): A(f"buffer_load_dwordx4 v4, s[12:15], s41 offen offset:{q*1024} sc1 lds")
        if st == 13: return 2
        for q in range(2,4): A(f"buffer_load_dwordx4 v4, s[12:15], s43 offen offset:{q*1024} sc1 lds")
        return 4
    NW = OPT.get('nw', 2)
    if OPT.get('wlate'):
        A("s_waitcnt vmcnt(1)" if 'lpfs' not in OPT else "s_waitcnt vmcnt(0)")
        chk_cleared(A, 18, 12)
        set_mask(A, 6)
        A("s_barrier")
        stamp(A, 4)
        if OPT.get('gslp'): A(f"s_sleep {OPT['gslp']}")
        A("s_mov_b64 exec, s[36:37]", *pollop("0"), "s_mov_b64 exec, -1")
        for st in range(NW): issue_w(st)
        A(f"s_waitcnt vmcnt({4*NW})")
        poll_h(A, 6, False)
    else:
        for st in range(NW): issue_w(st)
        A(f"s_waitcnt vmcnt({4*NW})")
        chk_cleared(A, 18, 12)
        A("s_barrier")
        stamp(A, 4)
        poll_h(A, 6, True)
    stamp(A, 5)
    ops = []
    D = OPT.get('D2') or 2
    for st in range(NW): ops += [st]*issue_h(st)
    nxt = NW
    for st in range(NST):
        last = max(i for i, x in enumerate(ops) if x == st)
        A(f"s_waitcnt vmcnt({len(ops)-1-last})", "s_barrier")
        if st == 1:
            set_mask(A, 14)
            A("s_mov_b64 exec, s[36:37]", *pollop("0"), "s_mov_b64 exec, -1"); ops.append('p')
        while nxt < NST and nxt <= st + max(D, NW-1 if st == 0 else 0) :
            if nxt == 6:
                A(f"s_waitcnt vmcnt({len(ops)-1-ops.index('p')})")
                poll_h(A, 14, False)
            ops += [nxt]*issue_h(nxt); ops += [nxt]*issue_w(nxt); nxt += 1
    if OPT['cpf']:
        A("s_lshl_b32 s34, s32, 2", "s_add_u32 s34, s34, s33", "s_cmp_ge_u32 s34, 1", "s_cbranch_scc1 Lk1_end")
        A("s_mov_b64 exec, 0x7ffffff")
        cpf(A, "k3_kernel", None, s=(36,38))
    A("s_branch Lk1_end")

def g2_compute(A):
    NST = 14
    XA, WA = 208, lambda mt: 209 + mt
    A("s_lshr_b32 s30, s32, 2", "s_and_b32 s50, s31, 1")
    A("s_lshl_b32 s35, s34, 13", f"v_lshl_add_u32 v{XA}, v0, 4, s35")
    A("v_bfe_u32 v4, v0, 2, 2", "v_lshl_add_u32 v5, v2, 2, v4", "v_lshlrev_b32 v5, 8, v5",
      "v_bfe_u32 v6, v0, 4, 1", "v_lshl_add_u32 v5, v6, 5, v5", "v_and_b32 v6, 3, v0", "v_lshl_add_u32 v5, v6, 3, v5",
      "s_lshl_b32 s35, s33, 1", "v_xor_b32 v6, s35, v4", f"v_lshl_add_u32 v{WA(0)}, v6, 6, v5", f"v_xor_b32 v{WA(1)}, 64, v{WA(0)}")
    srd(A, 24, 6, P_SZ, P_OFF)
    A("v_mov_b32 v240, v222", "v_mov_b32 v244, v223")
    for r in (241,242,243,245,246,247,249,250,251): A(f"v_mov_b32 v{r}, 0")
    A("v_cmp_gt_u32 vcc, 32, v0", "v_mov_b32 v5, 0x3f80", "s_nop 0", "v_cndmask_b32 v248, 0, v5, vcc")
    A("v_lshlrev_b32 v5, 9, v2", "v_lshl_add_u32 v7, v1, 3, v5",
      "s_lshl_b32 s40, s29, 2", "s_lshl_b32 s42, s34, 1", "s_add_u32 s40, s40, s42", "s_mul_i32 s40, s40, 10",
      "s_lshl_b32 s42, s30, 1", "s_add_u32 s40, s40, s42", "s_add_u32 s40, s40, s33", "s_lshl_b32 s40, s40, 12",
      f"s_mul_i32 s42, s50, {P_SZ//2}", "s_add_u32 s44, s40, s42", "s_add_u32 s45, s44, 40960")
    for mt in range(2):
        for nt in range(2):
            A(f"{M32} {vr(ACC(mt,nt),16)}, v[248:251], {vr(240+4*mt,4)}, 0")
    if OPT.get('gate') == 'm': A("s_barrier")
    A("s_waitcnt vmcnt(0)", *set_flag(254, 11, "s48", 128))
    if OPT.get('gate') == 'l': A("s_barrier")
    base = [0]
    def reads(st):
        p = st & 1; slot = (st % RING) * 32768
        L = []
        nb = slot & ~0xffff
        if nb != base[0]:
            for r in range(208, 211): L.append(f"v_xor_b32 v{r}, 0x10000, v{r}")
            base[0] = nb
        so = slot - nb
        for kk in range(4 if st < 13 else 2):
            for mt in range(2):
                for jh in range(2):
                    L.append(f"ds_read_b64_tr_b16 {vr(FB(p,kk,2+mt)+2*jh,2)}, v{WA(mt)} offset:{so+16384+(16*kk+8*jh)*256}")
            for nt in range(2):
                L.append(f"ds_read_b128 {vr(FB(p,kk,nt),4)}, v{XA} offset:{so+nt*4096+kk*1024}")
        return L
    mm = lambda p, kk, mt, nt: f"{M32} {vr(ACC(mt,nt),16)}, {vr(FB(p,kk,nt),4)}, {vr(FB(p,kk,2+mt),4)}, {vr(ACC(mt,nt),16)}"
    def mfmas(st):
        return [mm(st&1, kk, mt, nt) for kk in range(4) for mt in range(2) for nt in range(2)]
    compute_loop(A, NST, reads, mfmas, lambda st: [], lambda st: stamp(A, {0:4,1:5,7:6,13:7}[st]) if st in (0,1,7,13) else None)
    p = (NST-1) & 1
    def outp(mt, nt):
        L = []
        for a in range(4):
            a0 = ACC(mt,nt) + 4*a; o = FB(1-p,0,0) + ((mt*2+nt)*4+a)*2
            L += [f"v_cvt_pk_bf16_f32 v{o}, v{a0}, v{a0+1}", f"v_cvt_pk_bf16_f32 v{o+1}, v{a0+2}, v{a0+3}",
                  f"buffer_store_dwordx2 {vr(o,2)}, v7, s[24:27], s{44+nt} offen offset:{a*1024+mt*256} {OPT['sc_p']}"]
        return L
    tiles = [(mt,nt) for mt in range(2) for nt in range(2)]
    for i, (mt,nt) in enumerate(tiles):
        A(*[mm(p, kk, mt, nt) for kk in range(2)])
        if i >= 2: A(*outp(*tiles[i-2]))
    A(*outp(*tiles[2])); A(*outp(*tiles[3]))
    A("s_branch Lk1_end")

def hgen(Hl, HF, tvar):
    Hl(f"s_lshl_b32 s33, s{tvar}, 4", "v_add_u32 v14, s33, v1", "v_cvt_f32_u32 v15, v14", f"v_mul_f32 v15, {fl(1/160)}, v15", "v_mul_f32 v4, v7, v15")
    for bb in range(5):
        for ep in range(2):
            for e in range(2):
                Hl(f"v_fmamk_f32 v{8+e}, v15, {fl(float(16*bb+2*ep+e))}, v4")
            Hl("v_cos_f32 v10, v8", "v_cos_f32 v11, v9", "v_sin_f32 v12, v8", "v_sin_f32 v13, v9")
            if bb == 0 and ep == 0:
                Hl("v_cmp_gt_u32 vcc, 16, v0", "v_mov_b32 v8, 0.5", "s_nop 0", "v_cndmask_b32 v10, v10, v8, vcc")
            Hl(f"v_cvt_pk_bf16_f32 v{HF(bb)+ep}, v10, v11", f"v_cvt_pk_bf16_f32 v{HF(bb)+2+ep}, -v12, -v13")
    Hl("v_and_b32 v8, 1, v14", "v_lshlrev_b32 v8, 15, v8", "v_or_b32 v8, 0x3f80, v8", f"v_cndmask_b32 v{HF(5)}, 0, v8, vcc",
       f"v_mov_b32 v{HF(5)+1}, 0", f"v_mov_b32 v{HF(5)+2}, 0", f"v_mov_b32 v{HF(5)+3}, 0")

def p2(A):
    C = lambda t, ks: vr(16 + (t*2+ks)*4, 4)
    S = lambda t, ks: vr(48 + (t*2+ks)*4, 4)
    WV = lambda tau, pl, t, e: 80 + tau*32 + pl*16 + t*4 + e
    TB = lambda tau, ks, pl: 144 + tau*24 + (ks*3+pl)*4
    XA = lambda tau, pl, t: 192 + tau*32 + pl*16 + t*4
    PK = 80
    WIMG = 32768
    stamp(A, 8)
    A("s_load_dwordx4 s[8:11], s[0:1], 8", "s_load_dwordx2 s[48:49], s[0:1], 48")
    A("s_sub_u32 s33, s32, 20", "s_mul_i32 s34, s33, 43", "s_lshr_b32 s34, s34, 7", "s_mul_i32 s35, s34, 3", "s_sub_u32 s45, s33, s35",
      "s_lshl_b32 s29, s31, 2", "s_add_u32 s29, s29, s34", "s_and_b32 s46, s28, 3")
    A("s_mov_b32 s34, 0x9a543210", "s_mov_b32 s35, 0x8876", "s_lshl_b32 s33, s45, 2", "s_add_u32 s33, s33, s46", "s_lshl_b32 s33, s33, 2",
      "s_lshr_b64 s[34:35], s[34:35], s33", "s_and_b32 s30, s34, 15")
    A("s_lshl_b32 s47, s45, 6", "s_cmp_eq_u32 s45, 2", "s_cselect_b32 s47, 113, s47")
    A("s_mul_i32 s43, s29, 90112", "s_lshl_b32 s34, s30, 13", "s_add_u32 s43, s43, s34", "s_lshr_b32 s34, s28, 2", "s_lshl_b32 s34, s34, 12",
      "s_add_u32 s43, s43, s34", "s_lshl_b32 s35, s46, 13", "s_add_u32 s44, s35, s34")
    A("v_lshrrev_b32 v4, 3, v0", "v_lshl_add_u32 v4, v4, 5, s29", "v_mul_u32_u24 v4, 642, v4", "v_and_b32 v5, 7, v0", "v_lshl_add_u32 v4, v5, 4, v4",
      "s_lshl_b32 s34, s47, 1", "s_bfe_u32 s36, s28, 0x10001", "s_mulk_i32 s36, 320", "s_add_u32 s34, s34, s36",
      "s_and_b32 s36, s28, 1", f"s_mul_i32 s36, s36, {32*20544}", "s_add_u32 s34, s34, s36", "v_add_u32 v4, s34, v4")
    A("s_waitcnt lgkmcnt(0)")
    srd(A, 12, 6, T_SZ, T_OFF); srd(A, 24, 6, U_SZ, U_OFF)
    A("s_cmp_lt_u32 s28, 4", "s_cselect_b32 s16, s8, s10", "s_cselect_b32 s17, s9, s11", f"s_mov_b32 s18, {WF_SZ}", "s_mov_b32 s19, 0x00020000")
    A("s_barrier")
    A("s_lshl_b32 s36, s28, 12")
    def wdma():
        for q in range(4):
            A(f"s_add_u32 m0, s36, {WIMG+1024*q}", f"s_mov_b32 s34, {q*8*20544}", "buffer_load_dwordx4 v4, s[16:19], s34 offen lds")
    A("s_cmp_lg_u32 s28, 4", "s_cbranch_scc1 Lp2_np")
    A("s_waitcnt vmcnt(0)", "v_mov_b32 v12, 0")
    chk_cleared(A, 18, 12)
    A("v_and_b32 v13, 31, v0", "v_lshlrev_b32 v13, 7, v13", "v_lshrrev_b32 v14, 5, v0", "v_lshl_add_u32 v13, v14, 3, v13", f"s_mov_b32 s37, {32*8192}", "s_mov_b32 s3, 0",
      *pollop("s37"))
    wdma()
    A("s_waitcnt vmcnt(4)", "s_branch Lp2_pc", "Lp2_poll:",
      *pollop("s37"), "s_waitcnt vmcnt(0)", "Lp2_pc:",
      "v_cmp_eq_u64 vcc, v[20:21], v[18:19]", "s_add_u32 s3, s3, 1", "s_nop 0",
      "s_cmp_eq_u64 vcc, -1", "s_cbranch_scc1 Lp2_hb", "s_sleep 4", f"s_cmp_lt_u32 s3, {SPIN_MAX}", "s_cbranch_scc1 Lp2_poll", "s_branch Lp2_hb")
    A("Lp2_np:")
    wdma()
    A("v_and_b32 v1, 15, v0", "v_lshrrev_b32 v2, 4, v0", "v_cvt_f32_u32 v7, v2", "v_mul_f32 v7, 4.0, v7")
    def tdma():
        A("s_mov_b32 m0, s44", "v_lshlrev_b32 v8, 4, v0")
        for i in range(4): A(f"buffer_load_dwordx4 v8, s[12:15], s43 offen offset:{1024*i} sc1 lds")
    A("s_cmp_lt_u32 s28, 4", "s_cbranch_scc1 Lp2_main")
    A("Lp2_hb:", "s_barrier")
    tdma()
    A("s_waitcnt vmcnt(0)", "s_barrier", "s_branch Lk1_end")
    A("Lp2_main:")
    A("v_cvt_f32_u32 v5, v1", f"v_mul_f32 v5, {fl(1/64)}, v5", "v_add_f32 v6, 0x3e800000, v5",
      "v_and_b32 v14, 1, v0", "v_mov_b32 v15, 0x80008000", "v_mul_lo_u32 v14, v14, v15", "v_xor_b32 v15, 0x80000000, v14")
    for t in range(2):
        for jp in range(4):
            for e in range(2):
                j = 2*jp+e
                A(f"v_add_f32 v{8+e}, {fl(float(16*(j>>2)+(j&3)))}, v7", f"v_mul_f32 v{8+e}, v{8+e}, v{5+t}")
            c0 = 16+t*8+jp; s0 = 48+t*8+jp
            A("v_cos_f32 v10, v8", "v_cos_f32 v11, v9", "v_sin_f32 v12, v8", "v_sin_f32 v13, v9",
              f"v_cvt_pk_bf16_f32 v{c0}, v10, v11", f"v_cvt_pk_bf16_f32 v{s0}, v12, v13")
            for b in (c0, s0):
                A(f"v_xor_b32 v{b+4}, v14, v{b}", f"v_xor_b32 v{b+16}, 0x80000000, v{b}", f"v_xor_b32 v{b+20}, v15, v{b}")
    A("v_lshrrev_b32 v5, 2, v0", "v_lshlrev_b32 v5, 7, v5", "v_and_b32 v7, 3, v0", "v_lshl_add_u32 v5, v7, 4, v5", "v_add_u32 v5, s35, v5",
      "v_lshrrev_b32 v8, 3, v0", "s_mov_b32 s33, 45056", "v_mul_lo_u32 v6, v8, s33", "v_and_b32 v9, 7, v0", "v_lshl_add_u32 v6, v9, 4, v6",
      "s_lshl_b32 s36, s30, 12", "s_lshl_b32 s33, s29, 7", "s_add_u32 s36, s36, s33",
      "v_xor_b32 v10, v8, v9", "v_lshl_add_u32 v3, v8, 7, s35", "v_lshl_add_u32 v3, v10, 4, v3",
      "v_xor_b32 v10, v2, v9", "v_lshl_add_u32 v7, v1, 7, s35", "v_lshl_add_u32 v7, v10, 4, v7")
    A("s_lshl_b32 s33, s30, 4", "v_add_u32 v8, s33, v1", "v_sub_u32 v9, 256, v8",
      "s_cmp_lt_u32 s30, 6", "s_cselect_b64 vcc, -1, 0", "v_cndmask_b32 v8, v9, v8, vcc", "v_subrev_u32 v8, s47, v8",
      "v_lshlrev_b32 v4, 9, v2", "v_lshl_add_u32 v4, v8, 1, v4")
    stamp(A, 9)
    A("s_barrier")
    stamp(A, 10)
    tdma()
    A("s_waitcnt vmcnt(0)", "s_barrier")
    stamp(A, 11)
    A("s_lshl_b32 s33, s45, 2", "s_add_u32 s33, s33, s46", "s_cmp_eq_u32 s33, 11", "s_cbranch_scc1 Lk1_end")
    def treads(tau):
        return [f"ds_read_b64_tr_b16 {vr(TB(tau,ks,pl)+2*jh,2)}, v5 offset:{(32*ks+16*jh)*128+tau*64+pl*8}" for ks in range(2) for pl in range(2) for jh in range(2)]
    def wreads(tau):
        return [f"ds_read_u16_d16_hi v{WV(tau,pl,t,e)}, v4 offset:{WIMG+(pl*2+tau)*8192+(16*t+e)*128}" for t in range(4) for e in range(4) for pl in range(2)]
    M = M16
    def st2(tau):
        L = []
        for t in range(4):
            re = vr(XA(tau,0,t),4); im = vr(XA(tau,1,t),4)
            for ks in range(2):
                tr = vr(TB(tau,ks,0),4); ti = vr(TB(tau,ks,1),4)
                L += [f"{M} {re}, {C(t,ks)}, {tr}, {'0' if ks==0 else re}", f"{M} {im}, {C(t,ks)}, {ti}, {'0' if ks==0 else im}",
                      f"{M} {re}, {S(t,ks)}, {ti}, {re}", f"{M} {im}, {S(t,ks)}, {vr(TB(tau,ks,2),4)}, {im}"]
        return L
    def wmul(tau):
        L = []
        for t in range(4):
            for e in range(4):
                xr = XA(tau,0,t)+e; xi = XA(tau,1,t)+e; wr = WV(tau,0,t,e); wi = WV(tau,1,t,e)
                L += [f"v_mul_f32 v{8+e}, v{xr}, v{wr}", f"v_mul_f32 v{12+e}, v{xr}, v{wi}",
                      f"v_fma_f32 v{8+e}, -v{xi}, v{wi}, v{8+e}", f"v_fmac_f32 v{12+e}, v{xi}, v{wr}"]
            for pl in range(2):
                d = TB(tau, t>>1, pl) + (t&1)*2
                L += [f"v_cvt_pk_bf16_f32 v{d}, v{8+4*pl}, v{9+4*pl}", f"v_cvt_pk_bf16_f32 v{d+1}, v{10+4*pl}, v{11+4*pl}"]
            d = TB(tau, t>>1, 2) + (t&1)*2
            L += [f"v_cvt_pk_bf16_f32 v{d}, -v12, -v13", f"v_cvt_pk_bf16_f32 v{d+1}, -v14, -v15"]
        return L
    def negT(tau):
        return [f"v_xor_b32 v{TB(tau,ks,2)+j}, 0x80008000, v{TB(tau,ks,0)+j}" for ks in range(2) for j in range(4)]
    def st3(tau):
        L = []
        for nt in range(4):
            re = vr(XA(tau,0,nt),4); im = vr(XA(tau,1,nt),4)
            for ks in range(2):
                xr = vr(TB(tau,ks,0),4); xi = vr(TB(tau,ks,1),4)
                L += [f"{M} {re}, {xr}, {C(nt,ks)}, {'0' if ks==0 else re}", f"{M} {im}, {xi}, {C(nt,ks)}, {'0' if ks==0 else im}",
                      f"{M} {re}, {vr(TB(tau,ks,2),4)}, {S(nt,ks)}, {re}", f"{M} {im}, {xr}, {S(nt,ks)}, {im}"]
        return L
    def outp(tau):
        L = []
        for nt in range(4):
            pk = PK + 4*nt + 16*tau; re = XA(tau,0,nt); im = XA(tau,1,nt)
            L += [f"v_cvt_pk_bf16_f32 v{pk}, v{re}, v{re+1}", f"v_cvt_pk_bf16_f32 v{pk+1}, v{re+2}, v{re+3}",
                  f"v_cvt_pk_bf16_f32 v{pk+2}, v{im}, v{im+1}", f"v_cvt_pk_bf16_f32 v{pk+3}, v{im+2}, v{im+3}",
                  f"ds_write_b128 v7, {vr(pk,4)} offset:{nt*2048}"]
        return L
    A(*treads(0)); A(*treads(1))
    A("s_waitcnt lgkmcnt(8)")
    A(*negT(0))
    A(*st2(0)[:8])
    A("s_waitcnt lgkmcnt(0)")
    A(*spread(st2(0)[8:], negT(1) + wreads(0)))
    A("s_waitcnt lgkmcnt(0)")
    A(*spread(st2(1), interleave(wmul(0), wreads(1), 2)))
    A("s_waitcnt lgkmcnt(0)")
    A(*spread(st3(0), wmul(1)))
    S3 = st3(1); O1 = outp(1)
    A(*spread(S3[:16], outp(0) + ["v_xor_b32 v7, 64, v7"]))
    rb = lambda nt: [f"ds_read_b128 {vr(112+8*nt+4*q,4)}, v3 offset:{nt*2048+q*1024}" for q in range(2)]
    stq = lambda nt: [x for q in range(2) for x in (f"s_add_u32 s37, s36, {(16*nt+8*q)*45056}", f"buffer_store_dwordx4 {vr(112+8*nt+4*q,4)}, v6, s[24:27], s37 offen {OPT['sc_u']}")]
    A(*spread(S3[16:24], O1[0:5] + rb(0)))
    A(*spread(S3[24:32], O1[5:10] + rb(1)))
    A(*O1[10:15]); A(*rb(2))
    A("s_waitcnt lgkmcnt(6)"); A(*stq(0))
    A(*O1[15:20]); A(*rb(3))
    A("s_waitcnt lgkmcnt(6)"); A(*stq(1))
    A("s_waitcnt lgkmcnt(3)"); A(*stq(2))
    A("s_waitcnt lgkmcnt(0)"); A(*stq(3))

def k3(A):
    A("k3_kernel:")
    A("s_cmp_ge_u32 s2, 256", "s_cbranch_scc1 Lk3_end_x")
    kstart(A)
    A("s_load_dwordx2 s[4:5], s[0:1], 0", "s_load_dwordx2 s[6:7], s[0:1], 64", "s_load_dwordx2 s[40:41], s[0:1], 80")
    A("v_lshrrev_b32 v1, 6, v0", "v_and_b32 v0, 63, v0", "v_readfirstlane_b32 s28, v1")
    A("s_and_b32 s31, s2, 7", "s_lshr_b32 s32, s2, 3")
    A("s_lshl_b32 s29, s31, 3", "s_lshr_b32 s33, s32, 2", "s_add_u32 s29, s29, s33", "s_and_b32 s30, s32, 1")
    A("v_lshlrev_b32 v3, 4, v0", "v_and_b32 v1, 15, v0", "v_lshrrev_b32 v2, 4, v0")
    A("s_lshl_b32 s33, s30, 10", "s_add_u32 s33, s33, s29", "v_lshl_add_u32 v5, v1, 6, s33")
    ZIMG = 49152
    M = M16
    A("s_cmp_ge_u32 s28, 6", "s_cbranch_scc1 Lk3_back")
    A("s_setprio 1")
    GC, GS, GN = 16, 20, 24
    TWc = lambda r: 28 + (r-1)*8
    TWs = lambda r: 32 + (r-1)*8
    UA = lambda ty, tau, pl: 52 + ((ty*2+tau)*2+pl)*4
    VA = lambda ty, tau, pl: 84 + ((ty*2+tau)*2+pl)*4
    TT = 116
    A("s_mul_i32 s33, s29, 45056", "s_lshl_b32 s34, s28, 12", "s_add_u32 s33, s33, s34", f"s_add_u32 s34, s33, {6*4096}",
      "s_lshl_b32 s35, s28, 13", "s_mov_b32 m0, s35",
      "s_cmp_eq_u32 s28, 5", "s_cselect_b32 s36, 0x80000000, 0", "v_or_b32 v4, s36, v3")
    A("s_waitcnt lgkmcnt(0)")
    srd(A, 12, 40, U_SZ, U_OFF)
    for i in range(4): A(f"buffer_load_dwordx4 v3, s[12:15], s33 offen offset:{1024*i} lds")
    A("s_add_u32 m0, s35, 4096", "s_nop 0")
    for i in range(4): A(f"buffer_load_dwordx4 v4, s[12:15], s34 offen offset:{1024*i} lds")
    SC = 2/(640*2048)
    A("v_cvt_f32_u32 v5, v5", f"v_mul_f32 v5, {fl(1/2048)}, v5", "v_cvt_f32_u32 v7, v2", "v_mul_f32 v7, 4.0, v7", f"s_mov_b32 s37, {fl(SC)}", "v_mul_f32 v6, v7, v5")
    for jp in range(4):
        for e in range(2):
            j = 2*jp+e
            A(f"v_fmamk_f32 v{8+e}, v5, {fl(float(16*(j>>2)+(j&3)))}, v6")
        A("v_cos_f32 v10, v8", "v_cos_f32 v11, v9", "v_sin_f32 v12, v8", "v_sin_f32 v13, v9")
        A(f"v_cvt_pk_bf16_f32 v{GC+jp}, v10, v11", f"v_cvt_pk_bf16_f32 v{GS+jp}, v12, v13", f"v_cvt_pk_bf16_f32 v{GN+jp}, -v12, -v13")
    A("v_lshrrev_b32 v5, 2, v0", "v_lshlrev_b32 v5, 7, v5", "v_and_b32 v8, 3, v0", "v_lshl_add_u32 v5, v8, 4, v5", "v_add_u32 v5, s35, v5")
    A("s_lshl_b32 s33, s28, 4", "v_cvt_f32_u32 v8, s33", "v_add_f32 v8, v8, v7")
    for e in range(4):
        A(f"v_add_f32 v9, {fl(float(e))}, v8")
        for r in (1,2,3):
            A(f"v_mul_f32 v10, {fl(r/640)}, v9", f"v_cos_f32 v{TWc(r)+e}, v10", f"v_sin_f32 v{TWs(r)+e}, v10")
    A("s_lshl_b32 s33, s28, 12", f"s_add_u32 s33, s33, {ZIMG}", "v_add_u32 v6, s33, v3")
    stamp(A, 1)
    A("s_waitcnt vmcnt(0)")
    stamp(A, 2)
    order = [(0,0),(1,1),(0,1),(1,0)]
    for ty, tau in order:
        for pl in range(2):
            for jh in range(2):
                A(f"ds_read_b64_tr_b16 {vr(UA(ty,tau,pl)+2*jh,2)}, v5 offset:{ty*4096+jh*2048+tau*64+pl*8}")
    for n, (ty, tau) in enumerate(order):
        re = vr(VA(ty,tau,0),4); im = vr(VA(ty,tau,1),4); ur = vr(UA(ty,tau,0),4); ui = vr(UA(ty,tau,1),4)
        A(f"s_waitcnt lgkmcnt({12-4*n})")
        A(f"{M} {re}, {ur}, {vr(GC,4)}, 0", f"{M} {im}, {ui}, {vr(GC,4)}, 0", f"{M} {re}, {ui}, {vr(GN,4)}, {re}", f"{M} {im}, {ur}, {vr(GS,4)}, {im}")
    def pk(op, d, a, b, c=None, nb=False, na=False):
        s = f"v_pk_{op}_f32 {vr(d,2)}, {vr(a,2)}, {vr(b,2)}" + (f", {vr(c,2)}" if c is not None else "")
        n = [int(na), int(nb)] + ([0] if c is not None else [])
        if na or nb: s += f" neg_lo:[{','.join(map(str,n))}] neg_hi:[{','.join(map(str,n))}]"
        return s
    Ar,Ai,Br,Bi,Dr,Di,Cr,Ci = [VA(ty,tau,pl) for ty in range(2) for tau in range(2) for pl in range(2)]
    pr,pi,qr,qi,ur,ui,wr,wi = [TT+4*i for i in range(8)]
    Z = lambda r, pl: 52 + (r*2+pl)*4
    for e in (0,2):
        A(pk('add',pr+e,Ar+e,Cr+e), pk('add',pi+e,Ai+e,Ci+e,nb=True), pk('add',qr+e,Ar+e,Cr+e,nb=True), pk('add',qi+e,Ai+e,Ci+e))
    for e in (0,2):
        A(pk('add',ur+e,Br+e,Dr+e), pk('add',ui+e,Bi+e,Di+e,nb=True), pk('add',wr+e,Br+e,Dr+e,nb=True), pk('add',wi+e,Bi+e,Di+e))
    b = lambda r, pl: 84 + (r*2+pl)*4
    for e in (0,2):
        A(pk('add',Z(0,0)+e,pr+e,ur+e), pk('add',Z(0,1)+e,pi+e,ui+e), pk('add',b(2,0)+e,pr+e,ur+e,nb=True), pk('add',b(2,1)+e,pi+e,ui+e,nb=True),
          pk('add',b(1,0)+e,qr+e,wi+e,nb=True), pk('add',b(1,1)+e,qi+e,wr+e), pk('add',b(3,0)+e,qr+e,wi+e), pk('add',b(3,1)+e,qi+e,wr+e,nb=True))
    for r in range(4):
        if r:
            for e in (0,2):
                A(pk('mul',Z(r,0)+e,b(r,0)+e,TWc(r)+e), pk('mul',Z(r,1)+e,b(r,0)+e,TWs(r)+e))
            for e in (0,2):
                A(pk('fma',Z(r,0)+e,b(r,1)+e,TWs(r)+e,Z(r,0)+e,na=True), pk('fma',Z(r,1)+e,b(r,1)+e,TWc(r)+e,Z(r,1)+e))
        o = TT + 4*r
        for j in range(4): A(f"v_cvt_pk_bf16_f32 v{o+j}, v{Z(r,0)+2*j}, v{Z(r,0)+2*j+1}")
        A(f"ds_write_b128 v6, {vr(o,4)} offset:{r*1024}")
    A("s_waitcnt lgkmcnt(0)")
    stamp(A, 3)
    A("s_barrier", "s_branch Lk3_end")
    A("Lk3_back:")
    HF = lambda bb: 16 + 4*bb
    XR, P0, P1 = 40, 48, 56
    GU = 64
    XU = 80
    ZF = lambda bb, r: 96 + ((bb % 3)*4+r)*4
    AC = lambda r: 144 + 4*r
    A("s_bfe_u32 s33, s32, 0x10001", "s_mul_i32 s33, s33, 5", "s_add_u32 s42, s33, s28", "s_sub_u32 s42, s42, 6")
    A("s_lshl_b32 s33, s30, 10", "s_add_u32 s33, s33, s29", "v_lshl_add_u32 v6, v2, 8, s33", "v_mul_u32_u24 v6, 1280, v6", "v_lshl_add_u32 v6, v1, 3, v6",
      "s_lshl_b32 s44, s42, 7", "s_add_u32 s45, s44, 81920", "s_add_u32 s46, s45, 81920", "s_add_u32 s47, s46, 81920", "v_lshlrev_b32 v5, 5, v0")
    A("s_mul_i32 s48, s29, 10", "s_add_u32 s48, s48, s42", "s_lshl_b32 s48, s48, 12", "s_lshl_b32 s34, s30, 11", "s_add_u32 s48, s48, s34",
      f"s_add_u32 s49, s48, {P_SZ//2}", "v_cvt_f32_u32 v7, v2", "v_mul_f32 v7, 4.0, v7")
    Hl = Asm(); hgen(Hl, HF, 42)
    n0 = OPT.get('k3d', 60)
    A(*Hl.lines[:n0])
    A("s_waitcnt lgkmcnt(0)")
    srd(A, 20, 40, P_SZ, P_OFF); srd(A, 16, 4, X_SZ); srd(A, 24, 6, X_SZ)
    for half in range(2):
        A(f"buffer_load_dwordx4 {vr(P0+4*half,4)}, v5, s[20:23], s48 offen offset:{16*half}",
          f"buffer_load_dwordx4 {vr(P1+4*half,4)}, v5, s[20:23], s49 offen offset:{16*half}")
    for e in range(4):
        A(f"buffer_load_dwordx2 {vr(XR+2*e,2)}, v6, s[16:19], s{44+e} offen")
    A(*Hl.lines[n0:])
    SC = 2/(640*2048)
    A(f"s_mov_b32 s36, {fl(-1.4426950408889634)}", f"s_mov_b32 s38, {fl(1/SC)}", f"v_add_u32 v4, {ZIMG}, v3")
    stamp(A, 1)
    def gpart(half):
        G = Asm(); g = GU + 8*half; t = XU
        G(f"s_waitcnt vmcnt({6-2*half})")
        for q in range(4):
            G(f"v_lshlrev_b32 v{g+2*q}, 16, v{P0+4*half+q}", f"v_and_b32 v{g+2*q+1}, 0xffff0000, v{P0+4*half+q}",
              f"v_lshlrev_b32 v{t+2*q}, 16, v{P1+4*half+q}", f"v_and_b32 v{t+2*q+1}, 0xffff0000, v{P1+4*half+q}")
        for i in range(8): G(f"v_add_f32 v{g+i}, v{g+i}, v{t+i}")
        for i in range(8): G(f"v_mul_f32 v{t+i}, s36, v{g+i}")
        for i in range(8): G(f"v_exp_f32 v{t+i}, v{t+i}")
        for i in range(8): G(f"v_fma_f32 v{t+i}, v{t+i}, s38, s38")
        for i in range(8): G(f"v_rcp_f32 v{t+i}, v{t+i}")
        for i in range(8): G(f"v_mul_f32 v{g+i}, v{g+i}, v{t+i}")
        return G.lines
    ng = OPT.get('k3g', 1)
    for half in range(ng): A(*gpart(half))
    stamp(A, 2)
    A("s_barrier")
    stamp(A, 3)
    def zr(bb): return [f"ds_read_b128 {vr(ZF(bb,r),4)}, v4 offset:{(bb*4+r)*1024}" for r in range(4)]
    for bb in range(3): A(*zr(bb))
    for bb in range(6):
        A(f"s_waitcnt lgkmcnt({min(8,4*(5-bb))})")
        for r in range(4):
            A(f"{M} {vr(AC(r),4)}, {vr(ZF(bb,r),4)}, {vr(HF(bb),4)}, {'0' if bb==0 else vr(AC(r),4)}")
        if bb < 3: A(*zr(bb+3))
    for half in range(ng, 2): A(*gpart(half))
    A("s_waitcnt vmcnt(0)")
    for q in range(8):
        A(f"v_lshlrev_b32 v{XU+2*q}, 16, v{XR+q}", f"v_and_b32 v{XU+2*q+1}, 0xffff0000, v{XR+q}")
    for e in range(4):
        for r in range(4):
            A(f"v_fmac_f32 v{XU+4*e+r}, v{AC(r)+e}, v{GU+4*r+e}")
        for q in (2*e, 2*e+1):
            A(f"v_cvt_pk_bf16_f32 v{XR+q}, v{XU+2*q}, v{XU+2*q+1}")
        A(f"buffer_store_dwordx2 {vr(XR+2*e,2)}, v6, s[24:27], s{44+e} offen {OPT['sc_o']}")
    kend(A, 2, "Lk3_end")

def kd(name, vgpr, sgpr=100, accum=None):
    accum = accum or min(256, (vgpr+3)//4*4)
    return f""".amdhsa_kernel {name}
  .amdhsa_next_free_vgpr {vgpr}
  .amdhsa_next_free_sgpr {sgpr}
  .amdhsa_accum_offset {accum}
  .amdhsa_group_segment_fixed_size 0
  .amdhsa_kernarg_size 88
  .amdhsa_user_sgpr_count 2
  .amdhsa_user_sgpr_kernarg_segment_ptr 1
  .amdhsa_system_sgpr_workgroup_id_x 1
.end_amdhsa_kernel
"""

def build(kernels):
    hdr = open(f"cdna_kernels/{NAME}.s.ref").read().split("; Override")[0]
    out = hdr
    for (name, fn, grid, block, lds, vg) in kernels:
        out += f"; @launch kernel={name} grid=({grid},1,1) block=({block},1,1) lds={lds}\n"
    out += '.amdgcn_target "amdgcn-amd-amdhsa--gfx950"\n.text\n'
    seen = []
    for (name, fn, grid, block, lds, vg) in kernels:
        if name in seen: continue
        seen.append(name)
        A = Asm(); fn(A)
        out += f".globl {name}\n.p2align 8\n.type {name},@function\n" + A.text()
    out += '.section .rodata,"a"\n'
    seen = []
    for (name, fn, grid, block, lds, vg) in kernels:
        if name in seen: continue
        seen.append(name)
        out += ".p2align 6\n" + kd(name, vg)
    return out

KS = [("k1_kernel", k1, 256, 512, 133120, 256), ("k3_kernel", k3, 256, 704, 98304, 160)]

if __name__ == '__main__':
    DIAG = len(sys.argv) > 2 and sys.argv[2] == 'diag'
    for kv in sys.argv[3:]:
        k, v = kv.split('='); OPT[k] = eval(v)
    open(sys.argv[1] if len(sys.argv) > 1 else 'cur.s', 'w').write(build(KS))
```

```python
import sys, math
from asmlib import *

NAME = "recurrent_scan__spectral_gfnet__dense_activation_gelu__prompt"
H_OFF, H_SZ = 0, 2048*1728*2
T_OFF, T_SZ = 0x700000, 32*11*64*128
U_OFF, U_SZ = 0xA00000, 32*11*64*128
P_OFF, P_SZ = 0xD00000, 2*2048*640*2
FL_OFF, FL_SZ = 0x1200000, 33*8192
X_SZ = 2048*640*2
W1_SZ = 640*1728*2
WF_SZ = 2048*321*2
OPT = dict(rot1='xcd', rot2=False, pf=False, mpf=False, lpf=True, ppf=False, nw=2, mpf1=False, sc_h='sc1', sc_t='sc1', sc_u='sc1', sc_p='sc1', sc_o='', map1='4x7', D=2, cpf=True, hpf=False, pfst=None)

def vr(b, n): return f"v[{b}:{b+n-1}]"
def srd(A, d, base, size, off=0):
    if off:
        A(f"s_add_u32 s{d}, s{base}, 0x{off:x}", f"s_addc_u32 s{d+1}, s{base+1}, 0")
    else:
        A(f"s_mov_b32 s{d}, s{base}", f"s_mov_b32 s{d+1}, s{base+1}")
    A(f"s_mov_b32 s{d+2}, {size}", f"s_mov_b32 s{d+3}, 0x00020000")

DIAG = False
DIAG_OFF = 0x2000000
def stamp(A, k):
    if DIAG:
        A(f"s_memrealtime s[{60+2*k}:{61+2*k}]", "s_waitcnt lgkmcnt(0)")
def kstart(A):
    if DIAG:
        for k in range(60, 92): A(f"s_mov_b32 s{k}, 0")
        A("s_memrealtime s[60:61]", "s_memtime s[88:89]", "s_load_dwordx2 s[92:93], s[0:1], 80", "s_waitcnt lgkmcnt(0)")
def kend(A, kid, lab):
    A(f"{lab}:")
    if DIAG:
        A("s_memrealtime s[84:85]", "s_waitcnt vmcnt(0) lgkmcnt(0)", "s_memrealtime s[86:87]", "s_memtime s[90:91]", "s_waitcnt lgkmcnt(0)")
        A(f"s_add_u32 s92, s92, 0x{DIAG_OFF:x}", "s_addc_u32 s93, s93, 0", "s_mov_b32 s94, 0x1000000", "s_mov_b32 s95, 0x00020000")
        A(f"s_add_u32 s96, s2, {kid*256}", "s_lshl_b32 s96, s96, 4", "s_add_u32 s96, s96, s28", "s_lshl_b32 s96, s96, 6", "s_mov_b64 exec, -1", "v_mov_b32 v1, 0")
        for q in range(4):
            for j in range(4): A(f"v_mov_b32 v{4+j}, s{60+2*(4*q+j)}")
            A(f"buffer_store_dwordx4 v[4:7], v1, s[92:95], s96 offen offset:{16*q}", "s_nop 1")
    A("s_endpgm")
    A(f"{lab}_x:", "s_endpgm")

GA = -2*0.7978845608028654*1.4426950408889634
GB = GA*0.044715
ONES = "0x3f803f80"
M32 = "v_mfma_f32_32x32x16_bf16"
M16 = "v_mfma_f32_16x16x32_bf16"

def row_stats(A, sx, sxx, t0, t1, mean, sq):
    A(f"v_mul_f32 v{mean}, {fl(1/640)}, v{sx}",
      f"v_mul_f32 v{t0}, {fl(1/640)}, v{sxx}",
      f"v_fma_f32 v{t0}, -v{mean}, v{mean}, v{t0}",
      f"v_max_f32 v{t0}, 0, v{t0}",
      f"v_cvt_pk_bf16_f32 v{t0}, v{t0}, v{t0}",
      f"v_lshlrev_b32 v{t0}, 16, v{t0}",
      f"v_add_f32 v{t0}, {fl(1e-5)}, v{t0}",
      f"v_cvt_pk_bf16_f32 v{t0}, v{t0}, v{t0}",
      f"v_lshlrev_b32 v{t0}, 16, v{t0}",
      f"v_sqrt_f32 v{sq}, v{t0}")

RING = 4
def pollop(so):
    m = OPT.get('pm', 'at')
    if m == 'ld': return [f"buffer_load_dwordx2 v[20:21], v13, s[52:55], {so} offen sc1"]
    if m == 'sys': return [f"buffer_load_dwordx2 v[20:21], v13, s[52:55], {so} offen sc0 sc1"]
    if m == 'nt': return [f"buffer_load_dwordx2 v[20:21], v13, s[52:55], {so} offen sc1 nt"]
    return ["v_mov_b32 v20, 0", "v_mov_b32 v21, 0", f"buffer_atomic_add_x2 v[20:21], v13, s[52:55], {so} offen sc0 sc1"]
def set_flag(nv, va, soff, off=0):
    return ["s_mov_b64 exec, 0xffff", f"buffer_store_dwordx2 {vr(nv,2)}, v{va}, s[52:55], {soff} offen offset:{off} sc1", "s_mov_b64 exec, -1"]
SPIN_MAX = 0x20000
_pl = [0]
def sync_srds(A):
    srd(A, 52, 6, FL_SZ, FL_OFF); srd(A, 56, 50, 256)
def chk_cleared(A, v, vz):
    _pl[0] += 1; n = _pl[0]
    A(f"s_mov_b32 s3, 0", f"Lcc{n}:", f"v_readfirstlane_b32 s49, v{v}", "s_add_u32 s3, s3, 1", "s_cmp_lg_u32 s49, 0", f"s_cbranch_scc1 Lcd{n}",
      f"s_cmp_ge_u32 s3, {SPIN_MAX}", f"s_cbranch_scc1 Lcd{n}",
      f"buffer_load_dwordx2 {vr(v,2)}, v{vz}, s[56:59], 0 offen sc1", "s_waitcnt vmcnt(0)", f"s_branch Lcc{n}", f"Lcd{n}:")
_cpf_n = [0]
def cpf(A, target, sel, v=(14,15,13), s=(56,58)):
    _cpf_n[0] += 1; lab = f"Lcpf{_cpf_n[0]}"
    a, t = s
    A(f"s_getpc_b64 s[{a}:{a+1}]", f"{lab}:", f"s_add_u32 s{a}, s{a}, {target}-{lab}", f"s_addc_u32 s{a+1}, s{a+1}, ({target}-{lab})>>32")
    A(f"v_lshlrev_b32 v{v[0]}, 7, v0")
    if sel: A(f"s_lshl_b32 s{t}, {sel}, 13", f"v_add_u32 v{v[0]}, s{t}, v{v[0]}")
    A(f"v_mov_b32 v{v[1]}, s{a+1}", f"v_add_co_u32 v{v[0]}, vcc, s{a}, v{v[0]}", f"v_addc_co_u32 v{v[1]}, vcc, 0, v{v[1]}, vcc",
      f"global_load_dword v{v[2]}, v[{v[0]}:{v[1]}], off")
ACC = lambda mt, nt: 16 + (mt*2+nt)*16
FB = lambda p, kk, w: 80 + p*64 + kk*16 + w*4

def loader_loop(A, NST, issue, extra=None, D=None):
    D = D or OPT['D']
    ops = []
    for st in range(2): ops += [st]*(issue(st) or 8)
    nxt = 2
    if extra and OPT.get('lpfs') == 2: ops += ['x']*extra()
    for st in range(NST):
        last = max(i for i, x in enumerate(ops) if x == st)
        A(f"s_waitcnt vmcnt({len(ops)-1-last})", "s_barrier")
        while nxt < NST and nxt <= (st+D if st >= 1 else 2):
            ops += [nxt]*(issue(nxt) or 8); nxt += 1
            if extra and nxt == OPT.get('lpfs', NST): ops += ['x']*extra()

def compute_loop(A, NST, reads, mfmas, tail, stampf=None, gap=None):
    A("s_barrier")
    A(*reads(0))
    A("s_waitcnt lgkmcnt(0)")
    if stampf: stampf(0)
    A("s_barrier")
    for st in range(1, NST):
        M = mfmas(st-1)
        G = gap(st-1) if gap else []
        n1 = len(G) - 30 if G else 0
        A(*spread(M[:10], spread(reads(st), G[:n1])))
        A(*spread(M[10:13], G[n1:n1+15]))
        A("s_waitcnt lgkmcnt(0)")
        if stampf: stampf(st)
        if st < NST-1: A("s_barrier")
        A(*spread(M[13:], G[n1+15:]))
        A(*tail(st-1))

def k1(A):
    A("k1_kernel:")
    A("s_cmp_ge_u32 s2, 256", "s_cbranch_scc1 Lk1_end_x")
    kstart(A)
    A("s_load_dwordx2 s[4:5], s[0:1], 0", "s_load_dwordx4 s[8:11], s[0:1], 32", "s_load_dwordx2 s[6:7], s[0:1], 80", "s_load_dwordx2 s[50:51], s[0:1], 72", "s_load_dwordx2 s[36:37], s[0:1], 56")
    A("v_lshrrev_b32 v1, 6, v0", "v_and_b32 v0, 63, v0", "v_readfirstlane_b32 s28, v1")
    A("s_and_b32 s31, s2, 7", "s_lshr_b32 s32, s2, 3")
    if OPT['cpf']:
        A("s_lshl_b32 s33, s32, 3", "s_add_u32 s33, s33, s28", "s_cmp_ge_u32 s33, 4", "s_cbranch_scc1 Lk1_nc")
        cpf(A, "k1_kernel", "s28", v=(14,15,253))
        A("Lk1_nc:")
    A("s_cmp_ge_u32 s32, 28", "s_cbranch_scc1 Lp1")
    A("s_lshr_b32 s29, s31, 1", "s_lshl_b32 s29, s29, 2", "s_and_b32 s33, s32, 3", "s_add_u32 s29, s29, s33")
    A("s_and_b32 s30, s31, 1", "s_mul_i32 s30, s30, 7", "s_lshr_b32 s33, s32, 2", "s_add_u32 s30, s30, s33")
    A("s_cmp_lt_u32 s28, 4", "s_cbranch_scc1 Lg1c")
    g1_loader(A)
    g2_loader(A)
    A("Lg1c:")
    g1_compute(A)
    g2_compute(A)
    A("Lp1:")
    p1(A)
    A("Lp2:")
    p2(A)
    kend(A, 0, "Lk1_end")

def g1_loader(A):
    NST = 10
    A("s_sub_u32 s33, s28, 4")
    A("v_lshrrev_b32 v1, 3, v0", "v_and_b32 v2, 7, v0", "v_lshrrev_b32 v3, 4, v0",
      "s_lshl_b32 s34, s29, 2", "s_add_u32 s34, s34, s33",
      "v_lshl_add_u32 v1, v1, 6, s34", "v_mul_u32_u24 v1, 1280, v1",
      "v_xor_b32 v8, v2, v3", "v_xor_b32 v9, 4, v8",
      "v_lshl_add_u32 v4, v8, 4, v1", "v_lshl_add_u32 v5, v9, 4, v1",
      f"v_add_u32 v5, {8*64*1280}, v5", f"v_add_u32 v6, {16*64*1280}, v4", f"v_add_u32 v7, {16*64*1280}, v5")
    A("v_and_b32 v2, 15, v0", "v_lshlrev_b32 v8, 2, v3", "v_xor_b32 v2, v2, v8",
      "s_lshl_b32 s34, s33, 4", "v_add_u32 v8, s34, v3", "v_mul_u32_u24 v8, 3456, v8",
      "s_lshl_b32 s34, s30, 8", "v_lshl_add_u32 v10, v2, 4, v8", "v_add_u32 v10, s34, v10")
    A("s_cmp_eq_u32 s30, 13", "s_cselect_b32 s34, 8, 16",
      "v_cmp_le_u32 vcc, s34, v2", "v_mov_b32 v8, 0x80000000", "s_nop 0", "v_cndmask_b32 v10, v10, v8, vcc")
    A("s_lshl_b32 s40, s33, 12")
    if OPT['rot1']:
        if OPT['rot1'] == 'xcd':
            A("s_lshr_b32 s43, s31, 1", "s_mul_i32 s43, s43, 5", "s_lshr_b32 s43, s43, 1", "s_and_b32 s34, s31, 1", "s_mul_i32 s34, s34, 5", "s_add_u32 s43, s43, s34")
        elif OPT['map1'] == '2x14':
            A("s_mul_i32 s43, s30, 47", "s_lshr_b32 s43, s43, 6", "s_and_b32 s34, s29, 1", "s_mul_i32 s34, s34, 5", "s_add_u32 s43, s43, s34")
        else:
            A("s_lshr_b32 s43, s32, 2", "s_mul_i32 s43, s43, 92", "s_and_b32 s34, s32, 3", "s_mul_i32 s34, s34, 160", "s_add_u32 s43, s43, s34", "s_lshr_b32 s43, s43, 6")
        A("s_cmp_ge_u32 s43, 10", "s_cselect_b32 s34, 10, 0", "s_sub_u32 s43, s43, s34")
    else:
        A("s_mov_b32 s43, 0")
    A("s_waitcnt lgkmcnt(0)")
    srd(A, 12, 4, X_SZ); srd(A, 16, 8, W1_SZ)
    def issue(st):
        slot = (st % RING) * 32768
        A("s_lshl_b32 s41, s43, 7", f"s_mul_i32 s42, s43, {64*3456}")
        for q in range(4):
            A(f"s_add_u32 m0, s40, {slot + q*1024}", "s_nop 0", f"buffer_load_dwordx4 v{4+q}, s[12:15], s41 offen lds")
            A(f"s_add_u32 m0, s40, {slot + 16384 + q*1024}", "s_nop 0", f"buffer_load_dwordx4 v10, s[16:19], s42 offen lds")
            if q < 3: A(f"s_add_u32 s42, s42, {4*3456}")
        A("s_add_u32 s43, s43, 1", "s_cmp_eq_u32 s43, 10", "s_cselect_b32 s43, 0, s43")
    def extra():
        A("s_load_dwordx4 s[44:47], s[0:1], 8", "s_load_dwordx2 s[48:49], s[0:1], 48",
          "s_lshl_b32 s34, s2, 1", "s_add_u32 s34, s34, s33", "s_cmp_lt_u32 s33, 2", "s_cselect_b32 s34, s34, s2", "s_lshl_b32 s34, s34, 13",
          "v_lshl_add_u32 v11, v0, 7, s34", "s_waitcnt lgkmcnt(0)",
          "s_cmp_eq_u32 s33, 2", "s_cselect_b32 s20, s44, s46", "s_cselect_b32 s21, s45, s47",
          "s_cmp_lt_u32 s33, 2", "s_cselect_b32 s20, s48, s20", "s_cselect_b32 s21, s49, s21", f"s_mov_b32 s22, {W1_SZ}", f"s_cselect_b32 s22, s22, {WF_SZ}",
          "s_mov_b32 s23, 0x00020000", "v_mov_b32 v12, 0")
        sync_srds(A)
        A("buffer_load_dwordx2 v[18:19], v12, s[56:59], 0 offen sc1")
        if OPT.get('ftouch'):
            A("s_lshl_b32 s34, s29, 1", "s_lshr_b32 s35, s33, 1", "s_add_u32 s34, s34, s35", "s_cmp_lt_u32 s32, 20", "s_cselect_b32 s34, s34, 32", "s_lshl_b32 s34, s34, 13",
              "v_lshl_add_u32 v13, v0, 7, s34", "buffer_load_dword v22, v13, s[52:55], 0 offen sc1")
        A("buffer_load_dword v16, v11, s[20:23], 0 offen")
        return 3 if OPT.get('ftouch') else 2
    loader_loop(A, NST, issue, extra, OPT.get('D1'))
    A("s_barrier")
    A("s_cmp_ge_u32 s32, 20", "s_cbranch_scc1 Lp2")

def g1_compute(A):
    NST = 10
    XA = lambda kk, nt: 208 + kk*2 + nt
    WA = lambda mt: 216 + mt
    SX, SXX, CS, B1 = 218, 219, 220, 221
    A("s_and_b32 s33, s28, 1", "s_lshr_b32 s34, s28, 1")
    A("v_and_b32 v1, 31, v0", "v_lshrrev_b32 v2, 5, v0")
    A("s_lshl_b32 s35, s30, 7", "s_lshl_b32 s40, s33, 6", "s_add_u32 s35, s35, s40", "s_lshl_b32 s40, s34, 5", "s_add_u32 s35, s35, s40",
      "v_add_lshl_u32 v9, v1, s35, 1", f"v_mov_b32 v{B1}, 0")
    A("s_lshl_b32 s35, s34, 13", "s_lshl_b32 s40, s33, 12", "s_add_u32 s35, s35, s40",
      "v_lshl_add_u32 v3, v1, 7, s35", "v_bfe_u32 v4, v0, 1, 3", "v_xor_b32 v4, v4, v2")
    for kk in range(4):
        A(f"v_xor_b32 v5, {2*kk}, v4", f"v_lshl_add_u32 v{XA(kk,0)}, v5, 4, v3", f"v_xor_b32 v{XA(kk,1)}, 0x1000, v{XA(kk,0)}")
    A("v_bfe_u32 v4, v0, 2, 2", "v_lshl_add_u32 v5, v2, 3, v4", "v_lshlrev_b32 v5, 8, v5",
      "v_bfe_u32 v6, v0, 4, 1", "v_lshl_add_u32 v5, v6, 5, v5", "v_and_b32 v6, 3, v0", "v_lshl_add_u32 v5, v6, 3, v5",
      "s_lshl_b32 s35, s33, 1", "s_add_u32 s35, s35, s34",
      "v_xor_b32 v6, s35, v4", f"v_lshl_add_u32 v{WA(0)}, v6, 6, v5", f"v_xor_b32 v{WA(1)}, 64, v{WA(0)}")
    A(f"v_mov_b32 v{SX}, 0", f"v_mov_b32 v{SXX}, 0", f"v_mov_b32 v{CS}, 0", f"s_mov_b32 s41, {ONES}")
    A("s_waitcnt lgkmcnt(0)")
    srd(A, 20, 10, 1728*2); srd(A, 24, 6, H_SZ, H_OFF)
    A(f"buffer_load_short_d16_hi v{B1}, v9, s[20:23], 0 offen")
    srd(A, 16, 36, 640*2)
    A("s_lshr_b32 s35, s32, 2", "s_lshl_b32 s35, s35, 8", "s_lshl_b32 s40, s33, 7", "s_add_u32 s35, s35, s40",
      "s_lshl_b32 s40, s31, 31", "s_or_b32 s35, s35, s40", "v_lshl_add_u32 v9, v1, 1, s35",
      "buffer_load_ushort v222, v9, s[16:19], 0 offen", "buffer_load_ushort v223, v9, s[16:19], 0 offen offset:64")
    A("s_lshl_b32 s35, s30, 1", "s_add_u32 s35, s35, s33")
    for mt in range(2):
        for nt in range(2):
            s = 44 + mt*2 + nt
            A("s_lshl_b32 s40, s29, 2", "s_lshl_b32 s42, s34, 1", "s_add_u32 s40, s40, s42", f"s_xor_b32 s42, s33, {nt}", "s_add_u32 s40, s40, s42",
              "s_mulk_i32 s40, 108", "s_lshl_b32 s42, s35, 2", "s_add_u32 s40, s40, s42", f"s_xor_b32 s42, s34, {mt}",
              "s_add_u32 s40, s40, s42", f"s_lshl_b32 s{s}, s40, 10")
    XCH = 131072
    A("s_lshl_b32 s42, s34, 9", "s_lshl_b32 s40, s33, 8", "s_add_u32 s42, s42, s40", f"s_add_u32 s42, s42, {XCH}", "v_lshl_add_u32 v7, v1, 3, s42",
      "s_lshl_b32 s42, s33, 9", "s_lshl_b32 s40, s34, 8", "s_add_u32 s42, s42, s40", f"s_add_u32 s42, s42, {XCH}", "v_lshl_add_u32 v8, v1, 3, s42",
      "v_lshlrev_b32 v9, 4, v0")
    XF0, WF0, XF1, WF1 = 224, 228, 232, 236
    for r in (XF0, WF0, XF1, WF1):
        A(f"v_mov_b32 v{r+2}, 0", f"v_mov_b32 v{r+3}, 0")
    sync_srds(A)
    A("s_lshl_b32 s48, s29, 1", "s_add_u32 s48, s48, s34", "s_lshl_b32 s48, s48, 13", "s_lshl_b32 s40, s35, 8", "s_add_u32 s48, s48, s40", "v_mov_b32 v10, 0", "v_lshlrev_b32 v11, 3, v0")
    if OPT.get('tlb'):
        srd(A, 36, 6, 0x1400000)
        A("v_lshlrev_b32 v12, 21, v0", "v_add_u32 v12, 0x1fff80, v12", "s_cmp_lg_u32 s28, 1", "s_cbranch_scc1 Lg1_ntl", "buffer_load_dword v253, v12, s[36:39], 0 offen", "Lg1_ntl:")
    A("s_lshl_b32 s40, s2, 3", "s_add_u32 s40, s40, s28", "s_cmp_lg_u32 s40, 1737", "s_cbranch_scc1 Lg1_ncl")
    A("s_memrealtime s[36:37]", "s_waitcnt lgkmcnt(0)", "s_or_b32 s38, s36, 1", "v_mov_b32 v12, s38", "v_mov_b32 v13, s37",
      "s_mov_b64 exec, 1", "buffer_store_dwordx2 v[12:13], v10, s[56:59], 0 offen sc1", "s_mov_b64 exec, -1", "Lg1_ncl:")
    base = [0]
    def reads(st):
        p = st & 1; slot = (st % RING) * 32768
        L = []
        nb = slot & ~0xffff
        if nb != base[0]:
            for r in range(208, 218): L.append(f"v_xor_b32 v{r}, 0x10000, v{r}")
            base[0] = nb
        so = slot - nb
        for kk in range(4):
            for mt in range(2):
                for jh in range(2):
                    L.append(f"ds_read_b64_tr_b16 {vr(FB(p,kk,2+mt)+2*jh,2)}, v{WA(mt)} offset:{so+16384+(16*kk+4*jh)*256}")
            for nt in range(2):
                L.append(f"ds_read_b128 {vr(FB(p,kk,nt),4)}, v{XA(kk,nt)} offset:{so}")
        return L
    def mfmas(st):
        p = st & 1; L = []
        for kk in range(4):
            for mt in range(2):
                for nt in range(2):
                    c = "0" if (st == 0 and kk == 0) else vr(ACC(mt,nt),16)
                    L.append(f"{M32} {vr(ACC(mt,nt),16)}, {vr(FB(p,kk,2+mt),4)}, {vr(FB(p,kk,nt),4)}, {c}")
        return L
    def dots(st):
        p = st & 1; L = []
        for kk in range(4):
            for j in range(4):
                if not OPT.get('nostat'): L.append(f"v_dot2c_f32_bf16 v{SX}, s41, v{FB(p,kk,0)+j}")
                if (not OPT.get('sqv') or st == NST-1) and not OPT.get('nostat'): L.append(f"v_dot2c_f32_bf16 v{SXX}, v{FB(p,kk,0)+j}, v{FB(p,kk,0)+j}")
                L.append(f"v_dot2c_f32_bf16 v{CS}, s41, v{FB(p,kk,2)+j}")
        if st == 6: L.append("buffer_load_dwordx2 v[254:255], v10, s[56:59], 0 offen sc1")
        return L
    def sqgap(st):
        p = st & 1; L = []
        for kk in range(4):
            for j in range(4):
                r = FB(p,kk,0)+j
                L += [f"v_lshlrev_b32 v3, 16, v{r}", f"v_and_b32 v4, s51, v{r}", "v_fmac_f32 v222, v3, v3", "v_fmac_f32 v223, v4, v4"]
        return L
    pass
    compute_loop(A, NST, reads, mfmas, dots, lambda st: stamp(A, 1) if st == 0 else None)
    A(*dots(NST-1))
    M = mfmas(NST-1)
    F = Asm()
    if OPT.get('sqv'): F(f"v_add_f32 v{SXX}, v{SXX}, v222", f"v_add_f32 v{SXX}, v{SXX}, v223")
    for r in (SX, SXX, CS):
        F(f"v_mov_b32 v3, v{r}", "s_nop 1", f"v_permlane32_swap_b32 v{r}, v3", f"v_add_f32 v{r}, v{r}, v3")
    row_stats(F, SX, SXX, 3, 4, 5, 6)
    F(f"v_cvt_pk_bf16_f32 v{XF0}, -v5, -v5", f"v_cvt_pk_bf16_f32 v{XF0+1}, -v5, v6")
    F(f"v_cvt_pk_bf16_f32 v3, v{CS}, v{CS}", "v_lshlrev_b32 v3, 16, v3", f"v_sub_f32 v3, v{CS}, v3",
      f"v_cvt_pk_bf16_f32 v{WF0}, v{CS}, v3", f"v_and_b32 v4, 0xffff0000, v{WF0}", "v_sub_f32 v3, v3, v4",
      "s_waitcnt vmcnt(0)", f"v_cvt_pk_bf16_f32 v{WF0+1}, v3, v{B1}")
    F(f"ds_write_b64 v7, {vr(XF0,2)}", f"ds_write_b64 v8, {vr(WF0,2)} offset:1024",
      "v_xor_b32 v7, 0x100, v7", "v_xor_b32 v8, 0x100, v8")
    A(*spread(M[:8], F.lines))
    A(M[8], M[9])
    A("s_waitcnt lgkmcnt(0)", "s_barrier")
    A(f"ds_read_b64 {vr(XF1,2)}, v7", f"ds_read_b64 {vr(WF1,2)}, v8 offset:1024")
    A(*M[10:14])
    A("v_cmp_eq_u32 vcc, 0, v2", "s_waitcnt lgkmcnt(0)")
    G = Asm()
    for r in (WF0, WF0+1, WF1, WF1+1):
        G(f"v_cndmask_b32 v{r}, 0, v{r}, vcc")
    for nt in range(2):
        c = 240 + 4*nt
        G(f"v_and_b32 v{c+2}, 0xffff0000, v{(XF0,XF1)[nt]+1}", f"v_rcp_f32 v3, v{c+2}",
          f"v_mul_f32 v{c}, {fl(GA)}, v3", "v_mul_f32 v4, v3, v3", "v_mul_f32 v4, v4, v3", f"v_mul_f32 v{c+1}, {fl(GB)}, v4")
    A(*spread(M[14:], G.lines[:8]))
    X = [f"{M32} {vr(ACC(mt,nt),16)}, {vr((WF0,WF1)[mt],4)}, {vr((XF0,XF1)[nt],4)}, {vr(ACC(mt,nt),16)}" for mt in range(2) for nt in range(2)]
    A(*spread(X, G.lines[8:]))
    stamp(A, 2)
    A("s_cmp_ge_u32 s35, 27", "s_cbranch_scc1 Lp2")
    A("s_waitcnt vmcnt(0)")
    chk_cleared(A, 254, 10)
    n = 0
    for half in range(2):
        for mt in range(2):
            for nt in range(2):
                c = 240 + 4*nt
                a0 = ACC(mt,nt) + 8*half
                t = 80 + (n % 2)*16; o = 112 + (n % 4)*4; n += 1
                P = range(4)
                for i in P: A(f"v_pk_mul_f32 {vr(t+2*i,2)}, {vr(a0+2*i,2)}, {vr(a0+2*i,2)}")
                for i in P: A(f"v_pk_fma_f32 {vr(t+2*i,2)}, {vr(t+2*i,2)}, {vr(c,2)}, {vr(c,2)} op_sel:[0,1,0] op_sel_hi:[1,1,0]")
                for i in P: A(f"v_pk_mul_f32 {vr(t+2*i,2)}, {vr(t+2*i,2)}, {vr(a0+2*i,2)}")
                for i in range(8): A(f"v_exp_f32 v{t+i}, v{t+i}")
                for i in P: A(f"v_pk_fma_f32 {vr(t+2*i,2)}, {vr(t+2*i,2)}, {vr(c+2,2)}, {vr(c+2,2)} op_sel:[0,0,0] op_sel_hi:[1,0,0]")
                for i in range(8): A(f"v_rcp_f32 v{t+i}, v{t+i}")
                for i in P: A(f"v_pk_mul_f32 {vr(t+2*i,2)}, {vr(t+2*i,2)}, {vr(a0+2*i,2)}")
                for i in P: A(f"v_cvt_pk_bf16_f32 v{o+i}, v{t+2*i}, v{t+2*i+1}")
                A(f"buffer_store_dwordx4 {vr(o,4)}, v9, s[24:27], s{44+mt*2+nt} offen offset:{half*2048} sc1")
                if n == OPT.get('efl', 7):
                    A(f"s_waitcnt vmcnt({n-4})", *set_flag(254, 11, "s48"),
                      *(["s_cmp_ge_u32 s32, 20", "s_cbranch_scc1 Lg1_ng", "s_barrier", "Lg1_ng:"] if OPT.get('gate', 'e') == 'e' else []))
    stamp(A, 3)
    A("s_cmp_lt_u32 s32, 20", "s_cbranch_scc1 Lg2c")
    A("s_waitcnt vmcnt(0)", *set_flag(254, 11, "s48", 128), "s_branch Lp2")
    A("Lg2c:")

def p1(A):
    BC = lambda u: 16 + 8*u
    BS = lambda u: 20 + 8*u
    TW = 56
    AF = lambda p, u: 64 + p*20 + 4*u
    AP = lambda p: 104 + 8*p
    AQ = lambda p: 108 + 8*p
    OUT = lambda par, i: 120 + par*8 + i
    TMP = 136
    YF = lambda o, pl: 152 + (o*2+pl)*4
    FP = lambda nt, pl: 184 + (nt*3+pl)*4
    TA = 208; PK = 240
    FPIMG, DCT, SCR = 81920, 94208, 98304
    A("s_sub_u32 s29, s32, 28", "s_lshl_b32 s29, s29, 3", "s_add_u32 s29, s29, s31", "s_lshl_b32 s29, s29, 1")
    A("s_lshr_b32 s46, s28, 2", "s_add_u32 s47, s46, s29", "s_and_b32 s48, s28, 3", "s_lshl_b32 s34, s48, 9", "s_add_u32 s47, s47, s34",
      "s_mul_i32 s33, s47, 1280", "s_mul_i32 s34, s28, 10240", "s_mov_b32 s35, 81920")
    A("v_and_b32 v1, 15, v0", "v_lshrrev_b32 v2, 4, v0", "v_lshlrev_b32 v4, 2, v2", "v_xor_b32 v3, v1, v4", "v_mul_u32_u24 v4, s35, v2", "v_lshl_add_u32 v4, v3, 4, v4")
    A("s_waitcnt lgkmcnt(0)")
    srd(A, 12, 4, X_SZ); srd(A, 36, 6, T_SZ, T_OFF)
    for i in range(10):
        A(f"s_add_u32 m0, s34, {1024*i}", f"s_add_u32 s40, s33, {(i//5)*4*81920+(i%5)*256}", "buffer_load_dwordx4 v4, s[12:15], s40 offen lds")
    sync_srds(A)
    if OPT['mpf1']:
        srd(A, 16, 8, W1_SZ)
        A("s_lshl_b32 s40, s29, 2", "s_add_u32 s40, s40, s28", f"s_mul_i32 s40, s40, {68*128}", "v_lshl_add_u32 v3, v0, 7, s40",
          "buffer_load_dword v150, v3, s[16:19], 0 offen", "buffer_load_dword v151, v3, s[16:19], 0 offen offset:512")
    A("s_and_b32 s41, s28, 1", "s_add_u32 s41, s41, 4", "s_bfe_u32 s42, s28, 0x10001",
      "s_cmp_lt_u32 s28, 4", "s_cselect_b32 s43, s28, s41", "s_cselect_b32 s44, 0, s42", "s_cselect_b32 s45, 1, 0")
    A("v_lshl_add_u32 v8, v2, 6, s47", "v_cvt_f32_u32 v8, v8", f"v_mul_f32 v8, {fl(1/2048)}, v8", "v_cvt_f32_u32 v9, v1", "v_add_f32 v10, 0x41800000, v9")
    for tt in range(2):
        if tt: A(f"v_add_f32 v8, {fl(256/2048)}, v8")
        for nt in range(2):
            A(f"v_mul_f32 v12, v8, v{9+nt}", f"v_cos_f32 v{208+nt*2+tt}, v12", f"v_sin_f32 v{212+nt*2+tt}, v12")
    A("v_lshrrev_b32 v8, 5, v0", "v_mul_u32_u24 v9, 5120, v8", "v_add_u32 v9, s34, v9", "v_bfe_u32 v8, v0, 3, 2", "v_lshl_add_u32 v9, v8, 8, v9",
      "v_lshl_add_u32 v224, v1, 4, v9", "v_xor_b32 v225, 128, v224")
    A("v_mov_b32 v228, 0", "v_mov_b32 v229, 0", "v_mov_b32 v230, 0", "v_mov_b32 v231, 0", f"s_mov_b32 s49, {ONES}")
    A("s_mul_i32 s41, s46, 6144", "s_lshl_b32 s42, s48, 2", "s_add_u32 s41, s41, s42", f"s_add_u32 s41, s41, {FPIMG}", "v_lshl_add_u32 v226, v0, 4, s41",
      "s_lshl_b32 s41, s46, 6", "s_add_u32 s41, s41, s42", f"s_add_u32 s41, s41, {DCT}", "v_lshl_add_u32 v227, v2, 4, s41")
    A("s_lshl_b32 s41, s43, 4", "v_add_u32 v3, s41, v1", "v_cvt_f32_u32 v4, v3", f"v_mul_f32 v5, {fl(1/160)}, v4",
      "v_cvt_f32_u32 v6, v2", "v_mul_f32 v6, 4.0, v6", "v_mul_f32 v6, v6, v5")
    A("v_and_b32 v14, 1, v0", "v_mov_b32 v15, 0x80008000", "v_mul_lo_u32 v14, v14, v15")
    for u in range(5):
        for jp in range(2):
            for e in range(2):
                A(f"v_fmamk_f32 v{8+e}, v5, {fl(float(16*u+2*jp+e))}, v6")
            A("v_cos_f32 v10, v8", "v_cos_f32 v11, v9", "v_sin_f32 v12, v8", "v_sin_f32 v13, v9",
              f"v_cvt_pk_bf16_f32 v{BC(u)+jp}, v10, v11", f"v_cvt_pk_bf16_f32 v{BS(u)+jp}, -v12, -v13",
              f"v_xor_b32 v{BC(u)+2+jp}, v14, v{BC(u)+jp}", f"v_xor_b32 v{BS(u)+2+jp}, v14, v{BS(u)+jp}")
    for r in (1,2,3):
        A(f"v_mul_f32 v8, {fl(r/640)}, v4", f"v_cos_f32 v{TW+2*r-2}, v8", f"v_sin_f32 v{TW+2*r-1}, v8")
    A("v_and_b32 v8, 3, v0", "v_bfe_u32 v9, v0, 3, 1", "v_lshl_add_u32 v9, v2, 1, v9", "v_lshlrev_b32 v10, 2, v8", "v_xor_b32 v9, v9, v10",
      "v_lshlrev_b32 v10, 8, v8", "v_lshl_add_u32 v10, v9, 4, v10", "v_bfe_u32 v9, v0, 2, 1", "v_lshl_add_u32 v14, v9, 3, v10",
      "s_mul_i32 s41, s44, 40960", "v_add_u32 v14, s41, v14", "v_xor_b32 v15, 128, v14")
    A("s_mul_i32 s41, s44, 6144", f"s_add_u32 s41, s41, {FPIMG}", "v_lshl_add_u32 v7, v0, 4, s41",
      "s_lshl_b32 s41, s44, 6", f"s_add_u32 s41, s41, {DCT}", "v_lshl_add_u32 v62, v2, 4, s41",
      "v_lshrrev_b32 v8, 3, v0", "s_mov_b32 s41, 90112", "v_mul_lo_u32 v63, v8, s41", "v_and_b32 v9, 7, v0", "v_lshl_add_u32 v63, v9, 4, v63",
      "s_lshl_b32 s41, s28, 12", f"s_add_u32 s41, s41, {SCR}",
      "v_xor_b32 v10, v8, v9", "v_lshl_add_u32 v3, v8, 7, s41", "v_lshl_add_u32 v3, v10, 4, v3",
      "v_xor_b32 v10, v2, v9", "v_lshl_add_u32 v5, v1, 7, s41", "v_lshl_add_u32 v5, v10, 4, v5", "v_xor_b32 v6, 64, v5")
    if OPT['ppf']:
        A("s_load_dwordx4 s[24:27], s[0:1], 8", "s_load_dwordx2 s[16:17], s[0:1], 48",
          "s_mul_i32 s40, s29, 6", "s_add_u32 s40, s40, s28", "s_cmp_lt_u32 s28, 4", "s_cselect_b32 s41, 0, 4", "s_add_u32 s40, s40, s41",
          "s_lshl_b32 s41, s40, 13", "v_lshl_add_u32 v146, v0, 7, s41",
          "s_cmp_lt_u32 s29, 32", f"s_cselect_b32 s41, 0, {192*8192}", "v_subrev_u32 v147, s41, v146", "s_waitcnt lgkmcnt(0)",
          "s_cselect_b32 s20, s24, s26", "s_cselect_b32 s21, s25, s27", f"s_mov_b32 s22, {WF_SZ}", "s_mov_b32 s23, 0x00020000",
          f"s_mov_b32 s18, {W1_SZ}", "s_mov_b32 s19, 0x00020000")
    stamp(A, 1)
    A(f"s_waitcnt vmcnt({2 if OPT['mpf1'] else 0})")
    stamp(A, 2)
    for I in range(5):
        for ii in range(2):
            A(f"ds_read_b128 {vr(64+(I*2+ii)*4,4)}, v{224+ii} offset:{1024*I}")
    for I in range(5):
        A(f"s_waitcnt lgkmcnt({2*(4-I)})")
        for j in range(8):
            r = 64 + I*8 + j
            A(f"v_dot2c_f32_bf16 v{228+(j&1)}, s49, v{r}", f"v_dot2c_f32_bf16 v{230+(j&1)}, v{r}, v{r}")
    A("v_add_f32 v228, v228, v229", "v_add_f32 v230, v230, v231")
    for qp in ("quad_perm:[1,0,3,2]", "quad_perm:[2,3,0,1]", "row_half_mirror"):
        A(f"v_add_f32_dpp v228, v228, v228 {qp} row_mask:0xf bank_mask:0xf", f"v_add_f32_dpp v230, v230, v230 {qp} row_mask:0xf bank_mask:0xf")
    row_stats(A, 228, 230, 8, 9, 10, 11)
    A("v_cvt_pk_bf16_f32 v11, v11, v10", "v_lshlrev_b32 v8, 5, v2", "v_and_b32 v10, 0xffff0000, v11", "v_lshlrev_b32 v11, 16, v11", "v_rcp_f32 v11, v11",
      f"v_fmac_f32 v228, {fl(-640.0)}, v10")
    for tt in range(2):
        A(f"ds_bpermute_b32 v{232+tt}, v8, v11 offset:{128*tt}", f"ds_bpermute_b32 v{234+tt}, v8, v228 offset:{128*tt}")
    A("s_waitcnt lgkmcnt(0)")
    for nt in range(2):
        c = 208+nt*2; sn = 212+nt*2; o = 236 + nt*3
        for tt in range(2):
            A(f"v_mul_f32 v{c+tt}, v{c+tt}, v{232+tt}", f"v_mul_f32 v{sn+tt}, v{sn+tt}, v{232+tt}")
        A(f"v_cvt_pk_bf16_f32 v{o}, v{c}, v{c+1}", f"v_cvt_pk_bf16_f32 v{o+1}, v{sn}, v{sn+1}", f"v_cvt_pk_bf16_f32 v{o+2}, -v{sn}, -v{sn+1}")
        for pl in range(3):
            A(f"ds_write_b32 v226, v{o+pl} offset:{(nt*3+pl)*1024}")
    A("v_cvt_pk_bf16_f32 v8, v234, v235", "ds_write_b32 v227, v8")
    A("s_waitcnt lgkmcnt(0)", "s_barrier")
    stamp(A, 3)
    A("Lp1_unit:")
    stamp(A, 4)
    def reads(t):
        return [f"ds_read_b64_tr_b16 {vr(AF(t&1,u)+2*jh,2)}, v{14+((u+5*jh)&1)} offset:{t*5120+((u+5*jh)>>1)*1024}" for u in range(5) for jh in range(2)]
    def mf(t):
        L = []
        for u in range(5):
            for (acc, B) in ((AP(t&1), BC(u)), (AQ(t&1), BS(u))):
                L.append(f"{M16} {vr(acc,4)}, {vr(AF(t&1,u),4)}, {vr(B,4)}, {'0' if u==0 else vr(acc,4)}")
        return L
    def bfly(t):
        P = AP(t&1); Q = AQ(t&1); O = lambda i: OUT(t&1, i)
        c1,s1,c2,s2,c3,s3 = range(TW, TW+6)
        pr,pi,qr,qi,ar,ai,ur,ui,wr_,wi_ = range(TMP, TMP+10)
        L = [f"v_fma_f32 v{pr}, v{P+2}, v{c2}, v{P}", f"v_fma_f32 v{pi}, v{Q+2}, v{c2}, v{Q}",
             f"v_mul_f32 v{ar}, v{P+1}, v{c1}", f"v_mul_f32 v{ai}, v{Q+1}, v{c1}",
             f"v_fmac_f32 v{pr}, v{Q+2}, v{s2}", f"v_fma_f32 v{pi}, -v{P+2}, v{s2}, v{pi}",
             f"v_fmac_f32 v{ar}, v{Q+1}, v{s1}", f"v_fma_f32 v{ai}, -v{P+1}, v{s1}, v{ai}",
             f"v_fma_f32 v{qr}, 2.0, v{P}, -v{pr}", f"v_fma_f32 v{qi}, 2.0, v{Q}, -v{pi}",
             f"v_fma_f32 v{ur}, v{P+3}, v{c3}, v{ar}", f"v_fma_f32 v{ui}, v{Q+3}, v{c3}, v{ai}",
             f"v_fmac_f32 v{ur}, v{Q+3}, v{s3}", f"v_fma_f32 v{ui}, -v{P+3}, v{s3}, v{ui}",
             f"v_fma_f32 v{wr_}, 2.0, v{ar}, -v{ur}", f"v_fma_f32 v{wi_}, 2.0, v{ai}, -v{ui}",
             f"v_add_f32 v{O(0)}, v{pr}, v{ur}", f"v_add_f32 v{O(1)}, v{pi}, v{ui}",
             f"v_sub_f32 v{O(6)}, v{pr}, v{ur}", f"v_sub_f32 v{O(7)}, v{ui}, v{pi}",
             f"v_sub_f32 v{O(2)}, v{qr}, v{wi_}", f"v_add_f32 v{O(3)}, v{qi}, v{wr_}",
             f"v_add_f32 v{O(4)}, v{qr}, v{wi_}", f"v_sub_f32 v{O(5)}, v{qi}, v{wr_}"]
        if t & 1:
            for i in (0,1,6,7,2,3,4,5):
                n = '-' if i == 3 else ''
                L.append(f"v_cvt_pk_bf16_f32 v{YF(i>>1,i&1)+(t>>1)}, {n}v{OUT(0,i)}, {n}v{OUT(1,i)}")
        return L
    A(*reads(0))
    for t in range(9):
        if t < 8:
            A("s_waitcnt lgkmcnt(0)")
            fill = (reads(t+1) if t < 7 else [f"ds_read_b128 {vr(FP(nt,pl),4)}, v7 offset:{(nt*3+pl)*1024}" for nt in range(2) for pl in range(3)])
            fill = fill + (bfly(t-1) if t >= 1 else [])
            if OPT['ppf'] and t == 0: fill.append("buffer_load_dword v12, v146, s[16:19], 0 offen")
            if OPT['ppf'] and t == 4: fill.append("buffer_load_dword v13, v147, s[20:23], 0 offen")
            A(*spread(mf(t), fill))
        else:
            B = bfly(7)
            A(*B[:25])
            A("s_cmp_lg_u32 s43, 0", "s_cbranch_scc1 Lp1_nodc", "s_mov_b32 exec_lo, 0x10001", "s_mov_b32 exec_hi, 0x10001",
              f"ds_read_b128 {vr(YF(0,0),4)}, v62", "s_mov_b64 exec, -1", "Lp1_nodc:")
            A(*B[25:])
    A("s_add_u32 s41, s29, s44", "s_lshl_b32 s41, s41, 7", "s_lshl_b32 s42, s43, 13", "s_add_u32 s41, s41, s42")
    A("v_mov_b32 v150, 0", "buffer_load_dwordx2 v[148:149], v150, s[56:59], 0 offen sc1")
    A("s_waitcnt lgkmcnt(0)")
    stamp(A, 5)
    def s1m(kinds, base):
        L = []; n = 0
        for tile, o in enumerate(kinds):
            for nt in range(2):
                re = base + n*8; im = re + 4; n += 1
                L += [f"{M16} {vr(re,4)}, {vr(YF(o,0),4)}, {vr(FP(nt,0),4)}, 0", f"{M16} {vr(im,4)}, {vr(YF(o,1),4)}, {vr(FP(nt,0),4)}, 0",
                      f"{M16} {vr(re,4)}, {vr(YF(o,1),4)}, {vr(FP(nt,1),4)}, {vr(re,4)}", f"{M16} {vr(im,4)}, {vr(YF(o,0),4)}, {vr(FP(nt,2),4)}, {vr(im,4)}"]
        return L
    def s1w(base):
        L = []; n = 0
        for tile in range(2):
            for nt in range(2):
                re = base + n*8; pk = PK + n*4; n += 1
                L += [f"v_cvt_pk_bf16_f32 v{pk+j}, v{re+2*j}, v{re+2*j+1}" for j in range(4)]
                L.append(f"ds_write_b128 v{5+tile}, {vr(pk,4)} offset:{nt*2048}")
        L += [f"ds_read_b128 {vr(base+4*q,4)}, v3 offset:{q*1024}" for q in range(4)]
        return L
    def s1s(base, poff):
        L = []
        for q in range(4):
            L += [f"s_add_u32 s42, s41, {q*8*90112+poff}", f"s_waitcnt lgkmcnt({3-q})",
                  f"buffer_store_dwordx4 {vr(base+4*q,4)}, v63, s[36:39], s42 offen {OPT['sc_t']}"]
        return L
    TB_ = 64
    A(*s1m((0,2), TA))
    A("s_cmp_eq_u32 s43, 5", "s_cbranch_scc1 Lp1_b5")
    A(*spread(s1m((1,3), TB_), s1w(TA)))
    A(*s1s(TA, 0))
    A(*s1w(TB_))
    A(*s1s(TB_, 6*8192))
    A("s_cmp_eq_u32 s45, 0", "s_cbranch_scc1 Lp1_done")
    A("s_mov_b32 s45, 0", "s_mov_b32 s44, 1", "v_add_u32 v14, 40960, v14", "v_add_u32 v15, 40960, v15", "v_add_u32 v7, 6144, v7", "v_add_u32 v62, 64, v62", "v_add_u32 v146, 0x8000, v146", "v_add_u32 v147, 0x8000, v147", "s_branch Lp1_unit")
    A("Lp1_b5:", "s_nop 7")
    A(*s1w(TA))
    A(*s1s(TA, 0))
    A("Lp1_done:")
    stamp(A, 6)
    A("s_lshl_b32 s41, s29, 6", f"s_add_u32 s41, s41, {32*8192}", "v_lshlrev_b32 v151, 3, v0", "s_waitcnt vmcnt(0)")
    chk_cleared(A, 148, 150)
    A("v_mov_b32 v18, v148", "v_mov_b32 v19, v149", "v_mov_b32 v12, 0")
    A("s_barrier", "s_cmp_lg_u32 s28, 0", "s_cbranch_scc1 Lp2")
    A(*set_flag(148, 151, "s41"))

HK = [(4*c, 4*c+2) for c in range(7)] + [(4*c+1, 4*c+3) for c in range(6)] + [(25, None)]
def hk_mask(sp, upto):
    m = 0
    for j, (a, b) in enumerate(HK[:upto]):
        if upto == 14 and j < 6: continue
        for hs, x in enumerate((a, b)):
            if x is None: continue
            x = x + 28*sp
            if sp and j == 6 and hs == 1: x = 53
            if sp and j == 13: x = 27
            m |= 1 << x
    return m
def set_mask(A, upto):
    m0, m1 = hk_mask(0, upto), hk_mask(1, upto)
    A("s_cmp_eq_u32 s50, 0", f"s_mov_b32 s36, 0x{m0 & 0xffffffff:x}", f"s_mov_b32 s37, 0x{m0 >> 32:x}",
      f"s_cselect_b32 s36, s36, 0x{m1 & 0xffffffff:x}", f"s_cselect_b32 s37, s37, 0x{m1 >> 32:x}")
def poll_h(A, upto, first):
    _pl[0] += 1; n = _pl[0]
    if first: set_mask(A, upto)
    A("s_mov_b32 s3, 0")
    if not first: A(f"s_branch Lpc{n}")
    A(f"Lpl{n}:", "s_mov_b64 exec, s[36:37]", *pollop("0"), "s_mov_b64 exec, -1", "s_waitcnt vmcnt(0)", f"Lpc{n}:",
      "v_cmp_eq_u64 vcc, v[20:21], v[18:19]", "s_add_u32 s3, s3, 1", "s_nop 0", "s_and_b64 s[38:39], vcc, s[36:37]", "s_cmp_eq_u64 s[38:39], s[36:37]", f"s_cbranch_scc1 Lpd{n}",
      f"s_sleep {OPT.get('slp',4)}", f"s_cmp_lt_u32 s3, {SPIN_MAX}", f"s_cbranch_scc1 Lpl{n}", f"Lpd{n}:")

def g2_loader(A):
    NST = 14
    A("s_lshr_b32 s30, s32, 2", "s_and_b32 s50, s31, 1")
    A("s_lshl_b32 s34, s29, 2", "s_add_u32 s34, s34, s33", f"s_mul_i32 s34, s34, {108*1024}", "v_lshl_add_u32 v4, v0, 4, s34")
    A("v_lshrrev_b32 v3, 4, v0", "v_and_b32 v2, 15, v0", "v_lshlrev_b32 v5, 2, v3", "v_xor_b32 v2, v2, v5",
      "s_and_b32 s34, s33, 1", "s_lshl_b32 s34, s34, 5", "v_add_u32 v8, s34, v3", "v_mul_u32_u24 v8, 1280, v8",
      "s_lshl_b32 s34, s30, 8", "v_lshl_add_u32 v10, v2, 4, v8", "v_add_u32 v10, s34, v10")
    A("s_lshl_b32 s34, s29, 1", "s_lshr_b32 s35, s33, 1", "s_add_u32 s34, s34, s35", "s_lshl_b32 s34, s34, 13", "v_lshl_add_u32 v13, v0, 7, s34")
    A(f"s_mul_i32 s44, s50, {28*2048}", f"s_mul_i32 s45, s50, {14*81920}", f"s_mul_i32 s34, s35, 81920", "s_add_u32 s45, s45, s34")
    srd(A, 12, 6, H_SZ, H_OFF); srd(A, 16, 48, W1_SZ)
    def issue_w(st):
        slot = (st % RING) * 32768; a, b = HK[st]
        A(f"s_add_u32 s42, s45, {(a>>1)*81920+(a&1)*20480}")
        if st == 6:
            A("s_and_b32 s34, s50, s35", "s_cmp_eq_u32 s34, 1", f"s_cselect_b32 s42, {26*81920+20480}, s42")
        if st == 13:
            A("s_cmp_eq_u32 s50, 0", f"s_mov_b32 s42, {12*81920+20480}", f"s_cselect_b32 s42, s42, {13*81920+20480}", "s_cmp_eq_u32 s35, 0", "s_cselect_b32 s18, s18, 0")
        for q in range(4):
            A(f"s_add_u32 m0, s40, {slot + 16384 + q*1024}", "s_nop 0", f"buffer_load_dwordx4 v10, s[16:19], s42 offen lds")
            if q < 3: A(f"s_add_u32 s42, s42, {4*1280}")
        return 4
    def issue_h(st):
        slot = (st % RING) * 32768; a, b = HK[st]
        A(f"s_add_u32 s41, s44, {a*2048}", f"s_add_u32 m0, s40, {slot}")
        if st == 13: A("s_cmp_eq_u32 s50, 0", f"s_cselect_b32 s41, s41, {27*2048}")
        else: A(f"s_add_u32 s43, s44, {b*2048-2048}")
        if st == 6: A("s_cmp_eq_u32 s50, 0", f"s_cselect_b32 s43, s43, {53*2048-2048}")
        for q in range(2): A(f"buffer_load_dwordx4 v4, s[12:15], s41 offen offset:{q*1024} sc1 lds")
        if st == 13: return 2
        for q in range(2,4): A(f"buffer_load_dwordx4 v4, s[12:15], s43 offen offset:{q*1024} sc1 lds")
        return 4
    NW = OPT.get('nw', 2)
    def bits(sp, sts):
        m = 0
        for j in sts:
            for hs, x in enumerate(HK[j]):
                if x is None: continue
                x += 28*sp
                if sp and j == 6 and hs == 1: x = 53
                if sp and j == 13: x = 27
                m |= 1 << x
        return m
    def setm(d, sts):
        m0, m1 = bits(0, sts), bits(1, sts)
        A("s_cmp_eq_u32 s50, 0", f"s_mov_b32 s{d}, 0x{m0 & 0xffffffff:x}", f"s_mov_b32 s{d+1}, 0x{m0 >> 32:x}",
          f"s_cselect_b32 s{d}, s{d}, 0x{m1 & 0xffffffff:x}", f"s_cselect_b32 s{d+1}, s{d+1}, 0x{m1 >> 32:x}")
    def apoll(): A("s_mov_b64 exec, s[46:47]", *pollop("0"), "s_mov_b64 exec, -1")
    def merge(): A("v_cmp_eq_u64 vcc, v[20:21], v[18:19]", "s_nop 0", "s_and_b64 vcc, vcc, s[46:47]", "s_andn2_b64 s[36:37], s[36:37], vcc")
    def ensure(sts):
        _pl[0] += 1; n = _pl[0]
        setm(38, sts)
        A("s_mov_b32 s3, 0", f"Len{n}:", "s_and_b64 s[20:21], s[36:37], s[38:39]", f"s_cbranch_scc0 Leo{n}", "s_add_u32 s3, s3, 1", f"s_cmp_ge_u32 s3, {SPIN_MAX}", f"s_cbranch_scc1 Leo{n}",
          "s_waitcnt vmcnt(0)", "s_mov_b64 s[46:47], s[36:37]")
        apoll()
        A("s_waitcnt vmcnt(0)")
        merge()
        A(f"s_branch Len{n}", f"Leo{n}:")
    A("s_waitcnt vmcnt(1)")
    chk_cleared(A, 18, 12)
    setm(36, range(14)); setm(46, range(OPT.get('p0', 6)))
    A("s_barrier")
    stamp(A, 4)
    apoll()
    for st in range(NW): issue_w(st)
    A(f"s_waitcnt vmcnt({4*NW})")
    merge()
    ops = ['w']*(4*NW)
    D = OPT.get('D2') or 2
    for st in range(NW):
        ensure([st]); ops += [st]*issue_h(st)
    stamp(A, 5)
    nxt = NW; pend = None
    for st in range(NST):
        last = max(i for i, x in enumerate(ops) if x == st)
        A(f"s_waitcnt vmcnt({len(ops)-1-last})", "s_barrier")
        if pend is not None and pend < last:
            merge(); pend = None
        while nxt < NST and nxt <= st + D:
            if nxt <= 7: ensure([nxt] if nxt < 7 else range(7, 14))
            ops += [nxt]*issue_h(nxt); ops += [nxt]*issue_w(nxt); nxt += 1
        if st in OPT.get('aps', (1,)) and pend is None:
            A("s_or_b64 s[46:47], s[36:37], 1"); apoll(); pend = len(ops); ops.append('p')
    if OPT['cpf']:
        A("s_lshl_b32 s34, s32, 2", "s_add_u32 s34, s34, s33", "s_cmp_ge_u32 s34, 1", "s_cbranch_scc1 Lk1_end")
        A("s_mov_b64 exec, 0x7ffffff")
        cpf(A, "k3_kernel", None, s=(36,38))
    A("s_branch Lk1_end")

def g2_compute(A):
    NST = 14
    XA, WA = 208, lambda mt: 209 + mt
    A("s_lshr_b32 s30, s32, 2", "s_and_b32 s50, s31, 1")
    A("s_lshl_b32 s35, s34, 13", f"v_lshl_add_u32 v{XA}, v0, 4, s35")
    A("v_bfe_u32 v4, v0, 2, 2", "v_lshl_add_u32 v5, v2, 2, v4", "v_lshlrev_b32 v5, 8, v5",
      "v_bfe_u32 v6, v0, 4, 1", "v_lshl_add_u32 v5, v6, 5, v5", "v_and_b32 v6, 3, v0", "v_lshl_add_u32 v5, v6, 3, v5",
      "s_lshl_b32 s35, s33, 1", "v_xor_b32 v6, s35, v4", f"v_lshl_add_u32 v{WA(0)}, v6, 6, v5", f"v_xor_b32 v{WA(1)}, 64, v{WA(0)}")
    srd(A, 24, 6, P_SZ, P_OFF)
    A("v_mov_b32 v240, v222", "v_mov_b32 v244, v223")
    for r in (241,242,243,245,246,247,249,250,251): A(f"v_mov_b32 v{r}, 0")
    A("v_cmp_gt_u32 vcc, 32, v0", "v_mov_b32 v5, 0x3f80", "s_nop 0", "v_cndmask_b32 v248, 0, v5, vcc")
    A("v_lshlrev_b32 v5, 9, v2", "v_lshl_add_u32 v7, v1, 3, v5",
      "s_lshl_b32 s40, s29, 2", "s_lshl_b32 s42, s34, 1", "s_add_u32 s40, s40, s42", "s_mul_i32 s40, s40, 10",
      "s_lshl_b32 s42, s30, 1", "s_add_u32 s40, s40, s42", "s_add_u32 s40, s40, s33", "s_lshl_b32 s40, s40, 12",
      f"s_mul_i32 s42, s50, {P_SZ//2}", "s_add_u32 s44, s40, s42", "s_add_u32 s45, s44, 40960")
    for mt in range(2):
        for nt in range(2):
            A(f"{M32} {vr(ACC(mt,nt),16)}, v[248:251], {vr(240+4*mt,4)}, 0")
    if OPT.get('gate') == 'm': A("s_barrier")
    A("s_waitcnt vmcnt(0)", *set_flag(254, 11, "s48", 128))
    if OPT.get('gate') == 'l': A("s_barrier")
    base = [0]
    def reads(st):
        p = st & 1; slot = (st % RING) * 32768
        L = []
        nb = slot & ~0xffff
        if nb != base[0]:
            for r in range(208, 211): L.append(f"v_xor_b32 v{r}, 0x10000, v{r}")
            base[0] = nb
        so = slot - nb
        for kk in range(4 if st < 13 else 2):
            for mt in range(2):
                for jh in range(2):
                    L.append(f"ds_read_b64_tr_b16 {vr(FB(p,kk,2+mt)+2*jh,2)}, v{WA(mt)} offset:{so+16384+(16*kk+8*jh)*256}")
            for nt in range(2):
                L.append(f"ds_read_b128 {vr(FB(p,kk,nt),4)}, v{XA} offset:{so+nt*4096+kk*1024}")
        return L
    mm = lambda p, kk, mt, nt: f"{M32} {vr(ACC(mt,nt),16)}, {vr(FB(p,kk,nt),4)}, {vr(FB(p,kk,2+mt),4)}, {vr(ACC(mt,nt),16)}"
    def mfmas(st):
        return [mm(st&1, kk, mt, nt) for kk in range(4) for mt in range(2) for nt in range(2)]
    compute_loop(A, NST, reads, mfmas, lambda st: [], lambda st: stamp(A, {0:4,1:5,7:6,13:7}[st]) if st in (0,1,7,13) else None)
    p = (NST-1) & 1
    def outp(mt, nt):
        L = []
        for a in range(4):
            a0 = ACC(mt,nt) + 4*a; o = FB(1-p,0,0) + ((mt*2+nt)*4+a)*2
            L += [f"v_cvt_pk_bf16_f32 v{o}, v{a0}, v{a0+1}", f"v_cvt_pk_bf16_f32 v{o+1}, v{a0+2}, v{a0+3}",
                  f"buffer_store_dwordx2 {vr(o,2)}, v7, s[24:27], s{44+nt} offen offset:{a*1024+mt*256} {OPT['sc_p']}"]
        return L
    tiles = [(mt,nt) for mt in range(2) for nt in range(2)]
    for i, (mt,nt) in enumerate(tiles):
        A(*[mm(p, kk, mt, nt) for kk in range(2)])
        if i >= 2: A(*outp(*tiles[i-2]))
    A(*outp(*tiles[2])); A(*outp(*tiles[3]))
    A("s_branch Lk1_end")

def hgen(Hl, HF, tvar):
    Hl(f"s_lshl_b32 s33, s{tvar}, 4", "v_add_u32 v14, s33, v1", "v_cvt_f32_u32 v15, v14", f"v_mul_f32 v15, {fl(1/160)}, v15", "v_mul_f32 v4, v7, v15")
    for bb in range(5):
        for ep in range(2):
            for e in range(2):
                Hl(f"v_fmamk_f32 v{8+e}, v15, {fl(float(16*bb+2*ep+e))}, v4")
            Hl("v_cos_f32 v10, v8", "v_cos_f32 v11, v9", "v_sin_f32 v12, v8", "v_sin_f32 v13, v9")
            if bb == 0 and ep == 0:
                Hl("v_cmp_gt_u32 vcc, 16, v0", "v_mov_b32 v8, 0.5", "s_nop 0", "v_cndmask_b32 v10, v10, v8, vcc")
            Hl(f"v_cvt_pk_bf16_f32 v{HF(bb)+ep}, v10, v11", f"v_cvt_pk_bf16_f32 v{HF(bb)+2+ep}, -v12, -v13")
    Hl("v_and_b32 v8, 1, v14", "v_lshlrev_b32 v8, 15, v8", "v_or_b32 v8, 0x3f80, v8", f"v_cndmask_b32 v{HF(5)}, 0, v8, vcc",
       f"v_mov_b32 v{HF(5)+1}, 0", f"v_mov_b32 v{HF(5)+2}, 0", f"v_mov_b32 v{HF(5)+3}, 0")

def p2(A):
    C = lambda t, ks: vr(16 + (t*2+ks)*4, 4)
    S = lambda t, ks: vr(48 + (t*2+ks)*4, 4)
    WV = lambda tau, pl, t, e: 80 + tau*32 + pl*16 + t*4 + e
    TB = lambda tau, ks, pl: 144 + tau*24 + (ks*3+pl)*4
    XA = lambda tau, pl, t: 192 + tau*32 + pl*16 + t*4
    PK = 80
    WIMG = 32768
    stamp(A, 8)
    A("s_load_dwordx4 s[8:11], s[0:1], 8", "s_load_dwordx2 s[48:49], s[0:1], 48")
    A("s_sub_u32 s33, s32, 20", "s_mul_i32 s34, s33, 43", "s_lshr_b32 s34, s34, 7", "s_mul_i32 s35, s34, 3", "s_sub_u32 s45, s33, s35",
      "s_lshl_b32 s29, s31, 2", "s_add_u32 s29, s29, s34", "s_and_b32 s46, s28, 3")
    A("s_mov_b32 s34, 0x9a543210", "s_mov_b32 s35, 0x8876", "s_lshl_b32 s33, s45, 2", "s_add_u32 s33, s33, s46", "s_lshl_b32 s33, s33, 2",
      "s_lshr_b64 s[34:35], s[34:35], s33", "s_and_b32 s30, s34, 15")
    A("s_lshl_b32 s47, s45, 6", "s_cmp_eq_u32 s45, 2", "s_cselect_b32 s47, 113, s47")
    A("s_mul_i32 s43, s29, 90112", "s_lshl_b32 s34, s30, 13", "s_add_u32 s43, s43, s34", "s_lshr_b32 s34, s28, 2", "s_lshl_b32 s34, s34, 12",
      "s_add_u32 s43, s43, s34", "s_lshl_b32 s35, s46, 13", "s_add_u32 s44, s35, s34")
    A("v_lshrrev_b32 v4, 3, v0", "v_lshl_add_u32 v4, v4, 5, s29", "v_mul_u32_u24 v4, 642, v4", "v_and_b32 v5, 7, v0", "v_lshl_add_u32 v4, v5, 4, v4",
      "s_lshl_b32 s34, s47, 1", "s_bfe_u32 s36, s28, 0x10001", "s_mulk_i32 s36, 320", "s_add_u32 s34, s34, s36",
      "s_and_b32 s36, s28, 1", f"s_mul_i32 s36, s36, {32*20544}", "s_add_u32 s34, s34, s36", "v_add_u32 v4, s34, v4")
    A("s_waitcnt lgkmcnt(0)")
    srd(A, 12, 6, T_SZ, T_OFF); srd(A, 24, 6, U_SZ, U_OFF)
    A("s_cmp_lt_u32 s28, 4", "s_cselect_b32 s16, s8, s10", "s_cselect_b32 s17, s9, s11", f"s_mov_b32 s18, {WF_SZ}", "s_mov_b32 s19, 0x00020000")
    A("s_barrier")
    A("s_lshl_b32 s36, s28, 12")
    def wdma():
        for q in range(4):
            A(f"s_add_u32 m0, s36, {WIMG+1024*q}", f"s_mov_b32 s34, {q*8*20544}", "buffer_load_dwordx4 v4, s[16:19], s34 offen lds")
    A("s_cmp_lg_u32 s28, 4", "s_cbranch_scc1 Lp2_np")
    A("s_waitcnt vmcnt(0)", "v_mov_b32 v12, 0")
    chk_cleared(A, 18, 12)
    A("v_and_b32 v13, 31, v0", "v_lshlrev_b32 v13, 7, v13", "v_lshrrev_b32 v14, 5, v0", "v_lshl_add_u32 v13, v14, 3, v13", f"s_mov_b32 s37, {32*8192}", "s_mov_b32 s3, 0",
      *pollop("s37"))
    wdma()
    A("s_waitcnt vmcnt(4)", "s_branch Lp2_pc", "Lp2_poll:",
      *pollop("s37"), "s_waitcnt vmcnt(0)", "Lp2_pc:",
      "v_cmp_eq_u64 vcc, v[20:21], v[18:19]", "s_add_u32 s3, s3, 1", "s_nop 0",
      "s_cmp_eq_u64 vcc, -1", "s_cbranch_scc1 Lp2_hb", "s_sleep 4", f"s_cmp_lt_u32 s3, {SPIN_MAX}", "s_cbranch_scc1 Lp2_poll", "s_branch Lp2_hb")
    A("Lp2_np:")
    wdma()
    A("v_and_b32 v1, 15, v0", "v_lshrrev_b32 v2, 4, v0", "v_cvt_f32_u32 v7, v2", "v_mul_f32 v7, 4.0, v7")
    def tdma():
        A("s_mov_b32 m0, s44", "v_lshlrev_b32 v8, 4, v0")
        for i in range(4): A(f"buffer_load_dwordx4 v8, s[12:15], s43 offen offset:{1024*i} sc1 lds")
    A("s_cmp_lt_u32 s28, 4", "s_cbranch_scc1 Lp2_main")
    A("Lp2_hb:", "s_barrier")
    tdma()
    A("s_waitcnt vmcnt(0)", "s_barrier", "s_branch Lk1_end")
    A("Lp2_main:")
    A("v_cvt_f32_u32 v5, v1", f"v_mul_f32 v5, {fl(1/64)}, v5", "v_add_f32 v6, 0x3e800000, v5",
      "v_and_b32 v14, 1, v0", "v_mov_b32 v15, 0x80008000", "v_mul_lo_u32 v14, v14, v15", "v_xor_b32 v15, 0x80000000, v14")
    for t in range(2):
        for jp in range(4):
            for e in range(2):
                j = 2*jp+e
                A(f"v_add_f32 v{8+e}, {fl(float(16*(j>>2)+(j&3)))}, v7", f"v_mul_f32 v{8+e}, v{8+e}, v{5+t}")
            c0 = 16+t*8+jp; s0 = 48+t*8+jp
            A("v_cos_f32 v10, v8", "v_cos_f32 v11, v9", "v_sin_f32 v12, v8", "v_sin_f32 v13, v9",
              f"v_cvt_pk_bf16_f32 v{c0}, v10, v11", f"v_cvt_pk_bf16_f32 v{s0}, v12, v13")
            for b in (c0, s0):
                A(f"v_xor_b32 v{b+4}, v14, v{b}", f"v_xor_b32 v{b+16}, 0x80000000, v{b}", f"v_xor_b32 v{b+20}, v15, v{b}")
    A("v_lshrrev_b32 v5, 2, v0", "v_lshlrev_b32 v5, 7, v5", "v_and_b32 v7, 3, v0", "v_lshl_add_u32 v5, v7, 4, v5", "v_add_u32 v5, s35, v5",
      "v_lshrrev_b32 v8, 3, v0", "s_mov_b32 s33, 45056", "v_mul_lo_u32 v6, v8, s33", "v_and_b32 v9, 7, v0", "v_lshl_add_u32 v6, v9, 4, v6",
      "s_lshl_b32 s36, s30, 12", "s_lshl_b32 s33, s29, 7", "s_add_u32 s36, s36, s33",
      "v_xor_b32 v10, v8, v9", "v_lshl_add_u32 v3, v8, 7, s35", "v_lshl_add_u32 v3, v10, 4, v3",
      "v_xor_b32 v10, v2, v9", "v_lshl_add_u32 v7, v1, 7, s35", "v_lshl_add_u32 v7, v10, 4, v7")
    A("s_lshl_b32 s33, s30, 4", "v_add_u32 v8, s33, v1", "v_sub_u32 v9, 256, v8",
      "s_cmp_lt_u32 s30, 6", "s_cselect_b64 vcc, -1, 0", "v_cndmask_b32 v8, v9, v8, vcc", "v_subrev_u32 v8, s47, v8",
      "v_lshlrev_b32 v4, 9, v2", "v_lshl_add_u32 v4, v8, 1, v4")
    stamp(A, 9)
    A("s_barrier")
    stamp(A, 10)
    tdma()
    A("s_waitcnt vmcnt(0)", "s_barrier")
    stamp(A, 11)
    A("s_lshl_b32 s33, s45, 2", "s_add_u32 s33, s33, s46", "s_cmp_eq_u32 s33, 11", "s_cbranch_scc1 Lk1_end")
    def treads(tau):
        return [f"ds_read_b64_tr_b16 {vr(TB(tau,ks,pl)+2*jh,2)}, v5 offset:{(32*ks+16*jh)*128+tau*64+pl*8}" for ks in range(2) for pl in range(2) for jh in range(2)]
    def wreads(tau):
        return [f"ds_read_u16_d16_hi v{WV(tau,pl,t,e)}, v4 offset:{WIMG+(pl*2+tau)*8192+(16*t+e)*128}" for t in range(4) for e in range(4) for pl in range(2)]
    M = M16
    def st2(tau):
        L = []
        for t in range(4):
            re = vr(XA(tau,0,t),4); im = vr(XA(tau,1,t),4)
            for ks in range(2):
                tr = vr(TB(tau,ks,0),4); ti = vr(TB(tau,ks,1),4)
                L += [f"{M} {re}, {C(t,ks)}, {tr}, {'0' if ks==0 else re}", f"{M} {im}, {C(t,ks)}, {ti}, {'0' if ks==0 else im}",
                      f"{M} {re}, {S(t,ks)}, {ti}, {re}", f"{M} {im}, {S(t,ks)}, {vr(TB(tau,ks,2),4)}, {im}"]
        return L
    def wmul(tau):
        L = []
        for t in range(4):
            for e in range(4):
                xr = XA(tau,0,t)+e; xi = XA(tau,1,t)+e; wr = WV(tau,0,t,e); wi = WV(tau,1,t,e)
                L += [f"v_mul_f32 v{8+e}, v{xr}, v{wr}", f"v_mul_f32 v{12+e}, v{xr}, v{wi}",
                      f"v_fma_f32 v{8+e}, -v{xi}, v{wi}, v{8+e}", f"v_fmac_f32 v{12+e}, v{xi}, v{wr}"]
            for pl in range(2):
                d = TB(tau, t>>1, pl) + (t&1)*2
                L += [f"v_cvt_pk_bf16_f32 v{d}, v{8+4*pl}, v{9+4*pl}", f"v_cvt_pk_bf16_f32 v{d+1}, v{10+4*pl}, v{11+4*pl}"]
            d = TB(tau, t>>1, 2) + (t&1)*2
            L += [f"v_cvt_pk_bf16_f32 v{d}, -v12, -v13", f"v_cvt_pk_bf16_f32 v{d+1}, -v14, -v15"]
        return L
    def negT(tau):
        return [f"v_xor_b32 v{TB(tau,ks,2)+j}, 0x80008000, v{TB(tau,ks,0)+j}" for ks in range(2) for j in range(4)]
    def st3(tau):
        L = []
        for nt in range(4):
            re = vr(XA(tau,0,nt),4); im = vr(XA(tau,1,nt),4)
            for ks in range(2):
                xr = vr(TB(tau,ks,0),4); xi = vr(TB(tau,ks,1),4)
                L += [f"{M} {re}, {xr}, {C(nt,ks)}, {'0' if ks==0 else re}", f"{M} {im}, {xi}, {C(nt,ks)}, {'0' if ks==0 else im}",
                      f"{M} {re}, {vr(TB(tau,ks,2),4)}, {S(nt,ks)}, {re}", f"{M} {im}, {xr}, {S(nt,ks)}, {im}"]
        return L
    def outp(tau):
        L = []
        for nt in range(4):
            pk = PK + 4*nt + 16*tau; re = XA(tau,0,nt); im = XA(tau,1,nt)
            L += [f"v_cvt_pk_bf16_f32 v{pk}, v{re}, v{re+1}", f"v_cvt_pk_bf16_f32 v{pk+1}, v{re+2}, v{re+3}",
                  f"v_cvt_pk_bf16_f32 v{pk+2}, v{im}, v{im+1}", f"v_cvt_pk_bf16_f32 v{pk+3}, v{im+2}, v{im+3}",
                  f"ds_write_b128 v7, {vr(pk,4)} offset:{nt*2048}"]
        return L
    A(*treads(0)); A(*treads(1))
    A("s_waitcnt lgkmcnt(8)")
    A(*negT(0))
    A(*st2(0)[:8])
    A("s_waitcnt lgkmcnt(0)")
    A(*spread(st2(0)[8:], negT(1) + wreads(0)))
    A("s_waitcnt lgkmcnt(0)")
    A(*spread(st2(1), interleave(wmul(0), wreads(1), 2)))
    A("s_waitcnt lgkmcnt(0)")
    A(*spread(st3(0), wmul(1)))
    S3 = st3(1); O1 = outp(1)
    A(*spread(S3[:16], outp(0) + ["v_xor_b32 v7, 64, v7"]))
    rb = lambda nt: [f"ds_read_b128 {vr(112+8*nt+4*q,4)}, v3 offset:{nt*2048+q*1024}" for q in range(2)]
    stq = lambda nt: [x for q in range(2) for x in (f"s_add_u32 s37, s36, {(16*nt+8*q)*45056}", f"buffer_store_dwordx4 {vr(112+8*nt+4*q,4)}, v6, s[24:27], s37 offen {OPT['sc_u']}")]
    A(*spread(S3[16:24], O1[0:5] + rb(0)))
    A(*spread(S3[24:32], O1[5:10] + rb(1)))
    A(*O1[10:15]); A(*rb(2))
    A("s_waitcnt lgkmcnt(6)"); A(*stq(0))
    A(*O1[15:20]); A(*rb(3))
    A("s_waitcnt lgkmcnt(6)"); A(*stq(1))
    A("s_waitcnt lgkmcnt(3)"); A(*stq(2))
    A("s_waitcnt lgkmcnt(0)"); A(*stq(3))

def k3(A):
    A("k3_kernel:")
    A("s_cmp_ge_u32 s2, 256", "s_cbranch_scc1 Lk3_end_x")
    kstart(A)
    A("s_load_dwordx2 s[4:5], s[0:1], 0", "s_load_dwordx2 s[6:7], s[0:1], 64", "s_load_dwordx2 s[40:41], s[0:1], 80")
    A("v_lshrrev_b32 v1, 6, v0", "v_and_b32 v0, 63, v0", "v_readfirstlane_b32 s28, v1")
    A("s_and_b32 s31, s2, 7", "s_lshr_b32 s32, s2, 3")
    A("s_lshl_b32 s29, s31, 3", "s_lshr_b32 s33, s32, 2", "s_add_u32 s29, s29, s33", "s_and_b32 s30, s32, 1")
    A("v_lshlrev_b32 v3, 4, v0", "v_and_b32 v1, 15, v0", "v_lshrrev_b32 v2, 4, v0")
    A("s_lshl_b32 s33, s30, 10", "s_add_u32 s33, s33, s29", "v_lshl_add_u32 v5, v1, 6, s33")
    ZIMG = 49152
    M = M16
    A("s_cmp_ge_u32 s28, 6", "s_cbranch_scc1 Lk3_back")
    A("s_setprio 1")
    GC, GS, GN = 16, 20, 24
    TWc = lambda r: 28 + (r-1)*8
    TWs = lambda r: 32 + (r-1)*8
    UA = lambda ty, tau, pl: 52 + ((ty*2+tau)*2+pl)*4
    VA = lambda ty, tau, pl: 84 + ((ty*2+tau)*2+pl)*4
    TT = 116
    A("s_mul_i32 s33, s29, 45056", "s_lshl_b32 s34, s28, 12", "s_add_u32 s33, s33, s34", f"s_add_u32 s34, s33, {6*4096}",
      "s_lshl_b32 s35, s28, 13", "s_mov_b32 m0, s35",
      "s_cmp_eq_u32 s28, 5", "s_cselect_b32 s36, 0x80000000, 0", "v_or_b32 v4, s36, v3")
    A("s_waitcnt lgkmcnt(0)")
    srd(A, 12, 40, U_SZ, U_OFF)
    for i in range(4): A(f"buffer_load_dwordx4 v3, s[12:15], s33 offen offset:{1024*i} lds")
    A("s_add_u32 m0, s35, 4096", "s_nop 0")
    for i in range(4): A(f"buffer_load_dwordx4 v4, s[12:15], s34 offen offset:{1024*i} lds")
    SC = 2/(640*2048)
    A("v_cvt_f32_u32 v5, v5", f"v_mul_f32 v5, {fl(1/2048)}, v5", "v_cvt_f32_u32 v7, v2", "v_mul_f32 v7, 4.0, v7", f"s_mov_b32 s37, {fl(SC)}", "v_mul_f32 v6, v7, v5")
    for jp in range(4):
        for e in range(2):
            j = 2*jp+e
            A(f"v_fmamk_f32 v{8+e}, v5, {fl(float(16*(j>>2)+(j&3)))}, v6")
        A("v_cos_f32 v10, v8", "v_cos_f32 v11, v9", "v_sin_f32 v12, v8", "v_sin_f32 v13, v9")
        A(f"v_cvt_pk_bf16_f32 v{GC+jp}, v10, v11", f"v_cvt_pk_bf16_f32 v{GS+jp}, v12, v13", f"v_cvt_pk_bf16_f32 v{GN+jp}, -v12, -v13")
    A("v_lshrrev_b32 v5, 2, v0", "v_lshlrev_b32 v5, 7, v5", "v_and_b32 v8, 3, v0", "v_lshl_add_u32 v5, v8, 4, v5", "v_add_u32 v5, s35, v5")
    A("s_lshl_b32 s33, s28, 4", "v_cvt_f32_u32 v8, s33", "v_add_f32 v8, v8, v7")
    for e in range(4):
        A(f"v_add_f32 v9, {fl(float(e))}, v8")
        for r in (1,2,3):
            A(f"v_mul_f32 v10, {fl(r/640)}, v9", f"v_cos_f32 v{TWc(r)+e}, v10", f"v_sin_f32 v{TWs(r)+e}, v10")
    A("s_lshl_b32 s33, s28, 12", f"s_add_u32 s33, s33, {ZIMG}", "v_add_u32 v6, s33, v3")
    stamp(A, 1)
    A("s_waitcnt vmcnt(0)")
    stamp(A, 2)
    order = [(0,0),(1,1),(0,1),(1,0)]
    for ty, tau in order:
        for pl in range(2):
            for jh in range(2):
                A(f"ds_read_b64_tr_b16 {vr(UA(ty,tau,pl)+2*jh,2)}, v5 offset:{ty*4096+jh*2048+tau*64+pl*8}")
    for n, (ty, tau) in enumerate(order):
        re = vr(VA(ty,tau,0),4); im = vr(VA(ty,tau,1),4); ur = vr(UA(ty,tau,0),4); ui = vr(UA(ty,tau,1),4)
        A(f"s_waitcnt lgkmcnt({12-4*n})")
        A(f"{M} {re}, {ur}, {vr(GC,4)}, 0", f"{M} {im}, {ui}, {vr(GC,4)}, 0", f"{M} {re}, {ui}, {vr(GN,4)}, {re}", f"{M} {im}, {ur}, {vr(GS,4)}, {im}")
    def pk(op, d, a, b, c=None, nb=False, na=False):
        s = f"v_pk_{op}_f32 {vr(d,2)}, {vr(a,2)}, {vr(b,2)}" + (f", {vr(c,2)}" if c is not None else "")
        n = [int(na), int(nb)] + ([0] if c is not None else [])
        if na or nb: s += f" neg_lo:[{','.join(map(str,n))}] neg_hi:[{','.join(map(str,n))}]"
        return s
    Ar,Ai,Br,Bi,Dr,Di,Cr,Ci = [VA(ty,tau,pl) for ty in range(2) for tau in range(2) for pl in range(2)]
    pr,pi,qr,qi,ur,ui,wr,wi = [TT+4*i for i in range(8)]
    Z = lambda r, pl: 52 + (r*2+pl)*4
    for e in (0,2):
        A(pk('add',pr+e,Ar+e,Cr+e), pk('add',pi+e,Ai+e,Ci+e,nb=True), pk('add',qr+e,Ar+e,Cr+e,nb=True), pk('add',qi+e,Ai+e,Ci+e))
    for e in (0,2):
        A(pk('add',ur+e,Br+e,Dr+e), pk('add',ui+e,Bi+e,Di+e,nb=True), pk('add',wr+e,Br+e,Dr+e,nb=True), pk('add',wi+e,Bi+e,Di+e))
    b = lambda r, pl: 84 + (r*2+pl)*4
    for e in (0,2):
        A(pk('add',Z(0,0)+e,pr+e,ur+e), pk('add',Z(0,1)+e,pi+e,ui+e), pk('add',b(2,0)+e,pr+e,ur+e,nb=True), pk('add',b(2,1)+e,pi+e,ui+e,nb=True),
          pk('add',b(1,0)+e,qr+e,wi+e,nb=True), pk('add',b(1,1)+e,qi+e,wr+e), pk('add',b(3,0)+e,qr+e,wi+e), pk('add',b(3,1)+e,qi+e,wr+e,nb=True))
    for r in range(4):
        if r:
            for e in (0,2):
                A(pk('mul',Z(r,0)+e,b(r,0)+e,TWc(r)+e), pk('mul',Z(r,1)+e,b(r,0)+e,TWs(r)+e))
            for e in (0,2):
                A(pk('fma',Z(r,0)+e,b(r,1)+e,TWs(r)+e,Z(r,0)+e,na=True), pk('fma',Z(r,1)+e,b(r,1)+e,TWc(r)+e,Z(r,1)+e))
        o = TT + 4*r
        for j in range(4): A(f"v_cvt_pk_bf16_f32 v{o+j}, v{Z(r,0)+2*j}, v{Z(r,0)+2*j+1}")
        A(f"ds_write_b128 v6, {vr(o,4)} offset:{r*1024}")
    A("s_waitcnt lgkmcnt(0)")
    stamp(A, 3)
    A("s_barrier", "s_branch Lk3_end")
    A("Lk3_back:")
    HF = lambda bb: 16 + 4*bb
    XR, P0, P1 = 40, 48, 56
    GU = 64
    XU = 80
    ZF = lambda bb, r: 96 + ((bb % 3)*4+r)*4
    AC = lambda r: 144 + 4*r
    A("s_bfe_u32 s33, s32, 0x10001", "s_mul_i32 s33, s33, 5", "s_add_u32 s42, s33, s28", "s_sub_u32 s42, s42, 6")
    A("s_lshl_b32 s33, s30, 10", "s_add_u32 s33, s33, s29", "v_lshl_add_u32 v6, v2, 8, s33", "v_mul_u32_u24 v6, 1280, v6", "v_lshl_add_u32 v6, v1, 3, v6",
      "s_lshl_b32 s44, s42, 7", "s_add_u32 s45, s44, 81920", "s_add_u32 s46, s45, 81920", "s_add_u32 s47, s46, 81920", "v_lshlrev_b32 v5, 5, v0")
    A("s_mul_i32 s48, s29, 10", "s_add_u32 s48, s48, s42", "s_lshl_b32 s48, s48, 12", "s_lshl_b32 s34, s30, 11", "s_add_u32 s48, s48, s34",
      f"s_add_u32 s49, s48, {P_SZ//2}", "v_cvt_f32_u32 v7, v2", "v_mul_f32 v7, 4.0, v7")
    Hl = Asm(); hgen(Hl, HF, 42)
    n0 = OPT.get('k3d', 60)
    A(*Hl.lines[:n0])
    A("s_waitcnt lgkmcnt(0)")
    srd(A, 20, 40, P_SZ, P_OFF); srd(A, 16, 4, X_SZ); srd(A, 24, 6, X_SZ)
    for half in range(2):
        A(f"buffer_load_dwordx4 {vr(P0+4*half,4)}, v5, s[20:23], s48 offen offset:{16*half}",
          f"buffer_load_dwordx4 {vr(P1+4*half,4)}, v5, s[20:23], s49 offen offset:{16*half}")
    for e in range(4):
        A(f"buffer_load_dwordx2 {vr(XR+2*e,2)}, v6, s[16:19], s{44+e} offen")
    A(*Hl.lines[n0:])
    SC = 2/(640*2048)
    A(f"s_mov_b32 s36, {fl(-1.4426950408889634)}", f"s_mov_b32 s38, {fl(1/SC)}", f"v_add_u32 v4, {ZIMG}, v3")
    stamp(A, 1)
    def gpart(half):
        G = Asm(); g = GU + 8*half; t = XU
        G(f"s_waitcnt vmcnt({6-2*half})")
        for q in range(4):
            G(f"v_lshlrev_b32 v{g+2*q}, 16, v{P0+4*half+q}", f"v_and_b32 v{g+2*q+1}, 0xffff0000, v{P0+4*half+q}",
              f"v_lshlrev_b32 v{t+2*q}, 16, v{P1+4*half+q}", f"v_and_b32 v{t+2*q+1}, 0xffff0000, v{P1+4*half+q}")
        for i in range(8): G(f"v_add_f32 v{g+i}, v{g+i}, v{t+i}")
        for i in range(8): G(f"v_mul_f32 v{t+i}, s36, v{g+i}")
        for i in range(8): G(f"v_exp_f32 v{t+i}, v{t+i}")
        for i in range(8): G(f"v_fma_f32 v{t+i}, v{t+i}, s38, s38")
        for i in range(8): G(f"v_rcp_f32 v{t+i}, v{t+i}")
        for i in range(8): G(f"v_mul_f32 v{g+i}, v{g+i}, v{t+i}")
        return G.lines
    ng = OPT.get('k3g', 1)
    for half in range(ng): A(*gpart(half))
    stamp(A, 2)
    A("s_barrier")
    stamp(A, 3)
    def zr(bb): return [f"ds_read_b128 {vr(ZF(bb,r),4)}, v4 offset:{(bb*4+r)*1024}" for r in range(4)]
    for bb in range(3): A(*zr(bb))
    for bb in range(6):
        A(f"s_waitcnt lgkmcnt({min(8,4*(5-bb))})")
        for r in range(4):
            A(f"{M} {vr(AC(r),4)}, {vr(ZF(bb,r),4)}, {vr(HF(bb),4)}, {'0' if bb==0 else vr(AC(r),4)}")
        if bb < 3: A(*zr(bb+3))
    for half in range(ng, 2): A(*gpart(half))
    A("s_waitcnt vmcnt(0)")
    for q in range(8):
        A(f"v_lshlrev_b32 v{XU+2*q}, 16, v{XR+q}", f"v_and_b32 v{XU+2*q+1}, 0xffff0000, v{XR+q}")
    for e in range(4):
        for r in range(4):
            A(f"v_fmac_f32 v{XU+4*e+r}, v{AC(r)+e}, v{GU+4*r+e}")
        for q in (2*e, 2*e+1):
            A(f"v_cvt_pk_bf16_f32 v{XR+q}, v{XU+2*q}, v{XU+2*q+1}")
        A(f"buffer_store_dwordx2 {vr(XR+2*e,2)}, v6, s[24:27], s{44+e} offen {OPT['sc_o']}")
    kend(A, 2, "Lk3_end")

def kd(name, vgpr, sgpr=100, accum=None):
    accum = accum or min(256, (vgpr+3)//4*4)
    return f""".amdhsa_kernel {name}
  .amdhsa_next_free_vgpr {vgpr}
  .amdhsa_next_free_sgpr {sgpr}
  .amdhsa_accum_offset {accum}
  .amdhsa_group_segment_fixed_size 0
  .amdhsa_kernarg_size 88
  .amdhsa_user_sgpr_count 2
  .amdhsa_user_sgpr_kernarg_segment_ptr 1
  .amdhsa_system_sgpr_workgroup_id_x 1
.end_amdhsa_kernel
"""

def build(kernels):
    hdr = open(f"cdna_kernels/{NAME}.s.ref").read().split("; Override")[0]
    out = hdr
    for (name, fn, grid, block, lds, vg) in kernels:
        out += f"; @launch kernel={name} grid=({grid},1,1) block=({block},1,1) lds={lds}\n"
    out += '.amdgcn_target "amdgcn-amd-amdhsa--gfx950"\n.text\n'
    seen = []
    for (name, fn, grid, block, lds, vg) in kernels:
        if name in seen: continue
        seen.append(name)
        A = Asm(); fn(A)
        out += f".globl {name}\n.p2align 8\n.type {name},@function\n" + A.text()
    out += '.section .rodata,"a"\n'
    seen = []
    for (name, fn, grid, block, lds, vg) in kernels:
        if name in seen: continue
        seen.append(name)
        out += ".p2align 6\n" + kd(name, vg)
    return out

KS = [("k1_kernel", k1, 256, 512, 133120, 256), ("k3_kernel", k3, 256, 704, 98304, 160)]

if __name__ == '__main__':
    DIAG = len(sys.argv) > 2 and sys.argv[2] == 'diag'
    for kv in sys.argv[3:]:
        k, v = kv.split('='); OPT[k] = eval(v)
    open(sys.argv[1] if len(sys.argv) > 1 else 'cur.s', 'w').write(build(KS))
```

```python
import sys, math
from asmlib import *

NAME = "recurrent_scan__spectral_gfnet__dense_activation_gelu__prompt"
H_OFF, H_SZ = 0, 2048*1728*2
T_OFF, T_SZ = 0x700000, 32*11*64*128
U_OFF, U_SZ = 0xA00000, 32*11*64*128
P_OFF, P_SZ = 0xD00000, 2*2048*640*2
FL_OFF, FL_SZ = 0x1200000, 24*4096
X_SZ = 2048*640*2
W1_SZ = 640*1728*2
WF_SZ = 2048*321*2
OPT = dict(rot1='xcd', rot2=False, pf=False, mpf=False, lpf=True, ppf=False, nw=2, mpf1=False, sc_h='sc1', sc_t='sc1', sc_u='sc1', sc_p='sc1', sc_o='', map1='4x7', D=2, cpf=True, hpf=False, pfst=None)

def vr(b, n): return f"v[{b}:{b+n-1}]"
def srd(A, d, base, size, off=0):
    if off:
        A(f"s_add_u32 s{d}, s{base}, 0x{off:x}", f"s_addc_u32 s{d+1}, s{base+1}, 0")
    else:
        A(f"s_mov_b32 s{d}, s{base}", f"s_mov_b32 s{d+1}, s{base+1}")
    A(f"s_mov_b32 s{d+2}, {size}", f"s_mov_b32 s{d+3}, 0x00020000")

DIAG = False
DIAG_OFF = 0x2000000
def stamp(A, k):
    if DIAG:
        A(f"s_memrealtime s[{60+2*k}:{61+2*k}]", "s_waitcnt lgkmcnt(0)")
def kstart(A):
    if DIAG:
        for k in range(60, 92): A(f"s_mov_b32 s{k}, 0")
        A("s_memrealtime s[60:61]", "s_memtime s[88:89]", "s_load_dwordx2 s[92:93], s[0:1], 80", "s_waitcnt lgkmcnt(0)")
def kend(A, kid, lab):
    A(f"{lab}:")
    if DIAG:
        A("s_memrealtime s[84:85]", "s_waitcnt vmcnt(0) lgkmcnt(0)", "s_memrealtime s[86:87]", "s_memtime s[90:91]", "s_waitcnt lgkmcnt(0)")
        A(f"s_add_u32 s92, s92, 0x{DIAG_OFF:x}", "s_addc_u32 s93, s93, 0", "s_mov_b32 s94, 0x1000000", "s_mov_b32 s95, 0x00020000")
        A(f"s_add_u32 s96, s2, {kid*256}", "s_lshl_b32 s96, s96, 4", "s_add_u32 s96, s96, s28", "s_lshl_b32 s96, s96, 6", "s_mov_b64 exec, -1", "v_mov_b32 v1, 0")
        for q in range(4):
            for j in range(4): A(f"v_mov_b32 v{4+j}, s{60+2*(4*q+j)}")
            A(f"buffer_store_dwordx4 v[4:7], v1, s[92:95], s96 offen offset:{16*q}", "s_nop 1")
    A("s_endpgm")
    A(f"{lab}_x:", "s_endpgm")

GA = -2*0.7978845608028654*1.4426950408889634
GB = GA*0.044715
ONES = "0x3f803f80"
M32 = "v_mfma_f32_32x32x16_bf16"
M16 = "v_mfma_f32_16x16x32_bf16"

def row_stats(A, sx, sxx, t0, t1, mean, sq):
    A(f"v_mul_f32 v{mean}, {fl(1/640)}, v{sx}",
      f"v_mul_f32 v{t0}, {fl(1/640)}, v{sxx}",
      f"v_fma_f32 v{t0}, -v{mean}, v{mean}, v{t0}",
      f"v_max_f32 v{t0}, 0, v{t0}",
      f"v_cvt_pk_bf16_f32 v{t0}, v{t0}, v{t0}",
      f"v_lshlrev_b32 v{t0}, 16, v{t0}",
      f"v_add_f32 v{t0}, {fl(1e-5)}, v{t0}",
      f"v_cvt_pk_bf16_f32 v{t0}, v{t0}, v{t0}",
      f"v_lshlrev_b32 v{t0}, 16, v{t0}",
      f"v_sqrt_f32 v{sq}, v{t0}")

RING = 4
def pollop(so):
    m = OPT.get('pm', 'at')
    if m == 'ld': return [f"buffer_load_dwordx2 v[20:21], v13, s[52:55], {so} offen sc1"]
    if m == 'sys': return [f"buffer_load_dwordx2 v[20:21], v13, s[52:55], {so} offen sc0 sc1"]
    if m == 'nt': return [f"buffer_load_dwordx2 v[20:21], v13, s[52:55], {so} offen sc1 nt"]
    return ["v_mov_b32 v20, 0", "v_mov_b32 v21, 0", f"buffer_atomic_add_x2 v[20:21], v13, s[52:55], {so} offen sc0 sc1"]
def set_flag(nv, va, soff, off=0):
    return ["s_mov_b64 exec, 0xffff", f"buffer_store_dwordx2 {vr(nv,2)}, v{va}, s[52:55], {soff} offen offset:{off} sc1", "s_mov_b64 exec, -1"]
SPIN_MAX = 0x20000
_pl = [0]
def sync_srds(A):
    srd(A, 52, 6, FL_SZ, FL_OFF); srd(A, 56, 50, 256)
def chk_cleared(A, v, vz):
    _pl[0] += 1; n = _pl[0]
    A(f"s_mov_b32 s3, 0", f"Lcc{n}:", f"v_readfirstlane_b32 s49, v{v}", "s_add_u32 s3, s3, 1", "s_cmp_lg_u32 s49, 0", f"s_cbranch_scc1 Lcd{n}",
      f"s_cmp_ge_u32 s3, {SPIN_MAX}", f"s_cbranch_scc1 Lcd{n}",
      f"buffer_load_dwordx2 {vr(v,2)}, v{vz}, s[56:59], 0 offen sc1", "s_waitcnt vmcnt(0)", f"s_branch Lcc{n}", f"Lcd{n}:")
_cpf_n = [0]
def cpf(A, target, sel, v=(14,15,13), s=(56,58)):
    _cpf_n[0] += 1; lab = f"Lcpf{_cpf_n[0]}"
    a, t = s
    A(f"s_getpc_b64 s[{a}:{a+1}]", f"{lab}:", f"s_add_u32 s{a}, s{a}, {target}-{lab}", f"s_addc_u32 s{a+1}, s{a+1}, ({target}-{lab})>>32")
    A(f"v_lshlrev_b32 v{v[0]}, 7, v0")
    if sel: A(f"s_lshl_b32 s{t}, {sel}, 13", f"v_add_u32 v{v[0]}, s{t}, v{v[0]}")
    A(f"v_mov_b32 v{v[1]}, s{a+1}", f"v_add_co_u32 v{v[0]}, vcc, s{a}, v{v[0]}", f"v_addc_co_u32 v{v[1]}, vcc, 0, v{v[1]}, vcc",
      f"global_load_dword v{v[2]}, v[{v[0]}:{v[1]}], off")
ACC = lambda mt, nt: 16 + (mt*2+nt)*16
FB = lambda p, kk, w: 80 + p*64 + kk*16 + w*4

def loader_loop(A, NST, issue, extra=None, D=None):
    D = D or OPT['D']
    ops = []
    for st in range(2): ops += [st]*(issue(st) or 8)
    nxt = 2
    if extra and OPT.get('lpfs') == 2: ops += ['x']*extra()
    for st in range(NST):
        last = max(i for i, x in enumerate(ops) if x == st)
        A(f"s_waitcnt vmcnt({len(ops)-1-last})", "s_barrier")
        while nxt < NST and nxt <= (st+D if st >= 1 else 2):
            ops += [nxt]*(issue(nxt) or 8); nxt += 1
            if extra and nxt == OPT.get('lpfs', NST): ops += ['x']*extra()

def compute_loop(A, NST, reads, mfmas, tail, stampf=None, gap=None):
    A("s_barrier")
    A(*reads(0))
    A("s_waitcnt lgkmcnt(0)")
    if stampf: stampf(0)
    A("s_barrier")
    for st in range(1, NST):
        M = mfmas(st-1)
        G = gap(st-1) if gap else []
        n1 = len(G) - 30 if G else 0
        A(*spread(M[:10], spread(reads(st), G[:n1])))
        A(*spread(M[10:13], G[n1:n1+15]))
        A("s_waitcnt lgkmcnt(0)")
        if stampf: stampf(st)
        if st < NST-1: A("s_barrier")
        A(*spread(M[13:], G[n1+15:]))
        A(*tail(st-1))

def k1(A):
    A("k1_kernel:")
    A("s_cmp_ge_u32 s2, 256", "s_cbranch_scc1 Lk1_end_x")
    kstart(A)
    A("s_load_dwordx2 s[4:5], s[0:1], 0", "s_load_dwordx4 s[8:11], s[0:1], 32", "s_load_dwordx2 s[6:7], s[0:1], 80", "s_load_dwordx2 s[50:51], s[0:1], 72", "s_load_dwordx2 s[36:37], s[0:1], 56")
    A("v_lshrrev_b32 v1, 6, v0", "v_and_b32 v0, 63, v0", "v_readfirstlane_b32 s28, v1")
    A("s_and_b32 s31, s2, 7", "s_lshr_b32 s32, s2, 3")
    if OPT['cpf']:
        A("s_lshl_b32 s33, s32, 3", "s_add_u32 s33, s33, s28", "s_cmp_ge_u32 s33, 4", "s_cbranch_scc1 Lk1_nc")
        cpf(A, "k1_kernel", "s28", v=(14,15,253))
        A("Lk1_nc:")
    A("s_cmp_ge_u32 s32, 28", "s_cbranch_scc1 Lp1")
    A("s_lshr_b32 s29, s31, 1", "s_lshl_b32 s29, s29, 2", "s_and_b32 s33, s32, 3", "s_add_u32 s29, s29, s33")
    A("s_and_b32 s30, s31, 1", "s_mul_i32 s30, s30, 7", "s_lshr_b32 s33, s32, 2", "s_add_u32 s30, s30, s33")
    A("s_cmp_lt_u32 s28, 4", "s_cbranch_scc1 Lg1c")
    g1_loader(A)
    g2_loader(A)
    A("Lg1c:")
    g1_compute(A)
    g2_compute(A)
    A("Lp1:")
    p1(A)
    A("s_branch Lp2", "Lp2g:", "s_barrier", "s_barrier", "Lp2:")
    p2(A)
    kend(A, 0, "Lk1_end")

def g1_loader(A):
    NST = 10
    A("s_sub_u32 s33, s28, 4")
    A("v_lshrrev_b32 v1, 3, v0", "v_and_b32 v2, 7, v0", "v_lshrrev_b32 v3, 4, v0",
      "s_lshl_b32 s34, s29, 2", "s_add_u32 s34, s34, s33",
      "v_lshl_add_u32 v1, v1, 6, s34", "v_mul_u32_u24 v1, 1280, v1",
      "v_xor_b32 v8, v2, v3", "v_xor_b32 v9, 4, v8",
      "v_lshl_add_u32 v4, v8, 4, v1", "v_lshl_add_u32 v5, v9, 4, v1",
      f"v_add_u32 v5, {8*64*1280}, v5", f"v_add_u32 v6, {16*64*1280}, v4", f"v_add_u32 v7, {16*64*1280}, v5")
    A("v_and_b32 v2, 15, v0", "v_lshlrev_b32 v8, 2, v3", "v_xor_b32 v2, v2, v8",
      "s_lshl_b32 s34, s33, 4", "v_add_u32 v8, s34, v3", "v_mul_u32_u24 v8, 3456, v8",
      "s_lshl_b32 s34, s30, 8", "v_lshl_add_u32 v10, v2, 4, v8", "v_add_u32 v10, s34, v10")
    A("s_cmp_eq_u32 s30, 13", "s_cselect_b32 s34, 8, 16",
      "v_cmp_le_u32 vcc, s34, v2", "v_mov_b32 v8, 0x80000000", "s_nop 0", "v_cndmask_b32 v10, v10, v8, vcc")
    A("s_lshl_b32 s40, s33, 12")
    if OPT['rot1']:
        if OPT['rot1'] == 'xcd':
            A("s_lshr_b32 s43, s31, 1", "s_mul_i32 s43, s43, 5", "s_lshr_b32 s43, s43, 1", "s_and_b32 s34, s31, 1", "s_mul_i32 s34, s34, 5", "s_add_u32 s43, s43, s34")
        elif OPT['map1'] == '2x14':
            A("s_mul_i32 s43, s30, 47", "s_lshr_b32 s43, s43, 6", "s_and_b32 s34, s29, 1", "s_mul_i32 s34, s34, 5", "s_add_u32 s43, s43, s34")
        else:
            A("s_lshr_b32 s43, s32, 2", "s_mul_i32 s43, s43, 92", "s_and_b32 s34, s32, 3", "s_mul_i32 s34, s34, 160", "s_add_u32 s43, s43, s34", "s_lshr_b32 s43, s43, 6")
        A("s_cmp_ge_u32 s43, 10", "s_cselect_b32 s34, 10, 0", "s_sub_u32 s43, s43, s34")
    else:
        A("s_mov_b32 s43, 0")
    A("s_waitcnt lgkmcnt(0)")
    srd(A, 12, 4, X_SZ); srd(A, 16, 8, W1_SZ)
    def issue(st):
        slot = (st % RING) * 32768
        A("s_lshl_b32 s41, s43, 7", f"s_mul_i32 s42, s43, {64*3456}")
        for q in range(4):
            A(f"s_add_u32 m0, s40, {slot + q*1024}", "s_nop 0", f"buffer_load_dwordx4 v{4+q}, s[12:15], s41 offen lds")
            A(f"s_add_u32 m0, s40, {slot + 16384 + q*1024}", "s_nop 0", f"buffer_load_dwordx4 v10, s[16:19], s42 offen lds")
            if q < 3: A(f"s_add_u32 s42, s42, {4*3456}")
        A("s_add_u32 s43, s43, 1", "s_cmp_eq_u32 s43, 10", "s_cselect_b32 s43, 0, s43")
    def extra():
        A("s_load_dwordx4 s[44:47], s[0:1], 8", "s_load_dwordx2 s[48:49], s[0:1], 48",
          "s_lshl_b32 s34, s2, 1", "s_add_u32 s34, s34, s33", "s_cmp_lt_u32 s33, 2", "s_cselect_b32 s34, s34, s2", "s_lshl_b32 s34, s34, 13",
          "v_lshl_add_u32 v11, v0, 7, s34", "s_waitcnt lgkmcnt(0)",
          "s_cmp_eq_u32 s33, 2", "s_cselect_b32 s20, s44, s46", "s_cselect_b32 s21, s45, s47",
          "s_cmp_lt_u32 s33, 2", "s_cselect_b32 s20, s48, s20", "s_cselect_b32 s21, s49, s21", f"s_mov_b32 s22, {W1_SZ}", f"s_cselect_b32 s22, s22, {WF_SZ}",
          "s_mov_b32 s23, 0x00020000", "v_mov_b32 v12, 0")
        sync_srds(A)
        A("buffer_load_dwordx2 v[18:19], v12, s[56:59], 0 offen sc1")
        if OPT.get('ftouch'):
            A("s_lshl_b32 s34, s29, 1", "s_lshr_b32 s35, s33, 1", "s_add_u32 s34, s34, s35", "s_cmp_lt_u32 s32, 20", "s_cselect_b32 s34, s34, 32", "s_lshl_b32 s34, s34, 13",
              "v_lshl_add_u32 v13, v0, 7, s34", "buffer_load_dword v22, v13, s[52:55], 0 offen sc1")
        A("buffer_load_dword v16, v11, s[20:23], 0 offen")
        return 3 if OPT.get('ftouch') else 2
    loader_loop(A, NST, issue, extra, OPT.get('D1'))
    A("s_barrier")
    A("s_cmp_ge_u32 s32, 20", "s_cbranch_scc1 Lp2g")

def g1_compute(A):
    NST = 10
    XA = lambda kk, nt: 208 + kk*2 + nt
    WA = lambda mt: 216 + mt
    SX, SXX, CS, B1 = 218, 219, 220, 221
    A("s_and_b32 s33, s28, 1", "s_lshr_b32 s34, s28, 1")
    A("v_and_b32 v1, 31, v0", "v_lshrrev_b32 v2, 5, v0")
    A("s_lshl_b32 s35, s30, 7", "s_lshl_b32 s40, s33, 6", "s_add_u32 s35, s35, s40", "s_lshl_b32 s40, s34, 5", "s_add_u32 s35, s35, s40",
      "v_add_lshl_u32 v9, v1, s35, 1", f"v_mov_b32 v{B1}, 0")
    A("s_lshl_b32 s35, s34, 13", "s_lshl_b32 s40, s33, 12", "s_add_u32 s35, s35, s40",
      "v_lshl_add_u32 v3, v1, 7, s35", "v_bfe_u32 v4, v0, 1, 3", "v_xor_b32 v4, v4, v2")
    for kk in range(4):
        A(f"v_xor_b32 v5, {2*kk}, v4", f"v_lshl_add_u32 v{XA(kk,0)}, v5, 4, v3", f"v_xor_b32 v{XA(kk,1)}, 0x1000, v{XA(kk,0)}")
    A("v_bfe_u32 v4, v0, 2, 2", "v_lshl_add_u32 v5, v2, 3, v4", "v_lshlrev_b32 v5, 8, v5",
      "v_bfe_u32 v6, v0, 4, 1", "v_lshl_add_u32 v5, v6, 5, v5", "v_and_b32 v6, 3, v0", "v_lshl_add_u32 v5, v6, 3, v5",
      "s_lshl_b32 s35, s33, 1", "s_add_u32 s35, s35, s34",
      "v_xor_b32 v6, s35, v4", f"v_lshl_add_u32 v{WA(0)}, v6, 6, v5", f"v_xor_b32 v{WA(1)}, 64, v{WA(0)}")
    A(f"v_mov_b32 v{SX}, 0", f"v_mov_b32 v{SXX}, 0", f"v_mov_b32 v{CS}, 0", f"s_mov_b32 s41, {ONES}")
    A("s_waitcnt lgkmcnt(0)")
    srd(A, 20, 10, 1728*2); srd(A, 24, 6, H_SZ, H_OFF)
    A(f"buffer_load_short_d16_hi v{B1}, v9, s[20:23], 0 offen")
    srd(A, 16, 36, 640*2)
    A("s_lshr_b32 s35, s32, 2", "s_lshl_b32 s35, s35, 8", "s_lshl_b32 s40, s33, 7", "s_add_u32 s35, s35, s40",
      "s_lshl_b32 s40, s31, 31", "s_or_b32 s35, s35, s40", "v_lshl_add_u32 v9, v1, 1, s35",
      "buffer_load_ushort v222, v9, s[16:19], 0 offen", "buffer_load_ushort v223, v9, s[16:19], 0 offen offset:64")
    A("s_lshl_b32 s35, s30, 1", "s_add_u32 s35, s35, s33")
    for mt in range(2):
        for nt in range(2):
            s = 44 + mt*2 + nt
            A("s_lshl_b32 s40, s29, 2", "s_lshl_b32 s42, s34, 1", "s_add_u32 s40, s40, s42", f"s_xor_b32 s42, s33, {nt}", "s_add_u32 s40, s40, s42",
              "s_mulk_i32 s40, 108", "s_lshl_b32 s42, s35, 2", "s_add_u32 s40, s40, s42", f"s_xor_b32 s42, s34, {mt}",
              "s_add_u32 s40, s40, s42", f"s_lshl_b32 s{s}, s40, 10")
    XCH = 131072
    A("s_lshl_b32 s42, s34, 9", "s_lshl_b32 s40, s33, 8", "s_add_u32 s42, s42, s40", f"s_add_u32 s42, s42, {XCH}", "v_lshl_add_u32 v7, v1, 3, s42",
      "s_lshl_b32 s42, s33, 9", "s_lshl_b32 s40, s34, 8", "s_add_u32 s42, s42, s40", f"s_add_u32 s42, s42, {XCH}", "v_lshl_add_u32 v8, v1, 3, s42",
      "v_lshlrev_b32 v9, 4, v0")
    XF0, WF0, XF1, WF1 = 224, 228, 232, 236
    for r in (XF0, WF0, XF1, WF1):
        A(f"v_mov_b32 v{r+2}, 0", f"v_mov_b32 v{r+3}, 0")
    sync_srds(A)
    A("s_lshl_b32 s48, s29, 12", "s_lshl_b32 s40, s30, 8", "s_add_u32 s48, s48, s40", "v_mov_b32 v10, 0", "v_lshlrev_b32 v11, 3, v0")
    if OPT.get('tlb'):
        srd(A, 36, 6, 0x1400000)
        A("v_lshlrev_b32 v12, 21, v0", "v_add_u32 v12, 0x1fff80, v12", "s_cmp_lg_u32 s28, 1", "s_cbranch_scc1 Lg1_ntl", "buffer_load_dword v253, v12, s[36:39], 0 offen", "Lg1_ntl:")
    A("s_lshl_b32 s40, s2, 3", "s_add_u32 s40, s40, s28", "s_cmp_lg_u32 s40, 1737", "s_cbranch_scc1 Lg1_ncl")
    A("s_memrealtime s[36:37]", "s_waitcnt lgkmcnt(0)", "s_or_b32 s38, s36, 1", "v_mov_b32 v12, s38", "v_mov_b32 v13, s37",
      "s_mov_b64 exec, 1", "buffer_store_dwordx2 v[12:13], v10, s[56:59], 0 offen sc1", "s_mov_b64 exec, -1", "Lg1_ncl:")
    base = [0]
    def reads(st):
        p = st & 1; slot = (st % RING) * 32768
        L = []
        nb = slot & ~0xffff
        if nb != base[0]:
            for r in range(208, 218): L.append(f"v_xor_b32 v{r}, 0x10000, v{r}")
            base[0] = nb
        so = slot - nb
        for kk in range(4):
            for mt in range(2):
                for jh in range(2):
                    L.append(f"ds_read_b64_tr_b16 {vr(FB(p,kk,2+mt)+2*jh,2)}, v{WA(mt)} offset:{so+16384+(16*kk+4*jh)*256}")
            for nt in range(2):
                L.append(f"ds_read_b128 {vr(FB(p,kk,nt),4)}, v{XA(kk,nt)} offset:{so}")
        return L
    def mfmas(st):
        p = st & 1; L = []
        for kk in range(4):
            for mt in range(2):
                for nt in range(2):
                    c = "0" if (st == 0 and kk == 0) else vr(ACC(mt,nt),16)
                    L.append(f"{M32} {vr(ACC(mt,nt),16)}, {vr(FB(p,kk,2+mt),4)}, {vr(FB(p,kk,nt),4)}, {c}")
        return L
    def dots(st):
        p = st & 1; L = []
        for kk in range(4):
            for j in range(4):
                if not OPT.get('nostat'): L.append(f"v_dot2c_f32_bf16 v{SX}, s41, v{FB(p,kk,0)+j}")
                if (not OPT.get('sqv') or st == NST-1) and not OPT.get('nostat'): L.append(f"v_dot2c_f32_bf16 v{SXX}, v{FB(p,kk,0)+j}, v{FB(p,kk,0)+j}")
                L.append(f"v_dot2c_f32_bf16 v{CS}, s41, v{FB(p,kk,2)+j}")
        if st == 3: L.append("buffer_load_dwordx2 v[254:255], v10, s[56:59], 0 offen sc1")
        return L
    def sqgap(st):
        p = st & 1; L = []
        for kk in range(4):
            for j in range(4):
                r = FB(p,kk,0)+j
                L += [f"v_lshlrev_b32 v3, 16, v{r}", f"v_and_b32 v4, s51, v{r}", "v_fmac_f32 v222, v3, v3", "v_fmac_f32 v223, v4, v4"]
        return L
    pass
    compute_loop(A, NST, reads, mfmas, dots, lambda st: stamp(A, 1) if st == 0 else None)
    A(*dots(NST-1))
    M = mfmas(NST-1)
    F = Asm()
    if OPT.get('sqv'): F(f"v_add_f32 v{SXX}, v{SXX}, v222", f"v_add_f32 v{SXX}, v{SXX}, v223")
    for r in (SX, SXX, CS):
        F(f"v_mov_b32 v3, v{r}", "s_nop 1", f"v_permlane32_swap_b32 v{r}, v3", f"v_add_f32 v{r}, v{r}, v3")
    row_stats(F, SX, SXX, 3, 4, 5, 6)
    F(f"v_cvt_pk_bf16_f32 v{XF0}, -v5, -v5", f"v_cvt_pk_bf16_f32 v{XF0+1}, -v5, v6")
    F(f"v_cvt_pk_bf16_f32 v3, v{CS}, v{CS}", "v_lshlrev_b32 v3, 16, v3", f"v_sub_f32 v3, v{CS}, v3",
      f"v_cvt_pk_bf16_f32 v{WF0}, v{CS}, v3", f"v_and_b32 v4, 0xffff0000, v{WF0}", "v_sub_f32 v3, v3, v4",
      "s_waitcnt vmcnt(0)", f"v_cvt_pk_bf16_f32 v{WF0+1}, v3, v{B1}")
    F(f"ds_write_b64 v7, {vr(XF0,2)}", f"ds_write_b64 v8, {vr(WF0,2)} offset:1024",
      "v_xor_b32 v7, 0x100, v7", "v_xor_b32 v8, 0x100, v8")
    A(*spread(M[:8], F.lines))
    A(M[8], M[9])
    A("s_waitcnt lgkmcnt(0)", "s_barrier")
    A(f"ds_read_b64 {vr(XF1,2)}, v7", f"ds_read_b64 {vr(WF1,2)}, v8 offset:1024")
    A(*M[10:14])
    A("v_cmp_eq_u32 vcc, 0, v2", "s_waitcnt lgkmcnt(0)")
    G = Asm()
    for r in (WF0, WF0+1, WF1, WF1+1):
        G(f"v_cndmask_b32 v{r}, 0, v{r}, vcc")
    for nt in range(2):
        c = 240 + 4*nt
        G(f"v_and_b32 v{c+2}, 0xffff0000, v{(XF0,XF1)[nt]+1}", f"v_rcp_f32 v3, v{c+2}",
          f"v_mul_f32 v{c}, {fl(GA)}, v3", "v_mul_f32 v4, v3, v3", "v_mul_f32 v4, v4, v3", f"v_mul_f32 v{c+1}, {fl(GB)}, v4")
    A(*spread(M[14:], G.lines[:8]))
    X = [f"{M32} {vr(ACC(mt,nt),16)}, {vr((WF0,WF1)[mt],4)}, {vr((XF0,XF1)[nt],4)}, {vr(ACC(mt,nt),16)}" for mt in range(2) for nt in range(2)]
    A(*spread(X, G.lines[8:]))
    stamp(A, 2)
    A("s_cmp_ge_u32 s35, 27", "s_cbranch_scc1 Lp2g")
    A("s_waitcnt vmcnt(0)")
    chk_cleared(A, 254, 10)
    n = 0
    for half in range(2):
        for mt in range(2):
            for nt in range(2):
                c = 240 + 4*nt
                a0 = ACC(mt,nt) + 8*half
                t = 80 + (n % 2)*16; o = 112 + (n % 4)*4; n += 1
                P = range(4)
                for i in P: A(f"v_pk_mul_f32 {vr(t+2*i,2)}, {vr(a0+2*i,2)}, {vr(a0+2*i,2)}")
                for i in P: A(f"v_pk_fma_f32 {vr(t+2*i,2)}, {vr(t+2*i,2)}, {vr(c,2)}, {vr(c,2)} op_sel:[0,1,0] op_sel_hi:[1,1,0]")
                for i in P: A(f"v_pk_mul_f32 {vr(t+2*i,2)}, {vr(t+2*i,2)}, {vr(a0+2*i,2)}")
                for i in range(8): A(f"v_exp_f32 v{t+i}, v{t+i}")
                for i in P: A(f"v_pk_fma_f32 {vr(t+2*i,2)}, {vr(t+2*i,2)}, {vr(c+2,2)}, {vr(c+2,2)} op_sel:[0,0,0] op_sel_hi:[1,0,0]")
                for i in range(8): A(f"v_rcp_f32 v{t+i}, v{t+i}")
                for i in P: A(f"v_pk_mul_f32 {vr(t+2*i,2)}, {vr(t+2*i,2)}, {vr(a0+2*i,2)}")
                for i in P: A(f"v_cvt_pk_bf16_f32 v{o+i}, v{t+2*i}, v{t+2*i+1}")
                A(f"buffer_store_dwordx4 {vr(o,4)}, v9, s[24:27], s{44+mt*2+nt} offen offset:{half*2048} sc1")
                if n == OPT.get('efl', 7):
                    A(f"s_waitcnt vmcnt({n-4})", "s_barrier", "s_cmp_lg_u32 s28, 0", "s_cbranch_scc1 Lg1_nf", *set_flag(254, 11, "s48"), "Lg1_nf:")
    stamp(A, 3)
    A("s_cmp_lt_u32 s32, 20", "s_cbranch_scc1 Lg2c")
    A("s_waitcnt vmcnt(0)", "s_barrier", "s_cmp_lg_u32 s28, 0", "s_cbranch_scc1 Lp2", *set_flag(254, 11, "s48", 128), "s_branch Lp2")
    A("Lg2c:")

def p1(A):
    BC = lambda u: 16 + 8*u
    BS = lambda u: 20 + 8*u
    TW = 56
    AF = lambda p, u: 64 + p*20 + 4*u
    AP = lambda p: 104 + 8*p
    AQ = lambda p: 108 + 8*p
    OUT = lambda par, i: 120 + par*8 + i
    TMP = 136
    YF = lambda o, pl: 152 + (o*2+pl)*4
    FP = lambda nt, pl: 184 + (nt*3+pl)*4
    TA = 208; PK = 240
    FPIMG, DCT, SCR = 81920, 94208, 98304
    A("s_sub_u32 s29, s32, 28", "s_lshl_b32 s29, s29, 3", "s_add_u32 s29, s29, s31", "s_lshl_b32 s29, s29, 1")
    A("s_lshr_b32 s46, s28, 2", "s_add_u32 s47, s46, s29", "s_and_b32 s48, s28, 3", "s_lshl_b32 s34, s48, 9", "s_add_u32 s47, s47, s34",
      "s_mul_i32 s33, s47, 1280", "s_mul_i32 s34, s28, 10240", "s_mov_b32 s35, 81920")
    A("v_and_b32 v1, 15, v0", "v_lshrrev_b32 v2, 4, v0", "v_lshlrev_b32 v4, 2, v2", "v_xor_b32 v3, v1, v4", "v_mul_u32_u24 v4, s35, v2", "v_lshl_add_u32 v4, v3, 4, v4")
    A("s_waitcnt lgkmcnt(0)")
    srd(A, 12, 4, X_SZ); srd(A, 36, 6, T_SZ, T_OFF)
    for i in range(10):
        A(f"s_add_u32 m0, s34, {1024*i}", f"s_add_u32 s40, s33, {(i//5)*4*81920+(i%5)*256}", "buffer_load_dwordx4 v4, s[12:15], s40 offen lds")
    sync_srds(A)
    if OPT['mpf1']:
        srd(A, 16, 8, W1_SZ)
        A("s_lshl_b32 s40, s29, 2", "s_add_u32 s40, s40, s28", f"s_mul_i32 s40, s40, {68*128}", "v_lshl_add_u32 v3, v0, 7, s40",
          "buffer_load_dword v150, v3, s[16:19], 0 offen", "buffer_load_dword v151, v3, s[16:19], 0 offen offset:512")
    A("s_and_b32 s41, s28, 1", "s_add_u32 s41, s41, 4", "s_bfe_u32 s42, s28, 0x10001",
      "s_cmp_lt_u32 s28, 4", "s_cselect_b32 s43, s28, s41", "s_cselect_b32 s44, 0, s42", "s_cselect_b32 s45, 1, 0")
    A("v_lshl_add_u32 v8, v2, 6, s47", "v_cvt_f32_u32 v8, v8", f"v_mul_f32 v8, {fl(1/2048)}, v8", "v_cvt_f32_u32 v9, v1", "v_add_f32 v10, 0x41800000, v9")
    for tt in range(2):
        if tt: A(f"v_add_f32 v8, {fl(256/2048)}, v8")
        for nt in range(2):
            A(f"v_mul_f32 v12, v8, v{9+nt}", f"v_cos_f32 v{208+nt*2+tt}, v12", f"v_sin_f32 v{212+nt*2+tt}, v12")
    A("v_lshrrev_b32 v8, 5, v0", "v_mul_u32_u24 v9, 5120, v8", "v_add_u32 v9, s34, v9", "v_bfe_u32 v8, v0, 3, 2", "v_lshl_add_u32 v9, v8, 8, v9",
      "v_lshl_add_u32 v224, v1, 4, v9", "v_xor_b32 v225, 128, v224")
    A("v_mov_b32 v228, 0", "v_mov_b32 v229, 0", "v_mov_b32 v230, 0", "v_mov_b32 v231, 0", f"s_mov_b32 s49, {ONES}")
    A("s_mul_i32 s41, s46, 6144", "s_lshl_b32 s42, s48, 2", "s_add_u32 s41, s41, s42", f"s_add_u32 s41, s41, {FPIMG}", "v_lshl_add_u32 v226, v0, 4, s41",
      "s_lshl_b32 s41, s46, 6", "s_add_u32 s41, s41, s42", f"s_add_u32 s41, s41, {DCT}", "v_lshl_add_u32 v227, v2, 4, s41")
    A("s_lshl_b32 s41, s43, 4", "v_add_u32 v3, s41, v1", "v_cvt_f32_u32 v4, v3", f"v_mul_f32 v5, {fl(1/160)}, v4",
      "v_cvt_f32_u32 v6, v2", "v_mul_f32 v6, 4.0, v6", "v_mul_f32 v6, v6, v5")
    A("v_and_b32 v14, 1, v0", "v_mov_b32 v15, 0x80008000", "v_mul_lo_u32 v14, v14, v15")
    for u in range(5):
        for jp in range(2):
            for e in range(2):
                A(f"v_fmamk_f32 v{8+e}, v5, {fl(float(16*u+2*jp+e))}, v6")
            A("v_cos_f32 v10, v8", "v_cos_f32 v11, v9", "v_sin_f32 v12, v8", "v_sin_f32 v13, v9",
              f"v_cvt_pk_bf16_f32 v{BC(u)+jp}, v10, v11", f"v_cvt_pk_bf16_f32 v{BS(u)+jp}, -v12, -v13",
              f"v_xor_b32 v{BC(u)+2+jp}, v14, v{BC(u)+jp}", f"v_xor_b32 v{BS(u)+2+jp}, v14, v{BS(u)+jp}")
    for r in (1,2,3):
        A(f"v_mul_f32 v8, {fl(r/640)}, v4", f"v_cos_f32 v{TW+2*r-2}, v8", f"v_sin_f32 v{TW+2*r-1}, v8")
    A("v_and_b32 v8, 3, v0", "v_bfe_u32 v9, v0, 3, 1", "v_lshl_add_u32 v9, v2, 1, v9", "v_lshlrev_b32 v10, 2, v8", "v_xor_b32 v9, v9, v10",
      "v_lshlrev_b32 v10, 8, v8", "v_lshl_add_u32 v10, v9, 4, v10", "v_bfe_u32 v9, v0, 2, 1", "v_lshl_add_u32 v14, v9, 3, v10",
      "s_mul_i32 s41, s44, 40960", "v_add_u32 v14, s41, v14", "v_xor_b32 v15, 128, v14")
    A("s_mul_i32 s41, s44, 6144", f"s_add_u32 s41, s41, {FPIMG}", "v_lshl_add_u32 v7, v0, 4, s41",
      "s_lshl_b32 s41, s44, 6", f"s_add_u32 s41, s41, {DCT}", "v_lshl_add_u32 v62, v2, 4, s41",
      "v_lshrrev_b32 v8, 3, v0", "s_mov_b32 s41, 90112", "v_mul_lo_u32 v63, v8, s41", "v_and_b32 v9, 7, v0", "v_lshl_add_u32 v63, v9, 4, v63",
      "s_lshl_b32 s41, s28, 12", f"s_add_u32 s41, s41, {SCR}",
      "v_xor_b32 v10, v8, v9", "v_lshl_add_u32 v3, v8, 7, s41", "v_lshl_add_u32 v3, v10, 4, v3",
      "v_xor_b32 v10, v2, v9", "v_lshl_add_u32 v5, v1, 7, s41", "v_lshl_add_u32 v5, v10, 4, v5", "v_xor_b32 v6, 64, v5")
    if OPT['ppf']:
        A("s_load_dwordx4 s[24:27], s[0:1], 8", "s_load_dwordx2 s[16:17], s[0:1], 48",
          "s_mul_i32 s40, s29, 6", "s_add_u32 s40, s40, s28", "s_cmp_lt_u32 s28, 4", "s_cselect_b32 s41, 0, 4", "s_add_u32 s40, s40, s41",
          "s_lshl_b32 s41, s40, 13", "v_lshl_add_u32 v146, v0, 7, s41",
          "s_cmp_lt_u32 s29, 32", f"s_cselect_b32 s41, 0, {192*8192}", "v_subrev_u32 v147, s41, v146", "s_waitcnt lgkmcnt(0)",
          "s_cselect_b32 s20, s24, s26", "s_cselect_b32 s21, s25, s27", f"s_mov_b32 s22, {WF_SZ}", "s_mov_b32 s23, 0x00020000",
          f"s_mov_b32 s18, {W1_SZ}", "s_mov_b32 s19, 0x00020000")
    stamp(A, 1)
    A(f"s_waitcnt vmcnt({2 if OPT['mpf1'] else 0})")
    stamp(A, 2)
    for I in range(5):
        for ii in range(2):
            A(f"ds_read_b128 {vr(64+(I*2+ii)*4,4)}, v{224+ii} offset:{1024*I}")
    for I in range(5):
        A(f"s_waitcnt lgkmcnt({2*(4-I)})")
        for j in range(8):
            r = 64 + I*8 + j
            A(f"v_dot2c_f32_bf16 v{228+(j&1)}, s49, v{r}", f"v_dot2c_f32_bf16 v{230+(j&1)}, v{r}, v{r}")
    A("v_add_f32 v228, v228, v229", "v_add_f32 v230, v230, v231")
    for qp in ("quad_perm:[1,0,3,2]", "quad_perm:[2,3,0,1]", "row_half_mirror"):
        A(f"v_add_f32_dpp v228, v228, v228 {qp} row_mask:0xf bank_mask:0xf", f"v_add_f32_dpp v230, v230, v230 {qp} row_mask:0xf bank_mask:0xf")
    row_stats(A, 228, 230, 8, 9, 10, 11)
    A("v_cvt_pk_bf16_f32 v11, v11, v10", "v_lshlrev_b32 v8, 5, v2", "v_and_b32 v10, 0xffff0000, v11", "v_lshlrev_b32 v11, 16, v11", "v_rcp_f32 v11, v11",
      f"v_fmac_f32 v228, {fl(-640.0)}, v10")
    for tt in range(2):
        A(f"ds_bpermute_b32 v{232+tt}, v8, v11 offset:{128*tt}", f"ds_bpermute_b32 v{234+tt}, v8, v228 offset:{128*tt}")
    A("s_waitcnt lgkmcnt(0)")
    for nt in range(2):
        c = 208+nt*2; sn = 212+nt*2; o = 236 + nt*3
        for tt in range(2):
            A(f"v_mul_f32 v{c+tt}, v{c+tt}, v{232+tt}", f"v_mul_f32 v{sn+tt}, v{sn+tt}, v{232+tt}")
        A(f"v_cvt_pk_bf16_f32 v{o}, v{c}, v{c+1}", f"v_cvt_pk_bf16_f32 v{o+1}, v{sn}, v{sn+1}", f"v_cvt_pk_bf16_f32 v{o+2}, -v{sn}, -v{sn+1}")
        for pl in range(3):
            A(f"ds_write_b32 v226, v{o+pl} offset:{(nt*3+pl)*1024}")
    A("v_cvt_pk_bf16_f32 v8, v234, v235", "ds_write_b32 v227, v8")
    A("s_waitcnt lgkmcnt(0)", "s_barrier")
    stamp(A, 3)
    A("Lp1_unit:")
    stamp(A, 4)
    def reads(t):
        return [f"ds_read_b64_tr_b16 {vr(AF(t&1,u)+2*jh,2)}, v{14+((u+5*jh)&1)} offset:{t*5120+((u+5*jh)>>1)*1024}" for u in range(5) for jh in range(2)]
    def mf(t):
        L = []
        for u in range(5):
            for (acc, B) in ((AP(t&1), BC(u)), (AQ(t&1), BS(u))):
                L.append(f"{M16} {vr(acc,4)}, {vr(AF(t&1,u),4)}, {vr(B,4)}, {'0' if u==0 else vr(acc,4)}")
        return L
    def bfly(t):
        P = AP(t&1); Q = AQ(t&1); O = lambda i: OUT(t&1, i)
        c1,s1,c2,s2,c3,s3 = range(TW, TW+6)
        pr,pi,qr,qi,ar,ai,ur,ui,wr_,wi_ = range(TMP, TMP+10)
        L = [f"v_fma_f32 v{pr}, v{P+2}, v{c2}, v{P}", f"v_fma_f32 v{pi}, v{Q+2}, v{c2}, v{Q}",
             f"v_mul_f32 v{ar}, v{P+1}, v{c1}", f"v_mul_f32 v{ai}, v{Q+1}, v{c1}",
             f"v_fmac_f32 v{pr}, v{Q+2}, v{s2}", f"v_fma_f32 v{pi}, -v{P+2}, v{s2}, v{pi}",
             f"v_fmac_f32 v{ar}, v{Q+1}, v{s1}", f"v_fma_f32 v{ai}, -v{P+1}, v{s1}, v{ai}",
             f"v_fma_f32 v{qr}, 2.0, v{P}, -v{pr}", f"v_fma_f32 v{qi}, 2.0, v{Q}, -v{pi}",
             f"v_fma_f32 v{ur}, v{P+3}, v{c3}, v{ar}", f"v_fma_f32 v{ui}, v{Q+3}, v{c3}, v{ai}",
             f"v_fmac_f32 v{ur}, v{Q+3}, v{s3}", f"v_fma_f32 v{ui}, -v{P+3}, v{s3}, v{ui}",
             f"v_fma_f32 v{wr_}, 2.0, v{ar}, -v{ur}", f"v_fma_f32 v{wi_}, 2.0, v{ai}, -v{ui}",
             f"v_add_f32 v{O(0)}, v{pr}, v{ur}", f"v_add_f32 v{O(1)}, v{pi}, v{ui}",
             f"v_sub_f32 v{O(6)}, v{pr}, v{ur}", f"v_sub_f32 v{O(7)}, v{ui}, v{pi}",
             f"v_sub_f32 v{O(2)}, v{qr}, v{wi_}", f"v_add_f32 v{O(3)}, v{qi}, v{wr_}",
             f"v_add_f32 v{O(4)}, v{qr}, v{wi_}", f"v_sub_f32 v{O(5)}, v{qi}, v{wr_}"]
        if t & 1:
            for i in (0,1,6,7,2,3,4,5):
                n = '-' if i == 3 else ''
                L.append(f"v_cvt_pk_bf16_f32 v{YF(i>>1,i&1)+(t>>1)}, {n}v{OUT(0,i)}, {n}v{OUT(1,i)}")
        return L
    A(*reads(0))
    for t in range(9):
        if t < 8:
            A("s_waitcnt lgkmcnt(0)")
            fill = (reads(t+1) if t < 7 else [f"ds_read_b128 {vr(FP(nt,pl),4)}, v7 offset:{(nt*3+pl)*1024}" for nt in range(2) for pl in range(3)])
            fill = fill + (bfly(t-1) if t >= 1 else [])
            if OPT['ppf'] and t == 0: fill.append("buffer_load_dword v12, v146, s[16:19], 0 offen")
            if OPT['ppf'] and t == 4: fill.append("buffer_load_dword v13, v147, s[20:23], 0 offen")
            A(*spread(mf(t), fill))
        else:
            B = bfly(7)
            A(*B[:25])
            A("s_cmp_lg_u32 s43, 0", "s_cbranch_scc1 Lp1_nodc", "s_mov_b32 exec_lo, 0x10001", "s_mov_b32 exec_hi, 0x10001",
              f"ds_read_b128 {vr(YF(0,0),4)}, v62", "s_mov_b64 exec, -1", "Lp1_nodc:")
            A(*B[25:])
    A("s_add_u32 s41, s29, s44", "s_lshl_b32 s41, s41, 7", "s_lshl_b32 s42, s43, 13", "s_add_u32 s41, s41, s42")
    A("v_mov_b32 v150, 0", "buffer_load_dwordx2 v[148:149], v150, s[56:59], 0 offen sc1")
    A("s_waitcnt lgkmcnt(0)")
    stamp(A, 5)
    def s1m(kinds, base):
        L = []; n = 0
        for tile, o in enumerate(kinds):
            for nt in range(2):
                re = base + n*8; im = re + 4; n += 1
                L += [f"{M16} {vr(re,4)}, {vr(YF(o,0),4)}, {vr(FP(nt,0),4)}, 0", f"{M16} {vr(im,4)}, {vr(YF(o,1),4)}, {vr(FP(nt,0),4)}, 0",
                      f"{M16} {vr(re,4)}, {vr(YF(o,1),4)}, {vr(FP(nt,1),4)}, {vr(re,4)}", f"{M16} {vr(im,4)}, {vr(YF(o,0),4)}, {vr(FP(nt,2),4)}, {vr(im,4)}"]
        return L
    def s1w(base):
        L = []; n = 0
        for tile in range(2):
            for nt in range(2):
                re = base + n*8; pk = PK + n*4; n += 1
                L += [f"v_cvt_pk_bf16_f32 v{pk+j}, v{re+2*j}, v{re+2*j+1}" for j in range(4)]
                L.append(f"ds_write_b128 v{5+tile}, {vr(pk,4)} offset:{nt*2048}")
        L += [f"ds_read_b128 {vr(base+4*q,4)}, v3 offset:{q*1024}" for q in range(4)]
        return L
    def s1s(base, poff):
        L = []
        for q in range(4):
            L += [f"s_add_u32 s42, s41, {q*8*90112+poff}", f"s_waitcnt lgkmcnt({3-q})",
                  f"buffer_store_dwordx4 {vr(base+4*q,4)}, v63, s[36:39], s42 offen {OPT['sc_t']}"]
        return L
    TB_ = 64
    A(*s1m((0,2), TA))
    A("s_cmp_eq_u32 s43, 5", "s_cbranch_scc1 Lp1_b5")
    A(*spread(s1m((1,3), TB_), s1w(TA)))
    A(*s1s(TA, 0))
    A(*s1w(TB_))
    A(*s1s(TB_, 6*8192))
    A("s_cmp_eq_u32 s45, 0", "s_cbranch_scc1 Lp1_done")
    A("s_mov_b32 s45, 0", "s_mov_b32 s44, 1", "v_add_u32 v14, 40960, v14", "v_add_u32 v15, 40960, v15", "v_add_u32 v7, 6144, v7", "v_add_u32 v62, 64, v62", "v_add_u32 v146, 0x8000, v146", "v_add_u32 v147, 0x8000, v147", "s_branch Lp1_unit")
    A("Lp1_b5:", "s_nop 7")
    A(*s1w(TA))
    A(*s1s(TA, 0))
    A("Lp1_done:")
    stamp(A, 6)
    A("s_lshl_b32 s41, s29, 6", f"s_add_u32 s41, s41, {16*4096}", "v_lshrrev_b32 v147, 3, v0", "v_lshlrev_b32 v147, 12, v147", "v_and_b32 v146, 7, v0", "v_lshl_add_u32 v147, v146, 4, v147", "s_waitcnt vmcnt(0)")
    chk_cleared(A, 148, 150)
    A("v_mov_b32 v18, v148", "v_mov_b32 v19, v149", "v_mov_b32 v12, 0")
    A("s_barrier", "s_cmp_lg_u32 s28, 0", "s_cbranch_scc1 Lp2")
    A("v_mov_b32 v150, v148", "v_mov_b32 v151, v149", "buffer_store_dwordx4 v[148:151], v147, s[52:55], s41 offen sc1")

HK = [(4*c, 4*c+2) for c in range(7)] + [(4*c+1, 4*c+3) for c in range(6)] + [(25, None)]
def hk_mask(sp, upto):
    m = 0
    for j, (a, b) in enumerate(HK[:upto]):
        if upto == 14 and j < 6: continue
        for hs, x in enumerate((a, b)):
            if x is None: continue
            x = x + 28*sp
            if sp and j == 6 and hs == 1: x = 53
            if sp and j == 13: x = 27
            m |= 1 << x
    return m
def set_mask(A, upto):
    m0, m1 = hk_mask(0, upto), hk_mask(1, upto)
    A("s_cmp_eq_u32 s50, 0", f"s_mov_b32 s36, 0x{m0 & 0xffffffff:x}", f"s_mov_b32 s37, 0x{m0 >> 32:x}",
      f"s_cselect_b32 s36, s36, 0x{m1 & 0xffffffff:x}", f"s_cselect_b32 s37, s37, 0x{m1 >> 32:x}")
def poll_h(A, upto, first):
    _pl[0] += 1; n = _pl[0]
    if first: set_mask(A, upto)
    A("s_mov_b32 s3, 0")
    if not first: A(f"s_branch Lpc{n}")
    A(f"Lpl{n}:", "s_mov_b64 exec, s[36:37]", *pollop("0"), "s_mov_b64 exec, -1", "s_waitcnt vmcnt(0)", f"Lpc{n}:",
      "v_cmp_eq_u64 vcc, v[20:21], v[18:19]", "s_add_u32 s3, s3, 1", "s_nop 0", "s_and_b64 s[38:39], vcc, s[36:37]", "s_cmp_eq_u64 s[38:39], s[36:37]", f"s_cbranch_scc1 Lpd{n}",
      f"s_sleep {OPT.get('slp',4)}", f"s_cmp_lt_u32 s3, {SPIN_MAX}", f"s_cbranch_scc1 Lpl{n}", f"Lpd{n}:")

def g2_loader(A):
    NST = 14
    A("s_lshr_b32 s30, s32, 2", "s_and_b32 s50, s31, 1")
    A("s_lshl_b32 s34, s29, 2", "s_add_u32 s34, s34, s33", f"s_mul_i32 s34, s34, {108*1024}", "v_lshl_add_u32 v4, v0, 4, s34")
    A("v_lshrrev_b32 v3, 4, v0", "v_and_b32 v2, 15, v0", "v_lshlrev_b32 v5, 2, v3", "v_xor_b32 v2, v2, v5",
      "s_and_b32 s34, s33, 1", "s_lshl_b32 s34, s34, 5", "v_add_u32 v8, s34, v3", "v_mul_u32_u24 v8, 1280, v8",
      "s_lshl_b32 s34, s30, 8", "v_lshl_add_u32 v10, v2, 4, v8", "v_add_u32 v10, s34, v10")
    A("s_lshl_b32 s34, s29, 1", "s_lshr_b32 s35, s33, 1", "s_add_u32 s34, s34, s35", "s_lshl_b32 s34, s29, 12", "v_lshl_add_u32 v13, v0, 7, s34")
    A(f"s_mul_i32 s44, s50, {28*2048}", f"s_mul_i32 s45, s50, {14*81920}", f"s_mul_i32 s34, s35, 81920", "s_add_u32 s45, s45, s34")
    srd(A, 12, 6, H_SZ, H_OFF); srd(A, 16, 48, W1_SZ)
    def issue_w(st):
        slot = (st % RING) * 32768; a, b = HK[st]
        A(f"s_add_u32 s42, s45, {(a>>1)*81920+(a&1)*20480}")
        if st == 6:
            A("s_and_b32 s34, s50, s35", "s_cmp_eq_u32 s34, 1", f"s_cselect_b32 s42, {26*81920+20480}, s42")
        if st == 13:
            A("s_cmp_eq_u32 s50, 0", f"s_mov_b32 s42, {12*81920+20480}", f"s_cselect_b32 s42, s42, {13*81920+20480}", "s_cmp_eq_u32 s35, 0", "s_cselect_b32 s18, s18, 0")
        for q in range(4):
            A(f"s_add_u32 m0, s40, {slot + 16384 + q*1024}", "s_nop 0", f"buffer_load_dwordx4 v10, s[16:19], s42 offen lds")
            if q < 3: A(f"s_add_u32 s42, s42, {4*1280}")
        return 4
    def issue_h(st):
        slot = (st % RING) * 32768; a, b = HK[st]
        A(f"s_add_u32 s41, s44, {a*2048}", f"s_add_u32 m0, s40, {slot}")
        if st == 13: A("s_cmp_eq_u32 s50, 0", f"s_cselect_b32 s41, s41, {27*2048}")
        else: A(f"s_add_u32 s43, s44, {b*2048-2048}")
        if st == 6: A("s_cmp_eq_u32 s50, 0", f"s_cselect_b32 s43, s43, {53*2048-2048}")
        for q in range(2): A(f"buffer_load_dwordx4 v4, s[12:15], s41 offen offset:{q*1024} sc1 lds")
        if st == 13: return 2
        for q in range(2,4): A(f"buffer_load_dwordx4 v4, s[12:15], s43 offen offset:{q*1024} sc1 lds")
        return 4
    NW = OPT.get('nw', 2)
    EM = [sum(1 << (2*(7*sp+j)) for j in range(6)) for sp in range(2)]
    LM = [sum(1 << (2*(7*sp+j)+1) for j in range(7)) | (1 << (2*(7*sp+6))) | (1 << 13) for sp in range(2)]
    def setm(M):
        A("s_cmp_eq_u32 s50, 0", f"s_mov_b32 s36, 0x{M[0]:x}", f"s_cselect_b32 s36, s36, 0x{M[1]:x}", "s_mov_b32 s37, 0")
    def apoll(): A("s_mov_b64 exec, s[36:37]", *pollop("0"), "s_mov_b64 exec, -1")
    def settle():
        _pl[0] += 1; n = _pl[0]
        A("s_mov_b32 s3, 0", f"Len{n}:", "v_cmp_eq_u64 vcc, v[20:21], v[18:19]", "s_add_u32 s3, s3, 1", "s_nop 0", "s_andn2_b64 s[36:37], s[36:37], vcc", f"s_cbranch_scc0 Leo{n}",
          f"s_cmp_ge_u32 s3, {SPIN_MAX}", f"s_cbranch_scc1 Leo{n}")
        apoll()
        A("s_waitcnt vmcnt(0)", f"s_branch Len{n}", f"Leo{n}:")
    A("s_waitcnt vmcnt(1)")
    chk_cleared(A, 18, 12)
    setm(EM)
    A("s_barrier")
    stamp(A, 4)
    A("s_cmp_lg_u32 s28, 4", "s_cbranch_scc1 Lg2_n1"); apoll(); A("Lg2_n1:")
    for st in range(NW): issue_w(st)
    A("s_cmp_lg_u32 s28, 4", "s_cbranch_scc1 Lg2_n2", f"s_waitcnt vmcnt({4*NW})"); settle(); A("Lg2_n2:")
    A("s_barrier")
    stamp(A, 5)
    ops = ['w']*(4*NW)
    D = OPT.get('D2') or 2
    for st in range(NW): ops += [st]*issue_h(st)
    nxt = NW
    for st in range(NST):
        last = max(i for i, x in enumerate(ops) if x == st)
        if 6 - 2*D < st < 6 - D:
            A(f"s_waitcnt vmcnt({len(ops)-last})", "s_cmp_eq_u32 s28, 4", f"s_cbranch_scc1 Lg2_w{st}", f"s_waitcnt vmcnt({len(ops)-1-last})", f"Lg2_w{st}:")
        else:
            A(f"s_waitcnt vmcnt({len(ops)-1-last})")
        if st + D == 6:
            A("s_cmp_lg_u32 s28, 4", "s_cbranch_scc1 Lg2_n4"); settle(); A("Lg2_n4:")
        A("s_barrier")
        if st + 2*D == 6:
            setm(LM)
            A("s_cmp_lg_u32 s28, 4", "s_cbranch_scc1 Lg2_n3"); apoll(); A("Lg2_n3:")
        while nxt < NST and nxt <= st + D:
            ops += [nxt]*issue_h(nxt); ops += [nxt]*issue_w(nxt); nxt += 1
    if OPT['cpf']:
        A("s_lshl_b32 s34, s32, 2", "s_add_u32 s34, s34, s33", "s_cmp_ge_u32 s34, 1", "s_cbranch_scc1 Lk1_end")
        A("s_mov_b64 exec, 0x7ffffff")
        cpf(A, "k3_kernel", None, s=(36,38))
    A("s_branch Lk1_end")

def g2_compute(A):
    NST = 14
    XA, WA = 208, lambda mt: 209 + mt
    A("s_lshr_b32 s30, s32, 2", "s_and_b32 s50, s31, 1")
    A("s_lshl_b32 s35, s34, 13", f"v_lshl_add_u32 v{XA}, v0, 4, s35")
    A("v_bfe_u32 v4, v0, 2, 2", "v_lshl_add_u32 v5, v2, 2, v4", "v_lshlrev_b32 v5, 8, v5",
      "v_bfe_u32 v6, v0, 4, 1", "v_lshl_add_u32 v5, v6, 5, v5", "v_and_b32 v6, 3, v0", "v_lshl_add_u32 v5, v6, 3, v5",
      "s_lshl_b32 s35, s33, 1", "v_xor_b32 v6, s35, v4", f"v_lshl_add_u32 v{WA(0)}, v6, 6, v5", f"v_xor_b32 v{WA(1)}, 64, v{WA(0)}")
    srd(A, 24, 6, P_SZ, P_OFF)
    A("v_mov_b32 v240, v222", "v_mov_b32 v244, v223")
    for r in (241,242,243,245,246,247,249,250,251): A(f"v_mov_b32 v{r}, 0")
    A("v_cmp_gt_u32 vcc, 32, v0", "v_mov_b32 v5, 0x3f80", "s_nop 0", "v_cndmask_b32 v248, 0, v5, vcc")
    A("v_lshlrev_b32 v5, 9, v2", "v_lshl_add_u32 v7, v1, 3, v5",
      "s_lshl_b32 s40, s29, 2", "s_lshl_b32 s42, s34, 1", "s_add_u32 s40, s40, s42", "s_mul_i32 s40, s40, 10",
      "s_lshl_b32 s42, s30, 1", "s_add_u32 s40, s40, s42", "s_add_u32 s40, s40, s33", "s_lshl_b32 s40, s40, 12",
      f"s_mul_i32 s42, s50, {P_SZ//2}", "s_add_u32 s44, s40, s42", "s_add_u32 s45, s44, 40960")
    for mt in range(2):
        for nt in range(2):
            A(f"{M32} {vr(ACC(mt,nt),16)}, v[248:251], {vr(240+4*mt,4)}, 0")
    A("s_barrier", "s_waitcnt vmcnt(0)")
    base = [0]
    def reads(st):
        p = st & 1; slot = (st % RING) * 32768
        L = []
        nb = slot & ~0xffff
        if nb != base[0]:
            for r in range(208, 211): L.append(f"v_xor_b32 v{r}, 0x10000, v{r}")
            base[0] = nb
        so = slot - nb
        for kk in range(4 if st < 13 else 2):
            for mt in range(2):
                for jh in range(2):
                    L.append(f"ds_read_b64_tr_b16 {vr(FB(p,kk,2+mt)+2*jh,2)}, v{WA(mt)} offset:{so+16384+(16*kk+8*jh)*256}")
            for nt in range(2):
                L.append(f"ds_read_b128 {vr(FB(p,kk,nt),4)}, v{XA} offset:{so+nt*4096+kk*1024}")
        return L
    mm = lambda p, kk, mt, nt: f"{M32} {vr(ACC(mt,nt),16)}, {vr(FB(p,kk,nt),4)}, {vr(FB(p,kk,2+mt),4)}, {vr(ACC(mt,nt),16)}"
    def mfmas(st):
        return [mm(st&1, kk, mt, nt) for kk in range(4) for mt in range(2) for nt in range(2)]
    def hook(st):
        if st in (0,1,7,13): stamp(A, {0:4,1:5,7:6,13:7}[st])
        if st == 0: A("s_cmp_lg_u32 s28, 0", "s_cbranch_scc1 Lg2_nf", *set_flag(254, 11, "s48", 128), "Lg2_nf:")
    compute_loop(A, NST, reads, mfmas, lambda st: [], hook)
    p = (NST-1) & 1
    def outp(mt, nt):
        L = []
        for a in range(4):
            a0 = ACC(mt,nt) + 4*a; o = FB(1-p,0,0) + ((mt*2+nt)*4+a)*2
            L += [f"v_cvt_pk_bf16_f32 v{o}, v{a0}, v{a0+1}", f"v_cvt_pk_bf16_f32 v{o+1}, v{a0+2}, v{a0+3}",
                  f"buffer_store_dwordx2 {vr(o,2)}, v7, s[24:27], s{44+nt} offen offset:{a*1024+mt*256} {OPT['sc_p']}"]
        return L
    tiles = [(mt,nt) for mt in range(2) for nt in range(2)]
    for i, (mt,nt) in enumerate(tiles):
        A(*[mm(p, kk, mt, nt) for kk in range(2)])
        if i >= 2: A(*outp(*tiles[i-2]))
    A(*outp(*tiles[2])); A(*outp(*tiles[3]))
    A("s_branch Lk1_end")

def hgen(Hl, HF, tvar):
    Hl(f"s_lshl_b32 s33, s{tvar}, 4", "v_add_u32 v14, s33, v1", "v_cvt_f32_u32 v15, v14", f"v_mul_f32 v15, {fl(1/160)}, v15", "v_mul_f32 v4, v7, v15")
    for bb in range(5):
        for ep in range(2):
            for e in range(2):
                Hl(f"v_fmamk_f32 v{8+e}, v15, {fl(float(16*bb+2*ep+e))}, v4")
            Hl("v_cos_f32 v10, v8", "v_cos_f32 v11, v9", "v_sin_f32 v12, v8", "v_sin_f32 v13, v9")
            if bb == 0 and ep == 0:
                Hl("v_cmp_gt_u32 vcc, 16, v0", "v_mov_b32 v8, 0.5", "s_nop 0", "v_cndmask_b32 v10, v10, v8, vcc")
            Hl(f"v_cvt_pk_bf16_f32 v{HF(bb)+ep}, v10, v11", f"v_cvt_pk_bf16_f32 v{HF(bb)+2+ep}, -v12, -v13")
    Hl("v_and_b32 v8, 1, v14", "v_lshlrev_b32 v8, 15, v8", "v_or_b32 v8, 0x3f80, v8", f"v_cndmask_b32 v{HF(5)}, 0, v8, vcc",
       f"v_mov_b32 v{HF(5)+1}, 0", f"v_mov_b32 v{HF(5)+2}, 0", f"v_mov_b32 v{HF(5)+3}, 0")

def p2(A):
    C = lambda t, ks: vr(16 + (t*2+ks)*4, 4)
    S = lambda t, ks: vr(48 + (t*2+ks)*4, 4)
    WV = lambda tau, pl, t, e: 80 + tau*32 + pl*16 + t*4 + e
    TB = lambda tau, ks, pl: 144 + tau*24 + (ks*3+pl)*4
    XA = lambda tau, pl, t: 192 + tau*32 + pl*16 + t*4
    PK = 80
    WIMG = 32768
    stamp(A, 8)
    A("s_load_dwordx4 s[8:11], s[0:1], 8", "s_load_dwordx2 s[48:49], s[0:1], 48")
    A("s_sub_u32 s33, s32, 20", "s_mul_i32 s34, s33, 43", "s_lshr_b32 s34, s34, 7", "s_mul_i32 s35, s34, 3", "s_sub_u32 s45, s33, s35",
      "s_lshl_b32 s29, s31, 2", "s_add_u32 s29, s29, s34", "s_and_b32 s46, s28, 3")
    A("s_mov_b32 s34, 0x9a543210", "s_mov_b32 s35, 0x8876", "s_lshl_b32 s33, s45, 2", "s_add_u32 s33, s33, s46", "s_lshl_b32 s33, s33, 2",
      "s_lshr_b64 s[34:35], s[34:35], s33", "s_and_b32 s30, s34, 15")
    A("s_lshl_b32 s47, s45, 6", "s_cmp_eq_u32 s45, 2", "s_cselect_b32 s47, 113, s47")
    A("s_mul_i32 s43, s29, 90112", "s_lshl_b32 s34, s30, 13", "s_add_u32 s43, s43, s34", "s_lshr_b32 s34, s28, 2", "s_lshl_b32 s34, s34, 12",
      "s_add_u32 s43, s43, s34", "s_lshl_b32 s35, s46, 13", "s_add_u32 s44, s35, s34")
    A("v_lshrrev_b32 v4, 3, v0", "v_lshl_add_u32 v4, v4, 5, s29", "v_mul_u32_u24 v4, 642, v4", "v_and_b32 v5, 7, v0", "v_lshl_add_u32 v4, v5, 4, v4",
      "s_lshl_b32 s34, s47, 1", "s_bfe_u32 s36, s28, 0x10001", "s_mulk_i32 s36, 320", "s_add_u32 s34, s34, s36",
      "s_and_b32 s36, s28, 1", f"s_mul_i32 s36, s36, {32*20544}", "s_add_u32 s34, s34, s36", "v_add_u32 v4, s34, v4")
    A("s_waitcnt lgkmcnt(0)")
    srd(A, 12, 6, T_SZ, T_OFF); srd(A, 24, 6, U_SZ, U_OFF)
    A("s_cmp_lt_u32 s28, 4", "s_cselect_b32 s16, s8, s10", "s_cselect_b32 s17, s9, s11", f"s_mov_b32 s18, {WF_SZ}", "s_mov_b32 s19, 0x00020000")
    A("s_lshl_b32 s36, s28, 12")
    def wdma():
        for q in range(4):
            A(f"s_add_u32 m0, s36, {WIMG+1024*q}", f"s_mov_b32 s34, {q*8*20544}", "buffer_load_dwordx4 v4, s[16:19], s34 offen lds")
    A("s_cmp_lg_u32 s28, 4", "s_cbranch_scc1 Lp2_np")
    A("s_waitcnt vmcnt(0)", "v_mov_b32 v12, 0")
    chk_cleared(A, 18, 12)
    A("v_lshlrev_b32 v13, 7, v0", "s_lshl_b32 s37, s31, 12", f"s_add_u32 s37, s37, {16*4096}", "s_mov_b32 s3, 0", "s_mov_b32 s38, -1", "s_mov_b32 s39, 0")
    wdma()
    A("Lp2_poll:", "s_mov_b64 exec, s[38:39]", *pollop("s37"), "s_mov_b64 exec, -1", "s_waitcnt vmcnt(0)",
      "v_cmp_eq_u64 vcc, v[20:21], v[18:19]", "s_add_u32 s3, s3, 1", "s_nop 0", "s_andn2_b64 s[38:39], s[38:39], vcc",
      "s_cbranch_scc0 Lp2_hb", f"s_sleep {OPT.get('tslp', 4)}", f"s_cmp_lt_u32 s3, {SPIN_MAX}", "s_cbranch_scc1 Lp2_poll", "s_branch Lp2_hb")
    A("Lp2_np:")
    wdma()
    A("v_and_b32 v1, 15, v0", "v_lshrrev_b32 v2, 4, v0", "v_cvt_f32_u32 v7, v2", "v_mul_f32 v7, 4.0, v7")
    def tdma():
        A("s_mov_b32 m0, s44", "v_lshlrev_b32 v8, 4, v0")
        for i in range(4): A(f"buffer_load_dwordx4 v8, s[12:15], s43 offen offset:{1024*i} sc1 lds")
    A("s_cmp_lt_u32 s28, 4", "s_cbranch_scc1 Lp2_main")
    A("Lp2_hb:", "s_barrier")
    tdma()
    A("s_waitcnt vmcnt(0)", "s_barrier", "s_branch Lk1_end")
    A("Lp2_main:")
    A("v_cvt_f32_u32 v5, v1", f"v_mul_f32 v5, {fl(1/64)}, v5", "v_add_f32 v6, 0x3e800000, v5",
      "v_and_b32 v14, 1, v0", "v_mov_b32 v15, 0x80008000", "v_mul_lo_u32 v14, v14, v15", "v_xor_b32 v15, 0x80000000, v14")
    for t in range(2):
        for jp in range(4):
            for e in range(2):
                j = 2*jp+e
                A(f"v_add_f32 v{8+e}, {fl(float(16*(j>>2)+(j&3)))}, v7", f"v_mul_f32 v{8+e}, v{8+e}, v{5+t}")
            c0 = 16+t*8+jp; s0 = 48+t*8+jp
            A("v_cos_f32 v10, v8", "v_cos_f32 v11, v9", "v_sin_f32 v12, v8", "v_sin_f32 v13, v9",
              f"v_cvt_pk_bf16_f32 v{c0}, v10, v11", f"v_cvt_pk_bf16_f32 v{s0}, v12, v13")
            for b in (c0, s0):
                A(f"v_xor_b32 v{b+4}, v14, v{b}", f"v_xor_b32 v{b+16}, 0x80000000, v{b}", f"v_xor_b32 v{b+20}, v15, v{b}")
    A("v_lshrrev_b32 v5, 2, v0", "v_lshlrev_b32 v5, 7, v5", "v_and_b32 v7, 3, v0", "v_lshl_add_u32 v5, v7, 4, v5", "v_add_u32 v5, s35, v5",
      "v_lshrrev_b32 v8, 3, v0", "s_mov_b32 s33, 45056", "v_mul_lo_u32 v6, v8, s33", "v_and_b32 v9, 7, v0", "v_lshl_add_u32 v6, v9, 4, v6",
      "s_lshl_b32 s36, s30, 12", "s_lshl_b32 s33, s29, 7", "s_add_u32 s36, s36, s33",
      "v_xor_b32 v10, v8, v9", "v_lshl_add_u32 v3, v8, 7, s35", "v_lshl_add_u32 v3, v10, 4, v3",
      "v_xor_b32 v10, v2, v9", "v_lshl_add_u32 v7, v1, 7, s35", "v_lshl_add_u32 v7, v10, 4, v7")
    A("s_lshl_b32 s33, s30, 4", "v_add_u32 v8, s33, v1", "v_sub_u32 v9, 256, v8",
      "s_cmp_lt_u32 s30, 6", "s_cselect_b64 vcc, -1, 0", "v_cndmask_b32 v8, v9, v8, vcc", "v_subrev_u32 v8, s47, v8",
      "v_lshlrev_b32 v4, 9, v2", "v_lshl_add_u32 v4, v8, 1, v4")
    stamp(A, 9)
    A("s_barrier")
    stamp(A, 10)
    tdma()
    A("s_waitcnt vmcnt(0)", "s_barrier")
    stamp(A, 11)
    A("s_lshl_b32 s33, s45, 2", "s_add_u32 s33, s33, s46", "s_cmp_eq_u32 s33, 11", "s_cbranch_scc1 Lk1_end")
    def treads(tau):
        return [f"ds_read_b64_tr_b16 {vr(TB(tau,ks,pl)+2*jh,2)}, v5 offset:{(32*ks+16*jh)*128+tau*64+pl*8}" for ks in range(2) for pl in range(2) for jh in range(2)]
    def wreads(tau):
        return [f"ds_read_u16_d16_hi v{WV(tau,pl,t,e)}, v4 offset:{WIMG+(pl*2+tau)*8192+(16*t+e)*128}" for t in range(4) for e in range(4) for pl in range(2)]
    M = M16
    def st2(tau):
        L = []
        for t in range(4):
            re = vr(XA(tau,0,t),4); im = vr(XA(tau,1,t),4)
            for ks in range(2):
                tr = vr(TB(tau,ks,0),4); ti = vr(TB(tau,ks,1),4)
                L += [f"{M} {re}, {C(t,ks)}, {tr}, {'0' if ks==0 else re}", f"{M} {im}, {C(t,ks)}, {ti}, {'0' if ks==0 else im}",
                      f"{M} {re}, {S(t,ks)}, {ti}, {re}", f"{M} {im}, {S(t,ks)}, {vr(TB(tau,ks,2),4)}, {im}"]
        return L
    def wmul(tau):
        L = []
        for t in range(4):
            for e in range(4):
                xr = XA(tau,0,t)+e; xi = XA(tau,1,t)+e; wr = WV(tau,0,t,e); wi = WV(tau,1,t,e)
                L += [f"v_mul_f32 v{8+e}, v{xr}, v{wr}", f"v_mul_f32 v{12+e}, v{xr}, v{wi}",
                      f"v_fma_f32 v{8+e}, -v{xi}, v{wi}, v{8+e}", f"v_fmac_f32 v{12+e}, v{xi}, v{wr}"]
            for pl in range(2):
                d = TB(tau, t>>1, pl) + (t&1)*2
                L += [f"v_cvt_pk_bf16_f32 v{d}, v{8+4*pl}, v{9+4*pl}", f"v_cvt_pk_bf16_f32 v{d+1}, v{10+4*pl}, v{11+4*pl}"]
            d = TB(tau, t>>1, 2) + (t&1)*2
            L += [f"v_cvt_pk_bf16_f32 v{d}, -v12, -v13", f"v_cvt_pk_bf16_f32 v{d+1}, -v14, -v15"]
        return L
    def negT(tau):
        return [f"v_xor_b32 v{TB(tau,ks,2)+j}, 0x80008000, v{TB(tau,ks,0)+j}" for ks in range(2) for j in range(4)]
    def st3(tau):
        L = []
        for nt in range(4):
            re = vr(XA(tau,0,nt),4); im = vr(XA(tau,1,nt),4)
            for ks in range(2):
                xr = vr(TB(tau,ks,0),4); xi = vr(TB(tau,ks,1),4)
                L += [f"{M} {re}, {xr}, {C(nt,ks)}, {'0' if ks==0 else re}", f"{M} {im}, {xi}, {C(nt,ks)}, {'0' if ks==0 else im}",
                      f"{M} {re}, {vr(TB(tau,ks,2),4)}, {S(nt,ks)}, {re}", f"{M} {im}, {xr}, {S(nt,ks)}, {im}"]
        return L
    def outp(tau):
        L = []
        for nt in range(4):
            pk = PK + 4*nt + 16*tau; re = XA(tau,0,nt); im = XA(tau,1,nt)
            L += [f"v_cvt_pk_bf16_f32 v{pk}, v{re}, v{re+1}", f"v_cvt_pk_bf16_f32 v{pk+1}, v{re+2}, v{re+3}",
                  f"v_cvt_pk_bf16_f32 v{pk+2}, v{im}, v{im+1}", f"v_cvt_pk_bf16_f32 v{pk+3}, v{im+2}, v{im+3}",
                  f"ds_write_b128 v7, {vr(pk,4)} offset:{nt*2048}"]
        return L
    A(*treads(0)); A(*treads(1))
    A("s_waitcnt lgkmcnt(8)")
    A(*negT(0))
    A(*st2(0)[:8])
    A("s_waitcnt lgkmcnt(0)")
    A(*spread(st2(0)[8:], negT(1) + wreads(0)))
    A("s_waitcnt lgkmcnt(0)")
    A(*spread(st2(1), interleave(wmul(0), wreads(1), 2)))
    A("s_waitcnt lgkmcnt(0)")
    A(*spread(st3(0), wmul(1)))
    S3 = st3(1); O1 = outp(1)
    A(*spread(S3[:16], outp(0) + ["v_xor_b32 v7, 64, v7"]))
    rb = lambda nt: [f"ds_read_b128 {vr(112+8*nt+4*q,4)}, v3 offset:{nt*2048+q*1024}" for q in range(2)]
    stq = lambda nt: [x for q in range(2) for x in (f"s_add_u32 s37, s36, {(16*nt+8*q)*45056}", f"buffer_store_dwordx4 {vr(112+8*nt+4*q,4)}, v6, s[24:27], s37 offen {OPT['sc_u']}")]
    A(*spread(S3[16:24], O1[0:5] + rb(0)))
    A(*spread(S3[24:32], O1[5:10] + rb(1)))
    A(*O1[10:15]); A(*rb(2))
    A("s_waitcnt lgkmcnt(6)"); A(*stq(0))
    A(*O1[15:20]); A(*rb(3))
    A("s_waitcnt lgkmcnt(6)"); A(*stq(1))
    A("s_waitcnt lgkmcnt(3)"); A(*stq(2))
    A("s_waitcnt lgkmcnt(0)"); A(*stq(3))

def k3(A):
    A("k3_kernel:")
    A("s_cmp_ge_u32 s2, 256", "s_cbranch_scc1 Lk3_end_x")
    kstart(A)
    A("s_load_dwordx2 s[4:5], s[0:1], 0", "s_load_dwordx2 s[6:7], s[0:1], 64", "s_load_dwordx2 s[40:41], s[0:1], 80")
    A("v_lshrrev_b32 v1, 6, v0", "v_and_b32 v0, 63, v0", "v_readfirstlane_b32 s28, v1")
    A("s_and_b32 s31, s2, 7", "s_lshr_b32 s32, s2, 3")
    A("s_lshl_b32 s29, s31, 3", "s_lshr_b32 s33, s32, 2", "s_add_u32 s29, s29, s33", "s_and_b32 s30, s32, 1")
    A("v_lshlrev_b32 v3, 4, v0", "v_and_b32 v1, 15, v0", "v_lshrrev_b32 v2, 4, v0")
    A("s_lshl_b32 s33, s30, 10", "s_add_u32 s33, s33, s29", "v_lshl_add_u32 v5, v1, 6, s33")
    ZIMG = 49152
    M = M16
    A("s_cmp_ge_u32 s28, 6", "s_cbranch_scc1 Lk3_back")
    A("s_setprio 1")
    GC, GS, GN = 16, 20, 24
    TWc = lambda r: 28 + (r-1)*8
    TWs = lambda r: 32 + (r-1)*8
    UA = lambda ty, tau, pl: 52 + ((ty*2+tau)*2+pl)*4
    VA = lambda ty, tau, pl: 84 + ((ty*2+tau)*2+pl)*4
    TT = 116
    A("s_mul_i32 s33, s29, 45056", "s_lshl_b32 s34, s28, 12", "s_add_u32 s33, s33, s34", f"s_add_u32 s34, s33, {6*4096}",
      "s_lshl_b32 s35, s28, 13", "s_mov_b32 m0, s35",
      "s_cmp_eq_u32 s28, 5", "s_cselect_b32 s36, 0x80000000, 0", "v_or_b32 v4, s36, v3")
    A("s_waitcnt lgkmcnt(0)")
    srd(A, 12, 40, U_SZ, U_OFF)
    for i in range(4): A(f"buffer_load_dwordx4 v3, s[12:15], s33 offen offset:{1024*i} lds")
    A("s_add_u32 m0, s35, 4096", "s_nop 0")
    for i in range(4): A(f"buffer_load_dwordx4 v4, s[12:15], s34 offen offset:{1024*i} lds")
    SC = 2/(640*2048)
    A("v_cvt_f32_u32 v5, v5", f"v_mul_f32 v5, {fl(1/2048)}, v5", "v_cvt_f32_u32 v7, v2", "v_mul_f32 v7, 4.0, v7", f"s_mov_b32 s37, {fl(SC)}", "v_mul_f32 v6, v7, v5")
    for jp in range(4):
        for e in range(2):
            j = 2*jp+e
            A(f"v_fmamk_f32 v{8+e}, v5, {fl(float(16*(j>>2)+(j&3)))}, v6")
        A("v_cos_f32 v10, v8", "v_cos_f32 v11, v9", "v_sin_f32 v12, v8", "v_sin_f32 v13, v9")
        A(f"v_cvt_pk_bf16_f32 v{GC+jp}, v10, v11", f"v_cvt_pk_bf16_f32 v{GS+jp}, v12, v13", f"v_cvt_pk_bf16_f32 v{GN+jp}, -v12, -v13")
    A("v_lshrrev_b32 v5, 2, v0", "v_lshlrev_b32 v5, 7, v5", "v_and_b32 v8, 3, v0", "v_lshl_add_u32 v5, v8, 4, v5", "v_add_u32 v5, s35, v5")
    A("s_lshl_b32 s33, s28, 4", "v_cvt_f32_u32 v8, s33", "v_add_f32 v8, v8, v7")
    for e in range(4):
        A(f"v_add_f32 v9, {fl(float(e))}, v8")
        for r in (1,2,3):
            A(f"v_mul_f32 v10, {fl(r/640)}, v9", f"v_cos_f32 v{TWc(r)+e}, v10", f"v_sin_f32 v{TWs(r)+e}, v10")
    A("s_lshl_b32 s33, s28, 12", f"s_add_u32 s33, s33, {ZIMG}", "v_add_u32 v6, s33, v3")
    stamp(A, 1)
    A("s_waitcnt vmcnt(0)")
    stamp(A, 2)
    order = [(0,0),(1,1),(0,1),(1,0)]
    for ty, tau in order:
        for pl in range(2):
            for jh in range(2):
                A(f"ds_read_b64_tr_b16 {vr(UA(ty,tau,pl)+2*jh,2)}, v5 offset:{ty*4096+jh*2048+tau*64+pl*8}")
    for n, (ty, tau) in enumerate(order):
        re = vr(VA(ty,tau,0),4); im = vr(VA(ty,tau,1),4); ur = vr(UA(ty,tau,0),4); ui = vr(UA(ty,tau,1),4)
        A(f"s_waitcnt lgkmcnt({12-4*n})")
        A(f"{M} {re}, {ur}, {vr(GC,4)}, 0", f"{M} {im}, {ui}, {vr(GC,4)}, 0", f"{M} {re}, {ui}, {vr(GN,4)}, {re}", f"{M} {im}, {ur}, {vr(GS,4)}, {im}")
    def pk(op, d, a, b, c=None, nb=False, na=False):
        s = f"v_pk_{op}_f32 {vr(d,2)}, {vr(a,2)}, {vr(b,2)}" + (f", {vr(c,2)}" if c is not None else "")
        n = [int(na), int(nb)] + ([0] if c is not None else [])
        if na or nb: s += f" neg_lo:[{','.join(map(str,n))}] neg_hi:[{','.join(map(str,n))}]"
        return s
    Ar,Ai,Br,Bi,Dr,Di,Cr,Ci = [VA(ty,tau,pl) for ty in range(2) for tau in range(2) for pl in range(2)]
    pr,pi,qr,qi,ur,ui,wr,wi = [TT+4*i for i in range(8)]
    Z = lambda r, pl: 52 + (r*2+pl)*4
    for e in (0,2):
        A(pk('add',pr+e,Ar+e,Cr+e), pk('add',pi+e,Ai+e,Ci+e,nb=True), pk('add',qr+e,Ar+e,Cr+e,nb=True), pk('add',qi+e,Ai+e,Ci+e))
    for e in (0,2):
        A(pk('add',ur+e,Br+e,Dr+e), pk('add',ui+e,Bi+e,Di+e,nb=True), pk('add',wr+e,Br+e,Dr+e,nb=True), pk('add',wi+e,Bi+e,Di+e))
    b = lambda r, pl: 84 + (r*2+pl)*4
    for e in (0,2):
        A(pk('add',Z(0,0)+e,pr+e,ur+e), pk('add',Z(0,1)+e,pi+e,ui+e), pk('add',b(2,0)+e,pr+e,ur+e,nb=True), pk('add',b(2,1)+e,pi+e,ui+e,nb=True),
          pk('add',b(1,0)+e,qr+e,wi+e,nb=True), pk('add',b(1,1)+e,qi+e,wr+e), pk('add',b(3,0)+e,qr+e,wi+e), pk('add',b(3,1)+e,qi+e,wr+e,nb=True))
    for r in range(4):
        if r:
            for e in (0,2):
                A(pk('mul',Z(r,0)+e,b(r,0)+e,TWc(r)+e), pk('mul',Z(r,1)+e,b(r,0)+e,TWs(r)+e))
            for e in (0,2):
                A(pk('fma',Z(r,0)+e,b(r,1)+e,TWs(r)+e,Z(r,0)+e,na=True), pk('fma',Z(r,1)+e,b(r,1)+e,TWc(r)+e,Z(r,1)+e))
        o = TT + 4*r
        for j in range(4): A(f"v_cvt_pk_bf16_f32 v{o+j}, v{Z(r,0)+2*j}, v{Z(r,0)+2*j+1}")
        A(f"ds_write_b128 v6, {vr(o,4)} offset:{r*1024}")
    A("s_waitcnt lgkmcnt(0)")
    stamp(A, 3)
    A("s_barrier", "s_branch Lk3_end")
    A("Lk3_back:")
    HF = lambda bb: 16 + 4*bb
    XR, P0, P1 = 40, 48, 56
    GU = 64
    XU = 80
    ZF = lambda bb, r: 96 + ((bb % 3)*4+r)*4
    AC = lambda r: 144 + 4*r
    A("s_bfe_u32 s33, s32, 0x10001", "s_mul_i32 s33, s33, 5", "s_add_u32 s42, s33, s28", "s_sub_u32 s42, s42, 6")
    A("s_lshl_b32 s33, s30, 10", "s_add_u32 s33, s33, s29", "v_lshl_add_u32 v6, v2, 8, s33", "v_mul_u32_u24 v6, 1280, v6", "v_lshl_add_u32 v6, v1, 3, v6",
      "s_lshl_b32 s44, s42, 7", "s_add_u32 s45, s44, 81920", "s_add_u32 s46, s45, 81920", "s_add_u32 s47, s46, 81920", "v_lshlrev_b32 v5, 5, v0")
    A("s_mul_i32 s48, s29, 10", "s_add_u32 s48, s48, s42", "s_lshl_b32 s48, s48, 12", "s_lshl_b32 s34, s30, 11", "s_add_u32 s48, s48, s34",
      f"s_add_u32 s49, s48, {P_SZ//2}", "v_cvt_f32_u32 v7, v2", "v_mul_f32 v7, 4.0, v7")
    Hl = Asm(); hgen(Hl, HF, 42)
    n0 = OPT.get('k3d', 60)
    A(*Hl.lines[:n0])
    A("s_waitcnt lgkmcnt(0)")
    srd(A, 20, 40, P_SZ, P_OFF); srd(A, 16, 4, X_SZ); srd(A, 24, 6, X_SZ)
    for half in range(2):
        A(f"buffer_load_dwordx4 {vr(P0+4*half,4)}, v5, s[20:23], s48 offen offset:{16*half}",
          f"buffer_load_dwordx4 {vr(P1+4*half,4)}, v5, s[20:23], s49 offen offset:{16*half}")
    for e in range(4):
        A(f"buffer_load_dwordx2 {vr(XR+2*e,2)}, v6, s[16:19], s{44+e} offen")
    A(*Hl.lines[n0:])
    SC = 2/(640*2048)
    A(f"s_mov_b32 s36, {fl(-1.4426950408889634)}", f"s_mov_b32 s38, {fl(1/SC)}", f"v_add_u32 v4, {ZIMG}, v3")
    stamp(A, 1)
    def gpart(half):
        G = Asm(); g = GU + 8*half; t = XU
        G(f"s_waitcnt vmcnt({6-2*half})")
        for q in range(4):
            G(f"v_lshlrev_b32 v{g+2*q}, 16, v{P0+4*half+q}", f"v_and_b32 v{g+2*q+1}, 0xffff0000, v{P0+4*half+q}",
              f"v_lshlrev_b32 v{t+2*q}, 16, v{P1+4*half+q}", f"v_and_b32 v{t+2*q+1}, 0xffff0000, v{P1+4*half+q}")
        for i in range(8): G(f"v_add_f32 v{g+i}, v{g+i}, v{t+i}")
        for i in range(8): G(f"v_mul_f32 v{t+i}, s36, v{g+i}")
        for i in range(8): G(f"v_exp_f32 v{t+i}, v{t+i}")
        for i in range(8): G(f"v_fma_f32 v{t+i}, v{t+i}, s38, s38")
        for i in range(8): G(f"v_rcp_f32 v{t+i}, v{t+i}")
        for i in range(8): G(f"v_mul_f32 v{g+i}, v{g+i}, v{t+i}")
        return G.lines
    ng = OPT.get('k3g', 1)
    for half in range(ng): A(*gpart(half))
    stamp(A, 2)
    A("s_barrier")
    stamp(A, 3)
    def zr(bb): return [f"ds_read_b128 {vr(ZF(bb,r),4)}, v4 offset:{(bb*4+r)*1024}" for r in range(4)]
    for bb in range(3): A(*zr(bb))
    for bb in range(6):
        A(f"s_waitcnt lgkmcnt({min(8,4*(5-bb))})")
        for r in range(4):
            A(f"{M} {vr(AC(r),4)}, {vr(ZF(bb,r),4)}, {vr(HF(bb),4)}, {'0' if bb==0 else vr(AC(r),4)}")
        if bb < 3: A(*zr(bb+3))
    for half in range(ng, 2): A(*gpart(half))
    A("s_waitcnt vmcnt(0)")
    for q in range(8):
        A(f"v_lshlrev_b32 v{XU+2*q}, 16, v{XR+q}", f"v_and_b32 v{XU+2*q+1}, 0xffff0000, v{XR+q}")
    for e in range(4):
        for r in range(4):
            A(f"v_fmac_f32 v{XU+4*e+r}, v{AC(r)+e}, v{GU+4*r+e}")
        for q in (2*e, 2*e+1):
            A(f"v_cvt_pk_bf16_f32 v{XR+q}, v{XU+2*q}, v{XU+2*q+1}")
        A(f"buffer_store_dwordx2 {vr(XR+2*e,2)}, v6, s[24:27], s{44+e} offen {OPT['sc_o']}")
    kend(A, 2, "Lk3_end")

def kd(name, vgpr, sgpr=100, accum=None):
    accum = accum or min(256, (vgpr+3)//4*4)
    return f""".amdhsa_kernel {name}
  .amdhsa_next_free_vgpr {vgpr}
  .amdhsa_next_free_sgpr {sgpr}
  .amdhsa_accum_offset {accum}
  .amdhsa_group_segment_fixed_size 0
  .amdhsa_kernarg_size 88
  .amdhsa_user_sgpr_count 2
  .amdhsa_user_sgpr_kernarg_segment_ptr 1
  .amdhsa_system_sgpr_workgroup_id_x 1
.end_amdhsa_kernel
"""

def build(kernels):
    hdr = open(f"cdna_kernels/{NAME}.s.ref").read().split("; Override")[0]
    out = hdr
    for (name, fn, grid, block, lds, vg) in kernels:
        out += f"; @launch kernel={name} grid=({grid},1,1) block=({block},1,1) lds={lds}\n"
    out += '.amdgcn_target "amdgcn-amd-amdhsa--gfx950"\n.text\n'
    seen = []
    for (name, fn, grid, block, lds, vg) in kernels:
        if name in seen: continue
        seen.append(name)
        A = Asm(); fn(A)
        out += f".globl {name}\n.p2align 8\n.type {name},@function\n" + A.text()
    out += '.section .rodata,"a"\n'
    seen = []
    for (name, fn, grid, block, lds, vg) in kernels:
        if name in seen: continue
        seen.append(name)
        out += ".p2align 6\n" + kd(name, vg)
    return out

KS = [("k1_kernel", k1, 256, 512, 133120, 256), ("k3_kernel", k3, 256, 704, 98304, 160)]

if __name__ == '__main__':
    DIAG = len(sys.argv) > 2 and sys.argv[2] == 'diag'
    for kv in sys.argv[3:]:
        k, v = kv.split('='); OPT[k] = eval(v)
    open(sys.argv[1] if len(sys.argv) > 1 else 'cur.s', 'w').write(build(KS))
```

```python
import sys, importlib
g = importlib.import_module(sys.argv[1])
for kv in sys.argv[3:]:
    k, v = kv.split('='); g.OPT[k] = eval(v)
def kstart(A):
    A("s_memrealtime s[60:61]")
def kend(A, kid, lab):
    A(f"{lab}:")
    A("s_waitcnt vmcnt(0) lgkmcnt(0)", "s_memrealtime s[86:87]", "s_waitcnt lgkmcnt(0)")
    A(f"s_add_u32 s92, s6, 0x2000000", "s_addc_u32 s93, s7, 0", "s_mov_b32 s94, 0x1000000", "s_mov_b32 s95, 0x00020000")
    A("s_lshl_b32 s96, s28, 8", "s_add_u32 s96, s96, s2", "s_lshl_b32 s96, s96, 3", "s_mov_b64 exec, 1", "v_mov_b32 v1, 0", "v_mov_b32 v4, s60", "v_mov_b32 v5, s86",
      "buffer_store_dwordx2 v[4:5], v1, s[92:95], s96 offen")
    A("s_endpgm", f"{lab}_x:", "s_endpgm")
g.kstart = kstart; g.kend = kend
def k4(A):
    A("k4_kernel:", "s_cmp_lg_u32 s2, 0", "s_cbranch_scc1 Lk4_end")
    A("s_load_dwordx2 s[4:5], s[0:1], 80", "s_waitcnt lgkmcnt(0)")
    A("s_add_u32 s8, s4, 0x2000000", "s_addc_u32 s9, s5, 0", "s_mov_b32 s10, 0x1000000", "s_mov_b32 s11, 0x00020000")
    A("v_lshlrev_b32 v1, 3, v0")
    for q in range(32):
        A(f"s_movk_i32 s12, {q*512}", f"buffer_load_dwordx2 v[{4+2*q}:{5+2*q}], v1, s[8:11], s12 offen")
    A("s_waitcnt vmcnt(0)", "v_readfirstlane_b32 s20, v4", "s_sub_u32 s20, s20, 100000")
    for r in range(4, 68): A(f"v_subrev_u32 v{r}, s20, v{r}")
    for q in range(1, 32): A(f"v_min_u32 v4, v4, v{4+2*q}", f"v_max_u32 v5, v5, v{5+2*q}")
    A("s_mov_b32 s21, -1", "s_mov_b32 s22, 0")
    for l in range(64):
        A(f"v_readlane_b32 s23, v4, {l}", f"v_readlane_b32 s24, v5, {l}", "s_nop 0", "s_min_u32 s21, s21, s23", "s_max_u32 s22, s22, s24")
    A("s_sub_u32 s33, s22, s21", "s_min_u32 s33, s33, 5000", "s_mul_i32 s33, s33, 10", "s_add_u32 s33, s33, 10000", "s_add_u32 s21, s21, s20", "s_mov_b32 s25, 0")
    A("Lspin:", "s_memrealtime s[62:63]", "s_waitcnt lgkmcnt(0)", "s_add_u32 s25, s25, 1", "s_cmp_gt_u32 s25, 0x100000", "s_cbranch_scc1 Lk4_end",
      "s_sub_u32 s34, s62, s21", "s_cmp_lt_u32 s34, s33", "s_cbranch_scc1 Lspin")
    A("Lk4_end:", "s_endpgm")
open(sys.argv[2],'w').write(g.build(g.KS + [("k4_kernel", k4, 1, 64, 0, 72)]))
```

```python
import sys, importlib
g = importlib.import_module(sys.argv[1])
for kv in sys.argv[3:]:
    k, v = kv.split('='); g.OPT[k] = eval(v)
def kstart(A):
    A("s_memrealtime s[60:61]")
    if g.OPT.get('lt'): A("s_memrealtime s[86:87]")
def kend(A, kid, lab):
    A(f"{lab}:")
    A("s_waitcnt vmcnt(0) lgkmcnt(0)")
    if not g.OPT.get('lt'): A("s_memrealtime s[86:87]", "s_waitcnt lgkmcnt(0)")
    A(f"s_add_u32 s92, s6, 0x2000000", "s_addc_u32 s93, s7, 0", "s_mov_b32 s94, 0x1000000", "s_mov_b32 s95, 0x00020000")
    A("s_lshl_b32 s96, s28, 8", "s_add_u32 s96, s96, s2", "s_lshl_b32 s96, s96, 3", "s_mov_b64 exec, 1", "v_mov_b32 v1, 0", "v_mov_b32 v4, s60", "v_mov_b32 v5, s86",
      "buffer_store_dwordx2 v[4:5], v1, s[92:95], s96 offen")
    A("s_endpgm", f"{lab}_x:", "s_endpgm")
_c = [0]
def stamp(A, k):
    _c[0] += 1
    if g.OPT.get('lt') == _c[0]: A("s_memrealtime s[86:87]", "s_waitcnt lgkmcnt(0)")
g.stamp = stamp
g.kstart = kstart; g.kend = kend
def k4(A):
    A("k4_kernel:", "s_cmp_lg_u32 s2, 0", "s_cbranch_scc1 Lk4_end")
    A("s_load_dwordx2 s[4:5], s[0:1], 80", "s_waitcnt lgkmcnt(0)")
    A("s_add_u32 s8, s4, 0x2000000", "s_addc_u32 s9, s5, 0", "s_mov_b32 s10, 0x1000000", "s_mov_b32 s11, 0x00020000")
    A("v_lshlrev_b32 v1, 3, v0")
    for q in range(32):
        A(f"s_movk_i32 s12, {q*512}", f"buffer_load_dwordx2 v[{4+2*q}:{5+2*q}], v1, s[8:11], s12 offen")
    A("s_waitcnt vmcnt(0)", "v_readfirstlane_b32 s20, v4", "s_sub_u32 s20, s20, 100000")
    for r in range(4, 68): A(f"v_subrev_u32 v{r}, s20, v{r}")
    for q in range(1, 32): A(f"v_min_u32 v4, v4, v{4+2*q}", f"v_max_u32 v5, v5, v{5+2*q}")
    A("s_mov_b32 s21, -1", "s_mov_b32 s22, 0")
    for l in range(64):
        A(f"v_readlane_b32 s23, v4, {l}", f"v_readlane_b32 s24, v5, {l}", "s_nop 0", "s_min_u32 s21, s21, s23", "s_max_u32 s22, s22, s24")
    A("s_sub_u32 s33, s22, s21", "s_min_u32 s33, s33, 5000", "s_mul_i32 s33, s33, 10", "s_add_u32 s33, s33, 10000", "s_add_u32 s21, s21, s20", "s_mov_b32 s25, 0")
    A("Lspin:", "s_memrealtime s[62:63]", "s_waitcnt lgkmcnt(0)", "s_add_u32 s25, s25, 1", "s_cmp_gt_u32 s25, 0x100000", "s_cbranch_scc1 Lk4_end",
      "s_sub_u32 s34, s62, s21", "s_cmp_lt_u32 s34, s33", "s_cbranch_scc1 Lspin")
    A("Lk4_end:", "s_endpgm")
open(sys.argv[2],'w').write(g.build(g.KS + [("k4_kernel", k4, 1, 64, 0, 72)]))
```
